```python
import torch

def _softmax(x, axis=-1):
    return torch.softmax(x, dim=axis)
def _gelu(x):
    return torch.nn.functional.gelu(x, approximate="tanh")
def _silu(x):
    return torch.nn.functional.silu(x)
def _sigmoid(x):
    return torch.sigmoid(x)
def _layernorm(x, axis=-1, eps=1e-5):
    m = x.mean(dim=axis, keepdim=True)
    v = x.var(dim=axis, keepdim=True, unbiased=False)
    return (x - m) / torch.sqrt(v + eps)
def _scatter_add(tgt, idx, src, axis=0):
    return tgt.clone().index_add_(axis, idx, src)
def _segment_sum(src, seg, n):
    out = torch.zeros((n,) + src.shape[1:], dtype=src.dtype)
    return out.index_add_(0, seg, src)
def _pad(x, pw):
    flat = tuple(v for pair in reversed(pw) for v in pair)
    return torch.nn.functional.pad(x, flat)

kernel_name = 'gated_mix__grouped_kv_mqa__glu_gated_geglu__prompt'

def setup_inputs():

    _w = (lambda a: (lambda t: t.to(torch.bfloat16) if t.is_floating_point() else t)(torch.as_tensor(a)))
    def _A_setup():
        B, S, D, H = 1, 2048, 576, 32
        Dh = D // H
        return {
            "x": _w((lambda *s: torch.randn(*s, dtype=torch.bfloat16) * 0.05)(B, S, D)),
            "wq": _w((lambda *s: torch.randn(*s, dtype=torch.bfloat16) * 0.8)(D, H * Dh)),
            "wk": _w((lambda *s: torch.randn(*s, dtype=torch.bfloat16) * 0.8)(D, Dh)),
            "wv": _w((lambda *s: torch.randn(*s, dtype=torch.bfloat16) * 0.05)(D, Dh)),
            "wo": _w((lambda *s: torch.randn(*s, dtype=torch.bfloat16) * 0.05)(H * Dh, D)),
        }
    _A_in = _A_setup()

    def _B_setup():
        B, S, Dm, Df = 1, 2048, 576, 4608
        return {
            "x": _w((lambda *s: torch.randn(*s, dtype=torch.bfloat16) * 0.05)(B, S, Dm)),
            "w_gate": _w((lambda *s: torch.randn(*s, dtype=torch.bfloat16) * 0.8)(Dm, Df) * (Dm ** -0.5)),
            "w_up": _w((lambda *s: torch.randn(*s, dtype=torch.bfloat16) * 0.8)(Dm, Df) * (Dm ** -0.5)),
            "w_down": _w((lambda *s: torch.randn(*s, dtype=torch.bfloat16) * 0.8)(Df, Dm) * (Df ** -0.5)),
        }
    _B_in = _B_setup()

    return {
        "A_x": _A_in["x"],
        "A_wq": _A_in["wq"],
        "A_wk": _A_in["wk"],
        "A_wv": _A_in["wv"],
        "A_wo": _A_in["wo"],
        "B_x": _B_in["x"],
        "B_w_gate": _B_in["w_gate"],
        "B_w_up": _B_in["w_up"],
        "B_w_down": _B_in["w_down"],
        "gate_w": _w((lambda *s: torch.randn(*s, dtype=torch.bfloat16) * 0.05)(576) * 16.0),
    }

def reference(A_x, A_wq, A_wk, A_wv, A_wo, B_x, B_w_gate, B_w_up, B_w_down, gate_w):
    def _A_ref(x, wq, wk, wv, wo):
        B, S, D = x.shape
        H = 32
        Dh = D // H
        q = (lambda x, *d: x.permute(*d))((x @ wq).reshape(B, S, H, Dh), 0, 2, 1, 3)
        k = x @ wk
        v = x @ wv
        scores = torch.einsum("bhqd,bkd->bhqk", q, k) * (Dh ** -0.5)
        p = _softmax(scores, axis=-1)
        o = torch.einsum("bhqk,bkd->bhqd", p, v)
        return (lambda x, *d: x.permute(*d))(o, 0, 2, 1, 3).reshape(B, S, H * Dh) @ wo

    def _B_ref(x, w_gate, w_up, w_down):
        g = torch.einsum("bsd,df->bsf", x, w_gate)
        u = torch.einsum("bsd,df->bsf", x, w_up)
        h = _gelu(g) * u
        return torch.einsum("bsf,fd->bsd", h, w_down)

    x = A_x
    g = _sigmoid((x * gate_w).sum(-1, keepdims=True))
    a = _A_ref(x, A_wq, A_wk, A_wv, A_wo)
    b = _B_ref(x, B_w_gate, B_w_up, B_w_down)
    return g * a + (1 - g) * b
```

```python
import math, struct

def f2u(x):
    return struct.unpack("<I", struct.pack("<f", x))[0]

class Asm:
    def __init__(self):
        self.lines = []
    def __call__(self, s):
        for l in s.split("\n"):
            l = l.strip()
            if not l: continue
            if l.endswith(":") or l.startswith("."):
                self.lines.append(l)
            else:
                self.lines.append("    " + l)
    def many(self, ls):
        for l in ls: self(l)
    def text(self):
        return "\n".join(self.lines) + "\n"

def vr(b, n=1, f="v"):
    return f"{f}{b}" if n == 1 else f"{f}[{b}:{b+n-1}]"
def sr(b, n=1):
    return vr(b, n, "s")
def ar(b, n=1):
    return vr(b, n, "a")

def mfma16(d, a, b, c):
    return f"v_mfma_f32_32x32x16_bf16 {d}, {a}, {b}, {c}"
def mfma8(d, a, b, c):
    return f"v_mfma_f32_32x32x8_bf16 {d}, {a}, {b}, {c}"

def cost(ins):
    op = ins.split()[0]
    if op.startswith("v_mfma_f32_32x32x16"): return 8
    if op.startswith("v_mfma"): return 4
    if op in ("v_exp_f32", "v_rcp_f32", "v_log_f32", "v_rsq_f32", "v_sqrt_f32"): return 8
    if op.startswith("buffer_"): return 8
    return 4

class Counter:
    def __init__(self, maxv, init=()):
        self.ops = list(init); self.maxv = maxv
    def issue(self, tag): self.ops.append(tag)
    def need(self, tag):
        idx = max(i for i, t in enumerate(self.ops) if t == tag)
        return min(len(self.ops) - 1 - idx, self.maxv)

HO_G   = 324 * 2048
WS_HO  = 0
WS_WP  = 0x1500000
WP_T   = 324 * 3072
WS_Q   = 0x1B00000
WS_KV  = 0x1E00000
KV_GS  = 9600
KV_K2  = 4096
KV_V   = 4096 + 528
KV_VT  = 1216
KV_VF  = 608
WS_G   = 0x1E40000
WS_FL  = 0x1E50000
WS_PART= 0x1F00000
WS_SIZE= 0x2600000
QSCALE = (18 ** -0.5) * math.log2(math.e)
GC1 = -2.0 * math.sqrt(2.0 / math.pi) * math.log2(math.e)
GC2 = GC1 * 0.044715

STAMPS = False
WS_ST = 0x2400000
vStamp = 255
def stamp(A, idx, real=False):
    import common
    if not common.STAMPS or real: return
    A(f"s_memtime s[100:101]")
    A(f"s_memrealtime s[30:31]")
    A("s_waitcnt lgkmcnt(0)")
    A(f"v_writelane_b32 v{vStamp}, s100, {idx}")
    A(f"v_writelane_b32 v{vStamp-2}, s30, {idx}")
def stamp_flush(A, srd, vlane, swave, base=0):
    import common
    if not common.STAMPS: return
    A(f"""
    s_lshl_b32 s100, s2, 2
    s_add_u32 s100, s100, s{swave}
    s_lshl_b32 s100, s100, 9
    s_add_u32 s100, s100, {WS_ST + base}
    v_lshlrev_b32 v254, 2, v{vlane}
    buffer_store_dword v{vStamp}, v254, s[{srd}:{srd+3}], s100 offen
    buffer_store_dword v{vStamp-2}, v254, s[{srd}:{srd+3}], s100 offen offset:256
""")

def job_table():
    ranges = [list(range(14*r, 14*r+14)) for r in range(4)] + [list(range(56, 72))]
    order = sorted(range(72), key=lambda f: (next((rg.index(f) for rg in ranges if f in rg)), f))
    special = {3: [77, 72, 73], 7: [74, 75, 76]}
    tab = {g: list(special.get(g, [])) for g in range(16)}
    it = iter(order)
    for rnd in range(5):
        for g in range(16):
            if g in special:
                if rnd == 3: tab[g].append(next(it))
            else:
                tab[g].append(next(it))
    rounds = {}
    for g in range(16):
        for r, j in enumerate(tab[g]):
            if j < 72: rounds[j] = r
    out = []
    for g in range(16):
        b = [0xFE] + tab[g] + [0xFF] * 8
        out.append(b[:8])
    return out, rounds, ranges

if __name__ == "__main__":
    t, rounds, ranges = job_table()
    for g, b in enumerate(t): print(g, b)
    for rg in ranges: print([rounds[f] for f in rg])
```

```python
from common import *
import common

S_X, S_WQ, S_WK, S_WV, S_WO, S_WG, S_WU, S_WD, S_GW, S_OUT, S_DBG, S_WS = 4, 6, 8, 10, 12, 16, 18, 20, 22, 24, 26, 28
sW, sWn, nOff, sX, sWS, sH, sP, sPD = 32, 36, 39, 40, 44, 48, 52, 56
sWave, sOff, sStep, nStep, sHoff, sHbase, sTab, sM0, sRowOff = 60, 61, 62, 63, 64, 65, 66, 68, 69
sPs0, sPs1, sPd0, sPd1, sXbase = 70, 71, 72, 73, 74
sT = 76
sLink, sLink2, sSpecial, sTb, sKVoff, sC2, sFb, sLvl, sPar = 82, 84, 86, 87, 88, 89, 90, 92, 93
sXq, sQi = 94, 95
sDB = 96
SRD3 = 0x00020000
WG_SIZE = 576 * 9216

ACC = [0, 64]
AF = 128
XT = 152
GT = 184
PK = 200
PF = 208
vTR = 224
vDma, vNext, vF, vLane16, vC1, vPsrc, vPtr, vR8, vC16, vFlagOff, vPoll, vLane, vLvl = range(230, 243)
vT = 244

def xreg(tb2, ks):
    i = ks * 2 + tb2
    return ar(4 * i, 4) if i < 64 else vr(XT + 4 * (i - 64), 4)

def tr_reads(ks, region):
    out = []
    third = min(region // 12, 2)
    for r in range(4):
        a, rr = r // 2, r % 2
        reg = AF + (ks % 3) * 8 + a * 4 + rr * 2
        off = (region - third * 12) * 4096 + rr * 512
        out.append(f"ds_read_b64_tr_b16 {vr(reg,2)}, v{vTR + third*2 + a} offset:{off}")
    return out

def gelu_ops(accset, sc1):
    ops = []
    for blk in range(4):
        g = ACC[accset] + 16 * blk; u = g + 8
        t = GT + 8 * (blk % 2); pk = PK + 4 * (blk % 2)
        ops += [f"v_mul_f32 v{t+i}, v{g+i}, v{g+i}" for i in range(8)]
        ops += [f"v_fma_f32 v{t+i}, v{t+i}, s{sC2}, v{vC1}" for i in range(8)]
        ops += [f"v_mul_f32 v{t+i}, v{t+i}, v{g+i}" for i in range(8)]
        for i in range(8):
            ops += [f"v_exp_f32 v{t+i}, v{t+i}", f"v_mul_f32 v{g+i}, v{g+i}, v{u+i}"]
        ops += [f"v_add_f32 v{t+i}, 1.0, v{t+i}" for i in range(8)]
        ops += [f"v_rcp_f32 v{t+i}, v{t+i}" for i in range(8)]
        ops += [f"v_mul_f32 v{g+i}, v{g+i}, v{t+i}" for i in range(8)]
        ops += [f"v_cvt_pk_bf16_f32 v{pk+i}, v{g+2*i}, v{g+2*i+1}" for i in range(4)]
        ops += [f"buffer_store_dwordx4 {vr(pk,4)}, v{vLane16}, {sr(sH,4)}, s{sHoff} offen offset:{blk*1024}{sc1}"]
    return ops

def w_dma(region):
    return [f"s_add_u32 m0, s{sM0}, {region*4096}",
            f"s_add_u32 s{sOff}, s{sOff}, s{sStep}",
            f"buffer_load_dwordx4 v{vDma}, {sr(sW,4)}, s{sOff} offen sc1 lds"]

def switch_ops():
    return [[f"s_mov_b64 {sr(sW,2)}, {sr(sWn,2)}", f"s_mov_b32 s{sW+2}, s{sWn+2}", f"s_mov_b32 s{sStep}, s{nStep}"],
            [f"s_sub_u32 s{sOff}, s{nOff}, s{nStep}", f"v_mov_b32 v{vDma}, v{vNext}"]]

def next_ops(kvsize):
    t = sT
    return [[f"s_bfe_u32 s{t}, s{sTab}, 0x80018", f"s_lshl_b32 s{t+1}, s{t}, 7", f"s_add_u32 s{t+1}, s{t+1}, s{sRowOff}"],
            [f"s_cmp_eq_u32 s{t}, 0xff", f"s_cselect_b32 s{nOff}, s{sKVoff}, s{t+1}", f"s_cselect_b64 {sr(sWn,2)}, {sr(S_WS,2)}, {sr(sFb,2)}"],
            [f"s_mov_b32 s{t+1}, {WG_SIZE}", f"s_cmp_eq_u32 s{t}, 0xff", f"s_cselect_b32 s{sWn+2}, {kvsize}, s{t+1}"],
            [f"s_mov_b32 s{t+1}, {16*9216}", f"s_cmp_eq_u32 s{t}, 0xff", f"s_cselect_b32 s{nStep}, 0x1000, s{t+1}"],
            [f"s_cmp_eq_u32 s{t}, 0xff", f"s_cselect_b64 vcc, -1, 0", f"v_cndmask_b32 v{vNext}, v{vF}, v{vLane16}, vcc"]]

def emit_stream(A, accset, pinned, pre, queue, qstart, vm, lg, budget=24):
    qi = 0
    def put(ins):
        if callable(ins): ins = ins()
        tag = None
        if isinstance(ins, tuple): ins, tag = ins
        op = ins.split()[0]
        if op.startswith("ds_"): lg.issue(tag)
        if op.startswith("buffer_") or op.startswith("global_"): vm.issue(tag)
        A(ins)
        return cost(ins)
    for ks in range(36):
        for p in pre[ks]: put(p)
        for m in range(4):
            a, tb2 = m // 2, m % 2
            d = vr(ACC[accset] + 16 * m, 16)
            A(mfma16(d, vr(AF + (ks % 3) * 8 + a * 4, 4), xreg(tb2, ks), "0" if ks == 0 else d))
            used = 4 if m == 3 else 0
            gap = ks * 4 + m
            if gap >= qstart and qi < len(queue) and queue[qi].startswith("buffer_") and len(pinned[ks][m]) <= 1:
                used += put(queue[qi]); qi += 1
            for p in pinned[ks][m]: used += put(p)
            while gap >= qstart and qi < len(queue) and not queue[qi].startswith("buffer_") and used + cost(queue[qi]) <= budget:
                used += put(queue[qi]); qi += 1
    assert qi == len(queue), f"queue not drained {qi}/{len(queue)}"
    if common.STAMPS:
        A("s_mov_b32 m0, s3")
        stamp(A, "m0")
        A("s_add_u32 s3, s3, 1")

def body(A, odd, fused):
    sc1 = " sc1" if fused else ""
    accset = 1 if odd else 0
    vm = Counter(63); lg = Counter(15, ["k0"]*4 + ["k1"]*4)
    pinned = [[[] for _ in range(4)] for _ in range(36)]
    pre = [[] for _ in range(36)]
    for ks in range(36):
        pre[ks].append(lambda ks=ks: f"s_waitcnt lgkmcnt({lg.need(f'k{ks}')})")
        if ks % 4 == 2:
            pinned[ks][0] += ["s_waitcnt vmcnt(27)", "s_barrier"]
        k2 = (ks + 2) % 36
        tag = f"k{ks+2}"
        for r, ins in enumerate(tr_reads(k2, k2)):
            pinned[ks][r].append((ins, tag))
        pinned[ks][2] += w_dma((ks - 3) % 36)
    pinned[0][1] += [f"s_and_b32 s{sT+2}, s{sTab}, 0xff", f"s_lshl_b32 s{sT+2}, s{sT+2}, 13", f"s_add_u32 s{sHoff}, s{sHbase}, s{sT+2}"]
    sw = switch_ops()
    pinned[2][3] += sw[0]; pinned[3][0] += sw[1]
    for i, grp in enumerate(next_ops(WS_SIZE if fused else 0)):
        pinned[8 + i][1] += grp
    pinned[13][1] += [f"s_lshr_b64 {sr(sTab,2)}, {sr(sTab,2)}, 8"]
    units = [0, 1] if odd else [2]
    for n, u in enumerate(units):
        for e in range(2):
            ks = 4 + 2 * n + e
            pinned[ks][0 if ks % 4 != 2 else 1] += [
                f"s_add_u32 m0, s{sM0}, {36*4096 + (2*n+e)*4096}",
                f"s_add_u32 s{sT+3}, s{sPs0+e}, {u*128}",
                (f"buffer_load_dwordx4 v{vPsrc}, {sr(sP,4)}, s{sT+3} offen lds", "pk")]
    pinned[29][3].append(lambda: f"s_waitcnt vmcnt({vm.need('pk')})")
    for n, u in enumerate(units):
        for r in range(4):
            e, rr = r // 2, r % 2
            reg = PF + n * 8 + e * 4 + rr * 2
            pinned[30 + n][[1,3,1,3][r] if (30+n) % 4 == 2 else [0,1,3,3][r]].append(
                (f"ds_read_b64_tr_b16 {vr(reg,2)}, v{vPtr} offset:{n*8192 + rr*512 + e*64}", f"p{n}"))
        for e in range(2):
            nb = 2 * u + e
            ks = 32 + n
            lst = pinned[ks][[1, 3][e]]
            if e == 0: lst.append(lambda n=n: f"s_waitcnt lgkmcnt({lg.need(f'p{n}')})")
            lst.append(f"buffer_store_dwordx4 {vr(PF + n*8 + e*4, 4)}, v{vLane16}, {sr(sPD,4)}, s{sPd0 + nb//3} offen offset:{(nb%3)*1024}{sc1}")
    if not odd:
        pinned[35][1] += [f"s_mov_b32 s{sP+2}, 0", f"s_mov_b32 s{sPD+2}, 0"]
    if fused:
        pinned[27][0] += [f"buffer_atomic_or v{vLvl}, v{vFlagOff}, {sr(sDB,4)}, 0 offen sc1"]
        pinned[28][1] += [f"v_mov_b32 v{vLvl}, s{sLvl}", f"s_lshl_b32 s{sLvl}, s{sLvl}, 1"]
    emit_stream(A, accset, pinned, pre, gelu_ops(1 - accset, sc1), 4, vm, lg)

XR = 64
def x_dma(e):
    j, n = e // 8, e % 8
    region = (e + 8) % 40
    return [f"s_add_u32 m0, s{sM0}, {region*4096}",
            f"s_add_u32 s{sT+3}, s{sXbase}, {n*36864 + j*128}",
            (f"buffer_load_dwordx4 v{vT}, {sr(sX,4)}, s{sT+3} offen lds", f"e{e}")]
def elem_dma(e):
    if e < 72 and e % 8 < 4: return x_dma(e)
    d = w_dma((e + 8) % 40)
    return d[:2] + [(d[2], f"e{e}")]
def x_reads(j, s):
    out = []
    base = ((8 * j + 8) % 40) * 4096
    seg = base // 57344
    for tb2 in range(2):
        out.append(f"ds_read_b128 {xreg(tb2, 4*j+s)}, v{XR + seg*4 + s} offset:{base - seg*57344 + tb2*4096}")
    return out
def wregion0(ks):
    if ks >= 36: return ks - 36
    return (8 * (ks // 4) + 4 + ks % 4 + 8) % 40

def body0(A, fused, vm):
    lg = Counter(15)
    stamp(A, 1)
    A(f"s_waitcnt vmcnt({vm.need('e7')})")
    A("s_barrier")
    stamp(A, 2)
    for s in range(2):
        for ins in x_reads(0, s) + tr_reads(s, wregion0(s)):
            A(ins); lg.issue(f"k{s}")
    for s in range(2, 4):
        for ins in x_reads(0, s):
            A(ins); lg.issue(f"x")
    pinned = [[[] for _ in range(4)] for _ in range(36)]
    pre = [[] for _ in range(36)]
    e = 40
    for ks in range(36):
        pre[ks].append(lambda ks=ks: f"s_waitcnt lgkmcnt({lg.need(f'k{ks}')})")
        j = (ks + 2) // 4
        if ks % 4 == 2:
            last = 8 * j + 7 if j < 9 else 75
            pinned[ks][0] += [lambda last=last: f"s_waitcnt vmcnt({vm.need(f'e{last}')})", "s_barrier"]
        if ks % 4 >= 2 and j < 9:
            s0 = 2 * (ks % 4 - 2)
            xs = x_reads(j, s0) + x_reads(j, s0 + 1)
            for r in range(4): pinned[ks][r].append((xs[r], "x"))
        for r, ins in enumerate(tr_reads((ks + 2) % 36, wregion0(ks + 2))):
            pinned[ks][r].append((ins, f"k{ks+2}"))
        if ks >= 2:
            emax = min(40 + 8 * (j - 1) + 6, 104) if j < 9 else 103 + (ks - 34)
            for m in (1, 3):
                if e <= emax:
                    if e == 72:
                        sw = switch_ops()
                        pinned[ks][m - 1] += sw[0] + sw[1]
                        for i, grp in enumerate(next_ops(WS_SIZE if fused else 0)):
                            pinned[ks + 1 + i][2] += grp
                        pinned[ks + 6][2] += [f"s_lshr_b64 {sr(sTab,2)}, {sr(sTab,2)}, 8"]
                    pinned[ks][m] += elem_dma(e); e += 1
    assert e == 105, e
    emit_stream(A, 0, pinned, pre, [], 0, vm, lg)

def setup_sub(A, fused):
    t = sT
    A(f"""
L_setup:
    s_mov_b64 {sr(sWn,2)}, {sr(sFb,2)}
    s_mov_b32 s{sWn+2}, {WG_SIZE}
    s_movk_i32 s{t+1}, 9216
    s_lshl_b32 s{t+2}, s{t}, 7
    s_cmp_lt_u32 s{t}, 72
    s_cbranch_scc1 L_setup_fin
    s_cmp_lt_u32 s{t}, 77
    s_cbranch_scc0 L_setup_kv
    s_mov_b64 {sr(sWn,2)}, {sr(S_WQ,2)}
    s_movk_i32 s{t+1}, 1152
    s_sub_u32 s{t+2}, s{t}, 72
    s_lshl_b32 s{t+2}, s{t+2}, 1
    s_lshr_b32 s{t+3}, s{sWave}, 1
    s_add_u32 s{t+2}, s{t+2}, s{t+3}
    s_lshl_b32 s{t+2}, s{t+2}, 7
    s_cmp_lt_u32 s{t+2}, 1152
    s_cselect_b32 s{sWn+2}, {576*1152}, 0
    s_branch L_setup_fin
L_setup_kv:
    s_cmp_eq_u32 s{t}, 77
    s_cbranch_scc0 L_setup_img
    s_cmp_lt_u32 s{sWave}, 2
    s_cselect_b64 {sr(sWn,2)}, {sr(S_WK,2)}, {sr(S_WV,2)}
    s_movk_i32 s{sWn+2}, {576*36}
    s_movk_i32 s{t+1}, 36
    s_mov_b32 s{t+2}, 0
L_setup_fin:
    s_lshl_b32 s{nStep}, s{t+1}, 4
    s_and_b32 s{t+3}, s{sWave}, 1
    s_mul_i32 s{t+3}, s{t+3}, s{t+1}
    s_lshl_b32 s{t+3}, s{t+3}, 3
    s_add_u32 s{nOff}, s{t+2}, s{t+3}
    v_mad_u32_u24 v{vNext}, v{vR8}, s{t+1}, v{vC16}
    s_setpc_b64 {sr(sLink2,2)}
L_setup_img:
    s_mov_b64 {sr(sWn,2)}, {sr(S_WS,2)}
    s_mov_b32 s{sWn+2}, {WS_SIZE if fused else 0}
    s_movk_i32 s{nStep}, 0x1000
    s_mov_b32 s{nOff}, s{sKVoff}
    v_mov_b32 v{vNext}, v{vLane16}
    s_setpc_b64 {sr(sLink2,2)}
""")

def special_sub(A, fused):
    sc1 = " sc1" if fused else ""
    t = sT
    A(f"""
L_special:
    s_bfe_u32 s{t}, s{sTab}, 0x80010
    s_call_b64 {sr(sLink2,2)}, L_setup
    s_mov_b32 s{sH+2}, {WS_SIZE}
    s_and_b32 s{t}, s{sTab}, 0xff
    s_cmp_lt_u32 s{t}, 72
    s_cbranch_scc1 L_special_ret
    s_mov_b32 s{sH+2}, 0
    s_cmp_eq_u32 s{sPar}, 0
    s_cbranch_scc1 L_special_go
""")
    for i in range(64): A(f"v_mov_b32 v{i}, v{64+i}")
    A(f"""
L_special_go:
    v_and_b32 v{vT}, 31, v{vLane}
    v_lshrrev_b32 v{vT+1}, 5, v{vLane}
    s_cmp_eq_u32 s{t}, 77
    s_cbranch_scc1 L_special_kv
    v_mul_u32_u24 v{vT}, 1152, v{vT}
    v_lshl_add_u32 v{vT}, v{vT+1}, 4, v{vT}
    s_lshl_b32 s{t+1}, s{sTb}, 1
    s_lshr_b32 s{t+2}, s{sWave}, 1
    s_add_u32 s{t+1}, s{t+1}, s{t+2}
    s_mul_i32 s{t+1}, s{t+1}, {64*1152}
    s_sub_u32 s{t+2}, s{t}, 72
    s_lshl_b32 s{t+2}, s{t+2}, 8
    s_add_u32 s{t+1}, s{t+1}, s{t+2}
    s_and_b32 s{t+2}, s{sWave}, 1
    s_lshl_b32 s{t+2}, s{t+2}, 6
    s_add_u32 s{t+1}, s{t+1}, s{t+2}
    s_add_u32 s{t+1}, s{t+1}, {WS_Q}
    s_add_u32 s{t+2}, s{t+1}, {32*1152}
    s_mov_b32 s{t+3}, {f2u(QSCALE):#x}
""")
    for i in range(64): A(f"v_mul_f32 v{i}, s{t+3}, v{i}")
    for i in range(32): A(f"v_cvt_pk_bf16_f32 v{64+i}, v{2*i}, v{2*i+1}")
    for half in range(2):
        if half == 1:
            A(f"s_cmp_eq_u32 s{t}, 76")
            A("s_cbranch_scc1 L_special_ret")
        for blk in range(4):
            a, tb2 = blk // 2, blk % 2
            A(f"buffer_store_dwordx4 {vr(64 + blk*8 + half*4, 4)}, v{vT}, {sr(sWS,4)}, s{t+1+tb2} offen offset:{a*32 + half*128}{sc1}")
    A(f"""
    s_branch L_special_ret
L_special_kv:
    s_mul_i32 s{t+1}, s{sTb}, {KV_GS}
    s_add_u32 s{t+1}, s{t+1}, {WS_KV}
    s_lshr_b32 s{t+2}, s{sWave}, 1
    s_and_b32 s{t+3}, s{sWave}, 1
    s_cmp_eq_u32 s{t+3}, 0
    s_cbranch_scc1 L_special_kv0
    s_mul_i32 s{t+2}, s{t+2}, {2*KV_VT}
    v_and_b32 v{vT}, 3, v{vLane}
    v_mul_u32_u24 v{vT}, {KV_VF}, v{vT}
    v_and_b32 v{vT+1}, 4, v{vLane}
    v_lshl_add_u32 v{vT}, v{vT+1}, 2, v{vT}
    v_cmp_eq_u32 vcc, 0, v{vT+1}
    v_add_u32 v{vT}, s{t+2}, v{vT}
    v_mov_b32 v65, 0x3f803f80
    v_cndmask_b32 v64, 0, v65, vcc
    v_add_u32 v{vT}, {KV_V + 576}, v{vT}
    v_mov_b32 v{vT+1}, {KV_K2 + 512}
    v_cmp_eq_u32 vcc, 8, v{vLane}
    v_mov_b32 v{vT+2}, 0x40000000
    v_mov_b32 v65, v64
    v_cndmask_b32 v{vT}, v{vT}, v{vT+1}, vcc
    v_cmp_lt_u32 vcc, 8, v{vLane}
    v_mov_b32 v66, v64
    v_mov_b32 v67, v64
    v_cndmask_b32 v{vT}, v{vT}, v{vT+2}, vcc
    buffer_store_dwordx4 v[64:67], v{vT}, {sr(sWS,4)}, s{t+1} offen{sc1}
    s_branch L_special_ret
L_special_kv0:
""")
    for i in range(32): A(f"v_cvt_pk_bf16_f32 v{64+i}, v{2*i}, v{2*i+1}")
    A(f"""
    s_lshl_b32 s{t+3}, s{t+2}, 11
    s_add_u32 s{t+3}, s{t+3}, s{t+1}
    s_lshl_b32 s{t+4}, s{t+2}, 3
    s_add_u32 s{t+4}, s{t+4}, s{t+1}
    s_add_u32 s{t+4}, s{t+4}, {KV_K2}         ; K2 base
    s_mul_i32 s{t+5}, s{t+2}, {2*KV_VT}
    s_add_u32 s{t+5}, s{t+5}, s{t+1}
    s_add_u32 s{t+5}, s{t+5}, {KV_V}          ; V base
    v_lshrrev_b32 v{vT+2}, 4, v{vT}
    v_mul_u32_u24 v{vT+2}, {KV_VF}, v{vT+2}
    v_bfe_u32 v{vT+3}, v{vT}, 2, 1
    v_mul_u32_u24 v{vT+3}, 288, v{vT+3}
    v_add_u32 v{vT+2}, v{vT+2}, v{vT+3}
    v_and_b32 v{vT+3}, 3, v{vT}
    v_lshl_add_u32 v{vT+2}, v{vT+3}, 1, v{vT+2}
    v_and_b32 v{vT+3}, 8, v{vT}
    v_add_u32 v{vT+2}, v{vT+2}, v{vT+3}
    v_lshl_add_u32 v{vT+3}, v{vT+1}, 7, v{vT+2}
    v_lshl_add_u32 v{vT+2}, v{vT+1}, 30, v{vT+2}
    v_lshl_add_u32 v{vT+4}, v{vT+1}, 30, v{vLane16}
""")
    for tb2 in range(2):
        b0 = 64 + tb2 * 8
        b1 = 64 + (2 + tb2) * 8
        A(f"buffer_store_dwordx4 {vr(b0,4)}, v{vLane16}, {sr(sWS,4)}, s{t+3} offen offset:{tb2*1024}{sc1}")
        A(f"buffer_store_dword v{b1}, v{vT+4}, {sr(sWS,4)}, s{t+4} offen offset:{tb2*4}{sc1}")
        for i in range(8):
            op = "buffer_store_short" if i % 2 == 0 else "buffer_store_short_d16_hi"
            A(f"{op} v{b0+4+i//2}, v{vT+3}, {sr(sWS,4)}, s{t+5} offen offset:{tb2*KV_VT + i*16}{sc1}")
        for i in range(2):
            op = "buffer_store_short" if i % 2 == 0 else "buffer_store_short_d16_hi"
            A(f"{op} v{b1+4}, v{vT+2}, {sr(sWS,4)}, s{t+5} offen offset:{tb2*KV_VT + (16+i)*16}{sc1}")
    A(f"""
L_special_ret:
    s_nop 1
    s_setpc_b64 {sr(sLink,2)}
""")

def common_prologue(A):
    t = sT
    A(f"""
    s_cmp_ge_u32 s2, 256
    s_cbranch_scc1 L_end
    s_load_dwordx16 s[4:19], s[0:1], 0
    s_load_dwordx8 s[20:27], s[0:1], 64
    s_load_dwordx2 s[28:29], s[0:1], 96
    v_lshrrev_b32 v1, 6, v0
    v_and_b32 v{vLane}, 63, v0
    v_readfirstlane_b32 s{sWave}, v1
    v_lshlrev_b32 v{vLane16}, 4, v{vLane}
    s_and_b32 s{t}, s2, 1
    s_lshl_b32 s{t}, s{t}, 3
    s_bfe_u32 s{t+1}, s2, 0x30003
    s_add_u32 s{sTb}, s{t}, s{t+1}
    s_bfe_u32 s{sXq}, s2, 0x20001
    s_lshr_b32 s{sQi}, s2, 6
""")

def ws_srds(A):
    A(f"""
    s_mov_b64 {sr(sWS,2)}, {sr(S_WS,2)}
    s_mov_b32 s{sWS+2}, {WS_SIZE}
    s_mov_b32 s{sWS+3}, {SRD3}
    s_mov_b64 {sr(sDB,2)}, {sr(S_DBG,2)}
    s_movk_i32 s{sDB+2}, 256
    s_mov_b32 s{sDB+3}, {SRD3}
""")

def phase1(A, fused):
    t = sT
    sc1 = " sc1" if fused else ""
    stamp(A, 0); stamp(A, 32, True)
    common_prologue(A)
    if common.STAMPS: A("s_mov_b32 s3, 3")
    A(f"""
    s_getpc_b64 {sr(sLink,2)}
L_pc1:
    s_lshl_b32 s{t}, s{sXq}, 2
    s_add_u32 s{t}, s{t}, s{sQi}            ; jg
    s_lshl_b32 s{t+1}, s{t}, 3
    s_add_u32 s{t+1}, s{t+1}, L_jobtab-L_pc1
    s_load_dwordx2 {sr(sTab,2)}, {sr(sLink,2)}, s{t+1}
    s_and_b32 s{t}, s{t}, 11
    s_cmp_eq_u32 s{t}, 3
    s_cselect_b32 s{sSpecial}, 1, 0
    v_lshrrev_b32 v{vR8}, 3, v{vLane}
    v_and_b32 v1, 7, v{vLane}
    s_lshl_b32 s{sM0}, s{sWave}, 10
    s_lshr_b32 s{t+2}, s{sWave}, 1
    s_and_b32 s{t+3}, s{sWave}, 1
    v_and_b32 v2, 2, v{vR8}
    v_xor_b32 v2, v1, v2
    s_lshl_b32 s{t+4}, s{t+2}, 2
    v_xor_b32 v2, s{t+4}, v2
    v_lshlrev_b32 v{vC16}, 4, v2
    s_movk_i32 s{t+4}, 9216
    v_mad_u32_u24 v{vF}, v{vR8}, s{t+4}, v{vC16}
    v_lshrrev_b32 v2, 1, v{vR8}
    s_lshl_b32 s{t+4}, s{t+3}, 2
    v_or_b32 v2, s{t+4}, v2
    v_xor_b32 v2, v1, v2
    v_lshlrev_b32 v2, 4, v2
    v_mul_u32_u24 v3, 1152, v{vR8}
    v_add_u32 v{vT}, v2, v3
    s_mul_i32 s{sRowOff}, s{t+3}, {8*9216}
    s_lshl_b32 s{t+4}, s{sTb}, 4
    s_add_u32 s{t+4}, s{t+4}, s{sWave}
    s_mul_i32 s{sXbase}, s{t+4}, {8*1152}
    s_add_u32 s{sKVoff}, s{sM0}, {WS_KV}
    v_and_b32 v4, 31, v{vLane}
    v_mul_u32_u24 v4, 12, v4
    v_lshrrev_b32 v5, 5, v{vLane}
    s_lshl_b32 s{t+4}, s2, 2
    s_add_u32 s{t+4}, s{t+4}, s{sWave}
    s_lshl_b32 s{t+5}, s{t+4}, 1
    v_add_u32 v5, s{t+5}, v5                ; token
    v_mul_u32_u24 v6, 1152, v5
    v_add_u32 v6, v6, v4
    s_waitcnt lgkmcnt(0)
""")
    vm = Counter(63)
    A(f"""
    s_mov_b64 {sr(sX,2)}, {sr(S_X,2)}
    s_mov_b32 s{sX+2}, {2048*1152}
    s_mov_b32 s{sX+3}, {SRD3}
    s_cmp_lt_u32 s{sWave}, 2
    s_cselect_b64 {sr(sFb,2)}, {sr(S_WG,2)}, {sr(S_WU,2)}
    s_mov_b32 s{sW+3}, {SRD3}
    s_mov_b32 s{sPar}, s{t+4}
    s_bfe_u32 s{t}, s{sTab}, 0x80008
    s_call_b64 {sr(sLink2,2)}, L_setup
""")
    for g in switch_ops(): A.many(g)
    for e in range(8):
        for ins in elem_dma(e):
            if isinstance(ins, tuple): vm.issue(ins[1]); ins = ins[0]
            A(ins)
    for i in range(3):
        A(f"global_load_dwordx3 {vr(8+4*i,3)}, v6, {sr(S_X,2)} offset:{384*i}"); vm.issue("g")
        A(f"global_load_dwordx3 {vr(20+4*i,3)}, v4, {sr(S_GW,2)} offset:{384*i}"); vm.issue("g")
    for e in range(8, 40):
        for ins in elem_dma(e):
            if isinstance(ins, tuple): vm.issue(ins[1]); ins = ins[0]
            A(ins)
    ws_srds(A)
    W = sPar
    A(f"""
    s_bfe_u32 s{t}, s{sTab}, 0x80010
    s_call_b64 {sr(sLink2,2)}, L_setup
    s_mov_b64 {sr(sH,2)}, {sr(S_WS,2)}
    s_mov_b32 s{sH+2}, {WS_SIZE}
    s_mov_b32 s{sH+3}, {SRD3}
    s_mov_b64 {sr(sPD,2)}, {sr(S_WS,2)}
    s_mov_b32 s{sPD+3}, {SRD3}
    s_mov_b32 s{sP+3}, {SRD3}
    s_mov_b32 s{sC2}, {f2u(GC2):#x}
    v_mov_b32 v{vC1}, {f2u(GC1):#x}
    s_lshr_b32 s{t+2}, s{sWave}, 1
    s_and_b32 s{t+3}, s{sWave}, 1
    s_lshl_b32 s{t}, s{sTb}, 1
    s_add_u32 s{t}, s{t}, s{t+2}
    s_mul_i32 s{sHbase}, s{t}, {HO_G}
    s_lshl_b32 s{t}, s{t+3}, 12
    s_add_u32 s{sHbase}, s{sHbase}, s{t}
    v_and_b32 v32, 3, v{vLane}              ; c
    v_lshrrev_b32 v33, 1, v32
    v_and_b32 v32, 1, v32
    v_lshl_add_u32 v32, v32, 1, v33         ; perm(c)
    v_lshlrev_b32 v32, 3, v32               ; *8 bytes
    v_bfe_u32 v33, v{vLane}, 2, 2           ; r4
    v_lshl_add_u32 v32, v33, 7, v32         ; + r4*128
    v_bfe_u32 v34, v{vLane}, 4, 1
    v_lshrrev_b32 v35, 5, v{vLane}          ; hh
    v_lshl_add_u32 v36, v34, 5, v32
    v_lshl_add_u32 v36, v35, 12, v36
    s_add_u32 s{t}, s{sM0}, {36*4096}
    v_add_u32 v{vPtr}, s{t}, v36
    v_lshrrev_b32 v33, 1, v33
    v_lshl_add_u32 v33, v34, 1, v33         ; s
    s_lshl_b32 s{t}, s{t+3}, 1
    v_xor_b32 v33, s{t}, v33                ; s ^ (2j)
    v_lshl_add_u32 v32, v33, 5, v32
    v_lshl_add_u32 v32, v34, 11, v32
    v_lshl_add_u32 v{vTR}, v35, 10, v32
    v_xor_b32 v{vTR+1}, 32, v{vTR}
    v_add_u32 v{vTR+2}, {12*4096}, v{vTR}
    v_add_u32 v{vTR+3}, {12*4096}, v{vTR+1}
    v_add_u32 v{vTR+4}, {24*4096}, v{vTR}
    v_add_u32 v{vTR+5}, {24*4096}, v{vTR+1}
    v_and_b32 v32, 31, v{vLane}
    v_bfe_u32 v33, v{vLane}, 1, 3
    v_xor_b32 v33, v33, v35
    v_lshlrev_b32 v33, 4, v33
    v_lshl_add_u32 v32, v32, 7, v33
    s_lshl_b32 s{t}, s{t+2}, 13
    v_add_u32 v{XR}, s{t}, v32
    v_xor_b32 v{XR+1}, 32, v{XR}
    v_xor_b32 v{XR+2}, 64, v{XR}
    v_xor_b32 v{XR+3}, 0x60, v{XR}
""")
    for seg in (1, 2):
        for s in range(4): A(f"v_add_u32 v{XR+seg*4+s}, {seg*57344}, v{XR+s}")
    A(f"""
    ; pack params: ks = W/3, a = W%3
    s_mul_i32 s{t}, s{W}, 21846
    s_lshr_b32 s{t}, s{t}, 16               ; ks
    s_mul_i32 s{t+1}, s{t}, 3
    s_sub_u32 s{t+1}, s{W}, s{t+1}          ; a
    s_mul_i32 s{sPd0}, s{t+1}, {2*WP_T}
    s_mul_i32 s{t+2}, s{t}, 3072
    s_add_u32 s{sPd0}, s{sPd0}, s{t+2}
    s_add_u32 s{sPd0}, s{sPd0}, {WS_WP}
    s_add_u32 s{sPd1}, s{sPd0}, {WP_T}
    s_cmp_lt_u32 s{t}, 324
    s_cselect_b32 s{sPD+2}, {WS_SIZE}, 0
    s_mul_i32 s{t+1}, s{t+1}, 384
    v_and_b32 v32, 7, v{vLane}
    v_lshlrev_b32 v32, 4, v32
    s_movk_i32 s{t+4}, 1152
    v_mad_u32_u24 v{vPsrc}, v{vR8}, s{t+4}, v32
    s_mov_b64 {sr(sP,2)}, {sr(S_WD,2)}
    s_mov_b32 s{sP+2}, {4608*1152}
    s_mul_i32 s{sPs0}, s{t}, {16*1152}
    s_movk_i32 s{t+3}, {8*1152}
    s_cmp_lt_u32 s{t}, 288
    s_cbranch_scc1 L_pk_done
    s_mov_b64 {sr(sP,2)}, {sr(S_WO,2)}
    s_mov_b32 s{sP+2}, {576*1152}
    s_sub_u32 s{t+2}, s{t}, 288
    s_mul_i32 s{sPs0}, s{t+2}, {18*1152}
    s_cmp_lt_u32 s{t}, 320
    s_cbranch_scc1 L_pk_done
    s_sub_u32 s{t+2}, s{t}, 320
    s_mul_i32 s{sPs0}, s{t+2}, {144*1152}
    s_add_u32 s{sPs0}, s{sPs0}, {16*1152}
    s_mov_b32 s{t+3}, {72*1152}
    v_lshrrev_b32 v33, 1, v{vR8}
    v_mul_u32_u24 v33, 18, v33
    v_and_b32 v34, 1, v{vR8}
    v_add_u32 v33, v33, v34
    v_mad_u32_u24 v{vPsrc}, v33, s{t+4}, v32
L_pk_done:
    s_add_u32 s{sPs0}, s{sPs0}, s{t+1}
    s_add_u32 s{sPs1}, s{sPs0}, s{t+3}
    s_and_b32 s{t}, s2, 0xfc
    v_mov_b32 v32, s{t}
    v_mov_b32 v33, 0x40000000
    v_cmp_eq_u32 vcc, 0, v0
    s_and_b32 s{t}, s2, 3
    s_lshl_b32 s{t}, s{t}, 3
    v_cndmask_b32 v{vFlagOff}, v33, v32, vcc
    s_lshl_b32 s{sLvl}, 1, s{t}
    v_mov_b32 v{vLvl}, 0
    ; gate
    s_waitcnt vmcnt({vm.need('g')})
    v_mov_b32 v7, 0
""")
    for i in range(3):
        for k in range(3): A(f"v_dot2c_f32_bf16 v7, v{8+4*i+k}, v{20+4*i+k}")
    A(f"""
    s_nop 2
    v_add_f32_dpp v7, v7, v7 quad_perm:[1,0,3,2] row_mask:0xf bank_mask:0xf
    s_nop 1
    v_add_f32_dpp v7, v7, v7 quad_perm:[2,3,0,1] row_mask:0xf bank_mask:0xf
    s_nop 1
    v_add_f32_dpp v7, v7, v7 row_half_mirror row_mask:0xf bank_mask:0xf
    s_nop 1
    v_add_f32_dpp v7, v7, v7 row_mirror row_mask:0xf bank_mask:0xf
    s_nop 1
    ds_swizzle_b32 v8, v7 offset:0x401F
    v_and_b32 v9, 31, v{vLane}
    v_lshlrev_b32 v5, 2, v5
    v_cmp_eq_u32 vcc, 0, v9
    s_waitcnt lgkmcnt(0)
    v_add_f32 v7, v7, v8
    v_cndmask_b32 v5, v33, v5, vcc
    v_mul_f32 v7, {f2u(-math.log2(math.e)):#x}, v7
    v_exp_f32 v7, v7
    s_mov_b32 s{t}, {WS_G}
    v_add_f32 v7, 1.0, v7
    v_rcp_f32 v7, v7
    s_nop 0
    buffer_store_dword v7, v5, {sr(sWS,4)}, s{t} offen{sc1}
""")
    vm.issue("gs")
    body0(A, fused, vm)
    A(f"""
L_loop:
    s_cmp_eq_u32 s{sSpecial}, 0
    s_cbranch_scc1 L_odd
    s_mov_b32 s{sPar}, 0
    s_call_b64 {sr(sLink,2)}, L_special
L_odd:
""")
    body(A, True, fused)
    A(f"""
    s_cmp_eq_u32 s{sSpecial}, 0
    s_cbranch_scc1 L_even
    s_bfe_u32 s{t}, s{sTab}, 0x80008
    s_cmp_eq_u32 s{t}, 0xff
    s_cbranch_scc1 L_last_odd
    s_mov_b32 s{sPar}, 1
    s_call_b64 {sr(sLink,2)}, L_special
L_even:
""")
    body(A, False, fused)
    A(f"""
    s_bfe_u32 s{t}, s{sTab}, 0x80008
    s_cmp_eq_u32 s{t}, 0xff
    s_cbranch_scc0 L_loop
L_p1_final:
    s_and_b32 s{t+2}, s{sTab}, 0xff
    s_lshl_b32 s{t+2}, s{t+2}, 13
    s_add_u32 s{sHoff}, s{sHbase}, s{t+2}
    s_mov_b32 s{sH+2}, {WS_SIZE}
""")

def phase1_tail(A, fused):
    A("L_last_odd:")
    A("s_nop 7")
    for i in range(64): A(f"v_mov_b32 v{i}, v{64+i}")
    A("s_branch L_p1_final")
    setup_sub(A, fused)
    special_sub(A, fused)

def jobtab(A):
    tab, _, _ = job_table()
    A(".p2align 3")
    A(".type L_jobtab,@object")
    A("L_jobtab:")
    for b in tab:
        A(".byte " + ", ".join(str(x) for x in b))
```

```python
from common import *
import common
from phase1 import (S_X, S_OUT, S_WS, S_DBG, sWS, sDB, sWave, sTb, sXq, sQi, sT, sM0, sKVoff, SRD3,
                    vLane, vLane16, vFlagOff, vPoll, vLvl, vT, sLink)
GACC = 0
Q1 = [96, 100]; Q2 = [[104, 106], [108, 110]]
S = [112, 128]; P = [144, 152]; O = [160, 176]
K1 = [192, 196]; V = [200, 208]; K2 = [216, 220]
AK, AV, AK2 = 224, 225, 226
vO = [227, 228, 229, 230]
vG = [231, 232]
vNeedO, vNeedP = 234, 235
vQt = [236, 237]
sHp, sWp = 32, 34
sNA, sNM, sIt, sHead, sG64, sNt, sLv = 36, 37, 38, 39, 40, 41, 42
sHo, sWo = 52, 54
sOUT = 56
sByte = 43

def gld(dst, base, byteoff):
    j = byteoff // 8192
    return f"global_load_dwordx4 {dst}, v{vO[j]}, {sr(base,2)} offset:{byteoff - j*8192 - 4096} sc1"
def stage(s): return 20 * s
def g_mfma(st, n, c):
    d = vr(GACC + (c * 3 + n) * 16, 16)
    return mfma16(d, ar(stage(st) + 8 + 4 * n, 4), ar(stage(st) + 4 * c, 4), d)
def ld_h(st, ks, i, base=sHp): return gld(ar(stage(st) + 4 * i, 4), base, ks * 2048 + i * 1024)
def ld_w(st, ks, n, base=sWp): return gld(ar(stage(st) + 8 + 4 * n, 4), base, ks * 3072 + n * 1024)

def off_k1(t): return (t >> 2) * KV_GS + (t & 3) * 1024
def off_v(t, f): return (t >> 2) * KV_GS + KV_V + (t & 3) * KV_VT + f * KV_VF
def off_k2(g): return g * KV_GS + KV_K2

def qk8(u):
    c, t = u & 1, u >> 1
    return mfma8(vr(S[c], 16), vr(K2[(t // 4) % 2] + 2 * ((t % 4) // 2), 2), vr(Q2[c][t % 2], 2), "0")
def qk16(u):
    c, t = u & 1, u >> 1
    return mfma16(vr(S[c], 16), vr(K1[t % 2], 4), vr(Q1[c], 4), vr(S[c], 16))
def pv(u, f):
    c, t = u & 1, u >> 1
    return mfma16(vr(O[c], 16), vr(V[t % 2] + 4 * f, 4), vr(P[c] + 4 * f, 4), vr(O[c], 16))

def att_body(A, kind, fused):
    nvm = 0
    for u in range(16):
        c, t = u & 1, u >> 1
        s, p = S[c], P[c]
        valu = [f"v_exp_f32 v{s+i}, v{s+i}" for i in range(8)] + [f"v_cvt_pk_bf16_f32 v{p+i}, v{s+2*i}, v{s+2*i+1}" for i in range(4)]
        valu += [f"v_exp_f32 v{s+i}, v{s+i}" for i in range(8, 16)] + [f"v_cvt_pk_bf16_f32 v{p+i}, v{s+2*i}, v{s+2*i+1}" for i in range(4, 8)]
        Am = [[pv(u - 1, 1)], [qk8(u + 1)], [qk16(u + 1)], [pv(u, 0)]]
        if c == 0:
            Am[0].append(f"ds_read_b128 {vr(V[(t+1)%2],4)}, v{AV} offset:{off_v(t+1,0)}")
            Am[1].append(f"ds_read_b128 {vr(V[(t+1)%2]+4,4)}, v{AV} offset:{off_v(t+1,1)}")
            Am[2].append(f"ds_read_b128 {vr(K1[t%2],4)}, v{AK} offset:{off_k1(t+2)}")
            if t % 4 == 1:
                Am[3].append(f"ds_read_b128 {vr(K2[(t//4+1)%2],4)}, v{AK2} offset:{off_k2(t//4+1)}")
        extra = 1 if fused else 0
        if kind == 'M':
            G = [[g_mfma(t, n, c)] for n in range(3)]
            if c == 0:
                G[2].append(ld_h(t, t, 0))
            else:
                G[0].append(ld_w(t, t, 0)); G[1].append(ld_w(t, t, 1)); G[2].append(ld_w(t, t, 2))
                Am[3].append(ld_h(t, t, 1))
                Am[3].append("s_waitcnt vmcnt(35) lgkmcnt(0)")
            ms = [Am[0], G[0], Am[1], Am[2], G[1], G[2], Am[3]]
            pos = (16, 40, 64, 84, 104, 128, 152)
        else:
            if kind == 'L':
                if c == 0:
                    Am[3].insert(1, ld_h(t, t, 0))
                else:
                    Am[0].append(ld_w(t, t, 0)); Am[1].append(ld_w(t, t, 1)); Am[2].append(ld_w(t, t, 2))
                    Am[3].append(ld_h(t, t, 1))
            if c == 1:
                Am[3].append("s_waitcnt vmcnt(35) lgkmcnt(0)" if (kind == 'L' and t == 7) else "s_waitcnt lgkmcnt(0)")
            ms = Am; pos = (16, 56, 88, 136)
        if u == 0 and fused:
            ms[1].append(f"buffer_load_dword v{vPoll}, v{vT}, {sr(sDB,4)}, 0 offen sc1")
        if u == 15:
            ms[0] += [f"v_add_u32 v{AK}, {2*KV_GS}, v{AK}", f"v_add_u32 v{AV}, {2*KV_GS}, v{AV}", f"v_add_u32 v{AK2}, {2*KV_GS}, v{AK2}"]
        acc = 0; mi = 0
        for ins in valu:
            while mi < len(ms) and acc >= pos[mi]:
                A.many(ms[mi]); mi += 1
            A(ins); acc += cost(ins)
        while mi < len(ms):
            A.many(ms[mi]); mi += 1
        nvm += sum(1 for m in ms for x in m if x.startswith(("global_", "buffer_")))
    if kind != 'A':
        A(f"""
    s_add_u32 s{sHp}, s{sHp}, {8*2048}
    s_addc_u32 s{sHp+1}, s{sHp+1}, 0
    s_add_u32 s{sWp}, s{sWp}, {8*3072}
    s_addc_u32 s{sWp+1}, s{sWp+1}, 0
""")
    return nvm

def setup_scalars(A):
    t = sT
    A(f"""
    s_and_b32 s{t}, s{sXq}, 1
    s_lshl_b32 s{sG64}, s{sTb}, 1
    s_add_u32 s{sG64}, s{sG64}, s{t}
    s_lshr_b32 s{t}, s{sXq}, 1              ; nhalf
    s_lshl_b32 s{sHead}, s{t}, 2
    s_add_u32 s{sHead}, s{sHead}, s{sQi}
    s_lshl_b32 s{sHead}, s{sHead}, 2
    s_add_u32 s{sHead}, s{sHead}, s{sWave}
    s_mul_i32 s{t}, s{t}, 3
    s_mul_i32 s{t+2}, s{sWave}, 56
    s_cmp_eq_u32 s{sQi}, 3
    s_cselect_b32 s{t+1}, s{sWave}, s{sQi}
    s_cselect_b32 s{t+2}, 224, s{t+2}
    s_cselect_b32 s{sNA}, 0, 1
    s_cselect_b32 s{sNM}, 7, 6
    s_add_u32 s{sNt}, s{t}, s{t+1}
    s_cmp_eq_u32 s{t+1}, 3
    s_cselect_b32 s{sNA}, 8, s{sNA}
    s_cselect_b32 s{sNM}, 0, s{sNM}
    s_mul_i32 s{t+3}, s{sG64}, {HO_G}
    s_lshl_b32 s{t+4}, s{t+2}, 11
    s_add_u32 s{t+4}, s{t+4}, s{t+3}
    s_add_u32 s{sHp}, s{S_WS}, s{t+4}
    s_addc_u32 s{sHp+1}, s{S_WS+1}, 0
    s_mul_i32 s{t+4}, s{sWave}, {9*2048}
    s_add_u32 s{t+4}, s{t+4}, s{t+3}
    s_add_u32 s{t+4}, s{t+4}, {288*2048}
    s_add_u32 s{sHo}, s{S_WS}, s{t+4}
    s_addc_u32 s{sHo+1}, s{S_WS+1}, 0
    s_mul_i32 s{t+3}, s{sNt}, {WP_T}
    s_add_u32 s{t+3}, s{t+3}, {WS_WP}
    s_mul_i32 s{t+4}, s{t+2}, 3072
    s_add_u32 s{t+4}, s{t+4}, s{t+3}
    s_add_u32 s{sWp}, s{S_WS}, s{t+4}
    s_addc_u32 s{sWp+1}, s{S_WS+1}, 0
    s_mul_i32 s{t+4}, s{sWave}, {9*3072}
    s_add_u32 s{t+4}, s{t+4}, s{t+3}
    s_add_u32 s{t+4}, s{t+4}, {288*3072}
    s_add_u32 s{sWo}, s{S_WS}, s{t+4}
    s_addc_u32 s{sWo+1}, s{S_WS+1}, 0
    s_mov_b64 {sr(sOUT,2)}, {sr(S_OUT,2)}
    s_mov_b32 s{sOUT+2}, {2048*1152}
    s_mov_b32 s{sOUT+3}, {SRD3}
    s_and_b32 s{sByte}, s2, 3
    s_lshl_b32 s{sByte}, s{sByte}, 3
    s_mov_b32 s{sIt}, 0
""")

def q_loads(A):
    t = sT
    A(f"""
    v_and_b32 v{vT+1}, 31, v{vLane}
    v_lshrrev_b32 v{vT+2}, 5, v{vLane}
    v_mul_u32_u24 v{vT+3}, 1152, v{vT+1}
    v_lshl_add_u32 v{vT+4}, v{vT+2}, 4, v{vT+3}
    v_lshlrev_b32 v{vT+1}, 2, v{vT+1}
    s_mul_i32 s{t}, s{sG64}, {64*1152}
    s_mul_i32 s{t+1}, s{sHead}, 36
    s_add_u32 s{t}, s{t}, s{t+1}
    s_add_u32 s{t}, s{t}, {WS_Q}
    s_add_u32 s{t+1}, s{t}, {32*1152}
    s_lshl_b32 s{t+2}, s{sG64}, 8
    s_add_u32 s{t+2}, s{t+2}, {WS_G}
""")
    for c in range(2):
        A(f"buffer_load_dwordx4 {vr(Q1[c],4)}, v{vT+4}, {sr(sWS,4)}, s{t+c} offen sc1")
        A(f"buffer_load_dword v{vQt[c]}, v{vT+3}, {sr(sWS,4)}, s{t+c} offen offset:32 sc1")
        A(f"buffer_load_dword v{vG[c]}, v{vT+1}, {sr(sWS,4)}, s{t+2} offen offset:{128*c} sc1")

def lane_setup(A):
    t = sT
    A(f"""
    v_mov_b32 v{AK}, v{vLane16}
    v_min_u32 v{AK2}, 512, v{vLane16}
    v_and_b32 v{vT+1}, 31, v{vLane}
    v_bfe_u32 v{vT+2}, v{vLane}, 2, 1
    v_bfe_u32 v{vT+3}, v{vLane}, 3, 1
    v_lshlrev_b32 v{vT+2}, 3, v{vT+2}
    v_lshl_add_u32 v{vT+2}, v{vT+3}, 2, v{vT+2}
    v_and_b32 v{vT+3}, 0x13, v{vLane}
    v_or_b32 v{vT+2}, v{vT+2}, v{vT+3}        ; d for m<18
    v_lshrrev_b32 v{vT+3}, 5, v{vLane}
    v_mul_u32_u24 v{vT+3}, 18, v{vT+3}
    v_add_u32 v{vT+2}, v{vT+2}, v{vT+3}
    v_cmp_gt_u32 vcc, 18, v{vT+1}
    v_and_b32 v{vT+1}, 27, v{vT+1}
    v_add_u32 v{vO[0]}, 4096, v{vLane16}
    v_cndmask_b32 v{vT+2}, 37, v{vT+2}, vcc
    v_cmp_ne_u32 vcc, 18, v{vT+1}
    v_add_u32 v{vO[1]}, {4096+8192}, v{vLane16}
    v_add_u32 v{vO[2]}, {4096+2*8192}, v{vLane16}
    v_cndmask_b32 v{vT+2}, 36, v{vT+2}, vcc
    v_lshlrev_b32 v{AV}, 4, v{vT+2}
    v_add_u32 v{vO[3]}, {4096+3*8192}, v{vLane16}
    s_lshr_b32 s{t}, s2, 2
    v_xor_b32 v{vT+1}, s{t}, v{vLane}
    v_and_b32 v{vT+2}, 14, v{vT+1}
    v_cmp_eq_u32 vcc, 0, v{vT+2}
    s_lshl_b32 s{t+1}, 32, s{sByte}
    v_mov_b32 v{vT+3}, s{t+1}
    v_cndmask_b32 v{vNeedO}, 0, v{vT+3}, vcc
    s_or_b32 s{t}, s{t}, 48
    v_cmp_eq_u32 vcc, s{t}, v{vLane}
    v_lshlrev_b32 v{vT+3}, 1, v{vT+3}
    v_lshlrev_b32 v{vT}, 2, v{vLane}
    v_cndmask_b32 v{vNeedP}, 0, v{vT+3}, vcc
""")

def set_bias(A, c, m):
    a, b, d, e = vT+1, vT+2, vT+3, vT+4
    A(f"""
    v_and_b32 v{a}, 0xffff0000, v{m}
    v_sub_f32 v{b}, v{m}, v{a}
    v_and_b32 v{d}, 0xffff0000, v{b}
    v_sub_f32 v{b}, v{b}, v{d}
    v_lshrrev_b32 v{a}, 16, v{a}
    v_or_b32 v{a}, v{a}, v{d}
    v_xor_b32 v{a}, 0x80008000, v{a}
    v_lshrrev_b32 v{b}, 16, v{b}
    v_xor_b32 v{b}, 0x8000, v{b}
    v_cndmask_b32 v{Q2[c][0]}, v{a}, v{vQt[c]}, vcc
    v_cndmask_b32 v{Q2[c][0]+1}, v{b}, 0, vcc
    v_cndmask_b32 v{Q2[c][1]}, v{a}, 0, vcc
    v_cndmask_b32 v{Q2[c][1]+1}, v{b}, v{vQt[c]}, vcc
""")

def att_prologue(A, vmwait):
    A(f"""
    ds_read_b128 {vr(K1[0],4)}, v{AK} offset:{off_k1(0)}
    ds_read_b128 {vr(K2[0],4)}, v{AK2} offset:{off_k2(0)}
    ds_read_b128 {vr(K1[1],4)}, v{AK} offset:{off_k1(1)}
    ds_read_b128 {vr(V[0],4)}, v{AV} offset:{off_v(0,0)}
    ds_read_b128 {vr(V[0]+4,4)}, v{AV} offset:{off_v(0,1)}
    v_cmp_gt_u32 vcc, 32, v{vLane}
    s_waitcnt vmcnt({vmwait})
    s_nop 0
""")
    for c in range(2):
        A(f"v_cndmask_b32 v{Q2[c][0]}, 0, v{vQt[c]}, vcc")
        A(f"v_mov_b32 v{Q2[c][0]+1}, 0")
    A("s_waitcnt lgkmcnt(0)")
    A("s_nop 0")
    A.many([qk8(0), qk8(1), qk16(0), qk16(1)])
    z = [O[0] + i for i in range(32)] + [P[1] + 4 + i for i in range(4)] + [V[1] + 4 + i for i in range(4)]
    for r in z: A(f"v_mov_b32 v{r}, 0")
    for c in range(2):
        s = S[c]
        A(f"v_max3_f32 v{s}, v{s}, v{s+1}, v{s+2}")
        for i in range(3, 15, 2): A(f"v_max3_f32 v{s}, v{s}, v{s+i}, v{s+i+1}")
        A(f"v_max_f32 v{s}, v{s}, v{s+15}")
        A(f"v_mov_b32 v{s+1}, v{s}")
        A("s_nop 1")
        A(f"v_permlane32_swap_b32 v{s}, v{s+1}")
        A("s_nop 1")
        A(f"v_max_f32 v{s}, v{s}, v{s+1}")
        set_bias(A, c, s)
    A("s_nop 1")
    A.many([qk8(0), qk16(0)])
    for i in range(96): A(f"v_mov_b32 v{GACC+i}, 0")

def poll(A, need, name):
    A(f"""
    s_mov_b32 s{sT+5}, 0x100000
L_poll_{name}:
    buffer_load_dword v{vPoll}, v{vT}, {sr(sDB,4)}, 0 offen sc1
    s_sub_u32 s{sT+5}, s{sT+5}, 1
    s_cbranch_scc1 L_pollx_{name}
    s_waitcnt vmcnt(0)
    v_and_b32 v{vPoll}, {need}, v{vPoll}
    v_cmp_ne_u32 vcc, {need}, v{vPoll}
    s_cbranch_vccnz L_poll_{name}
L_pollx_{name}:
""")

def boundary(A, kind, nvm, fused):
    A(f"s_add_u32 s{sIt}, s{sIt}, 1")
    if kind != 'M':
        A(f"""
    s_cmp_eq_u32 s{sIt}, 1
    s_cbranch_scc0 L_nb_{kind}
    s_waitcnt vmcnt({nvm})
    s_barrier
""")
        if fused:
            A(f"""
    s_lshl_b32 s{sT}, 31, s{sByte}
    v_mov_b32 v{vLvl}, s{sT}
    buffer_atomic_or v{vLvl}, v{vFlagOff}, {sr(sDB,4)}, 0 offen sc1
""")
        A(f"L_nb_{kind}:")

def level_check(A, name, fused):
    if not fused: return
    t = sT
    A(f"""
    s_and_b32 s{t}, s{sLv}, 15
    s_lshr_b32 s{sLv}, s{sLv}, 4
    s_lshl_b32 s{t}, 0x01010101, s{t}
    v_and_b32 v{vPoll}, s{t}, v{vPoll}
    v_cmp_ne_u32 vcc, s{t}, v{vPoll}
    s_cbranch_vccz L_pollx_{name}
""")
    poll(A, f"s{t}", name)

def main_loop(A, fused):
    A(f"""
    s_cmp_eq_u32 s{sNA}, 0
    s_cbranch_scc1 L_itL
L_itA:
""")
    n = att_body(A, 'A', fused); boundary(A, 'A', n, fused)
    A(f"""
    s_cmp_lt_u32 s{sIt}, s{sNA}
    s_cbranch_scc1 L_itA
    s_cmp_eq_u32 s{sIt}, 8
    s_cbranch_scc1 L_done
""")
    if fused: A("s_waitcnt vmcnt(1)")
    A("L_itL:")
    level_check(A, "L", fused)
    n = att_body(A, 'L', fused); boundary(A, 'L', n, fused)
    A("L_itM:")
    level_check(A, "M", fused)
    n = att_body(A, 'M', fused); boundary(A, 'M', n, fused)
    A(f"""
    s_cmp_lt_u32 s{sIt}, 8
    s_cbranch_scc1 L_itM
L_done:
""")

def o_epilogue(A):
    t = sT
    A("s_nop 0")
    A(pv(15, 1))
    A(f"""
    s_mul_i32 s{t}, s{sG64}, {HO_G}
    s_lshl_b32 s{t+1}, s{sHead}, 11
    s_add_u32 s{t+1}, s{t+1}, s{t}
    s_add_u32 s{t+1}, s{t+1}, {288*2048}
    s_lshr_b32 s{t+2}, s{sHead}, 3
    s_lshl_b32 s{t+2}, s{t+2}, 11
    s_add_u32 s{t+2}, s{t+2}, s{t}
    s_bfe_u32 s{t+3}, s{sHead}, 0x10002
    s_lshl_b32 s{t+3}, s{t+3}, 9
    s_add_u32 s{t+2}, s{t+2}, s{t+3}
    s_and_b32 s{t+3}, s{sHead}, 3
    s_lshl_b32 s{t+3}, s{t+3}, 2
    s_add_u32 s{t+2}, s{t+2}, s{t+3}
    s_add_u32 s{t+2}, s{t+2}, {320*2048}
    v_lshrrev_b32 v{vT+1}, 5, v{vLane}
    v_lshl_add_u32 v{vT+1}, v{vT+1}, 30, v{vLane16}
    s_mov_b32 s{t+3}, {f2u(2.0**60):#x}
    v_max_f32 v{vT+2}, v{O[0]+10}, v{O[1]+10}
    v_add_f32 v{vT+3}, v{O[0]+10}, v{O[1]+10}
    v_cmp_nlt_f32 vcc, v{vT+3}, s{t+3}
    s_cbranch_vccnz L_fallback
L_fb_ret:
""")
    for c in range(2):
        o = O[c]
        A(f"v_rcp_f32 v{o+10}, v{o+10}")
        A("s_nop 0")
        A(f"v_mul_f32 v{o+10}, v{o+10}, v{vG[c]}")
        for i in range(10): A(f"v_mul_f32 v{o+i}, v{o+i}, v{o+10}")
        for i in range(5): A(f"v_cvt_pk_bf16_f32 v{P[c]+i}, v{o+2*i}, v{o+2*i+1}")
        A(f"buffer_store_dwordx4 {vr(P[c],4)}, v{vLane16}, {sr(sWS,4)}, s{t+1} offen offset:{c*1024} sc1")
        A(f"buffer_store_dword v{P[c]+4}, v{vT+1}, {sr(sWS,4)}, s{t+2} offen offset:{c*1024} sc1")

def tail(A):
    t = sT
    o_epilogue(A)
    stamp(A, 21)
    A(f"""
    s_cmp_eq_u32 s{sNM}, 0
    s_cbranch_scc1 L_idle_tail
    s_waitcnt vmcnt(4)
""")
    for n in range(3): A(ld_w(8, 8, n, sWo))
    nl = 3
    for st in range(8):
        for c in range(2):
            for n in range(3):
                A(g_mfma(st, n, c))
                if c == 1: A(ld_w(st, st, n, sWo)); nl += 1
        if st == 3:
            A(f"s_waitcnt vmcnt({nl})")
            A("s_barrier")
            A(f"s_lshl_b32 s{t}, 32, s{sByte}")
            A(f"v_mov_b32 v{vLvl}, s{t}")
            A(f"buffer_atomic_or v{vLvl}, v{vFlagOff}, {sr(sDB,4)}, 0 offen sc1")
    A(f"""
    s_mul_i32 s{t}, s{sG64}, 6
    s_add_u32 s{t}, s{t}, s{sNt}
    s_mul_i32 s{t}, s{t}, 24576
    s_add_u32 s{t+4}, s{t}, {WS_PART}
    v_sub_f32 v{vG[0]}, 1.0, v{vG[0]}
    v_sub_f32 v{vG[1]}, 1.0, v{vG[1]}
    s_cmp_eq_u32 s{sQi}, 3
    s_cbranch_scc1 L_helper_tail
    s_nop 3
""")
    for i in range(96): A(f"v_mul_f32 v{GACC+i}, v{GACC+i}, v{vG[i//48]}")
    stamp(A, 22)
    poll(A, f"v{vNeedO}", "o")
    stamp(A, 23)
    for st in range(9):
        for i in range(2): A(ld_h(st, st, i, sHo))
    A(f"""
    s_lshl_b32 s{t}, s{sWave}, 11
    v_add_u32 v{vT+1}, s{t}, v{vLane16}
    v_add_u32 v{vT+2}, {6*8192}, v{vT+1}
    s_mul_i32 s{t}, s{sWave}, {3*8192}
    v_add_u32 v{vT+3}, s{t}, v{vLane16}
""")
    for st in range(9):
        for c in range(2):
            A(f"s_waitcnt vmcnt({17 - 2*st - c})")
            for n in range(3): A(g_mfma(st, n, c))
    stamp(A, 24)
    poll(A, f"v{vNeedP}", "p")
    A(f"""
    s_mul_i32 s{t}, s{sWave}, 6144
    s_add_u32 s{t+4}, s{t+4}, s{t}
    s_add_u32 s{t+3}, s{t+4}, 4096
""")
    PL = 96
    for i in range(6):
        A(f"buffer_load_dwordx4 {vr(PL+4*i,4)}, v{vLane16}, {sr(sWS,4)}, s{t+4 if i < 4 else t+3} offen offset:{(i%4)*1024} sc1")
    for q in range(12):
        for k in range(2):
            A(f"ds_write_b128 v{vT+1+q//6}, {vr(GACC+8*q+4*k,4)} offset:{(q%6)*8192 + k*1024}")
    A(f"""
    s_cmp_lt_u32 s{sWave}, 2
    s_cselect_b64 vcc, -1, 0
    v_cndmask_b32 v{vG[0]}, v{vG[1]}, v{vG[0]}, vcc
    v_and_b32 v{vT+4}, 31, v{vLane}
    v_mul_u32_u24 v{vT+4}, 1152, v{vT+4}
    v_lshrrev_b32 v{vT+5}, 5, v{vLane}
    v_lshl_add_u32 v{vT+4}, v{vT+5}, 4, v{vT+4}
    s_lshl_b32 s{t}, s{sG64}, 1
    s_lshr_b32 s{t+1}, s{sWave}, 1
    s_add_u32 s{t}, s{t}, s{t+1}
    s_mul_i32 s{t}, s{t}, {32*1152}
    s_mul_i32 s{t+1}, s{sNt}, 192
    s_add_u32 s{t}, s{t}, s{t+1}
    s_and_b32 s{t+1}, s{sWave}, 1
    s_mul_i32 s{t+1}, s{t+1}, 96
    s_add_u32 s{t}, s{t}, s{t+1}
    s_waitcnt lgkmcnt(0)
    s_barrier
""")
    RD = 120
    for i in range(3):
        for w in range(4):
            for k in range(2):
                A(f"ds_read_b128 {vr(RD + (i*4+w)*8 + 4*k, 4)}, v{vT+3} offset:{i*8192 + w*2048 + k*1024}")
    A("s_waitcnt vmcnt(0)")
    for i in range(3):
        A(f"s_waitcnt lgkmcnt({min(15, 16 - 8*i)})")
        b = RD + i * 32
        for r in range(8): A(f"v_fma_f32 v{b+r}, v{PL+8*i+r}, v{vG[0]}, v{b+r}")
        for r in range(8): A(f"v_add_f32 v{b+8+r}, v{b+8+r}, v{b+16+r}")
        for r in range(8): A(f"v_add_f32 v{b+r}, v{b+r}, v{b+24+r}")
        for r in range(8): A(f"v_add_f32 v{b+r}, v{b+r}, v{b+8+r}")
        for r in range(4): A(f"v_cvt_pk_bf16_f32 v{b+16+r}, v{b+2*r}, v{b+2*r+1}")
        A(f"buffer_store_dwordx4 {vr(b+16,4)}, v{vT+4}, {sr(sOUT,4)}, s{t} offen offset:{i*32}")
    A("L_fin:")
    stamp(A, 25)
    if common.STAMPS: A("s_waitcnt vmcnt(0)")
    stamp(A, 26)

def tail_out_of_line(A):
    t = sT
    A(f"""
L_idle_tail:
    s_waitcnt vmcnt(0)
    s_barrier
    s_branch L_fin
L_helper_tail:
    s_nop 3
""")
    for i in range(24):
        if i and i % 4 == 0: A(f"s_add_u32 s{t+4}, s{t+4}, 4096")
        A(f"buffer_store_dwordx4 {vr(GACC+4*i,4)}, v{vLane16}, {sr(sWS,4)}, s{t+4} offen offset:{(i%4)*1024} sc1")
    A(f"""
    s_lshl_b32 s{t}, 64, s{sByte}
    v_mov_b32 v{vLvl}, s{t}
    s_waitcnt vmcnt(0)
    s_barrier
    buffer_atomic_or v{vLvl}, v{vFlagOff}, {sr(sDB,4)}, 0 offen sc1
    s_branch L_fin
L_fallback:
    s_branch L_fb_ret
""")

def k2_prologue(A):
    import phase1 as p1
    t = sT
    stamp(A, 0)
    p1.common_prologue(A)
    A(f"""
    s_lshl_b32 s{sM0}, s{sWave}, 10
    s_add_u32 s{sKVoff}, s{sM0}, {WS_KV}
    s_and_b32 s{t}, s2, 0xfc
    v_mov_b32 v32, s{t}
    v_mov_b32 v33, 0x40000000
    v_cmp_eq_u32 vcc, 0, v0
    s_nop 1
    v_cndmask_b32 v{vFlagOff}, v33, v32, vcc
    s_waitcnt lgkmcnt(0)
""")
    p1.ws_srds(A)
    setup_scalars(A)
    q_loads(A)
    for r in range(38):
        A(f"s_add_u32 m0, s{sM0}, {r*4096}")
        A(f"s_add_u32 s{t}, s{sKVoff}, {r*4096}")
        A(f"buffer_load_dwordx4 v{vLane16}, {sr(sWS,4)}, s{t} offen lds")
    lane_setup(A)
    A("s_waitcnt vmcnt(29)")
    A("s_barrier")
    stamp(A, 12)
    att_prologue(A, 38)
    stamp(A, 13)
```

```python
import sys
from common import *
import common
import phase1 as p1
import phase2 as p2

NAME = "gated_mix__grouped_kv_mqa__glu_gated_geglu__prompt"
def kd(name):
    return f"""
.section .rodata,"a"
.p2align 6
.amdhsa_kernel {name}
  .amdhsa_next_free_vgpr 512
  .amdhsa_next_free_sgpr 102
  .amdhsa_accum_offset 256
  .amdhsa_group_segment_fixed_size 0
  .amdhsa_kernarg_size 104
  .amdhsa_user_sgpr_count 2
  .amdhsa_user_sgpr_kernarg_segment_ptr 1
  .amdhsa_system_sgpr_workgroup_id_x 1
.end_amdhsa_kernel
.text
"""
def head(name):
    return f""".globl {name}
.p2align 8
.type {name},@function
{name}:
"""
def gen_k1only():
    A = Asm()
    p1.phase1(A, False)
    A.many(p1.gelu_ops(0, ""))
    stamp(A, 10)
    if common.STAMPS: A("s_waitcnt vmcnt(0)")
    stamp(A, 11); stamp(A, 33, True)
    stamp_flush(A, p1.sWS, p1.vLane, p1.sWave)
    A("L_end:")
    A("s_endpgm")
    p1.phase1_tail(A, False)
    p1.jobtab(A)
    s = "; @launch kernel=k1_kernel grid=(256,1,1) block=(256,1,1) lds=163840\n"
    s += '.amdgcn_target "amdgcn-amd-amdhsa--gfx950"\n.text\n' + head("k1_kernel") + A.text() + kd("k1_kernel")
    return s
def hdr_comment():
    ref = open(f"cdna_kernels/{NAME}.s.ref").read().split("\n")
    return "\n".join(l for l in ref[:14]) + "\n"
def gen_split2():
    A = Asm()
    p1.phase1(A, False)
    A.many(p1.gelu_ops(0, ""))
    stamp(A, 10)
    if common.STAMPS: A("s_waitcnt vmcnt(0)")
    stamp(A, 11)
    stamp_flush(A, p1.sWS, p1.vLane, p1.sWave)
    A("L_end:")
    A("s_endpgm")
    p1.phase1_tail(A, False)
    p1.jobtab(A)
    B = Asm()
    p2.k2_prologue(B)
    p2.main_loop(B, False)
    stamp(B, 20)
    p2.tail(B)
    stamp_flush(B, p1.sWS, p1.vLane, p1.sWave, 0x80000)
    B("L_end2:")
    B("s_endpgm")
    p2.tail_out_of_line(B)
    s = hdr_comment()
    s += "; @launch kernel=k1_kernel grid=(256,1,1) block=(256,1,1) lds=163840\n"
    s += "; @launch kernel=k2_kernel grid=(256,1,1) block=(256,1,1) lds=163840\n"
    s += '.amdgcn_target "amdgcn-amd-amdhsa--gfx950"\n.text\n' + head("k1_kernel") + A.text() + kd("k1_kernel")
    s += head("k2_kernel") + B.text().replace("L_end\n", "L_end2\n") + kd("k2_kernel")
    return s
if __name__ == "__main__":
    mode = sys.argv[1]; out = sys.argv[2]
    if "stamps" in sys.argv: common.STAMPS = True
    if mode == "k1": s = gen_k1only()
    if mode == "split2": s = gen_split2()
    open(out, "w").write(s)
```

```python
import math, struct

def f2u(x):
    return struct.unpack("<I", struct.pack("<f", x))[0]

class Asm:
    def __init__(self):
        self.lines = []
    def __call__(self, s):
        for l in s.split("\n"):
            l = l.strip()
            if not l: continue
            if l.endswith(":") or l.startswith("."):
                self.lines.append(l)
            else:
                self.lines.append("    " + l)
    def many(self, ls):
        for l in ls: self(l)
    def text(self):
        return "\n".join(self.lines) + "\n"

def vr(b, n=1, f="v"):
    return f"{f}{b}" if n == 1 else f"{f}[{b}:{b+n-1}]"
def sr(b, n=1):
    return vr(b, n, "s")
def ar(b, n=1):
    return vr(b, n, "a")

def mfma16(d, a, b, c):
    return f"v_mfma_f32_32x32x16_bf16 {d}, {a}, {b}, {c}"
def mfma8(d, a, b, c):
    return f"v_mfma_f32_32x32x8_bf16 {d}, {a}, {b}, {c}"

def cost(ins):
    op = ins.split()[0]
    if op.startswith("v_mfma_f32_32x32x16"): return 8
    if op.startswith("v_mfma"): return 4
    if op in ("v_exp_f32", "v_rcp_f32", "v_log_f32", "v_rsq_f32", "v_sqrt_f32"): return 8
    if op.startswith("buffer_"): return 8
    return 4

class Counter:
    def __init__(self, maxv, init=()):
        self.ops = list(init); self.maxv = maxv
    def issue(self, tag): self.ops.append(tag)
    def need(self, tag):
        idx = max(i for i, t in enumerate(self.ops) if t == tag)
        return min(len(self.ops) - 1 - idx, self.maxv)

HO_G   = 324 * 2048
WS_HO  = 0
WS_WP  = 0x1500000
WP_T   = 324 * 3072
WS_Q   = 0x1B00000
WS_KV  = 0x1E00000
KV_GS  = 9600
KV_K2  = 4096
KV_V   = 4096 + 528
KV_VT  = 1216
KV_VF  = 608
WS_G   = 0x1E40000
WS_FL  = 0x1E50000
WS_PART= 0x1F00000
WS_SIZE= 0x2600000
QSCALE = (18 ** -0.5) * math.log2(math.e)
GC1 = -2.0 * math.sqrt(2.0 / math.pi) * math.log2(math.e)
GC2 = GC1 * 0.044715

STAMPS = False
WS_ST = 0x2400000
vStamp = 255
OPT = {}
PART_T = 24576 + 128
def stamp(A, idx):
    import common
    if not common.STAMPS: return
    r = 76 if idx == 0 else 0
    if idx == 0: A("v_mov_b32 v252, 3")
    if idx == "next":
        A("v_readfirstlane_b32 s0, v252")
        A("v_add_u32 v252, 1, v252")
        A("s_mov_b32 m0, s0")
        idx = "m0"
    A(f"s_memtime s[{r}:{r+1}]")
    A("s_waitcnt lgkmcnt(0)")
    A(f"v_writelane_b32 v{vStamp}, s{r}, {idx}")
    A(f"s_memrealtime s[{r}:{r+1}]")
    A("s_waitcnt lgkmcnt(0)")
    A(f"v_writelane_b32 v{vStamp-2}, s{r}, {idx}")
def stamp_set(A, n):
    import common
    if common.STAMPS: A(f"v_mov_b32 v252, {n}")
def stamp_flush(A, srd, vlane4, swave):
    import common
    if not common.STAMPS: return
    A(f"""
    s_lshl_b32 s0, s2, 2
    s_add_u32 s0, s0, s{swave}
    s_lshl_b32 s0, s0, 9
    s_add_u32 s0, s0, {WS_ST}
    buffer_store_dword v{vStamp}, v{vlane4}, s[{srd}:{srd+3}], s0 offen
    buffer_store_dword v{vStamp-2}, v{vlane4}, s[{srd}:{srd+3}], s0 offen offset:256
""")

KM, KH = 58, 56
def job_table():
    starts = [KM * w for w in range(4)] + [4 * KM]
    def pos(ks): return ks - max(s for s in starts if s <= ks)
    order = sorted(range(72), key=lambda f: (min(pos(4*f+i) for i in range(4)), f))
    special = {3: [77, 72, 73], 7: [74, 75, 76]}
    tab = {g: list(special.get(g, [])) for g in range(16)}
    it = iter(order)
    for rnd in range(5):
        for g in range(16):
            if g in special:
                if rnd == 3: tab[g].append(next(it))
            else:
                tab[g].append(next(it))
    rounds = {}
    for g in range(16):
        for r, j in enumerate(tab[g]):
            if j < 72: rounds[j] = r
    out = []
    for g in range(16):
        b = [0xFE] + tab[g] + [0xFF] * 8
        out.append(b[:8])
    bits = []
    for i in range(8):
        r = max(rounds[ks // 4] for ks in range(288) if pos(ks) // 8 == i)
        bits.append(2 if r <= 1 else 3 if r == 2 else 4)
    return out, rounds, bits

if __name__ == "__main__":
    t, rounds, bits = job_table()
    for g, b in enumerate(t): print(g, b)
    print(bits)
```

```python
from common import *
import common

S_X, S_WQ, S_WK, S_WV, S_WO, S_WG, S_WU, S_WD, S_GW, S_OUT, S_DBG, S_WS = 4, 6, 8, 10, 12, 16, 18, 20, 22, 24, 26, 28
sW, sWn, nOff, sX, sWS, sH, sP, sPD = 32, 36, 39, 40, 44, 48, 52, 56
sWave, sOff, sStep, nStep, sHoff, sHbase, sTab, sM0, sRowOff = 60, 61, 62, 63, 64, 65, 66, 68, 69
sPs0, sPs1, sPd0, sPd1, sXc, sXend = 70, 71, 72, 73, 74, 85
sT = 76
sLink, sLink2, sSpecial, sTb, sKVoff, sC2, sFb, sPub, sPar = 82, 84, 86, 87, 88, 89, 90, 92, 93
sXq, sQi = 94, 95
sDB = 96
sBase, sEnd, nStart, sSkip, sRot = 100, 101, 31, 30, 3
sPollOff = 74
nD = 75
sHp, sWp, sHo, sWo = 12, 14, 16, 18
sO1, sO2, sQoff, sGoff = 20, 21, 22, 23
sOUT = 24
sPart, sOutOff = 4, 5
SRD3 = 0x00020000
WG_SIZE = 576 * 9216
LEAD = 20
NT_W = ""
NT_X = ""
NT_P = ""

ACC = [0, 64]
AF = 128
XT = 152
GT = 184
PK = 200
PF = 208
vDma = 220
vTR = 224
vSpare, vNext, vF, vLane16, vC1, vPsrc, vPtr, vR8, vC16, vFlagOff, vOne, vLane, vQa, vAV = range(230, 244)
vT = 244
vPoll = 244
vLane4 = 250
F0, F2, F4, FOOB = WS_FL, WS_FL + 1024, WS_FL + 2048, 0x40000000

def xreg(tb2, ks):
    i = ks * 2 + tb2
    return ar(4 * i, 4) if i < 64 else vr(XT + 4 * (i - 64), 4)

def tr_reads(ks, region):
    out = []
    third = min(region // 12, 2)
    for r in range(4):
        a, rr = r // 2, r % 2
        reg = AF + (ks % 3) * 8 + a * 4 + rr * 2
        off = (region // 4 - third * 3) * 16384 + (region % 4) * 1024 + rr * 512
        out.append(f"ds_read_b64_tr_b16 {vr(reg,2)}, v{vTR + third*2 + a} offset:{off}")
    return out

def gelu_ops(accset, gt=GT, pkb=PK):
    blocks = []
    for blk in range(4):
        ops = []
        g = ACC[accset] + 16 * blk; u = g + 8
        t = gt + 8 * (blk % 2); pk = pkb + 4 * (blk % 2)
        ops += [f"v_mul_f32 v{t+i}, v{g+i}, v{g+i}" for i in range(8)]
        ops += [f"v_fma_f32 v{t+i}, v{t+i}, s{sC2}, v{vC1}" for i in range(8)]
        ops += [f"v_mul_f32 v{t+i}, v{t+i}, v{g+i}" for i in range(8)]
        for i in range(8):
            ops += [f"v_exp_f32 v{t+i}, v{t+i}", f"v_mul_f32 v{g+i}, v{g+i}, v{u+i}"]
        ops += [f"v_add_f32 v{t+i}, 1.0, v{t+i}" for i in range(8)]
        ops += [f"v_rcp_f32 v{t+i}, v{t+i}" for i in range(8)]
        ops += [f"v_mul_f32 v{g+i}, v{g+i}, v{t+i}" for i in range(8)]
        ops += [f"v_cvt_pk_bf16_f32 v{pk+i}, v{g+2*i}, v{g+2*i+1}" for i in range(4)]
        ops += [f"buffer_store_dwordx4 {vr(pk,4)}, v{vLane16}, {sr(sH,4)}, s{sHoff} offen offset:{blk*1024} sc1"]
        blocks.append(ops)
    return blocks

def w_dma(region, kpos):
    o = []
    if region % 4 == 0:
        o = [f"s_add_u32 m0, s{sM0}, {(region//4)*16384}", f"s_add_u32 s{sOff}, s{sOff}, s{sStep}"]
        if kpos > 0:
            o += [f"s_cmp_eq_u32 s{sOff}, s{sEnd}", f"s_cselect_b32 s{sOff}, s{sBase}, s{sOff}"]
    j = region % 4
    return o, f"buffer_load_dwordx4 v{vDma+j}, {sr(sW,4)}, s{sOff} offen offset:{j*1024} sc1{NT_W} lds"

def switch_ops():
    return [[f"s_mov_b64 {sr(sW,2)}, {sr(sWn,2)}", f"s_mov_b32 s{sW+2}, s{sWn+2}", f"s_mov_b32 s{sStep}, s{nStep}", f"v_mov_b32 v{vDma}, v{vNext}"],
            [f"s_mov_b32 s{sOff}, s{nStart}", f"s_mov_b32 s{sBase}, s{nOff}", f"s_mul_i32 s{sEnd}, s{nStep}, 9", f"s_add_u32 s{sEnd}, s{sEnd}, s{nOff}"],
            [f"v_add_u32 v{vDma+1}, s{nD}, v{vDma}", f"v_add_u32 v{vDma+2}, s{nD}, v{vDma+1}", f"v_add_u32 v{vDma+3}, s{nD}, v{vDma+2}"]]

def next_ops():
    t = sT
    return [[f"s_bfe_u32 s{t}, s{sTab}, 0x80018", f"s_lshl_b32 s{t+1}, s{t}, 7", f"s_add_u32 s{t+1}, s{t+1}, s{sRowOff}"],
            [f"s_cmp_eq_u32 s{t}, 0xff", f"s_cselect_b32 s{nOff}, s{sKVoff}, s{t+1}", f"s_cselect_b64 {sr(sWn,2)}, {sr(S_WS,2)}, {sr(sFb,2)}"],
            [f"s_mov_b32 s{t+1}, {WG_SIZE}", f"s_cmp_eq_u32 s{t}, 0xff", f"s_cselect_b32 s{sWn+2}, {WS_SIZE}, s{t+1}"],
            [f"s_mov_b32 s{t+1}, {64*9216}", f"s_cmp_eq_u32 s{t}, 0xff", f"s_cselect_b32 s{nStep}, 0x4000, s{t+1}", f"s_cselect_b32 s{nD}, 0, {16*9216-1024}"],
            [f"s_cmp_eq_u32 s{t}, 0xff", f"s_cselect_b64 vcc, -1, 0", f"v_cndmask_b32 v{vNext}, v{vF}, v{vLane16}, vcc"],
            [f"s_cmp_eq_u32 s{t}, 0xff", f"s_cselect_b32 s{sSkip}, 0, 1", f"s_cselect_b32 s{t+1}, -1, s{sRot}"],
            [f"s_mul_i32 s{t+1}, s{t+1}, s{nStep}", f"s_add_u32 s{nStart}, s{nOff}, s{t+1}", f"s_lshr_b64 {sr(sTab,2)}, {sr(sTab,2)}, 8"]]

def poll_ld(soff):
    return f"buffer_load_dwordx4 {vr(vPoll,4)}, v{vLane16}, {sr(sWS,4)}, {soff} offen sc1"
def flag_min():
    return [f"v_min3_u32 v{vPoll}, v{vPoll}, v{vPoll+1}, v{vPoll+2}", f"v_min_u32 v{vPoll}, v{vPoll}, v{vPoll+3}"]

def emit_stream(A, accset, pinned, pre, queue, qstart, vm, lg, budget=24, maxpin=1):
    qi = 0
    def put(ins):
        if callable(ins): ins = ins()
        tag = None
        if isinstance(ins, tuple): ins, tag = ins
        op = ins.split()[0]
        if op.startswith("ds_"): lg.issue(tag)
        if op.startswith("buffer_") or op.startswith("global_"): vm.issue(tag)
        A(ins)
        return 0 if ins.endswith(":") else cost(ins)
    for ks in range(36):
        for p in pre[ks]: put(p)
        for m in range(4):
            a, tb2 = m // 2, m % 2
            d = vr(ACC[accset] + 16 * m, 16)
            A(mfma16(d, vr(AF + (ks % 3) * 8 + a * 4, 4), xreg(tb2, ks), "0" if ks == 0 else d))
            used = 4 if m == 3 else 0
            gap = ks * 4 + m
            if gap >= qstart and qi < len(queue) and queue[qi].startswith("buffer_") and len(pinned[ks][m]) <= maxpin:
                used += put(queue[qi]); qi += 1
            for p in pinned[ks][m]: used += put(p)
            while gap >= qstart and qi < len(queue) and not queue[qi].startswith("buffer_") and used + cost(queue[qi]) <= budget:
                used += put(queue[qi]); qi += 1
    assert qi == len(queue), f"queue not drained {qi}/{len(queue)}"
    stamp(A, "next")

def body(A, odd):
    accset = 1 if odd else 0
    nm = "o" if odd else "e"
    vm = Counter(63); lg = Counter(15, ["k0"]*4 + ["k1"]*4)
    pinned = [[[] for _ in range(4)] for _ in range(36)]
    pre = [[] for _ in range(36)]
    SW = 36 - LEAD
    for ks in range(36):
        pre[ks].append(lambda ks=ks: f"s_waitcnt lgkmcnt({lg.need(f'k{ks}')})")
        if ks % 4 == 2:
            pinned[ks][0] += [f"s_waitcnt vmcnt({LEAD-6})", "s_barrier"]
        k2 = (ks + 2) % 36
        for r, ins in enumerate(tr_reads(k2, k2)):
            pinned[ks][r].append((ins, f"k{ks+2}"))
        rg = (ks + LEAD) % 36
        o, ld = w_dma(rg, rg)
        pinned[ks][1] += o
        pinned[ks][2] += [ld]
    pinned[0][0] += [f"s_and_b32 s{sT+2}, s{sTab}, 0xff", f"s_lshl_b32 s{sT+2}, s{sT+2}, 13", f"s_add_u32 s{sHoff}, s{sHbase}, s{sT+2}"]
    assert LEAD - 6 <= 14
    if odd:
        pinned[14][1] += [f"buffer_store_dword v{vOne}, v{vFlagOff}, {sr(sWS,4)}, s{sPub} offen sc1"]
        pinned[14][3] += [f"s_lshl_b32 s{sPub}, s2, 2", f"s_add_u32 s{sPub}, s{sPub}, {F2}"]
    pinned[SW-1][0] += flag_min() + [f"v_or_b32 v{vPoll}, s{sSkip}, v{vPoll}", f"v_cmp_eq_u32 vcc, 0, v{vPoll}"]
    pinned[SW-1][1] += [f"s_cbranch_vccnz L_kvspin_{nm}", f"L_kvok_{nm}:"]
    sw = switch_ops()
    pinned[SW-1][3] += sw[0]; pinned[SW][0] += sw[1]; pinned[SW][3] += sw[2]
    pinned[SW+2][1] += [f"s_mov_b32 s{sT+2}, {FOOB}", f"s_cmp_eq_u32 s{sT}, 0xff", f"s_cselect_b32 s{sPollOff}, {F0}, s{sT+2}"]
    pinned[SW+3][0] += [f"s_cmp_eq_u32 s{sSkip}, 0", f"s_cselect_b32 s{sPollOff}, {F2}, s{sPollOff}"]
    pinned[21][0] += [poll_ld(f"s{sPollOff}")]
    for i, grp in enumerate(next_ops()):
        pinned[SW + 1 + i][3] += grp
    units = [0, 1] if odd else [2]
    for n, u in enumerate(units):
        ks = 3 + 4 * n
        pinned[ks][3] += [f"s_add_u32 m0, s{sM0}, {9*16384 + n*2048}", f"s_add_u32 s{sT+3}, s{sPs0}, {u*128}",
                          (f"buffer_load_dwordx4 v{vPsrc}, {sr(sP,4)}, s{sT+3} offen{NT_P} lds", "pk")]
        pinned[ks+1][0] += [f"s_add_u32 s{sT+3}, s{sPs1}, {u*128}",
                          (f"buffer_load_dwordx4 v{vPsrc}, {sr(sP,4)}, s{sT+3} offen offset:1024{NT_P} lds", "pk")]
    for n, u in enumerate(units):
        for r in range(4):
            e, rr = r // 2, r % 2
            reg = PF + e * 4 + rr * 2
            pinned[27 + 4*n][[0,1,1,3][r]].append(
                (f"ds_read_b64_tr_b16 {vr(reg,2)}, v{vPtr} offset:{n*2048 + rr*512 + e*64}", f"p{n}"))
        for e in range(2):
            nb = 2 * u + e
            pinned[30 + 4*n][[1, 3][e]].append(
                f"buffer_store_dwordx4 {vr(PF + e*4, 4)}, v{vLane16}, {sr(sPD,4)}, s{sPd0 + nb//3} offen offset:{(nb%3)*1024} sc1")
    if not odd:
        pinned[35][1] += [f"s_mov_b32 s{sP+2}, 0", f"s_mov_b32 s{sPD+2}, 0"]
    q = sum(gelu_ops(1 - accset), [])
    emit_stream(A, accset, pinned, pre, q, 4, vm, lg)

XR = 64
GX = 80
vXd = 76
sXb = 64
def elem_dma(e):
    region = (e + 8) % 40
    if e < 72 and e % 8 < 4:
        n = e % 8
        o = []
        if n == 0:
            o = [f"s_add_u32 m0, s{sM0}, {(region//4)*16384}"]
            o += [f"s_add_u32 s{sXc}, s{sXc}, 128", f"s_cmp_eq_u32 s{sXc}, s{sXend}", f"s_cselect_b32 s{sXc}, s{sXb}, s{sXc}"] if e > 0 else ["s_nop 0"]
        return o + [(f"buffer_load_dwordx4 v{vXd+n}, {sr(sX,4)}, s{sXc} offen offset:{n*1024}{NT_X} lds", f"e{e}")]
    kpos = (e // 8) * 4 + e % 4 if e < 72 else e - 72
    o, ld = w_dma(region, kpos)
    return o + [(ld, f"e{e}")]
def x_reads(j, s):
    out = []
    base = ((8 * j + 8) % 40) * 4096
    seg = base // 57344
    for tb2 in range(2):
        out.append(f"ds_read_b128 {xreg(tb2, 4*j+s)}, v{XR + seg*4 + s} offset:{base - seg*57344 + tb2*4096}")
    return out
def wregion0(ks):
    if ks >= 36: return ks - 36
    return (8 * (ks // 4) + 4 + ks % 4 + 8) % 40
def put_elems(A, vm, es):
    for e in es:
        for ins in elem_dma(e):
            if isinstance(ins, tuple): vm.issue(ins[1]); ins = ins[0]
            A(ins)

def gate_queue():
    a = GX + 24; b = GX + 25
    q = [f"v_mov_b32 v{a}, 0"]
    for i in range(3):
        for k in range(3): q.append(f"v_dot2c_f32_bf16 v{a}, v{GX+4*i+k}, v{GX+12+4*i+k}")
    q += ["s_nop 2"]
    for dpp in ("quad_perm:[1,0,3,2]", "quad_perm:[2,3,0,1]", "row_half_mirror", "row_mirror"):
        q += [f"v_add_f32_dpp v{a}, v{a}, v{a} {dpp} row_mask:0xf bank_mask:0xf", "s_nop 1"]
    q += [f"v_mov_b32 v{b}, v{a}", "s_nop 1", f"v_permlane16_swap_b32 v{a}, v{b}", "s_nop 1",
          f"v_add_f32 v{a}, v{a}, v{b}", f"v_mul_f32 v{a}, {f2u(-math.log2(math.e)):#x}, v{a}",
          f"v_exp_f32 v{a}, v{a}", "s_nop 0", f"v_add_f32 v{a}, 1.0, v{a}", f"v_rcp_f32 v{a}, v{a}", "s_nop 0",
          f"buffer_store_dword v{a}, v{GX+26}, {sr(sWS,4)}, 0 offen sc1"]
    s = GX + 28
    for c in range(2):
        q += [f"buffer_store_dwordx4 {vr(s,4)}, v{vLane16}, {sr(sWS,4)}, s{sO1} offen offset:{c*1024} sc1",
              f"buffer_store_dword v{s}, v{GX+27}, {sr(sWS,4)}, s{sO2} offen offset:{c*1024} sc1"]
    q += [f"buffer_store_dword v{GX+32}, v{GX+33}, {sr(sWS,4)}, s{sPart} offen sc1"]
    return q

def body0(A, vm):
    lg = Counter(15)
    stamp(A, 1)
    A(f"s_waitcnt vmcnt({vm.need('e7')})")
    A("s_barrier")
    stamp(A, 2)
    for s in range(2):
        for ins in x_reads(0, s) + tr_reads(s, wregion0(s)):
            A(ins); lg.issue(f"k{s}")
    for s in range(2, 4):
        for ins in x_reads(0, s):
            A(ins); lg.issue(f"x")
    put_elems(A, vm, range(12, 20))
    pinned = [[[] for _ in range(4)] for _ in range(36)]
    pre = [[] for _ in range(36)]
    e = 20
    elast = 72 + LEAD - 1
    for ks in range(36):
        pre[ks].append(lambda ks=ks: f"s_waitcnt lgkmcnt({lg.need(f'k{ks}')})")
        j = (ks + 2) // 4
        if ks % 4 == 2:
            last = 8 * j + 7 if j < 9 else 75
            pinned[ks][0] += [lambda last=last: f"s_waitcnt vmcnt({vm.need(f'e{last}')})", "s_barrier"]
        if ks % 4 >= 2 and j < 9:
            s0 = 2 * (ks % 4 - 2)
            xs = x_reads(j, s0) + x_reads(j, s0 + 1)
            for r in range(4): pinned[ks][r].append((xs[r], "x"))
        for r, ins in enumerate(tr_reads((ks + 2) % 36, wregion0(ks + 2))):
            pinned[ks][r].append((ins, f"k{ks+2}"))
        for m in ((0, 1, 2, 3) if ks < 2 else (1, 3)):
            if e <= elast:
                assert e < 40 or e <= 40 + 8 * (j - 1) + 6
                if e == 72:
                    pinned[ks][m - 1] += sum(switch_ops(), [])
                    for i, grp in enumerate(next_ops()):
                        pinned[ks + 1 + i][2] += grp
                pinned[ks][m] += elem_dma(e); e += 1
    assert e == elast + 1, e
    pinned[22][2] += [(f"buffer_load_dword v{GX+34}, off, {sr(sDB,4)}, 0 sc1", "ini")]
    pinned[34][1] += [lambda: f"s_waitcnt vmcnt({vm.need('ini')})", f"v_cmp_eq_u32 vcc, 0, v{GX+34}"]
    pinned[34][2] += ["s_cbranch_vccnz L_inispin", "L_iniok:"]
    emit_stream(A, 0, pinned, pre, gate_queue(), 12, vm, lg, maxpin=2)

def setup_sub(A):
    t = sT
    A(f"""
L_setup:
    s_mov_b64 {sr(sWn,2)}, {sr(sFb,2)}
    s_mov_b32 s{sWn+2}, {WG_SIZE}
    s_movk_i32 s{t+1}, 9216
    s_lshl_b32 s{t+2}, s{t}, 7
    s_mov_b32 s{t+4}, 0
    s_cmp_lt_u32 s{t}, 72
    s_cbranch_scc1 L_setup_fin
    s_cmp_lt_u32 s{t}, 77
    s_cbranch_scc0 L_setup_kv
    s_mov_b64 {sr(sWn,2)}, {sr(S_WQ,2)}
    s_movk_i32 s{t+1}, 1152
    s_sub_u32 s{t+2}, s{t}, 72
    s_lshl_b32 s{t+2}, s{t+2}, 1
    s_lshr_b32 s{t+3}, s{sWave}, 1
    s_add_u32 s{t+2}, s{t+2}, s{t+3}
    s_lshl_b32 s{t+2}, s{t+2}, 7
    s_cmp_lt_u32 s{t+2}, 1152
    s_cselect_b32 s{sWn+2}, {576*1152}, 0
    s_branch L_setup_fin
L_setup_kv:
    s_cmp_eq_u32 s{t}, 77
    s_cbranch_scc0 L_setup_ret
    s_cmp_lt_u32 s{sWave}, 2
    s_cselect_b64 {sr(sWn,2)}, {sr(S_WK,2)}, {sr(S_WV,2)}
    s_sub_u32 s{sWn}, s{sWn}, 3072
    s_subb_u32 s{sWn+1}, s{sWn+1}, 0
    s_movk_i32 s{sWn+2}, {576*36 + 3072}
    s_movk_i32 s{t+1}, 36
    s_mov_b32 s{t+2}, 0
    s_movk_i32 s{t+4}, 3072
L_setup_fin:
    s_lshl_b32 s{nStep}, s{t+1}, 6
    s_lshl_b32 s{nD}, s{t+1}, 4
    s_sub_u32 s{nD}, s{nD}, 1024
    s_and_b32 s{t+3}, s{sWave}, 1
    s_mul_i32 s{t+3}, s{t+3}, s{t+1}
    s_lshl_b32 s{t+3}, s{t+3}, 3
    s_add_u32 s{nOff}, s{t+2}, s{t+3}
    s_mul_i32 s{t+3}, s{sRot}, s{nStep}
    s_add_u32 s{nStart}, s{nOff}, s{t+3}
    v_mad_u32_u24 v{vNext}, v{vR8}, s{t+1}, v{vC16}
    v_add_u32 v{vNext}, s{t+4}, v{vNext}
    s_setpc_b64 {sr(sLink2,2)}
L_setup_ret:
    s_mov_b64 {sr(sWn,2)}, {sr(S_WS,2)}
    s_mov_b32 s{sWn+2}, {WS_SIZE}
    v_mov_b32 v{vNext}, v{vLane16}
    s_setpc_b64 {sr(sLink2,2)}
""")

def special_sub(A):
    sc1 = " sc1"
    t = sT
    A(f"""
L_special:
    s_bfe_u32 s{t}, s{sTab}, 0x80010
    s_call_b64 {sr(sLink2,2)}, L_setup
    s_mov_b32 s{sH+2}, {WS_SIZE}
    s_and_b32 s{t}, s{sTab}, 0xff
    s_cmp_lt_u32 s{t}, 72
    s_cbranch_scc1 L_special_ret
    s_mov_b32 s{sH+2}, 0
    s_cmp_eq_u32 s{sPar}, 0
    s_cbranch_scc1 L_special_go
""")
    for i in range(64): A(f"v_mov_b32 v{i}, v{64+i}")
    A(f"""
L_special_go:
    s_cmp_eq_u32 s{t}, 77
    s_cbranch_scc1 L_special_kv
    s_lshl_b32 s{t+1}, s{sTb}, 1
    s_lshr_b32 s{t+2}, s{sWave}, 1
    s_add_u32 s{t+1}, s{t+1}, s{t+2}
    s_mul_i32 s{t+1}, s{t+1}, {64*1152}
    s_sub_u32 s{t+2}, s{t}, 72
    s_lshl_b32 s{t+2}, s{t+2}, 8
    s_add_u32 s{t+1}, s{t+1}, s{t+2}
    s_and_b32 s{t+2}, s{sWave}, 1
    s_lshl_b32 s{t+2}, s{t+2}, 6
    s_add_u32 s{t+1}, s{t+1}, s{t+2}
    s_add_u32 s{t+1}, s{t+1}, {WS_Q}
    s_add_u32 s{t+2}, s{t+1}, {32*1152}
    s_mov_b32 s{t+3}, {f2u(QSCALE):#x}
""")
    for i in range(64): A(f"v_mul_f32 v{i}, s{t+3}, v{i}")
    for i in range(32): A(f"v_cvt_pk_bf16_f32 v{64+i}, v{2*i}, v{2*i+1}")
    for half in range(2):
        if half == 1:
            A(f"s_cmp_eq_u32 s{t}, 76")
            A("s_cbranch_scc1 L_special_ret")
        for blk in range(4):
            a, tb2 = blk // 2, blk % 2
            A(f"buffer_store_dwordx4 {vr(64 + blk*8 + half*4, 4)}, v{vQa}, {sr(sWS,4)}, s{t+1+tb2} offen offset:{a*32 + half*128}{sc1}")
    A(f"""
    s_branch L_special_ret
L_special_kv:
    v_and_b32 v{vT}, 31, v{vLane}
    v_lshrrev_b32 v{vT+1}, 5, v{vLane}
    s_mul_i32 s{t+1}, s{sTb}, {KV_GS}
    s_add_u32 s{t+1}, s{t+1}, {WS_KV}
    s_lshr_b32 s{t+2}, s{sWave}, 1
    s_and_b32 s{t+3}, s{sWave}, 1
    s_cmp_eq_u32 s{t+3}, 0
    s_cbranch_scc1 L_special_kv0
    s_mul_i32 s{t+2}, s{t+2}, {2*KV_VT}
    v_and_b32 v{vT}, 3, v{vLane}
    v_mul_u32_u24 v{vT}, {KV_VF}, v{vT}
    v_and_b32 v{vT+1}, 4, v{vLane}
    v_lshl_add_u32 v{vT}, v{vT+1}, 2, v{vT}
    v_cmp_eq_u32 vcc, 0, v{vT+1}
    v_add_u32 v{vT}, s{t+2}, v{vT}
    v_mov_b32 v65, 0x3f803f80
    v_cndmask_b32 v64, 0, v65, vcc
    v_add_u32 v{vT}, {KV_V + 576}, v{vT}
    v_mov_b32 v{vT+1}, {KV_K2 + 512}
    v_cmp_eq_u32 vcc, 8, v{vLane}
    v_mov_b32 v{vT+2}, 0x40000000
    v_mov_b32 v65, v64
    v_cndmask_b32 v{vT}, v{vT}, v{vT+1}, vcc
    v_cmp_lt_u32 vcc, 8, v{vLane}
    v_mov_b32 v66, v64
    v_mov_b32 v67, v64
    v_cndmask_b32 v{vT}, v{vT}, v{vT+2}, vcc
    buffer_store_dwordx4 v[64:67], v{vT}, {sr(sWS,4)}, s{t+1} offen{sc1}
    s_branch L_special_ret
L_special_kv0:
""")
    for i in range(32): A(f"v_cvt_pk_bf16_f32 v{64+i}, v{2*i}, v{2*i+1}")
    A(f"""
    s_lshl_b32 s{t+3}, s{t+2}, 11
    s_add_u32 s{t+3}, s{t+3}, s{t+1}
    s_lshl_b32 s{t+4}, s{t+2}, 3
    s_add_u32 s{t+4}, s{t+4}, s{t+1}
    s_add_u32 s{t+4}, s{t+4}, {KV_K2}         ; K2 base
    s_mul_i32 s{t+5}, s{t+2}, {2*KV_VT}
    s_add_u32 s{t+5}, s{t+5}, s{t+1}
    s_add_u32 s{t+5}, s{t+5}, {KV_V}          ; V base
    v_lshrrev_b32 v{vT+2}, 4, v{vT}
    v_mul_u32_u24 v{vT+2}, {KV_VF}, v{vT+2}
    v_bfe_u32 v{vT+3}, v{vT}, 2, 1
    v_mul_u32_u24 v{vT+3}, 288, v{vT+3}
    v_add_u32 v{vT+2}, v{vT+2}, v{vT+3}
    v_and_b32 v{vT+3}, 3, v{vT}
    v_lshl_add_u32 v{vT+2}, v{vT+3}, 1, v{vT+2}
    v_and_b32 v{vT+3}, 8, v{vT}
    v_add_u32 v{vT+2}, v{vT+2}, v{vT+3}
    v_lshl_add_u32 v{vT+3}, v{vT+1}, 7, v{vT+2}
    v_lshl_add_u32 v{vT+2}, v{vT+1}, 30, v{vT+2}
    v_lshl_add_u32 v{vT+4}, v{vT+1}, 30, v{vLane16}
""")
    for tb2 in range(2):
        b0 = 64 + tb2 * 8
        b1 = 64 + (2 + tb2) * 8
        A(f"buffer_store_dwordx4 {vr(b0,4)}, v{vLane16}, {sr(sWS,4)}, s{t+3} offen offset:{tb2*1024}{sc1}")
        A(f"buffer_store_dword v{b1}, v{vT+4}, {sr(sWS,4)}, s{t+4} offen offset:{tb2*4}{sc1}")
        for i in range(8):
            op = "buffer_store_short" if i % 2 == 0 else "buffer_store_short_d16_hi"
            A(f"{op} v{b0+4+i//2}, v{vT+3}, {sr(sWS,4)}, s{t+5} offen offset:{tb2*KV_VT + i*16}{sc1}")
        for i in range(2):
            op = "buffer_store_short" if i % 2 == 0 else "buffer_store_short_d16_hi"
            A(f"{op} v{b1+4}, v{vT+2}, {sr(sWS,4)}, s{t+5} offen offset:{tb2*KV_VT + (16+i)*16}{sc1}")
    A(f"""
L_special_ret:
    s_nop 1
    s_setpc_b64 {sr(sLink,2)}
""")

def spin(A, soff, name, back):
    A(f"""
L_{name}:
    s_mov_b32 s{sT+5}, 0x40000
L_{name}_l:
    {poll_ld(soff)}
    s_sub_u32 s{sT+5}, s{sT+5}, 1
    s_cbranch_scc1 {back}
    s_waitcnt vmcnt(0)
""")
    A.many(flag_min())
    A(f"""
    v_cmp_eq_u32 vcc, 0, v{vPoll}
    s_cbranch_vccz {back}
    s_sleep 8
    s_branch L_{name}_l
""")

def phase1(A):
    t = sT
    stamp(A, 0)
    A(f"""
    s_cmp_ge_u32 s2, 256
    s_cbranch_scc1 L_end
    s_load_dwordx16 s[4:19], s[0:1], 0
    s_load_dwordx8 s[20:27], s[0:1], 64
    s_load_dwordx2 s[28:29], s[0:1], 96
    s_getpc_b64 {sr(sLink,2)}
L_pc1:
    s_bfe_u32 s{sXq}, s2, 0x20001
    s_lshr_b32 s{sQi}, s2, 6
    s_lshl_b32 s{t}, s{sXq}, 2
    s_add_u32 s{t}, s{t}, s{sQi}            ; jg
    s_lshl_b32 s{t+1}, s{t}, 3
    s_add_u32 s{t+1}, s{t+1}, L_jobtab-L_pc1
    s_load_dwordx2 {sr(sTab,2)}, {sr(sLink,2)}, s{t+1}
    v_lshrrev_b32 v1, 6, v0
    v_and_b32 v{vLane}, 63, v0
    v_readfirstlane_b32 s{sWave}, v1
    v_lshlrev_b32 v{vLane16}, 4, v{vLane}
    s_and_b32 s{t}, s{t}, 11
    s_cmp_eq_u32 s{t}, 3
    s_cselect_b32 s{sSpecial}, 1, 0
    s_and_b32 s{t}, s2, 1
    s_lshl_b32 s{t}, s{t}, 3
    s_bfe_u32 s{t+1}, s2, 0x30003
    s_add_u32 s{sTb}, s{t}, s{t+1}
    s_lshl_b32 s{t}, s{sQi}, 1
    s_add_u32 s{t}, s{t}, s{t+1}
    s_cmp_ge_u32 s{t}, 9
    s_cselect_b32 s{t+1}, 9, 0
    s_sub_u32 s{t+5}, s{t}, s{t+1}
    {"s_mov_b32 s%d, 0" % (t+5) if common.OPT.get("norot") else ""}
    s_sub_u32 s{sRot}, s{t+5}, 1
    v_lshrrev_b32 v{vR8}, 3, v{vLane}
    v_and_b32 v1, 7, v{vLane}
    s_lshl_b32 s{sM0}, s{sWave}, 12
    s_lshr_b32 s{t+2}, s{sWave}, 1
    s_and_b32 s{t+3}, s{sWave}, 1
    v_and_b32 v2, 2, v{vR8}
    v_xor_b32 v2, v1, v2
    s_lshl_b32 s{t+4}, s{t+2}, 2
    v_xor_b32 v2, s{t+4}, v2
    v_lshlrev_b32 v{vC16}, 4, v2
    v_lshrrev_b32 v2, 1, v{vR8}
    v_xor_b32 v2, v1, v2
    v_lshlrev_b32 v2, 4, v2
    v_mul_u32_u24 v3, 1152, v{vR8}
    v_add_u32 v{vXd}, v2, v3
    v_xor_b32 v2, 64, v{vXd}
    v_add_u32 v{vXd+1}, {8*1152-1024}, v2
    v_add_u32 v{vXd+2}, {2*(8*1152-1024)}, v{vXd}
    v_add_u32 v{vXd+3}, {3*(8*1152-1024)}, v2
    s_lshl_b32 s{t+4}, s{sTb}, 2
    s_add_u32 s{t+4}, s{t+4}, s{sWave}
    s_mul_i32 s{sXb}, s{t+4}, {32*1152}
    s_lshl_b32 s{t+5}, s{t+5}, 7
    s_add_u32 s{sXc}, s{sXb}, s{t+5}
    s_mov_b32 s{sX+2}, {2048*1152}
    s_mov_b32 s{sX+3}, {SRD3}
    s_mov_b32 s{sW+3}, {SRD3}
    s_waitcnt lgkmcnt(0)
    s_mov_b64 {sr(sX,2)}, {sr(S_X,2)}
""")
    vm = Counter(63)
    put_elems(A, vm, range(0, 4))
    A(f"""
    s_cmp_lt_u32 s{sWave}, 2
    s_cselect_b64 {sr(sFb,2)}, {sr(S_WG,2)}, {sr(S_WU,2)}
    s_bfe_u32 s{t}, s{sTab}, 0x80008
    s_call_b64 {sr(sLink2,2)}, L_setup
""")
    for g in switch_ops(): A.many(g)
    put_elems(A, vm, range(4, 8))
    A(f"""
    s_bfe_u32 s{t}, s{sTab}, 0x80010
    s_call_b64 {sr(sLink2,2)}, L_setup
    s_add_u32 s{sXend}, s{sXb}, 1152
""")
    put_elems(A, vm, range(8, 12))
    W = sPar
    A(f"""
    s_mov_b64 {sr(sWS,2)}, {sr(S_WS,2)}
    s_mov_b32 s{sWS+2}, {WS_SIZE}
    s_mov_b32 s{sWS+3}, {SRD3}
    s_mov_b64 {sr(sDB,2)}, {sr(S_DBG,2)}
    s_movk_i32 s{sDB+2}, 256
    s_mov_b32 s{sDB+3}, {SRD3}
    s_mov_b32 s{sOUT+2}, {2048*1152}
    s_mov_b32 s{sOUT+3}, {SRD3}
    s_mov_b64 {sr(sH,2)}, {sr(S_WS,2)}
    s_mov_b32 s{sH+2}, {WS_SIZE}
    s_mov_b32 s{sH+3}, {SRD3}
    s_mov_b64 {sr(sPD,2)}, {sr(S_WS,2)}
    s_mov_b32 s{sPD+3}, {SRD3}
    s_mov_b32 s{sP+3}, {SRD3}
    s_mov_b32 s{sC2}, {f2u(GC2):#x}
    v_mov_b32 v{vC1}, {f2u(GC1):#x}
    s_movk_i32 s{t+4}, 9216
    v_mad_u32_u24 v{vF}, v{vR8}, s{t+4}, v{vC16}
    s_add_u32 s{sKVoff}, s{sM0}, {WS_KV}
    s_lshl_b32 s{W}, s2, 2
    s_add_u32 s{W}, s{W}, s{sWave}
    s_lshr_b32 s{t+2}, s{sWave}, 1
    s_and_b32 s{t+3}, s{sWave}, 1
    s_mul_i32 s{sRowOff}, s{t+3}, {8*9216}
    s_lshl_b32 s{t}, s{sTb}, 1
    s_add_u32 s{t}, s{t}, s{t+2}
    s_mul_i32 s{sHbase}, s{t}, {HO_G}
    s_lshl_b32 s{t}, s{t+3}, 12
    s_add_u32 s{sHbase}, s{sHbase}, s{t}
    v_and_b32 v32, 3, v{vLane}              ; c
    v_lshrrev_b32 v33, 1, v32
    v_and_b32 v32, 1, v32
    v_lshl_add_u32 v32, v32, 1, v33         ; perm(c)
    v_lshlrev_b32 v32, 3, v32
    v_bfe_u32 v33, v{vLane}, 2, 2           ; r4
    v_lshl_add_u32 v32, v33, 7, v32
    v_bfe_u32 v34, v{vLane}, 4, 1
    v_lshrrev_b32 v35, 5, v{vLane}          ; hh
    v_lshl_add_u32 v36, v34, 5, v32
    v_lshl_add_u32 v36, v35, 10, v36
    s_add_u32 s{t}, s{sM0}, {9*16384}
    v_add_u32 v{vPtr}, s{t}, v36
    v_lshrrev_b32 v33, 1, v33
    v_lshl_add_u32 v33, v34, 1, v33
    s_lshl_b32 s{t}, s{t+3}, 1
    v_xor_b32 v33, s{t}, v33
    v_lshl_add_u32 v32, v33, 5, v32
    v_lshl_add_u32 v32, v34, 13, v32
    v_lshl_add_u32 v{vTR}, v35, 12, v32
    v_xor_b32 v{vTR+1}, 32, v{vTR}
    v_add_u32 v{vTR+2}, {12*4096}, v{vTR}
    v_add_u32 v{vTR+3}, {12*4096}, v{vTR+1}
    v_add_u32 v{vTR+4}, {24*4096}, v{vTR}
    v_add_u32 v{vTR+5}, {24*4096}, v{vTR+1}
    v_and_b32 v37, 31, v{vLane}             ; n
    v_bfe_u32 v33, v{vLane}, 1, 3
    v_xor_b32 v33, v33, v35
    v_lshlrev_b32 v33, 4, v33
    v_lshl_add_u32 v32, v37, 7, v33
    s_lshl_b32 s{t}, s{t+2}, 13
    v_add_u32 v{XR}, s{t}, v32
    v_xor_b32 v{XR+1}, 32, v{XR}
    v_xor_b32 v{XR+2}, 64, v{XR}
    v_xor_b32 v{XR+3}, 0x60, v{XR}
""")
    for seg in (1, 2):
        for s in range(4): A(f"v_add_u32 v{XR+seg*4+s}, {seg*57344}, v{XR+s}")
    A(f"""
    v_mul_u32_u24 v{vQa}, 1152, v37
    v_lshl_add_u32 v{vQa}, v35, 4, v{vQa}
    v_lshlrev_b32 v{vLane4}, 2, v{vLane}
    v_bfe_u32 v32, v{vLane}, 2, 1
    v_bfe_u32 v33, v{vLane}, 3, 1
    v_lshlrev_b32 v32, 3, v32
    v_lshl_add_u32 v32, v33, 2, v32
    v_and_b32 v33, 0x13, v{vLane}
    v_or_b32 v32, v32, v33
    v_mul_u32_u24 v33, 18, v35
    v_cmp_gt_u32 vcc, 18, v37
    v_add_u32 v32, v32, v33
    v_and_b32 v33, 27, v37
    v_cndmask_b32 v32, 37, v32, vcc
    v_cmp_ne_u32 vcc, 18, v33
    v_mul_u32_u24 v4, 12, v37
    s_lshl_b32 s{t+5}, s{W}, 1
    v_cndmask_b32 v32, 36, v32, vcc
    v_lshlrev_b32 v{vAV}, 4, v32
    v_add_u32 v5, s{t+5}, v35               ; token
    v_mul_u32_u24 v6, 1152, v5
    v_add_u32 v6, v6, v4
    v_cmp_eq_u32 vcc, 0, v37
    v_lshlrev_b32 v5, 2, v5
    v_add_u32 v5, {WS_G}, v5
    v_mov_b32 v33, 0x40000000
    v_cndmask_b32 v{GX+26}, v33, v5, vcc
    v_lshl_add_u32 v{GX+27}, v35, 30, v{vLane16}
    v_mov_b32 v{GX+28}, -1
    v_mov_b32 v{GX+29}, -1
    v_mov_b32 v{GX+30}, -1
    v_mov_b32 v{GX+31}, -1
    v_mov_b32 v{GX+32}, 0
    v_cmp_eq_u32 vcc, 0, v0
    v_mov_b32 v{vOne}, 1
    s_mov_b32 s{sSkip}, 1
    v_cndmask_b32 v{vFlagOff}, v33, 0, vcc
    s_lshl_b32 s{t}, s{sTb}, 2
    s_add_u32 s{t}, s{t}, {F0}
    s_bfe_u32 s{t+1}, s{sTab}, 0x80008
    s_cmp_eq_u32 s{t+1}, 77
    s_cselect_b32 s{sPub}, s{t}, {FOOB}
    ; pack params: ks = W/3, a = W%3
    s_mul_i32 s{t}, s{W}, 21846
    s_lshr_b32 s{t}, s{t}, 16
    s_mul_i32 s{t+1}, s{t}, 3
    s_sub_u32 s{t+1}, s{W}, s{t+1}
    s_mul_i32 s{sPd0}, s{t+1}, {2*WP_T}
    s_mul_i32 s{t+2}, s{t}, 3072
    s_add_u32 s{sPd0}, s{sPd0}, s{t+2}
    s_add_u32 s{sPd0}, s{sPd0}, {WS_WP}
    s_add_u32 s{sPd1}, s{sPd0}, {WP_T}
    s_cmp_lt_u32 s{t}, 324
    s_cselect_b32 s{sPD+2}, {WS_SIZE}, 0
    s_mul_i32 s{t+1}, s{t+1}, 384
    v_and_b32 v32, 7, v{vLane}
    v_lshlrev_b32 v32, 4, v32
    s_movk_i32 s{t+4}, 1152
    v_mad_u32_u24 v{vPsrc}, v{vR8}, s{t+4}, v32
    s_mov_b64 {sr(sP,2)}, {sr(S_WD,2)}
    s_mov_b32 s{sP+2}, {4608*1152}
    s_mul_i32 s{sPs0}, s{t}, {16*1152}
    s_movk_i32 s{t+3}, {8*1152}
    s_cmp_lt_u32 s{t}, 288
    s_cbranch_scc1 L_pk_done
    s_mov_b64 {sr(sP,2)}, {sr(S_WO,2)}
    s_mov_b32 s{sP+2}, {576*1152}
    s_sub_u32 s{t+2}, s{t}, 288
    s_mul_i32 s{sPs0}, s{t+2}, {18*1152}
    s_cmp_lt_u32 s{t}, 320
    s_cbranch_scc1 L_pk_done
    s_sub_u32 s{t+2}, s{t}, 320
    s_mul_i32 s{sPs0}, s{t+2}, {144*1152}
    s_add_u32 s{sPs0}, s{sPs0}, {16*1152}
    s_mov_b32 s{t+3}, {72*1152}
    v_lshrrev_b32 v34, 1, v{vR8}
    v_mul_u32_u24 v34, 18, v34
    v_and_b32 v36, 1, v{vR8}
    v_add_u32 v34, v34, v36
    v_mad_u32_u24 v{vPsrc}, v34, s{t+4}, v32
L_pk_done:
    s_add_u32 s{sPs0}, s{sPs0}, s{t+1}
    s_add_u32 s{sPs1}, s{sPs0}, s{t+3}
    s_sub_u32 s{sPs1}, s{sPs1}, 1024
    s_mov_b64 {sr(sLink,2)}, {sr(S_GW,2)}
""")
    g64, head, nt = t, t + 1, t + 2
    A(f"""
    s_and_b32 s{t+3}, s{sXq}, 1
    s_lshl_b32 s{g64}, s{sTb}, 1
    s_add_u32 s{g64}, s{g64}, s{t+3}
    s_lshr_b32 s{t+3}, s{sXq}, 1            ; nhalf
    s_lshl_b32 s{head}, s{t+3}, 2
    s_add_u32 s{head}, s{head}, s{sQi}
    s_lshl_b32 s{head}, s{head}, 2
    s_add_u32 s{head}, s{head}, s{sWave}
    s_mul_i32 s{t+3}, s{t+3}, 3
    s_mul_i32 s{t+4}, s{sWave}, {KM}
    s_cmp_eq_u32 s{sQi}, 3
    s_cselect_b32 s{nt}, s{sWave}, s{sQi}
    s_cselect_b32 s{t+4}, {4*KM}, s{t+4}
    s_add_u32 s{nt}, s{nt}, s{t+3}
    ; W side
    s_mul_i32 s{t+3}, s{nt}, {WP_T}
    s_add_u32 s{t+3}, s{t+3}, {WS_WP}
    s_mul_i32 s{t+5}, s{t+4}, 3072
    s_add_u32 s{t+5}, s{t+5}, s{t+3}
    s_add_u32 s{sWp}, s{S_WS}, s{t+5}
    s_addc_u32 s{sWp+1}, s{S_WS+1}, 0
    s_mul_i32 s{t+5}, s{sWave}, {9*3072}
    s_add_u32 s{t+5}, s{t+5}, s{t+3}
    s_add_u32 s{t+5}, s{t+5}, {288*3072}
    s_add_u32 s{sWo}, s{S_WS}, s{t+5}
    s_addc_u32 s{sWo+1}, s{S_WS+1}, 0
    ; h side
    s_mul_i32 s{t+3}, s{g64}, {HO_G}
    s_lshl_b32 s{t+5}, s{t+4}, 11
    s_add_u32 s{t+5}, s{t+5}, s{t+3}
    s_add_u32 s{sHp}, s{S_WS}, s{t+5}
    s_addc_u32 s{sHp+1}, s{S_WS+1}, 0
    s_mul_i32 s{t+5}, s{sWave}, {9*2048}
    s_add_u32 s{t+5}, s{t+5}, s{t+3}
    s_add_u32 s{t+5}, s{t+5}, {288*2048}
    s_add_u32 s{sHo}, s{S_WS}, s{t+5}
    s_addc_u32 s{sHo+1}, s{S_WS+1}, 0
    s_lshl_b32 s{sO1}, s{head}, 11
    s_add_u32 s{sO1}, s{sO1}, s{t+3}
    s_add_u32 s{sO1}, s{sO1}, {288*2048}
    s_lshr_b32 s{sO2}, s{head}, 3
    s_lshl_b32 s{sO2}, s{sO2}, 11
    s_add_u32 s{sO2}, s{sO2}, s{t+3}
    s_bfe_u32 s{t+5}, s{head}, 0x10002
    s_lshl_b32 s{t+5}, s{t+5}, 9
    s_add_u32 s{sO2}, s{sO2}, s{t+5}
    s_lshl_b32 s{t+5}, s{sWave}, 2
    s_add_u32 s{sO2}, s{sO2}, s{t+5}
    s_add_u32 s{sO2}, s{sO2}, {320*2048}
    ; q / g offsets
    s_mul_i32 s{sQoff}, s{g64}, {64*1152}
    s_mul_i32 s{t+5}, s{head}, 36
    s_add_u32 s{sQoff}, s{sQoff}, s{t+5}
    s_add_u32 s{sQoff}, s{sQoff}, {WS_Q}
    s_lshl_b32 s{sGoff}, s{g64}, 8
    s_add_u32 s{sGoff}, s{sGoff}, {WS_G}
    s_mul_i32 s{sPart}, s{g64}, 6
    s_add_u32 s{sPart}, s{sPart}, s{nt}
    s_mul_i32 s{sPart}, s{sPart}, {PART_T}
    s_add_u32 s{sPart}, s{sPart}, {WS_PART}
    s_lshl_b32 s{t+3}, s{g64}, 1
    s_lshr_b32 s{t+5}, s{sWave}, 1
    s_add_u32 s{t+3}, s{t+3}, s{t+5}
    s_mul_i32 s{sOutOff}, s{t+3}, {32*1152}
    s_mul_i32 s{t+5}, s{nt}, 192
    s_add_u32 s{sOutOff}, s{sOutOff}, s{t+5}
    s_and_b32 s{t+5}, s{sWave}, 1
    s_mul_i32 s{t+5}, s{t+5}, 96
    s_add_u32 s{sOutOff}, s{sOutOff}, s{t+5}
    s_lshl_b32 s{t+5}, s{sQi}, 2
    s_add_u32 s{t+5}, s{t+5}, s{sWave}
    s_sub_u32 s{t+5}, s{t+5}, 12
    s_cmp_lt_u32 s{t+5}, 3
    s_cselect_b32 s{t+5}, 0, 64
    v_mov_b32 v32, 24576
    v_cmp_eq_u32 vcc, s{t+5}, v{vLane}
    s_nop 1
    v_cndmask_b32 v{GX+33}, v33, v32, vcc
""")
    A(f"""
    s_cmp_eq_u32 s{W}, 771
    s_cbranch_scc1 L_flaginit
L_flaginit_ret:
""")
    for i in range(3):
        A(f"global_load_dwordx3 {vr(GX+4*i,3)}, v6, {sr(sX,2)} offset:{384*i}"); vm.issue("g")
        A(f"global_load_dwordx3 {vr(GX+12+4*i,3)}, v4, {sr(sLink,2)} offset:{384*i}"); vm.issue("g")
    body0(A, vm)
    A(f"""
L_loop:
    s_cmp_eq_u32 s{sSpecial}, 0
    s_cbranch_scc1 L_odd
    s_mov_b32 s{sPar}, 0
    s_call_b64 {sr(sLink,2)}, L_special
L_odd:
""")
    body(A, True)
    A(f"""
    s_cmp_eq_u32 s{sSpecial}, 0
    s_cbranch_scc1 L_even
    s_bfe_u32 s{t}, s{sTab}, 0x80008
    s_cmp_eq_u32 s{t}, 0xff
    s_cbranch_scc1 L_last_odd
    s_mov_b32 s{sPar}, 1
    s_call_b64 {sr(sLink,2)}, L_special
L_even:
""")
    body(A, False)
    A(f"""
    s_bfe_u32 s{t}, s{sTab}, 0x80008
    s_cmp_eq_u32 s{t}, 0xff
    s_cbranch_scc0 L_loop
L_p1_final:
""")

def phase1_tail(A):
    A("L_last_odd:")
    A("s_nop 7")
    for i in range(64): A(f"v_mov_b32 v{i}, v{64+i}")
    A(f"s_mov_b32 s{sH+2}, {WS_SIZE}")
    A("s_branch L_p1_final")
    setup_sub(A)
    special_sub(A)
    spin(A, f"s{sPollOff}", "kvspin_o", "L_kvok_o")
    spin(A, f"s{sPollOff}", "kvspin_e", "L_kvok_e")
    A(f"""
L_flaginit:
    v_cmp_lt_u32 vcc, 3, v{vLane}
    v_mov_b32 v12, 0
    v_mov_b32 v13, 0
    v_cndmask_b32 v8, 0, 1, vcc
    v_mov_b32 v14, 0
    v_mov_b32 v15, 0
    v_mov_b32 v9, v8
    v_mov_b32 v10, v8
    v_mov_b32 v11, v8
    s_mov_b32 s{sT}, {WS_FL}
    buffer_store_dwordx4 v[8:11], v{vLane16}, {sr(sWS,4)}, s{sT} offen sc1
    buffer_store_dwordx4 v[12:15], v{vLane16}, {sr(sWS,4)}, s{sT} offen offset:1024 sc1
    buffer_store_dwordx4 v[12:15], v{vLane16}, {sr(sWS,4)}, s{sT} offen offset:2048 sc1
    s_waitcnt vmcnt(0)
    buffer_store_dword v{vOne}, off, {sr(sDB,4)}, 0 sc1
    s_branch L_flaginit_ret
L_inispin:
    s_mov_b32 s{sT+5}, 0x40000
L_inispin_l:
    buffer_load_dword v{GX+34}, off, {sr(sDB,4)}, 0 sc1
    s_sub_u32 s{sT+5}, s{sT+5}, 1
    s_cbranch_scc1 L_iniok
    s_waitcnt vmcnt(0)
    v_cmp_eq_u32 vcc, 0, v{GX+34}
    s_cbranch_vccz L_iniok
    s_sleep 8
    s_branch L_inispin_l
""")

def jobtab(A):
    tab, _, _ = job_table()
    A(".p2align 3")
    A(".type L_jobtab,@object")
    A("L_jobtab:")
    for b in tab:
        A(".byte " + ", ".join(str(x) for x in b))
```

```python
from common import *
import common
import phase1 as p1
from phase1 import (sWS, sDB, sWave, sQi, sT, sM0, sPub, sPollOff, sLink, sTab, sHoff, sHbase, sW, sOff, sStep,
                    sHp, sWp, sHo, sWo, sO1, sO2, sQoff, sGoff, sOUT, sPart, sOutOff,
                    vLane, vLane16, vLane4, vFlagOff, vPoll, vOne, vT, vQa, vAV, vDma, LEAD,
                    F0, F2, F4, FOOB, poll_ld, flag_min)
GACC = 0
Q1 = [96, 100]; Q2 = [[104, 106], [108, 110]]
S = [112, 128]; P = [144, 152]; O = [160, 176]
K1 = [192, 196]; V = [200, 208]; K2 = [216, 220]
AK, AK2, AV = 224, 225, vAV
vO = [226, 227, 228, 229]
vG = [231, 232]
vQt = [236, 237]
vZ = 238
ZP = 246
WOA = 160
sIt, sNA = 36, 37
vPf = 251

def gld(dst, base, byteoff):
    j = byteoff // 8192
    return f"global_load_dwordx4 {dst}, v{vO[j]}, {sr(base,2)} offset:{byteoff - j*8192 - 4096} sc1"
def stage(s): return 20 * s
def gacc(n, c): return vr(GACC + (c * 3 + n) * 16, 16)
def g_mfma(st, n, c):
    return mfma16(gacc(n, c), ar(stage(st) + 8 + 4 * n, 4), ar(stage(st) + 4 * c, 4), gacc(n, c))
def ld_h(st, ks, i): return gld(ar(stage(st) + 4 * i, 4), sHp, ks * 2048 + i * 1024)
def ld_w(st, ks, n): return gld(ar(stage(st) + 8 + 4 * n, 4), sWp, ks * 3072 + n * 1024)
def wo_reg(ks, n): return ar(WOA + 12 * ks + 4 * n, 4) if ks < 8 else ar(stage(2) + 8 + 4 * n, 4)
def ld_wo(ks, n): return gld(wo_reg(ks, n), sWo, ks * 3072 + n * 1024)

def off_k1(t): return (t >> 2) * KV_GS + (t & 3) * 1024
def off_v(t, f): return (t >> 2) * KV_GS + KV_V + (t & 3) * KV_VT + f * KV_VF
def off_k2(g): return g * KV_GS + KV_K2

def qk8(u):
    c, t = u & 1, u >> 1
    return mfma8(vr(S[c], 16), vr(K2[(t // 4) % 2] + 2 * ((t % 4) // 2), 2), vr(Q2[c][t % 2], 2), "0")
def qk16(u):
    c, t = u & 1, u >> 1
    return mfma16(vr(S[c], 16), vr(K1[t % 2], 4), vr(Q1[c], 4), vr(S[c], 16))
def pv(u, f):
    c, t = u & 1, u >> 1
    return mfma16(vr(O[c], 16), vr(V[t % 2] + 4 * f, 4), vr(P[c] + 4 * f, 4), vr(O[c], 16))
def zero16(r): return mfma8(vr(r, 16), vr(ZP, 2), vr(ZP, 2), "0")

POS_M = (16, 40, 64, 84, 104, 128, 152)
POS_A = (16, 56, 88, 136)
def att_body(A, kind):
    nvm = 0
    for u in range(16):
        c, t = u & 1, u >> 1
        s, p = S[c], P[c]
        valu = [f"v_exp_f32 v{s+i}, v{s+i}" for i in range(8)] + [f"v_cvt_pk_bf16_f32 v{p+i}, v{s+2*i}, v{s+2*i+1}" for i in range(4)]
        valu += [f"v_exp_f32 v{s+i}, v{s+i}" for i in range(8, 16)] + [f"v_cvt_pk_bf16_f32 v{p+i}, v{s+2*i}, v{s+2*i+1}" for i in range(4, 8)]
        Am = [[pv(u - 1, 1)], [qk8(u + 1)], [qk16(u + 1)], [pv(u, 0)]]
        if c == 0:
            Am[0].append(f"ds_read_b128 {vr(V[(t+1)%2],4)}, v{AV} offset:{off_v(t+1,0)}")
            Am[1].append(f"ds_read_b128 {vr(V[(t+1)%2]+4,4)}, v{AV} offset:{off_v(t+1,1)}")
            Am[2].append(f"ds_read_b128 {vr(K1[t%2],4)}, v{AK} offset:{off_k1(t+2)}")
            if t % 4 == 1:
                Am[3].append(f"ds_read_b128 {vr(K2[(t//4+1)%2],4)}, v{AK2} offset:{off_k2(t//4+1)}")
        if kind == 'M':
            G = [[g_mfma(t, n, c)] for n in range(3)]
            if c == 0:
                G[2].append(ld_h(t, t, 0))
            else:
                G[0].append(ld_w(t, t, 0)); G[1].append(ld_w(t, t, 1)); G[2].append(ld_w(t, t, 2))
                Am[3].append(ld_h(t, t, 1))
                Am[3].append("s_waitcnt vmcnt(35) lgkmcnt(0)")
            if u == 0: G[0].append(poll_ld(f"s{sPollOff}"))
            ms = [Am[0], G[0], Am[1], Am[2], G[1], G[2], Am[3]]
            pos = POS_M
        else:
            if kind == 'L':
                if c == 0:
                    Am[3].insert(1, ld_h(t, t, 0))
                else:
                    Am[0].append(ld_w(t, t, 0)); Am[1].append(ld_w(t, t, 1)); Am[2].append(ld_w(t, t, 2))
                    Am[3].append(ld_h(t, t, 1))
            elif c == 1:
                for n in range(3): Am[n].append(ld_wo(t, n))
            if c == 1:
                Am[3].append("s_waitcnt vmcnt(35) lgkmcnt(0)" if (kind == 'L' and t == 7) else "s_waitcnt lgkmcnt(0)")
            ms = Am; pos = POS_A
        if u == 15:
            ms[0] += [f"v_add_u32 v{AK}, {2*KV_GS}, v{AK}", f"v_add_u32 v{AV}, {2*KV_GS}, v{AV}", f"v_add_u32 v{AK2}, {2*KV_GS}, v{AK2}"]
        acc = 0; mi = 0
        for ins in valu:
            while mi < len(ms) and acc >= pos[mi]:
                A.many(ms[mi]); mi += 1
            A(ins); acc += cost(ins)
        while mi < len(ms):
            A.many(ms[mi]); mi += 1
        nvm += sum(1 for m in ms for x in m if x.startswith(("global_", "buffer_")))
    if kind != 'A':
        A(f"""
    s_add_u32 s{sHp}, s{sHp}, {8*2048}
    s_addc_u32 s{sHp+1}, s{sHp+1}, 0
    s_add_u32 s{sWp}, s{sWp}, {8*3072}
    s_addc_u32 s{sWp+1}, s{sWp+1}, 0
""")
    stamp(A, "next")
    return nvm

def set_bias(c, m):
    a, b, d = vT, vT+1, vT+4
    return f"""
    v_and_b32 v{a}, 0xffff0000, v{m}
    v_sub_f32 v{b}, v{m}, v{a}
    v_and_b32 v{d}, 0xffff0000, v{b}
    v_sub_f32 v{b}, v{b}, v{d}
    v_lshrrev_b32 v{a}, 16, v{a}
    v_or_b32 v{a}, v{a}, v{d}
    v_xor_b32 v{a}, 0x80008000, v{a}
    v_lshrrev_b32 v{b}, 16, v{b}
    v_xor_b32 v{b}, 0x8000, v{b}
    v_cndmask_b32 v{Q2[c][0]}, v{a}, v{vQt[c]}, vcc
    v_cndmask_b32 v{Q2[c][0]+1}, v{b}, 0, vcc
    v_cndmask_b32 v{Q2[c][1]}, v{a}, 0, vcc
    v_cndmask_b32 v{Q2[c][1]+1}, v{b}, v{vQt[c]}, vcc
"""
def max16(s, dst, first):
    o = []
    if first:
        o.append(f"v_max3_f32 v{dst}, v{s}, v{s+1}, v{s+2}")
        for i in range(3, 15, 2): o.append(f"v_max3_f32 v{dst}, v{dst}, v{s+i}, v{s+i+1}")
        o.append(f"v_max_f32 v{dst}, v{dst}, v{s+15}")
    else:
        for i in range(0, 16, 2): o.append(f"v_max3_f32 v{dst}, v{dst}, v{s+i}, v{s+i+1}")
    return o
def half_max(m, tmp):
    return [f"v_mov_b32 v{tmp}, v{m}", "s_nop 1", f"v_permlane32_swap_b32 v{m}, v{tmp}", "s_nop 1", f"v_max_f32 v{m}, v{m}, v{tmp}"]

def transition(A):
    t = sT
    vm = Counter(63)
    def put(ins, tag=None):
        if ins.startswith(("buffer_", "global_")): vm.issue(tag)
        A(ins)
    stamp_set(A, 12)
    A(f"""
    s_and_b32 s{t+2}, s{sTab}, 0xff
    s_lshl_b32 s{t+2}, s{t+2}, 13
    s_add_u32 s{sHoff}, s{sHbase}, s{t+2}
    s_add_u32 s{t+1}, s{sQoff}, {32*1152}
    v_and_b32 v{vT+4}, 0x7c, v{vLane4}
    v_and_b32 v{vT+5}, 0xffffffef, v{vQa}
    s_waitcnt vmcnt({LEAD-8}) lgkmcnt(0)
    s_barrier
    {flag_min()[0]}
    {flag_min()[1]}
    v_cmp_eq_u32 vcc, 0, v{vPoll}
    s_cbranch_vccnz L_qspin
L_qok:
""")
    for c in range(2):
        so = sQoff if c == 0 else t + 1
        put(f"buffer_load_dwordx4 {vr(Q1[c],4)}, v{vQa}, {sr(sWS,4)}, s{so} offen sc1", "q")
        put(f"buffer_load_dword v{vQt[c]}, v{vT+5}, {sr(sWS,4)}, s{so} offen offset:32 sc1", "q")
        put(f"buffer_load_dword v{vG[c]}, v{vT+4}, {sr(sWS,4)}, s{sGoff} offen offset:{128*c} sc1", "q")
    A(f"""
    v_min_u32 v{AK2}, 512, v{vLane16}
    v_mov_b32 v{ZP}, 0
    v_mov_b32 v{ZP+1}, 0
    s_mov_b32 s{sIt}, 0
    ds_read_b128 {vr(K1[0],4)}, v{vLane16} offset:{off_k1(0)}
    ds_read_b128 {vr(K2[0],4)}, v{AK2} offset:{off_k2(0)}
    ds_read_b128 {vr(K1[1],4)}, v{vLane16} offset:{off_k1(1)}
    ds_read_b128 {vr(V[0],4)}, v{AV} offset:{off_v(0,0)}
    ds_read_b128 {vr(V[0]+4,4)}, v{AV} offset:{off_v(0,1)}
""")
    A(zero16(O[0]))
    A(f"v_mov_b32 v{AK}, v{vLane16}")
    for j in range(4): A(f"v_add_u32 v{vO[j]}, {4096 + j*8192}, v{vLane16}")
    for r in [P[1] + 4 + i for i in range(4)] + [V[1] + 4 + i for i in range(4)]: A(f"v_mov_b32 v{r}, 0")
    A(zero16(O[1]))
    blocks = p1.gelu_ops(0, 64, 80)
    regions = list(range(LEAD, 40))
    def run_block(ops, ndma):
        step = len(ops) // (ndma + 1) if ndma else 0
        for i, ins in enumerate(ops):
            if ndma and i and i % step == 0 and regions and i // step <= ndma:
                r = regions.pop(0)
                if r % 4 == 0:
                    A(f"s_add_u32 m0, s{sM0}, {(r//4)*16384}")
                    A(f"s_add_u32 s{sOff}, s{sOff}, s{sStep}")
                put(f"buffer_load_dwordx4 v{vLane16}, {sr(sW,4)}, s{sOff} offen offset:{(r%4)*1024} sc1 lds")
                r = regions.pop(0)
                put(f"buffer_load_dwordx4 v{vLane16}, {sr(sW,4)}, s{sOff} offen offset:{(r%4)*1024} sc1 lds")
            put(ins)
    nper = (len(regions) // 2 + 3) // 4
    run_block(blocks[0], nper)
    run_block(blocks[1], nper)
    A(f"v_cmp_gt_u32 vcc, 32, v{vLane}")
    A(f"s_waitcnt vmcnt({vm.need('q')}) lgkmcnt(0)")
    A(zero16(GACC));
    for c in range(2):
        A(f"v_cndmask_b32 v{Q2[c][0]}, 0, v{vQt[c]}, vcc")
        A(f"v_mov_b32 v{Q2[c][0]+1}, 0")
    b2 = blocks[2]
    ins_at = {4: qk8(0), 12: qk16(0), 20: qk8(1), 27: qk16(1), 33: zero16(GACC + 16)}
    nb2 = []
    for i, ins in enumerate(b2):
        if i in ins_at: nb2.append(ins_at[i])
        nb2.append(ins)
    run_block(nb2, nper)
    for c in range(2):
        A.many(max16(S[c], S[c], True)); A.many(half_max(S[c], S[c] + 1)); A(set_bias(c, S[c]))
    b3 = blocks[3]
    ins_at = {2: qk8(0), 10: qk16(0), 18: zero16(GACC + 32)}
    nb3 = []
    for i, ins in enumerate(b3):
        if i in ins_at: nb3.append(ins_at[i])
        nb3.append(ins)
    run_block(nb3, nper)
    assert not regions
    A(f"""
    s_lshl_b32 s{t}, s{sQi}, 2
    s_add_u32 s{t}, s{t}, s{sWave}
    s_cmp_eq_u32 s{t}, 15
    s_cselect_b32 s{sNA}, 8, 1
""")
    A.many([zero16(GACC + 48), zero16(GACC + 64), zero16(GACC + 80)])
    stamp(A, "next")

def main_loop(A):
    t = sT
    A("L_itA:")
    n = att_body(A, 'A')
    A(f"""
    s_add_u32 s{sIt}, s{sIt}, 1
    s_cmp_eq_u32 s{sIt}, 1
    s_cbranch_scc0 L_idle_next
    s_mov_b32 s{sPollOff}, {F4}
    s_waitcnt vmcnt({n})
    s_barrier
    buffer_store_dword v{vOne}, v{vFlagOff}, {sr(sWS,4)}, s{sPub} offen offset:1024 sc1
    s_cmp_eq_u32 s{sNA}, 1
    s_cbranch_scc0 L_itA
""")
    att_body(A, 'L')
    A(f"s_mov_b32 s{sIt}, 2")
    A("L_itM:")
    att_body(A, 'M')
    A(f"""
    s_add_u32 s{sIt}, s{sIt}, 1
    s_cmp_eq_u32 s{sIt}, 3
    s_cbranch_scc1 L_hchk
    s_cmp_lt_u32 s{sIt}, 8
    s_cbranch_scc1 L_itM
L_done:
""")

OL = 96
PL = 168
def ld_o(f):
    c, st = f // 9, f % 9
    return gld(vr(OL + 4 * f, 4), sHo, st * 2048 + c * 1024)

def tail(A):
    t = sT
    A(pv(15, 1))
    A(f"""
    v_lshrrev_b32 v{vT+1}, 5, v{vLane}
    v_lshl_add_u32 v{vT+1}, v{vT+1}, 30, v{vLane16}
    s_mov_b32 s{t+3}, {f2u(2.0**60):#x}
    s_nop 7
    s_nop 0
    v_add_f32 v{vT+3}, v{O[0]+10}, v{O[1]+10}
    v_cmp_nlt_f32 vcc, v{vT+3}, s{t+3}
    s_cbranch_vccnz L_fallback
L_fb_ret:
    v_rcp_f32 v{O[0]+10}, v{O[0]+10}
    v_rcp_f32 v{O[1]+10}, v{O[1]+10}
""")
    ST = [192, 200]
    for c in range(2):
        o = O[c]
        A(f"v_mul_f32 v{o+10}, v{o+10}, v{vG[c]}")
        for i in range(10): A(f"v_mul_f32 v{o+i}, v{o+i}, v{o+10}")
        for i in range(5): A(f"v_cvt_pk_bf16_f32 v{ST[c]+i}, v{o+2*i}, v{o+2*i+1}")
        A(f"buffer_store_dwordx4 {vr(ST[c],4)}, v{vLane16}, {sr(sWS,4)}, s{sO1} offen offset:{c*1024} sc1")
        A(f"buffer_store_dword v{ST[c]+4}, v{vT+1}, {sr(sWS,4)}, s{sO2} offen offset:{c*1024} sc1")
    stamp(A, 21)
    A(f"""
    s_cmp_eq_u32 s{sQi}, 3
    s_cbranch_scc1 L_helper_tail
    s_waitcnt vmcnt(4)
""")
    vm = Counter(63)
    def put(ins, tag=None):
        if ins.startswith(("buffer_", "global_")): vm.issue(tag)
        A(ins)
    NTR = KM - 48
    OST = common.OPT.get("ost", 6)
    of = 0
    for k in range(NTR):
        st = k % 8
        if k >= 8: A(f"s_waitcnt vmcnt({vm.need(f'x{k}')})")
        for c in range(2):
            for n in range(3):
                A(g_mfma(st, n, c))
                if k + 8 < NTR:
                    if c == 0 and n == 2: put(ld_h(st, k, 0), f"x{k+8}")
                    if c == 1: put(ld_w(st, k, n), f"x{k+8}")
                    if c == 1 and n == 2: put(ld_h(st, k, 1), f"x{k+8}")
                elif k == 2 and c == 1: put(ld_wo(8, n), "wo")
                elif k == 3 and c == 0 and n == 0:
                    A(f"v_sub_f32 v{vG[0]}, 1.0, v{vG[0]}"); A(f"v_sub_f32 v{vG[1]}, 1.0, v{vG[1]}")
                    A(f"s_lshl_b32 s{t}, s{sWave}, 11"); A(f"v_add_u32 v{vT+1}, s{t}, v{vLane16}")
                elif k == 3 and c == 0 and n == 1:
                    A(f"v_add_u32 v{vT+2}, {6*8192}, v{vT+1}"); A(f"s_mul_i32 s{t}, s{sWave}, {3*8192}")
                    A(f"v_add_u32 v{vT+3}, s{t}, v{vLane16}"); A(f"s_mul_i32 s{t}, s{sWave}, 6144")
                    A(f"s_add_u32 s{t+4}, s{sPart}, s{t}")
                elif k == 3 and c == 0 and n == 2:
                    A(f"s_add_u32 s{t+3}, s{t+4}, 4096"); A(f"v_mov_b32 v{vT+5}, 24576"); A("s_barrier")
                elif k >= OST and of < 18:
                    put(ld_o(of), f"o{of}"); of += 1
    while of < 18:
        put(ld_o(of), f"o{of}"); of += 1
    A("s_nop 7")
    for i in range(96): A(f"v_mul_f32 v{GACC+i}, v{GACC+i}, v{vG[i//48]}")
    stamp(A, 22)
    wq = [f"ds_write_b128 v{vT+1+q//6}, {vr(GACC+8*q+4*k,4)} offset:{(q%6)*8192 + k*1024}" for q in range(12) for k in range(2)]
    wi = 0
    def check(f):
        r = OL + 4 * f
        A(f"s_waitcnt vmcnt({vm.need(f'o{f}')})")
        A(f"L_ochk{f}:")
        A(f"v_max3_u32 v{vT}, v{r}, v{r+1}, v{r+2}")
        A(f"v_max_u32 v{vT}, v{vT}, v{r+3}")
        A(f"v_cmp_eq_u32 vcc, -1, v{vT}")
        A(f"s_cbranch_vccnz L_ore{f}")
    A(f"s_mov_b32 s{t+5}, 0x10000")
    check(0)
    for f in range(18):
        c, st = f // 9, f % 9
        for n in range(3):
            A(mfma16(gacc(n, c), wo_reg(st, n), vr(OL + 4 * f, 4), gacc(n, c)))
            if n == 0 and f + 1 < 18: check(f + 1)
            if f == 9 and n == 1: put(f"buffer_load_dword v{vPf}, v{vT+5}, {sr(sWS,4)}, s{sPart} offen sc1", "pf")
            if f >= 11 and n >= 1 and wi < 12: A(wq[wi]); wi += 1
    stamp(A, 23)
    A(f"""
    s_waitcnt vmcnt(0)
    v_cmp_eq_u32 vcc, 0, v{vPf}
    s_cbranch_vccnz L_pspin
L_pok:
""")
    for i in range(6):
        A(f"buffer_load_dwordx4 {vr(PL+4*i,4)}, v{vLane16}, {sr(sWS,4)}, s{t+4 if i < 4 else t+3} offen offset:{(i%4)*1024} sc1")
    A(f"""
    s_cmp_lt_u32 s{sWave}, 2
    s_cselect_b64 vcc, -1, 0
    v_cndmask_b32 v{vG[0]}, v{vG[1]}, v{vG[0]}, vcc
""")
    while wi < 24: A(wq[wi]); wi += 1
    A("s_waitcnt lgkmcnt(0)")
    A("s_barrier")
    stamp(A, 24)
    RD = 0
    for i in range(3):
        for w in range(4):
            for k in range(2):
                A(f"ds_read_b128 {vr(RD + (i*4+w)*8 + 4*k, 4)}, v{vT+3} offset:{i*8192 + w*2048 + k*1024}")
    for i in range(3):
        A(f"s_waitcnt lgkmcnt({min(15, 16 - 8*i)})")
        b = RD + i * 32
        for r in range(8): A(f"v_add_f32 v{b+8+r}, v{b+8+r}, v{b+16+r}")
        for r in range(8): A(f"v_add_f32 v{b+r}, v{b+r}, v{b+24+r}")
        for r in range(8): A(f"v_add_f32 v{b+r}, v{b+r}, v{b+8+r}")
        A(f"s_waitcnt vmcnt({4 - i})")
        for r in range(8): A(f"v_fma_f32 v{b+r}, v{PL+8*i+r}, v{vG[0]}, v{b+r}")
        for r in range(4): A(f"v_cvt_pk_bf16_f32 v{b+16+r}, v{b+2*r}, v{b+2*r+1}")
        A(f"buffer_store_dwordx4 {vr(b+16,4)}, v{vQa}, {sr(sOUT,4)}, s{sOutOff} offen offset:{i*32}")
    A("L_fin:")
    stamp(A, 25)
    if common.STAMPS: A("s_waitcnt vmcnt(0)")
    stamp(A, 26)

def fallback(A):
    t = sT
    M = [vT + 2, vT + 3]
    def rebase():
        A(f"v_add_u32 v{AK}, {-16*KV_GS & 0xffffffff:#x}, v{AK}")
        A(f"v_add_u32 v{AV}, {-16*KV_GS & 0xffffffff:#x}, v{AV}")
        A(f"v_add_u32 v{AK2}, {-16*KV_GS & 0xffffffff:#x}, v{AK2}")
        A(f"s_mov_b32 s{t}, 16")
    def loop(name, work, needv):
        A(f"L_{name}:")
        A(f"ds_read_b128 {vr(K2[0],4)}, v{AK2} offset:{off_k2(0)}")
        for tt in range(4):
            A(f"ds_read_b128 {vr(K1[tt%2],4)}, v{AK} offset:{off_k1(tt)}")
            if needv:
                for f in range(2): A(f"ds_read_b128 {vr(V[tt%2]+4*f,4)}, v{AV} offset:{off_v(tt,f)}")
            A("s_waitcnt lgkmcnt(0)")
            A.many([qk8(2*tt), qk8(2*tt+1), "s_nop 15", qk16(2*tt), qk16(2*tt+1), "s_nop 15"])
            for c in range(2): work(2*tt + c)
        A(f"v_add_u32 v{AK}, {KV_GS}, v{AK}"); A(f"v_add_u32 v{AV}, {KV_GS}, v{AV}"); A(f"v_add_u32 v{AK2}, {KV_GS}, v{AK2}")
        A(f"s_sub_u32 s{t}, s{t}, 1"); A(f"s_cmp_lg_u32 s{t}, 0"); A(f"s_cbranch_scc1 L_{name}")
    A("L_fallback:")
    A(f"v_cmp_gt_u32 vcc, 32, v{vLane}")
    rebase()
    for c in range(2):
        A(f"v_cndmask_b32 v{Q2[c][0]}, 0, v{vQt[c]}, vcc"); A(f"v_mov_b32 v{Q2[c][0]+1}, 0")
        A(f"v_mov_b32 v{Q2[c][1]}, 0"); A(f"v_cndmask_b32 v{Q2[c][1]+1}, 0, v{vQt[c]}, vcc")
        A(f"v_mov_b32 v{M[c]}, 0xff800000")
    loop("fbmax", lambda u: A.many(max16(S[u & 1], M[u & 1], False)), False)
    for c in range(2):
        A.many(half_max(M[c], vT)); A(set_bias(c, M[c]))
    for i in range(32): A(f"v_mov_b32 v{O[0]+i}, 0")
    rebase()
    def work(u):
        s, p = S[u & 1], P[u & 1]
        for i in range(16): A(f"v_exp_f32 v{s+i}, v{s+i}")
        A("s_nop 0")
        for i in range(8): A(f"v_cvt_pk_bf16_f32 v{p+i}, v{s+2*i}, v{s+2*i+1}")
        A.many(["s_nop 1", pv(u, 0), pv(u, 1)])
    loop("fbexp", work, True)
    A(f"""
    v_lshrrev_b32 v{vT+1}, 5, v{vLane}
    v_lshl_add_u32 v{vT+1}, v{vT+1}, 30, v{vLane16}
    s_nop 15
    s_branch L_fb_ret
""")

def out_of_line(A):
    t = sT
    A(f"""
L_idle_next:
    s_cmp_lt_u32 s{sIt}, 8
    s_cbranch_scc1 L_itA
    s_branch L_done
L_hchk:
    s_mov_b32 s{sPollOff}, {FOOB}
    s_mov_b32 s{t}, {F4}
    {flag_min()[0]}
    {flag_min()[1]}
    v_cmp_eq_u32 vcc, 0, v{vPoll}
    s_cbranch_vccz L_itM
""")
    p1.spin(A, f"s{t}", "hspin", "L_itM")
    p1.spin(A, f"s{sPollOff}", "qspin", "L_qok")
    A(f"""
L_helper_tail:
    s_cmp_eq_u32 s{sWave}, 3
    s_cbranch_scc1 L_fin
    s_waitcnt vmcnt(4)
""")
    for st in range(8):
        for c in range(2):
            for n in range(3): A(g_mfma(st, n, c))
    A(f"""
    v_mov_b32 v{vT+5}, 24576
    s_nop 0
    s_mov_b32 s{t+4}, s{sPart}
    s_nop 3
""")
    for i in range(24):
        if i and i % 4 == 0: A(f"s_add_u32 s{t+4}, s{t+4}, 4096")
        A(f"buffer_store_dwordx4 {vr(GACC+4*i,4)}, v{vLane16}, {sr(sWS,4)}, s{t+4} offen offset:{(i%4)*1024} sc1")
    A(f"""
    s_waitcnt vmcnt(0)
    buffer_store_dword v{vOne}, v{vT+5}, {sr(sWS,4)}, s{sPart} offen sc1
    s_branch L_fin
L_pspin:
    buffer_load_dword v{vPf}, v{vT+5}, {sr(sWS,4)}, s{sPart} offen sc1
    s_sub_u32 s{t+5}, s{t+5}, 1
    s_cbranch_scc1 L_pok
    s_waitcnt vmcnt(0)
    v_cmp_eq_u32 vcc, 0, v{vPf}
    s_cbranch_vccnz L_pspin
    s_branch L_pok
""")
    for f in range(18):
        A(f"""
L_ore{f}:
    s_call_b64 {sr(sLink,2)}, L_orl{f}
    s_branch L_ochk{f}
""")
    for f in range(18):
        A(f"L_orl{f}:")
        A(ld_o(f))
    A(f"""
    s_sub_u32 s{t+5}, s{t+5}, 1
    s_cbranch_scc1 L_fin
    s_waitcnt vmcnt(0)
    s_setpc_b64 {sr(sLink,2)}
""")
    fallback(A)
```

```python
import sys
from common import *
import common
import phase1 as p1
import phase2 as p2

NAME = "gated_mix__grouped_kv_mqa__glu_gated_geglu__prompt"
def kd(name):
    return f"""
.section .rodata,"a"
.p2align 6
.amdhsa_kernel {name}
  .amdhsa_next_free_vgpr 512
  .amdhsa_next_free_sgpr 102
  .amdhsa_accum_offset 256
  .amdhsa_group_segment_fixed_size 0
  .amdhsa_kernarg_size 104
  .amdhsa_user_sgpr_count 2
  .amdhsa_user_sgpr_kernarg_segment_ptr 1
  .amdhsa_system_sgpr_workgroup_id_x 1
.end_amdhsa_kernel
"""
def head(name):
    return f""".globl {name}
.p2align 8
.type {name},@function
{name}:
"""
def hdr_comment():
    ref = open(f"cdna_kernels/{NAME}.s.ref").read().split("\n")
    return "\n".join(l for l in ref[:14]) + "\n"
def gen_fused():
    A = Asm()
    p1.phase1(A)
    p2.transition(A)
    p2.main_loop(A)
    p2.tail(A)
    stamp_flush(A, p1.sWS, p1.vLane4, p1.sWave)
    A("L_end:")
    A("s_endpgm")
    p1.phase1_tail(A)
    p2.out_of_line(A)
    p1.jobtab(A)
    k = NAME + "_kernel"
    s = hdr_comment()
    s += "; @launch grid=(256,1,1) block=(256,1,1) lds=163840\n"
    s += '.amdgcn_target "amdgcn-amd-amdhsa--gfx950"\n.text\n' + head(k) + A.text() + kd(k)
    return s
if __name__ == "__main__":
    out = sys.argv[1]
    for a in sys.argv[2:]:
        if a == "stamps": common.STAMPS = True
        elif "=" in a:
            k, v = a.split("="); common.OPT[k] = int(v) if v.lstrip("-").isdigit() else v
        else: common.OPT[a] = 1
    if common.OPT.get("ntw"): p1.NT_W = " nt"
    if common.OPT.get("ntx"): p1.NT_X = " nt"
    if common.OPT.get("ntp"): p1.NT_P = " nt"
    txt = gen_fused()
    import re
    if common.OPT.get("noatom"):
        txt = re.sub(r"    buffer_atomic_or.*\n", "    s_nop 0\n", txt)
        txt = re.sub(r"    s_cbranch_vccnz L_(kvspin_.|qspin)\n", "    s_nop 0\n", txt)
        txt = txt.replace("s_cbranch_vccz L_itM", "s_branch L_itM")
    if common.OPT.get("nopoll"):
        txt = re.sub(r"    buffer_load_dword v240, v250, .*\n(?!    s_sub)", "    s_nop 0\n", txt)
    if common.OPT.get("nosc1h"):
        txt = re.sub(r"(buffer_store_dwordx4 .* s\[(48:51|56:59)\].*) sc1", r"\1", txt)
    open(out, "w").write(txt)
```

```python
from common import *
import common

S_X, S_WQ, S_WK, S_WV, S_WO, S_WG, S_WU, S_WD, S_GW, S_OUT, S_DBG, S_WS = 4, 6, 8, 10, 12, 16, 18, 20, 22, 24, 26, 28
sW, sWn, nOff, sX, sWS, sH, sP, sPD = 32, 36, 39, 40, 44, 48, 52, 56
sWave, sOff, sStep, nStep, sHoff, sHbase, sTab, sM0, sRowOff = 60, 61, 62, 63, 64, 65, 66, 68, 69
sPs0, sPs1, sPd0, sPd1, sXc, sXend = 70, 71, 72, 73, 74, 85
sT = 76
sLink, sLink2, sSpecial, sTb, sKVoff, sC2, sFb, sPub, sPar = 82, 84, 86, 87, 88, 89, 90, 92, 93
sXq, sQi = 94, 95
sDB = 96
sBase, sEnd, nStart, sSkip, sRot = 100, 101, 31, 30, 3
sPollOff = 74
nD = 75
sHp, sWp, sHo, sWo = 12, 14, 16, 18
sO1, sO2, sQoff, sGoff = 20, 21, 22, 23
sOUT = 24
sPart, sOutOff = 4, 5
SRD3 = 0x00020000
WG_SIZE = 576 * 9216
LEAD = 20
NT_W = ""
NT_X = ""
NT_P = ""

ACC = [0, 64]
AF = 128
XT = 152
GT = 184
PK = 200
PF = 208
vDma = 220
vTR = 224
vSpare, vNext, vF, vLane16, vC1, vPsrc, vPtr, vR8, vC16, vFlagOff, vOne, vLane, vQa, vAV = range(230, 244)
vT = 244
vPoll = 244
vLane4 = 250
F0, F2, F4, FOOB = WS_FL, WS_FL + 1024, WS_FL + 2048, 0x40000000

def xreg(tb2, ks):
    i = ks * 2 + tb2
    return ar(4 * i, 4) if i < 64 else vr(XT + 4 * (i - 64), 4)

def tr_reads(ks, region):
    out = []
    third = min(region // 12, 2)
    for r in range(4):
        a, rr = r // 2, r % 2
        reg = AF + (ks % 3) * 8 + a * 4 + rr * 2
        off = (region // 4 - third * 3) * 16384 + (region % 4) * 1024 + rr * 512
        out.append(f"ds_read_b64_tr_b16 {vr(reg,2)}, v{vTR + third*2 + a} offset:{off}")
    return out

def gelu_ops(accset, gt=GT, pkb=PK):
    blocks = []
    for blk in range(4):
        ops = []
        g = ACC[accset] + 16 * blk; u = g + 8
        t = gt + 8 * (blk % 2); pk = pkb + 4 * (blk % 2)
        ops += [f"v_mul_f32 v{t+i}, v{g+i}, v{g+i}" for i in range(8)]
        ops += [f"v_fma_f32 v{t+i}, v{t+i}, s{sC2}, v{vC1}" for i in range(8)]
        ops += [f"v_mul_f32 v{t+i}, v{t+i}, v{g+i}" for i in range(8)]
        for i in range(8):
            ops += [f"v_exp_f32 v{t+i}, v{t+i}", f"v_mul_f32 v{g+i}, v{g+i}, v{u+i}"]
        ops += [f"v_add_f32 v{t+i}, 1.0, v{t+i}" for i in range(8)]
        ops += [f"v_rcp_f32 v{t+i}, v{t+i}" for i in range(8)]
        ops += [f"v_mul_f32 v{g+i}, v{g+i}, v{t+i}" for i in range(8)]
        ops += [f"v_cvt_pk_bf16_f32 v{pk+i}, v{g+2*i}, v{g+2*i+1}" for i in range(4)]
        ops += [f"buffer_store_dwordx4 {vr(pk,4)}, v{vLane16}, {sr(sH,4)}, s{sHoff} offen offset:{blk*1024} sc1"]
        blocks.append(ops)
    return blocks

def w_dma(region, kpos):
    o = []
    if region % 4 == 0:
        o = [f"s_add_u32 m0, s{sM0}, {(region//4)*16384}", f"s_add_u32 s{sOff}, s{sOff}, s{sStep}"]
        if kpos > 0:
            o += [f"s_cmp_eq_u32 s{sOff}, s{sEnd}", f"s_cselect_b32 s{sOff}, s{sBase}, s{sOff}"]
    j = region % 4
    return o, f"buffer_load_dwordx4 v{vDma+j}, {sr(sW,4)}, s{sOff} offen offset:{j*1024} sc1{NT_W} lds"

def switch_ops():
    return [[f"s_mov_b64 {sr(sW,2)}, {sr(sWn,2)}", f"s_mov_b32 s{sW+2}, s{sWn+2}", f"s_mov_b32 s{sStep}, s{nStep}", f"v_mov_b32 v{vDma}, v{vNext}"],
            [f"s_mov_b32 s{sOff}, s{nStart}", f"s_mov_b32 s{sBase}, s{nOff}", f"s_mul_i32 s{sEnd}, s{nStep}, 9", f"s_add_u32 s{sEnd}, s{sEnd}, s{nOff}"],
            [f"v_add_u32 v{vDma+1}, s{nD}, v{vDma}", f"v_add_u32 v{vDma+2}, s{nD}, v{vDma+1}", f"v_add_u32 v{vDma+3}, s{nD}, v{vDma+2}"]]

def next_ops():
    t = sT
    return [[f"s_bfe_u32 s{t}, s{sTab}, 0x80018", f"s_lshl_b32 s{t+1}, s{t}, 7", f"s_add_u32 s{t+1}, s{t+1}, s{sRowOff}"],
            [f"s_cmp_eq_u32 s{t}, 0xff", f"s_cselect_b32 s{nOff}, s{sKVoff}, s{t+1}", f"s_cselect_b64 {sr(sWn,2)}, {sr(S_WS,2)}, {sr(sFb,2)}"],
            [f"s_mov_b32 s{t+1}, {WG_SIZE}", f"s_cmp_eq_u32 s{t}, 0xff", f"s_cselect_b32 s{sWn+2}, {WS_SIZE}, s{t+1}"],
            [f"s_mov_b32 s{t+1}, {64*9216}", f"s_cmp_eq_u32 s{t}, 0xff", f"s_cselect_b32 s{nStep}, 0x4000, s{t+1}", f"s_cselect_b32 s{nD}, 0, {16*9216-1024}"],
            [f"s_cmp_eq_u32 s{t}, 0xff", f"s_cselect_b64 vcc, -1, 0", f"v_cndmask_b32 v{vNext}, v{vF}, v{vLane16}, vcc"],
            [f"s_cmp_eq_u32 s{t}, 0xff", f"s_cselect_b32 s{sSkip}, 0, 1", f"s_cselect_b32 s{t+1}, -1, s{sRot}"],
            [f"s_mul_i32 s{t+1}, s{t+1}, s{nStep}", f"s_add_u32 s{nStart}, s{nOff}, s{t+1}", f"s_lshr_b64 {sr(sTab,2)}, {sr(sTab,2)}, 8"]]

def poll_ld(soff):
    return f"buffer_load_dwordx4 {vr(vPoll,4)}, v{vLane16}, {sr(sWS,4)}, {soff} offen sc1"
def flag_min():
    return [f"v_min3_u32 v{vPoll}, v{vPoll}, v{vPoll+1}, v{vPoll+2}", f"v_min_u32 v{vPoll}, v{vPoll}, v{vPoll+3}"]

def emit_stream(A, accset, pinned, pre, queue, qstart, vm, lg, budget=24, maxpin=1):
    qi = 0
    def put(ins):
        if callable(ins): ins = ins()
        tag = None
        if isinstance(ins, tuple): ins, tag = ins
        op = ins.split()[0]
        if op.startswith("ds_"): lg.issue(tag)
        if op.startswith("buffer_") or op.startswith("global_"): vm.issue(tag)
        A(ins)
        return 0 if ins.endswith(":") else cost(ins)
    for ks in range(36):
        for p in pre[ks]: put(p)
        for m in range(4):
            a, tb2 = m // 2, m % 2
            d = vr(ACC[accset] + 16 * m, 16)
            A(mfma16(d, vr(AF + (ks % 3) * 8 + a * 4, 4), xreg(tb2, ks), "0" if ks == 0 else d))
            used = 4 if m == 3 else 0
            gap = ks * 4 + m
            if gap >= qstart and qi < len(queue) and queue[qi].startswith("buffer_") and len(pinned[ks][m]) <= maxpin:
                used += put(queue[qi]); qi += 1
            for p in pinned[ks][m]: used += put(p)
            while gap >= qstart and qi < len(queue) and not queue[qi].startswith("buffer_") and used + cost(queue[qi]) <= budget:
                used += put(queue[qi]); qi += 1
    assert qi == len(queue), f"queue not drained {qi}/{len(queue)}"
    stamp(A, "next")

def body(A, odd):
    accset = 1 if odd else 0
    nm = "o" if odd else "e"
    vm = Counter(63); lg = Counter(15, ["k0"]*4 + ["k1"]*4)
    pinned = [[[] for _ in range(4)] for _ in range(36)]
    pre = [[] for _ in range(36)]
    SW = 36 - LEAD
    for ks in range(36):
        pre[ks].append(lambda ks=ks: f"s_waitcnt lgkmcnt({lg.need(f'k{ks}')})")
        if ks % 4 == 2:
            pinned[ks][0] += [f"s_waitcnt vmcnt({LEAD-6})", "s_barrier"]
        k2 = (ks + 2) % 36
        for r, ins in enumerate(tr_reads(k2, k2)):
            pinned[ks][r].append((ins, f"k{ks+2}"))
        rg = (ks + LEAD) % 36
        o, ld = w_dma(rg, rg)
        pinned[ks][1] += o
        pinned[ks][2] += [ld]
    pinned[0][0] += [f"s_and_b32 s{sT+2}, s{sTab}, 0xff", f"s_lshl_b32 s{sT+2}, s{sT+2}, 13", f"s_add_u32 s{sHoff}, s{sHbase}, s{sT+2}"]
    assert LEAD - 6 <= 14
    if odd:
        pinned[14][1] += [f"buffer_store_dword v{vOne}, v{vFlagOff}, {sr(sWS,4)}, s{sPub} offen sc1"]
        pinned[14][3] += [f"s_lshl_b32 s{sPub}, s2, 2", f"s_add_u32 s{sPub}, s{sPub}, {F2}"]
    pinned[SW-1][0] += flag_min() + [f"v_or_b32 v{vPoll}, s{sSkip}, v{vPoll}", f"v_cmp_eq_u32 vcc, 0, v{vPoll}"]
    pinned[SW-1][1] += [f"s_cbranch_vccnz L_kvspin_{nm}", f"L_kvok_{nm}:"]
    sw = switch_ops()
    pinned[SW-1][3] += sw[0]; pinned[SW][0] += sw[1]; pinned[SW][3] += sw[2]
    pinned[SW+2][1] += [f"s_mov_b32 s{sT+2}, {FOOB}", f"s_cmp_eq_u32 s{sT}, 0xff", f"s_cselect_b32 s{sPollOff}, {F0}, s{sT+2}"]
    pinned[SW+3][0] += [f"s_cmp_eq_u32 s{sSkip}, 0", f"s_cselect_b32 s{sPollOff}, {F2}, s{sPollOff}"]
    pinned[21][0] += [poll_ld(f"s{sPollOff}")]
    for i, grp in enumerate(next_ops()):
        pinned[SW + 1 + i][3] += grp
    units = [0, 1] if odd else [2]
    for n, u in enumerate(units):
        ks = 3 + 4 * n
        pinned[ks][3] += [f"s_add_u32 m0, s{sM0}, {9*16384 + n*2048}", f"s_add_u32 s{sT+3}, s{sPs0}, {u*128}",
                          (f"buffer_load_dwordx4 v{vPsrc}, {sr(sP,4)}, s{sT+3} offen{NT_P} lds", "pk")]
        pinned[ks+1][0] += [f"s_add_u32 s{sT+3}, s{sPs1}, {u*128}",
                          (f"buffer_load_dwordx4 v{vPsrc}, {sr(sP,4)}, s{sT+3} offen offset:1024{NT_P} lds", "pk")]
    for n, u in enumerate(units):
        for r in range(4):
            e, rr = r // 2, r % 2
            reg = PF + e * 4 + rr * 2
            pinned[27 + 4*n][[0,1,1,3][r]].append(
                (f"ds_read_b64_tr_b16 {vr(reg,2)}, v{vPtr} offset:{n*2048 + rr*512 + e*64}", f"p{n}"))
        for e in range(2):
            nb = 2 * u + e
            pinned[30 + 4*n][[1, 3][e]].append(
                f"buffer_store_dwordx4 {vr(PF + e*4, 4)}, v{vLane16}, {sr(sPD,4)}, s{sPd0 + nb//3} offen offset:{(nb%3)*1024} sc1")
    if not odd:
        pinned[35][1] += [f"s_mov_b32 s{sP+2}, 0", f"s_mov_b32 s{sPD+2}, 0"]
    q = sum(gelu_ops(1 - accset), [])
    emit_stream(A, accset, pinned, pre, q, 4, vm, lg)

XR = 64
GX = 80
vXd = 76
sXb = 64
def elem_dma(e):
    region = (e + 8) % 40
    if e < 72 and e % 8 < 4:
        n = e % 8
        o = []
        if n == 0:
            o = [f"s_add_u32 m0, s{sM0}, {(region//4)*16384}"]
            o += [f"s_add_u32 s{sXc}, s{sXc}, 128", f"s_cmp_eq_u32 s{sXc}, s{sXend}", f"s_cselect_b32 s{sXc}, s{sXb}, s{sXc}"] if e > 0 else ["s_nop 0"]
        return o + [(f"buffer_load_dwordx4 v{vXd+n}, {sr(sX,4)}, s{sXc} offen offset:{n*1024}{NT_X} lds", f"e{e}")]
    kpos = (e // 8) * 4 + e % 4 if e < 72 else e - 72
    o, ld = w_dma(region, kpos)
    return o + [(ld, f"e{e}")]
def x_reads(j, s):
    out = []
    base = ((8 * j + 8) % 40) * 4096
    seg = base // 57344
    for tb2 in range(2):
        out.append(f"ds_read_b128 {xreg(tb2, 4*j+s)}, v{XR + seg*4 + s} offset:{base - seg*57344 + tb2*4096}")
    return out
def wregion0(ks):
    if ks >= 36: return ks - 36
    return (8 * (ks // 4) + 4 + ks % 4 + 8) % 40
def put_elems(A, vm, es):
    for e in es:
        for ins in elem_dma(e):
            if isinstance(ins, tuple): vm.issue(ins[1]); ins = ins[0]
            A(ins)

def gate_queue():
    a = GX + 24; b = GX + 25
    q = [f"v_mov_b32 v{a}, 0"]
    for i in range(3):
        for k in range(3): q.append(f"v_dot2c_f32_bf16 v{a}, v{GX+4*i+k}, v{GX+12+4*i+k}")
    q += ["s_nop 2"]
    for dpp in ("quad_perm:[1,0,3,2]", "quad_perm:[2,3,0,1]", "row_half_mirror", "row_mirror"):
        q += [f"v_add_f32_dpp v{a}, v{a}, v{a} {dpp} row_mask:0xf bank_mask:0xf", "s_nop 1"]
    q += [f"v_mov_b32 v{b}, v{a}", "s_nop 1", f"v_permlane16_swap_b32 v{a}, v{b}", "s_nop 1",
          f"v_add_f32 v{a}, v{a}, v{b}", f"v_mul_f32 v{a}, {f2u(-math.log2(math.e)):#x}, v{a}",
          f"v_exp_f32 v{a}, v{a}", "s_nop 0", f"v_add_f32 v{a}, 1.0, v{a}", f"v_rcp_f32 v{a}, v{a}", "s_nop 0",
          f"buffer_store_dword v{a}, v{GX+26}, {sr(sWS,4)}, 0 offen sc1"]
    s = GX + 28
    for c in range(2):
        q += [f"buffer_store_dwordx4 {vr(s,4)}, v{vLane16}, {sr(sWS,4)}, s{sO1} offen offset:{c*1024} sc1",
              f"buffer_store_dword v{s}, v{GX+27}, {sr(sWS,4)}, s{sO2} offen offset:{c*1024} sc1"]
    q += [f"buffer_store_dword v{GX+32}, v{GX+33}, {sr(sWS,4)}, s{sPart} offen sc1"]
    return q

def body0(A, vm):
    lg = Counter(15)
    stamp(A, 1)
    A(f"s_waitcnt vmcnt({vm.need('e7')})")
    A("s_barrier")
    stamp(A, 2)
    for s in range(2):
        for ins in x_reads(0, s) + tr_reads(s, wregion0(s)):
            A(ins); lg.issue(f"k{s}")
    for s in range(2, 4):
        for ins in x_reads(0, s):
            A(ins); lg.issue(f"x")
    put_elems(A, vm, range(12, 20))
    pinned = [[[] for _ in range(4)] for _ in range(36)]
    pre = [[] for _ in range(36)]
    e = 20
    elast = 72 + LEAD - 1
    for ks in range(36):
        pre[ks].append(lambda ks=ks: f"s_waitcnt lgkmcnt({lg.need(f'k{ks}')})")
        j = (ks + 2) // 4
        if ks % 4 == 2:
            last = 8 * j + 7 if j < 9 else 75
            pinned[ks][0] += [lambda last=last: f"s_waitcnt vmcnt({vm.need(f'e{last}')})", "s_barrier"]
        if ks % 4 >= 2 and j < 9:
            s0 = 2 * (ks % 4 - 2)
            xs = x_reads(j, s0) + x_reads(j, s0 + 1)
            for r in range(4): pinned[ks][r].append((xs[r], "x"))
        for r, ins in enumerate(tr_reads((ks + 2) % 36, wregion0(ks + 2))):
            pinned[ks][r].append((ins, f"k{ks+2}"))
        for m in ((0, 1, 2, 3) if ks < 2 else (1, 3)):
            if e <= elast:
                assert e < 40 or e <= 40 + 8 * (j - 1) + 6
                if e == 72:
                    pinned[ks][m - 1] += sum(switch_ops(), [])
                    for i, grp in enumerate(next_ops()):
                        pinned[ks + 1 + i][2] += grp
                pinned[ks][m] += elem_dma(e); e += 1
    assert e == elast + 1, e
    pinned[22][2] += [(f"buffer_load_dword v{GX+34}, off, {sr(sDB,4)}, 0 sc1", "ini")]
    pinned[34][1] += [lambda: f"s_waitcnt vmcnt({vm.need('ini')})", f"v_cmp_eq_u32 vcc, 0, v{GX+34}"]
    pinned[34][2] += ["s_cbranch_vccnz L_inispin", "L_iniok:"]
    emit_stream(A, 0, pinned, pre, gate_queue(), 12, vm, lg, maxpin=2)

def setup_sub(A):
    t = sT
    A(f"""
L_setup:
    s_mov_b64 {sr(sWn,2)}, {sr(sFb,2)}
    s_mov_b32 s{sWn+2}, {WG_SIZE}
    s_movk_i32 s{t+1}, 9216
    s_lshl_b32 s{t+2}, s{t}, 7
    s_mov_b32 s{t+4}, 0
    s_cmp_lt_u32 s{t}, 72
    s_cbranch_scc1 L_setup_fin
    s_cmp_lt_u32 s{t}, 77
    s_cbranch_scc0 L_setup_kv
    s_mov_b64 {sr(sWn,2)}, {sr(S_WQ,2)}
    s_movk_i32 s{t+1}, 1152
    s_sub_u32 s{t+2}, s{t}, 72
    s_lshl_b32 s{t+2}, s{t+2}, 1
    s_lshr_b32 s{t+3}, s{sWave}, 1
    s_add_u32 s{t+2}, s{t+2}, s{t+3}
    s_lshl_b32 s{t+2}, s{t+2}, 7
    s_cmp_lt_u32 s{t+2}, 1152
    s_cselect_b32 s{sWn+2}, {576*1152}, 0
    s_branch L_setup_fin
L_setup_kv:
    s_cmp_eq_u32 s{t}, 77
    s_cbranch_scc0 L_setup_ret
    s_cmp_lt_u32 s{sWave}, 2
    s_cselect_b64 {sr(sWn,2)}, {sr(S_WK,2)}, {sr(S_WV,2)}
    s_sub_u32 s{sWn}, s{sWn}, 3072
    s_subb_u32 s{sWn+1}, s{sWn+1}, 0
    s_movk_i32 s{sWn+2}, {576*36 + 3072}
    s_movk_i32 s{t+1}, 36
    s_mov_b32 s{t+2}, 0
    s_movk_i32 s{t+4}, 3072
L_setup_fin:
    s_lshl_b32 s{nStep}, s{t+1}, 6
    s_lshl_b32 s{nD}, s{t+1}, 4
    s_sub_u32 s{nD}, s{nD}, 1024
    s_and_b32 s{t+3}, s{sWave}, 1
    s_mul_i32 s{t+3}, s{t+3}, s{t+1}
    s_lshl_b32 s{t+3}, s{t+3}, 3
    s_add_u32 s{nOff}, s{t+2}, s{t+3}
    s_mul_i32 s{t+3}, s{sRot}, s{nStep}
    s_add_u32 s{nStart}, s{nOff}, s{t+3}
    v_mad_u32_u24 v{vNext}, v{vR8}, s{t+1}, v{vC16}
    v_add_u32 v{vNext}, s{t+4}, v{vNext}
    s_setpc_b64 {sr(sLink2,2)}
L_setup_ret:
    s_mov_b64 {sr(sWn,2)}, {sr(S_WS,2)}
    s_mov_b32 s{sWn+2}, {WS_SIZE}
    v_mov_b32 v{vNext}, v{vLane16}
    s_setpc_b64 {sr(sLink2,2)}
""")

def special_sub(A):
    sc1 = " sc1"
    t = sT
    A(f"""
L_special:
    s_bfe_u32 s{t}, s{sTab}, 0x80010
    s_call_b64 {sr(sLink2,2)}, L_setup
    s_mov_b32 s{sH+2}, {WS_SIZE}
    s_and_b32 s{t}, s{sTab}, 0xff
    s_cmp_lt_u32 s{t}, 72
    s_cbranch_scc1 L_special_ret
    s_mov_b32 s{sH+2}, 0
    s_cmp_eq_u32 s{sPar}, 0
    s_cbranch_scc1 L_special_go
""")
    for i in range(64): A(f"v_mov_b32 v{i}, v{64+i}")
    A(f"""
L_special_go:
    s_cmp_eq_u32 s{t}, 77
    s_cbranch_scc1 L_special_kv
    s_lshl_b32 s{t+1}, s{sTb}, 1
    s_lshr_b32 s{t+2}, s{sWave}, 1
    s_add_u32 s{t+1}, s{t+1}, s{t+2}
    s_mul_i32 s{t+1}, s{t+1}, {2*36*1024}
    s_sub_u32 s{t+2}, s{t}, 72
    s_lshl_b32 s{t+2}, s{t+2}, 13
    s_add_u32 s{t+1}, s{t+1}, s{t+2}
    s_and_b32 s{t+2}, s{sWave}, 1
    s_lshl_b32 s{t+2}, s{t+2}, 11
    s_add_u32 s{t+1}, s{t+1}, s{t+2}
    s_add_u32 s{t+1}, s{t+1}, {WS_Q}
    s_add_u32 s{t+2}, s{t+1}, {36*1024}
    s_mov_b32 s{t+3}, {f2u(QSCALE):#x}
""")
    for i in range(64): A(f"v_mul_f32 v{i}, s{t+3}, v{i}")
    for i in range(32): A(f"v_cvt_pk_bf16_f32 v{64+i}, v{2*i}, v{2*i+1}")
    for half in range(2):
        if half == 1:
            A(f"s_add_u32 s{t+1}, s{t+1}, 4096")
            A(f"s_add_u32 s{t+2}, s{t+2}, 4096")
            A(f"s_cmp_eq_u32 s{t}, 76")
            A("s_cbranch_scc1 L_special_ret")
        for blk in range(4):
            a, tb2 = blk // 2, blk % 2
            A(f"buffer_store_dwordx4 {vr(64 + blk*8 + half*4, 4)}, v{vLane16}, {sr(sWS,4)}, s{t+1+tb2} offen offset:{a*1024}{sc1}")
    LB = 9 * 16384
    A(f"""
    s_branch L_special_ret
L_special_kv:
    s_barrier
    v_and_b32 v{vT}, 31, v{vLane}
    v_lshrrev_b32 v{vT+1}, 5, v{vLane}
    s_lshr_b32 s{t+2}, s{sWave}, 1
    s_mul_i32 s{t+5}, s{t+2}, {2*KV_VT}
    s_add_u32 s{t+5}, s{t+5}, {LB + KV_V}
    s_and_b32 s{t+3}, s{sWave}, 1
    s_cmp_eq_u32 s{t+3}, 0
    s_cbranch_scc1 L_special_kv0
    v_and_b32 v{vT}, 3, v{vLane}
    v_mul_u32_u24 v{vT}, {KV_VF}, v{vT}
    v_and_b32 v{vT+1}, 4, v{vLane}
    v_lshl_add_u32 v{vT}, v{vT+1}, 2, v{vT}
    v_cmp_eq_u32 vcc, 0, v{vT+1}
    v_add_u32 v{vT}, s{t+5}, v{vT}
    v_mov_b32 v65, 0x3f803f80
    v_cndmask_b32 v64, 0, v65, vcc
    v_add_u32 v{vT}, 576, v{vT}
    v_mov_b32 v{vT+1}, {LB + KV_K2 + 512}
    v_cmp_eq_u32 vcc, 8, v{vLane}
    v_mov_b32 v65, v64
    v_mov_b32 v66, v64
    v_cndmask_b32 v{vT}, v{vT}, v{vT+1}, vcc
    v_mov_b32 v67, v64
    s_mov_b64 exec, 0x1ff
    ds_write_b128 v{vT}, v[64:67]
    s_mov_b64 exec, -1
    s_branch L_special_kv1
L_special_kv0:
""")
    for i in range(32): A(f"v_cvt_pk_bf16_f32 v{64+i}, v{2*i}, v{2*i+1}")
    A(f"""
    s_lshl_b32 s{t+3}, s{t+2}, 11
    s_add_u32 s{t+3}, s{t+3}, {LB}
    s_lshl_b32 s{t+4}, s{t+2}, 3
    s_add_u32 s{t+4}, s{t+4}, {LB + KV_K2}    ; K2 base
    v_lshrrev_b32 v{vT+2}, 4, v{vT}
    v_mul_u32_u24 v{vT+2}, {KV_VF}, v{vT+2}
    v_bfe_u32 v{vT+3}, v{vT}, 2, 1
    v_mul_u32_u24 v{vT+3}, 288, v{vT+3}
    v_add_u32 v{vT+2}, v{vT+2}, v{vT+3}
    v_and_b32 v{vT+3}, 3, v{vT}
    v_lshl_add_u32 v{vT+2}, v{vT+3}, 1, v{vT+2}
    v_and_b32 v{vT+3}, 8, v{vT}
    v_add3_u32 v{vT+2}, v{vT+2}, v{vT+3}, s{t+5}
    v_lshl_add_u32 v{vT+3}, v{vT+1}, 7, v{vT+2}   ; d = 8hh + i
    v_add_u32 v{vT+4}, s{t+3}, v{vLane16}
    v_add_u32 v{vT+5}, s{t+4}, v{vLane16}
""")
    for tb2 in range(2):
        b0 = 64 + tb2 * 8
        A(f"ds_write_b128 v{vT+4}, {vr(b0,4)} offset:{tb2*1024}")
        for i in range(8):
            op = "ds_write_b16" if i % 2 == 0 else "ds_write_b16_d16_hi"
            A(f"{op} v{vT+3}, v{b0+4+i//2} offset:{tb2*KV_VT + i*16}")
    A("s_mov_b32 exec_hi, 0")
    for tb2 in range(2):
        b1 = 64 + (2 + tb2) * 8
        A(f"ds_write_b32 v{vT+5}, v{b1} offset:{tb2*4}")
        for i in range(2):
            op = "ds_write_b16" if i % 2 == 0 else "ds_write_b16_d16_hi"
            A(f"{op} v{vT+2}, v{b1+4} offset:{tb2*KV_VT + (16+i)*16}")
    A(f"""
    s_mov_b64 exec, -1
L_special_kv1:
    s_lshl_b32 s{t+2}, s{sWave}, 10
    v_add_u32 v{vT}, s{t+2}, v{vLane16}
    v_add_u32 v{vT+1}, {LB}, v{vT}
    v_cmp_gt_u32 vcc, {KV_GS - 8192}, v{vT}
    v_mov_b32 v{vT+2}, 0x40000000
    s_mul_i32 s{t+1}, s{sTb}, {KV_GS}
    v_cndmask_b32 v{vT+2}, v{vT+2}, v{vT}, vcc
    s_add_u32 s{t+1}, s{t+1}, {WS_KV}
    s_add_u32 s{t+2}, s{t+1}, 4096
    s_add_u32 s{t+3}, s{t+1}, 8192
    s_waitcnt lgkmcnt(0)
    s_barrier
    ds_read_b128 v[64:67], v{vT+1}
    ds_read_b128 v[68:71], v{vT+1} offset:4096
    ds_read_b128 v[72:75], v{vT+1} offset:8192
    s_waitcnt lgkmcnt(0)
    buffer_store_dwordx4 v[64:67], v{vT}, {sr(sWS,4)}, s{t+1} offen{sc1}
    buffer_store_dwordx4 v[68:71], v{vT}, {sr(sWS,4)}, s{t+2} offen{sc1}
    buffer_store_dwordx4 v[72:75], v{vT+2}, {sr(sWS,4)}, s{t+3} offen{sc1}
L_special_ret:
    s_nop 1
    s_setpc_b64 {sr(sLink,2)}
""")

def spin(A, soff, name, back):
    A(f"""
L_{name}:
    s_mov_b32 s{sT+5}, 0x40000
L_{name}_l:
    {poll_ld(soff)}
    s_sub_u32 s{sT+5}, s{sT+5}, 1
    s_cbranch_scc1 {back}
    s_waitcnt vmcnt(0)
""")
    A.many(flag_min())
    A(f"""
    v_cmp_eq_u32 vcc, 0, v{vPoll}
    s_cbranch_vccz {back}
    s_sleep 8
    s_branch L_{name}_l
""")

def phase1(A):
    t = sT
    stamp(A, 0)
    A(f"""
    s_cmp_ge_u32 s2, 256
    s_cbranch_scc1 L_end
    s_load_dwordx16 s[4:19], s[0:1], 0
    s_load_dwordx8 s[20:27], s[0:1], 64
    s_load_dwordx2 s[28:29], s[0:1], 96
    s_getpc_b64 {sr(sLink,2)}
L_pc1:
    s_bfe_u32 s{sXq}, s2, 0x20001
    s_lshr_b32 s{sQi}, s2, 6
    s_lshl_b32 s{t}, s{sXq}, 2
    s_add_u32 s{t}, s{t}, s{sQi}            ; jg
    s_lshl_b32 s{t+1}, s{t}, 3
    s_add_u32 s{t+1}, s{t+1}, L_jobtab-L_pc1
    s_load_dwordx2 {sr(sTab,2)}, {sr(sLink,2)}, s{t+1}
    v_lshrrev_b32 v1, 6, v0
    v_and_b32 v{vLane}, 63, v0
    v_readfirstlane_b32 s{sWave}, v1
    v_lshlrev_b32 v{vLane16}, 4, v{vLane}
    s_and_b32 s{t}, s{t}, 11
    s_cmp_eq_u32 s{t}, 3
    s_cselect_b32 s{sSpecial}, 1, 0
    s_and_b32 s{t}, s2, 1
    s_lshl_b32 s{t}, s{t}, 3
    s_bfe_u32 s{t+1}, s2, 0x30003
    s_add_u32 s{sTb}, s{t}, s{t+1}
    s_lshl_b32 s{t}, s{sQi}, 1
    s_add_u32 s{t}, s{t}, s{t+1}
    s_cmp_ge_u32 s{t}, 9
    s_cselect_b32 s{t+1}, 9, 0
    s_sub_u32 s{t+5}, s{t}, s{t+1}
    {"s_mov_b32 s%d, 0" % (t+5) if common.OPT.get("norot") else ""}
    s_sub_u32 s{sRot}, s{t+5}, 1
    v_lshrrev_b32 v{vR8}, 3, v{vLane}
    v_and_b32 v1, 7, v{vLane}
    s_lshl_b32 s{sM0}, s{sWave}, 12
    s_lshr_b32 s{t+2}, s{sWave}, 1
    s_and_b32 s{t+3}, s{sWave}, 1
    v_and_b32 v2, 2, v{vR8}
    v_xor_b32 v2, v1, v2
    s_lshl_b32 s{t+4}, s{t+2}, 2
    v_xor_b32 v2, s{t+4}, v2
    v_lshlrev_b32 v{vC16}, 4, v2
    v_lshrrev_b32 v2, 1, v{vR8}
    v_xor_b32 v2, v1, v2
    v_lshlrev_b32 v2, 4, v2
    v_mul_u32_u24 v3, 1152, v{vR8}
    v_add_u32 v{vXd}, v2, v3
    v_xor_b32 v2, 64, v{vXd}
    v_add_u32 v{vXd+1}, {8*1152-1024}, v2
    v_add_u32 v{vXd+2}, {2*(8*1152-1024)}, v{vXd}
    v_add_u32 v{vXd+3}, {3*(8*1152-1024)}, v2
    s_lshl_b32 s{t+4}, s{sTb}, 2
    s_add_u32 s{t+4}, s{t+4}, s{sWave}
    s_mul_i32 s{sXb}, s{t+4}, {32*1152}
    s_lshl_b32 s{t+5}, s{t+5}, 7
    s_add_u32 s{sXc}, s{sXb}, s{t+5}
    s_mov_b32 s{sX+2}, {2048*1152}
    s_mov_b32 s{sX+3}, {SRD3}
    s_mov_b32 s{sW+3}, {SRD3}
    s_waitcnt lgkmcnt(0)
    s_mov_b64 {sr(sX,2)}, {sr(S_X,2)}
""")
    vm = Counter(63)
    put_elems(A, vm, range(0, 4))
    A(f"""
    s_cmp_lt_u32 s{sWave}, 2
    s_cselect_b64 {sr(sFb,2)}, {sr(S_WG,2)}, {sr(S_WU,2)}
    s_bfe_u32 s{t}, s{sTab}, 0x80008
    s_call_b64 {sr(sLink2,2)}, L_setup
""")
    for g in switch_ops(): A.many(g)
    put_elems(A, vm, range(4, 8))
    A(f"""
    s_bfe_u32 s{t}, s{sTab}, 0x80010
    s_call_b64 {sr(sLink2,2)}, L_setup
    s_add_u32 s{sXend}, s{sXb}, 1152
""")
    put_elems(A, vm, range(8, 12))
    W = sPar
    A(f"""
    s_mov_b64 {sr(sWS,2)}, {sr(S_WS,2)}
    s_mov_b32 s{sWS+2}, {WS_SIZE}
    s_mov_b32 s{sWS+3}, {SRD3}
    s_mov_b64 {sr(sDB,2)}, {sr(S_DBG,2)}
    s_movk_i32 s{sDB+2}, 256
    s_mov_b32 s{sDB+3}, {SRD3}
    s_mov_b32 s{sOUT+2}, {2048*1152}
    s_mov_b32 s{sOUT+3}, {SRD3}
    s_mov_b64 {sr(sH,2)}, {sr(S_WS,2)}
    s_mov_b32 s{sH+2}, {WS_SIZE}
    s_mov_b32 s{sH+3}, {SRD3}
    s_mov_b64 {sr(sPD,2)}, {sr(S_WS,2)}
    s_mov_b32 s{sPD+3}, {SRD3}
    s_mov_b32 s{sP+3}, {SRD3}
    s_mov_b32 s{sC2}, {f2u(GC2):#x}
    v_mov_b32 v{vC1}, {f2u(GC1):#x}
    s_movk_i32 s{t+4}, 9216
    v_mad_u32_u24 v{vF}, v{vR8}, s{t+4}, v{vC16}
    s_add_u32 s{sKVoff}, s{sM0}, {WS_KV}
    s_lshl_b32 s{W}, s2, 2
    s_add_u32 s{W}, s{W}, s{sWave}
    s_lshr_b32 s{t+2}, s{sWave}, 1
    s_and_b32 s{t+3}, s{sWave}, 1
    s_mul_i32 s{sRowOff}, s{t+3}, {8*9216}
    s_lshl_b32 s{t}, s{sTb}, 1
    s_add_u32 s{t}, s{t}, s{t+2}
    s_mul_i32 s{sHbase}, s{t}, {HO_G}
    s_lshl_b32 s{t}, s{t+3}, 12
    s_add_u32 s{sHbase}, s{sHbase}, s{t}
    v_and_b32 v32, 3, v{vLane}              ; c
    v_lshrrev_b32 v33, 1, v32
    v_and_b32 v32, 1, v32
    v_lshl_add_u32 v32, v32, 1, v33         ; perm(c)
    v_lshlrev_b32 v32, 3, v32
    v_bfe_u32 v33, v{vLane}, 2, 2           ; r4
    v_lshl_add_u32 v32, v33, 7, v32
    v_bfe_u32 v34, v{vLane}, 4, 1
    v_lshrrev_b32 v35, 5, v{vLane}          ; hh
    v_lshl_add_u32 v36, v34, 5, v32
    v_lshl_add_u32 v36, v35, 10, v36
    s_add_u32 s{t}, s{sM0}, {9*16384}
    v_add_u32 v{vPtr}, s{t}, v36
    v_lshrrev_b32 v33, 1, v33
    v_lshl_add_u32 v33, v34, 1, v33
    s_lshl_b32 s{t}, s{t+3}, 1
    v_xor_b32 v33, s{t}, v33
    v_lshl_add_u32 v32, v33, 5, v32
    v_lshl_add_u32 v32, v34, 13, v32
    v_lshl_add_u32 v{vTR}, v35, 12, v32
    v_xor_b32 v{vTR+1}, 32, v{vTR}
    v_add_u32 v{vTR+2}, {12*4096}, v{vTR}
    v_add_u32 v{vTR+3}, {12*4096}, v{vTR+1}
    v_add_u32 v{vTR+4}, {24*4096}, v{vTR}
    v_add_u32 v{vTR+5}, {24*4096}, v{vTR+1}
    v_and_b32 v37, 31, v{vLane}             ; n
    v_bfe_u32 v33, v{vLane}, 1, 3
    v_xor_b32 v33, v33, v35
    v_lshlrev_b32 v33, 4, v33
    v_lshl_add_u32 v32, v37, 7, v33
    s_lshl_b32 s{t}, s{t+2}, 13
    v_add_u32 v{XR}, s{t}, v32
    v_xor_b32 v{XR+1}, 32, v{XR}
    v_xor_b32 v{XR+2}, 64, v{XR}
    v_xor_b32 v{XR+3}, 0x60, v{XR}
""")
    for seg in (1, 2):
        for s in range(4): A(f"v_add_u32 v{XR+seg*4+s}, {seg*57344}, v{XR+s}")
    A(f"""
    v_mul_u32_u24 v{vQa}, 1152, v37
    v_lshl_add_u32 v{vQa}, v35, 4, v{vQa}
    v_lshlrev_b32 v{vLane4}, 2, v{vLane}
    v_bfe_u32 v32, v{vLane}, 2, 1
    v_bfe_u32 v33, v{vLane}, 3, 1
    v_lshlrev_b32 v32, 3, v32
    v_lshl_add_u32 v32, v33, 2, v32
    v_and_b32 v33, 0x13, v{vLane}
    v_or_b32 v32, v32, v33
    v_mul_u32_u24 v33, 18, v35
    v_cmp_gt_u32 vcc, 18, v37
    v_add_u32 v32, v32, v33
    v_and_b32 v33, 27, v37
    v_cndmask_b32 v32, 37, v32, vcc
    v_cmp_ne_u32 vcc, 18, v33
    v_mul_u32_u24 v4, 12, v37
    s_lshl_b32 s{t+5}, s{W}, 1
    v_cndmask_b32 v32, 36, v32, vcc
    v_lshlrev_b32 v{vAV}, 4, v32
    v_add_u32 v5, s{t+5}, v35               ; token
    v_mul_u32_u24 v6, 1152, v5
    v_add_u32 v6, v6, v4
    v_cmp_eq_u32 vcc, 0, v37
    v_lshlrev_b32 v5, 2, v5
    v_add_u32 v5, {WS_G}, v5
    v_mov_b32 v33, 0x40000000
    v_cndmask_b32 v{GX+26}, v33, v5, vcc
    v_lshl_add_u32 v{GX+27}, v35, 30, v{vLane16}
    v_mov_b32 v{GX+28}, -1
    v_mov_b32 v{GX+29}, -1
    v_mov_b32 v{GX+30}, -1
    v_mov_b32 v{GX+31}, -1
    v_mov_b32 v{GX+32}, 0
    v_cmp_eq_u32 vcc, 0, v0
    v_mov_b32 v{vOne}, 1
    s_mov_b32 s{sSkip}, 1
    v_cndmask_b32 v{vFlagOff}, v33, 0, vcc
    s_lshl_b32 s{t}, s{sTb}, 2
    s_add_u32 s{t}, s{t}, {F0}
    s_bfe_u32 s{t+1}, s{sTab}, 0x80008
    s_cmp_eq_u32 s{t+1}, 77
    s_cselect_b32 s{sPub}, s{t}, {FOOB}
    ; pack params: ks = W/3, a = W%3
    s_mul_i32 s{t}, s{W}, 21846
    s_lshr_b32 s{t}, s{t}, 16
    s_mul_i32 s{t+1}, s{t}, 3
    s_sub_u32 s{t+1}, s{W}, s{t+1}
    s_mul_i32 s{sPd0}, s{t+1}, {2*WP_T}
    s_mul_i32 s{t+2}, s{t}, 3072
    s_add_u32 s{sPd0}, s{sPd0}, s{t+2}
    s_add_u32 s{sPd0}, s{sPd0}, {WS_WP}
    s_add_u32 s{sPd1}, s{sPd0}, {WP_T}
    s_cmp_lt_u32 s{t}, 324
    s_cselect_b32 s{sPD+2}, {WS_SIZE}, 0
    s_mul_i32 s{t+1}, s{t+1}, 384
    v_and_b32 v32, 7, v{vLane}
    v_lshlrev_b32 v32, 4, v32
    s_movk_i32 s{t+4}, 1152
    v_mad_u32_u24 v{vPsrc}, v{vR8}, s{t+4}, v32
    s_mov_b64 {sr(sP,2)}, {sr(S_WD,2)}
    s_mov_b32 s{sP+2}, {4608*1152}
    s_mul_i32 s{sPs0}, s{t}, {16*1152}
    s_movk_i32 s{t+3}, {8*1152}
    s_cmp_lt_u32 s{t}, 288
    s_cbranch_scc1 L_pk_done
    s_mov_b64 {sr(sP,2)}, {sr(S_WO,2)}
    s_mov_b32 s{sP+2}, {576*1152}
    s_sub_u32 s{t+2}, s{t}, 288
    s_mul_i32 s{sPs0}, s{t+2}, {18*1152}
    s_cmp_lt_u32 s{t}, 320
    s_cbranch_scc1 L_pk_done
    s_sub_u32 s{t+2}, s{t}, 320
    s_mul_i32 s{sPs0}, s{t+2}, {144*1152}
    s_add_u32 s{sPs0}, s{sPs0}, {16*1152}
    s_mov_b32 s{t+3}, {72*1152}
    v_lshrrev_b32 v34, 1, v{vR8}
    v_mul_u32_u24 v34, 18, v34
    v_and_b32 v36, 1, v{vR8}
    v_add_u32 v34, v34, v36
    v_mad_u32_u24 v{vPsrc}, v34, s{t+4}, v32
L_pk_done:
    s_add_u32 s{sPs0}, s{sPs0}, s{t+1}
    s_add_u32 s{sPs1}, s{sPs0}, s{t+3}
    s_sub_u32 s{sPs1}, s{sPs1}, 1024
    s_mov_b64 {sr(sLink,2)}, {sr(S_GW,2)}
""")
    g64, head, nt = t, t + 1, t + 2
    A(f"""
    s_and_b32 s{t+3}, s{sXq}, 1
    s_lshl_b32 s{g64}, s{sTb}, 1
    s_add_u32 s{g64}, s{g64}, s{t+3}
    s_lshr_b32 s{t+3}, s{sXq}, 1            ; nhalf
    s_lshl_b32 s{head}, s{t+3}, 2
    s_add_u32 s{head}, s{head}, s{sQi}
    s_lshl_b32 s{head}, s{head}, 2
    s_add_u32 s{head}, s{head}, s{sWave}
    s_mul_i32 s{t+3}, s{t+3}, 3
    s_mul_i32 s{t+4}, s{sWave}, {KM}
    s_cmp_eq_u32 s{sQi}, 3
    s_cselect_b32 s{nt}, s{sWave}, s{sQi}
    s_cselect_b32 s{t+4}, {4*KM}, s{t+4}
    s_add_u32 s{nt}, s{nt}, s{t+3}
    ; W side
    s_mul_i32 s{t+3}, s{nt}, {WP_T}
    s_add_u32 s{t+3}, s{t+3}, {WS_WP}
    s_mul_i32 s{t+5}, s{t+4}, 3072
    s_add_u32 s{t+5}, s{t+5}, s{t+3}
    s_add_u32 s{sWp}, s{S_WS}, s{t+5}
    s_addc_u32 s{sWp+1}, s{S_WS+1}, 0
    s_mul_i32 s{t+5}, s{sWave}, {9*3072}
    s_add_u32 s{t+5}, s{t+5}, s{t+3}
    s_add_u32 s{t+5}, s{t+5}, {288*3072}
    s_add_u32 s{sWo}, s{S_WS}, s{t+5}
    s_addc_u32 s{sWo+1}, s{S_WS+1}, 0
    ; h side
    s_mul_i32 s{t+3}, s{g64}, {HO_G}
    s_lshl_b32 s{t+5}, s{t+4}, 11
    s_add_u32 s{t+5}, s{t+5}, s{t+3}
    s_add_u32 s{sHp}, s{S_WS}, s{t+5}
    s_addc_u32 s{sHp+1}, s{S_WS+1}, 0
    s_mul_i32 s{t+5}, s{sWave}, {9*2048}
    s_add_u32 s{t+5}, s{t+5}, s{t+3}
    s_add_u32 s{t+5}, s{t+5}, {288*2048}
    s_add_u32 s{sHo}, s{S_WS}, s{t+5}
    s_addc_u32 s{sHo+1}, s{S_WS+1}, 0
    s_lshl_b32 s{sO1}, s{head}, 11
    s_add_u32 s{sO1}, s{sO1}, s{t+3}
    s_add_u32 s{sO1}, s{sO1}, {288*2048}
    s_lshr_b32 s{sO2}, s{head}, 3
    s_lshl_b32 s{sO2}, s{sO2}, 11
    s_add_u32 s{sO2}, s{sO2}, s{t+3}
    s_bfe_u32 s{t+5}, s{head}, 0x10002
    s_lshl_b32 s{t+5}, s{t+5}, 9
    s_add_u32 s{sO2}, s{sO2}, s{t+5}
    s_lshl_b32 s{t+5}, s{sWave}, 2
    s_add_u32 s{sO2}, s{sO2}, s{t+5}
    s_add_u32 s{sO2}, s{sO2}, {320*2048}
    ; q / g offsets
    s_mul_i32 s{sQoff}, s{g64}, {2*36*1024}
    s_mul_i32 s{t+5}, s{head}, 18
    s_lshr_b32 s{t+5}, s{t+5}, 3
    s_lshl_b32 s{t+5}, s{t+5}, 9
    s_add_u32 s{sQoff}, s{sQoff}, s{t+5}
    s_add_u32 s{sQoff}, s{sQoff}, {WS_Q}
    s_lshl_b32 s{sGoff}, s{g64}, 8
    s_add_u32 s{sGoff}, s{sGoff}, {WS_G}
    s_mul_i32 s{sPart}, s{g64}, 6
    s_add_u32 s{sPart}, s{sPart}, s{nt}
    s_mul_i32 s{sPart}, s{sPart}, {PART_T}
    s_add_u32 s{sPart}, s{sPart}, {WS_PART}
    s_lshl_b32 s{t+3}, s{g64}, 1
    s_lshr_b32 s{t+5}, s{sWave}, 1
    s_add_u32 s{t+3}, s{t+3}, s{t+5}
    s_mul_i32 s{sOutOff}, s{t+3}, {32*1152}
    s_mul_i32 s{t+5}, s{nt}, 192
    s_add_u32 s{sOutOff}, s{sOutOff}, s{t+5}
    s_and_b32 s{t+5}, s{sWave}, 1
    s_mul_i32 s{t+5}, s{t+5}, 96
    s_add_u32 s{sOutOff}, s{sOutOff}, s{t+5}
    s_lshl_b32 s{t+5}, s{sQi}, 2
    s_add_u32 s{t+5}, s{t+5}, s{sWave}
    s_sub_u32 s{t+5}, s{t+5}, 12
    s_cmp_lt_u32 s{t+5}, 3
    s_cselect_b32 s{t+5}, 0, 64
    v_mov_b32 v32, 24576
    v_cmp_eq_u32 vcc, s{t+5}, v{vLane}
    s_nop 1
    v_cndmask_b32 v{GX+33}, v33, v32, vcc
""")
    A(f"""
    s_cmp_eq_u32 s{W}, 771
    s_cbranch_scc1 L_flaginit
L_flaginit_ret:
""")
    for i in range(3):
        A(f"global_load_dwordx3 {vr(GX+4*i,3)}, v6, {sr(sX,2)} offset:{384*i}"); vm.issue("g")
        A(f"global_load_dwordx3 {vr(GX+12+4*i,3)}, v4, {sr(sLink,2)} offset:{384*i}"); vm.issue("g")
    body0(A, vm)
    A(f"""
L_loop:
    s_cmp_eq_u32 s{sSpecial}, 0
    s_cbranch_scc1 L_odd
    s_mov_b32 s{sPar}, 0
    s_call_b64 {sr(sLink,2)}, L_special
L_odd:
""")
    body(A, True)
    A(f"""
    s_cmp_eq_u32 s{sSpecial}, 0
    s_cbranch_scc1 L_even
    s_bfe_u32 s{t}, s{sTab}, 0x80008
    s_cmp_eq_u32 s{t}, 0xff
    s_cbranch_scc1 L_last_odd
    s_mov_b32 s{sPar}, 1
    s_call_b64 {sr(sLink,2)}, L_special
L_even:
""")
    body(A, False)
    A(f"""
    s_bfe_u32 s{t}, s{sTab}, 0x80008
    s_cmp_eq_u32 s{t}, 0xff
    s_cbranch_scc0 L_loop
L_p1_final:
""")

def phase1_tail(A):
    A("L_last_odd:")
    A("s_nop 7")
    for i in range(64): A(f"v_mov_b32 v{i}, v{64+i}")
    A(f"s_mov_b32 s{sH+2}, {WS_SIZE}")
    A("s_branch L_p1_final")
    setup_sub(A)
    special_sub(A)
    spin(A, f"s{sPollOff}", "kvspin_o", "L_kvok_o")
    spin(A, f"s{sPollOff}", "kvspin_e", "L_kvok_e")
    A(f"""
L_flaginit:
    v_cmp_lt_u32 vcc, 3, v{vLane}
    v_mov_b32 v12, 0
    v_mov_b32 v13, 0
    v_cndmask_b32 v8, 0, 1, vcc
    v_mov_b32 v14, 0
    v_mov_b32 v15, 0
    v_mov_b32 v9, v8
    v_mov_b32 v10, v8
    v_mov_b32 v11, v8
    s_mov_b32 s{sT}, {WS_FL}
    buffer_store_dwordx4 v[8:11], v{vLane16}, {sr(sWS,4)}, s{sT} offen sc1
    buffer_store_dwordx4 v[12:15], v{vLane16}, {sr(sWS,4)}, s{sT} offen offset:1024 sc1
    buffer_store_dwordx4 v[12:15], v{vLane16}, {sr(sWS,4)}, s{sT} offen offset:2048 sc1
    s_waitcnt vmcnt(0)
    buffer_store_dword v{vOne}, off, {sr(sDB,4)}, 0 sc1
    s_branch L_flaginit_ret
L_inispin:
    s_mov_b32 s{sT+5}, 0x40000
L_inispin_l:
    buffer_load_dword v{GX+34}, off, {sr(sDB,4)}, 0 sc1
    s_sub_u32 s{sT+5}, s{sT+5}, 1
    s_cbranch_scc1 L_iniok
    s_waitcnt vmcnt(0)
    v_cmp_eq_u32 vcc, 0, v{GX+34}
    s_cbranch_vccz L_iniok
    s_sleep 8
    s_branch L_inispin_l
""")

def jobtab(A):
    tab, _, _ = job_table()
    A(".p2align 3")
    A(".type L_jobtab,@object")
    A("L_jobtab:")
    for b in tab:
        A(".byte " + ", ".join(str(x) for x in b))
```

```python
from common import *
import common
import phase1 as p1
from phase1 import (sWS, sDB, sWave, sQi, sT, sM0, sPub, sPollOff, sLink, sTab, sHoff, sHbase, sW, sOff, sStep,
                    sHp, sWp, sHo, sWo, sO1, sO2, sQoff, sGoff, sOUT, sPart, sOutOff,
                    vLane, vLane16, vLane4, vFlagOff, vPoll, vOne, vT, vQa, vAV, vDma, LEAD,
                    F0, F2, F4, FOOB, poll_ld, flag_min)
GACC = 0
Q1 = [96, 100]; Q2 = [[104, 106], [108, 110]]
S = [112, 128]; P = [144, 152]; O = [160, 176]
K1 = [192, 196]; V = [200, 208]; K2 = [216, 220]
AK, AK2, AV = 224, 225, vAV
vO = [226, 227, 228, 229]
vG = [231, 232]
vQt = [236, 237]
vZ = 238
ZP = 246
WOA = 160
sIt, sNA = 36, 37
vPf = 251

def gld(dst, base, byteoff):
    j = byteoff // 8192
    return f"global_load_dwordx4 {dst}, v{vO[j]}, {sr(base,2)} offset:{byteoff - j*8192 - 4096} sc1"
def stage(s): return 20 * s
def gacc(n, c): return vr(GACC + (c * 3 + n) * 16, 16)
def g_mfma(st, n, c):
    return mfma16(gacc(n, c), ar(stage(st) + 8 + 4 * n, 4), ar(stage(st) + 4 * c, 4), gacc(n, c))
def ld_h(st, ks, i): return gld(ar(stage(st) + 4 * i, 4), sHp, ks * 2048 + i * 1024)
def ld_w(st, ks, n): return gld(ar(stage(st) + 8 + 4 * n, 4), sWp, ks * 3072 + n * 1024)
def wo_reg(ks, n): return ar(WOA + 12 * ks + 4 * n, 4) if ks < 8 else ar(stage(2) + 8 + 4 * n, 4)
def ld_wo(ks, n): return gld(wo_reg(ks, n), sWo, ks * 3072 + n * 1024)

def off_k1(t): return (t >> 2) * KV_GS + (t & 3) * 1024
def off_v(t, f): return (t >> 2) * KV_GS + KV_V + (t & 3) * KV_VT + f * KV_VF
def off_k2(g): return g * KV_GS + KV_K2

def qk8(u):
    c, t = u & 1, u >> 1
    return mfma8(vr(S[c], 16), vr(K2[(t // 4) % 2] + 2 * ((t % 4) // 2), 2), vr(Q2[c][t % 2], 2), "0")
def qk16(u):
    c, t = u & 1, u >> 1
    return mfma16(vr(S[c], 16), vr(K1[t % 2], 4), vr(Q1[c], 4), vr(S[c], 16))
def pv(u, f):
    c, t = u & 1, u >> 1
    return mfma16(vr(O[c], 16), vr(V[t % 2] + 4 * f, 4), vr(P[c] + 4 * f, 4), vr(O[c], 16))
def zero16(r): return mfma8(vr(r, 16), vr(ZP, 2), vr(ZP, 2), "0")

POS_M = (16, 40, 64, 84, 104, 128, 152)
POS_A = (16, 56, 88, 136)
def att_body(A, kind):
    nvm = 0
    for u in range(16):
        c, t = u & 1, u >> 1
        s, p = S[c], P[c]
        valu = [f"v_exp_f32 v{s+i}, v{s+i}" for i in range(8)] + [f"v_cvt_pk_bf16_f32 v{p+i}, v{s+2*i}, v{s+2*i+1}" for i in range(4)]
        valu += [f"v_exp_f32 v{s+i}, v{s+i}" for i in range(8, 16)] + [f"v_cvt_pk_bf16_f32 v{p+i}, v{s+2*i}, v{s+2*i+1}" for i in range(4, 8)]
        Am = [[pv(u - 1, 1)], [qk8(u + 1)], [qk16(u + 1)], [pv(u, 0)]]
        if c == 0:
            Am[0].append(f"ds_read_b128 {vr(V[(t+1)%2],4)}, v{AV} offset:{off_v(t+1,0)}")
            Am[1].append(f"ds_read_b128 {vr(V[(t+1)%2]+4,4)}, v{AV} offset:{off_v(t+1,1)}")
            Am[2].append(f"ds_read_b128 {vr(K1[t%2],4)}, v{AK} offset:{off_k1(t+2)}")
            if t % 4 == 1:
                Am[3].append(f"ds_read_b128 {vr(K2[(t//4+1)%2],4)}, v{AK2} offset:{off_k2(t//4+1)}")
        if kind == 'M':
            G = [[g_mfma(t, n, c)] for n in range(3)]
            if c == 0:
                G[2].append(ld_h(t, t, 0))
            else:
                G[0].append(ld_w(t, t, 0)); G[1].append(ld_w(t, t, 1)); G[2].append(ld_w(t, t, 2))
                Am[3].append(ld_h(t, t, 1))
                Am[3].append("s_waitcnt vmcnt(35) lgkmcnt(0)")
            if u == 0: G[0].append(poll_ld(f"s{sPollOff}"))
            ms = [Am[0], G[0], Am[1], Am[2], G[1], G[2], Am[3]]
            pos = POS_M
        else:
            if kind == 'L':
                if c == 0:
                    Am[3].insert(1, ld_h(t, t, 0))
                else:
                    Am[0].append(ld_w(t, t, 0)); Am[1].append(ld_w(t, t, 1)); Am[2].append(ld_w(t, t, 2))
                    Am[3].append(ld_h(t, t, 1))
            elif c == 1:
                for n in range(3): Am[n].append(ld_wo(t, n))
            if c == 1:
                Am[3].append("s_waitcnt vmcnt(35) lgkmcnt(0)" if (kind == 'L' and t == 7) else "s_waitcnt lgkmcnt(0)")
            ms = Am; pos = POS_A
        if u == 15:
            ms[0] += [f"v_add_u32 v{AK}, {2*KV_GS}, v{AK}", f"v_add_u32 v{AV}, {2*KV_GS}, v{AV}", f"v_add_u32 v{AK2}, {2*KV_GS}, v{AK2}"]
        acc = 0; mi = 0
        for ins in valu:
            while mi < len(ms) and acc >= pos[mi]:
                A.many(ms[mi]); mi += 1
            A(ins); acc += cost(ins)
        while mi < len(ms):
            A.many(ms[mi]); mi += 1
        nvm += sum(1 for m in ms for x in m if x.startswith(("global_", "buffer_")))
    if kind != 'A':
        A(f"""
    s_add_u32 s{sHp}, s{sHp}, {8*2048}
    s_addc_u32 s{sHp+1}, s{sHp+1}, 0
    s_add_u32 s{sWp}, s{sWp}, {8*3072}
    s_addc_u32 s{sWp+1}, s{sWp+1}, 0
""")
    stamp(A, "next")
    return nvm

def set_bias(c, m):
    a, b, d = vT, vT+1, vT+4
    return f"""
    v_and_b32 v{a}, 0xffff0000, v{m}
    v_sub_f32 v{b}, v{m}, v{a}
    v_and_b32 v{d}, 0xffff0000, v{b}
    v_sub_f32 v{b}, v{b}, v{d}
    v_lshrrev_b32 v{a}, 16, v{a}
    v_or_b32 v{a}, v{a}, v{d}
    v_xor_b32 v{a}, 0x80008000, v{a}
    v_lshrrev_b32 v{b}, 16, v{b}
    v_xor_b32 v{b}, 0x8000, v{b}
    v_cndmask_b32 v{Q2[c][0]}, v{a}, v{vQt[c]}, vcc
    v_cndmask_b32 v{Q2[c][0]+1}, v{b}, 0, vcc
    v_cndmask_b32 v{Q2[c][1]}, v{a}, 0, vcc
    v_cndmask_b32 v{Q2[c][1]+1}, v{b}, v{vQt[c]}, vcc
"""
def max16(s, dst, first):
    o = []
    if first:
        o.append(f"v_max3_f32 v{dst}, v{s}, v{s+1}, v{s+2}")
        for i in range(3, 15, 2): o.append(f"v_max3_f32 v{dst}, v{dst}, v{s+i}, v{s+i+1}")
        o.append(f"v_max_f32 v{dst}, v{dst}, v{s+15}")
    else:
        for i in range(0, 16, 2): o.append(f"v_max3_f32 v{dst}, v{dst}, v{s+i}, v{s+i+1}")
    return o
def half_max(m, tmp):
    return [f"v_mov_b32 v{tmp}, v{m}", "s_nop 1", f"v_permlane32_swap_b32 v{m}, v{tmp}", "s_nop 1", f"v_max_f32 v{m}, v{m}, v{tmp}"]

def transition(A):
    t = sT
    vm = Counter(63)
    def put(ins, tag=None):
        if ins.startswith(("buffer_", "global_")): vm.issue(tag)
        A(ins)
    stamp_set(A, 12)
    A(f"""
    s_and_b32 s{t+2}, s{sTab}, 0xff
    s_lshl_b32 s{t+2}, s{t+2}, 13
    s_add_u32 s{sHoff}, s{sHbase}, s{t+2}
    s_add_u32 s{t+1}, s{sQoff}, {36*1024}
    v_and_b32 v{vT+4}, 0x7c, v{vLane4}
    v_lshl_add_u32 v{vT+5}, s{sWave}, 2, v{vLane16}
    s_waitcnt vmcnt({LEAD-8}) lgkmcnt(0)
    s_barrier
    {flag_min()[0]}
    {flag_min()[1]}
    v_cmp_eq_u32 vcc, 0, v{vPoll}
    s_cbranch_vccnz L_qspin
L_qok:
""")
    for c in range(2):
        so = sQoff if c == 0 else t + 1
        put(f"buffer_load_dwordx4 {vr(S[0]+8*c,4)}, v{vLane16}, {sr(sWS,4)}, s{so} offen sc1", "q")
        put(f"buffer_load_dwordx4 {vr(S[0]+8*c+4,4)}, v{vLane16}, {sr(sWS,4)}, s{so} offen offset:512 sc1", "q")
        put(f"buffer_load_dword v{vQt[c]}, v{vT+5}, {sr(sWS,4)}, s{so} offen offset:1024 sc1", "q")
        put(f"buffer_load_dword v{vG[c]}, v{vT+4}, {sr(sWS,4)}, s{sGoff} offen offset:{128*c} sc1", "q")
    A(f"""
    v_min_u32 v{AK2}, 512, v{vLane16}
    v_mov_b32 v{ZP}, 0
    v_mov_b32 v{ZP+1}, 0
    s_mov_b32 s{sIt}, 0
    ds_read_b128 {vr(K1[0],4)}, v{vLane16} offset:{off_k1(0)}
    ds_read_b128 {vr(K2[0],4)}, v{AK2} offset:{off_k2(0)}
    ds_read_b128 {vr(K1[1],4)}, v{vLane16} offset:{off_k1(1)}
    ds_read_b128 {vr(V[0],4)}, v{AV} offset:{off_v(0,0)}
    ds_read_b128 {vr(V[0]+4,4)}, v{AV} offset:{off_v(0,1)}
""")
    A(zero16(O[0]))
    A(f"v_mov_b32 v{AK}, v{vLane16}")
    for j in range(4): A(f"v_add_u32 v{vO[j]}, {4096 + j*8192}, v{vLane16}")
    for r in [P[1] + 4 + i for i in range(4)] + [V[1] + 4 + i for i in range(4)]: A(f"v_mov_b32 v{r}, 0")
    A(zero16(O[1]))
    blocks = p1.gelu_ops(0, 64, 80)
    regions = list(range(LEAD, 40))
    def run_block(ops, ndma):
        step = len(ops) // (ndma + 1) if ndma else 0
        for i, ins in enumerate(ops):
            if ndma and i and i % step == 0 and regions and i // step <= ndma:
                r = regions.pop(0)
                if r % 4 == 0:
                    A(f"s_add_u32 m0, s{sM0}, {(r//4)*16384}")
                    A(f"s_add_u32 s{sOff}, s{sOff}, s{sStep}")
                put(f"buffer_load_dwordx4 v{vLane16}, {sr(sW,4)}, s{sOff} offen offset:{(r%4)*1024} sc1 lds")
                r = regions.pop(0)
                put(f"buffer_load_dwordx4 v{vLane16}, {sr(sW,4)}, s{sOff} offen offset:{(r%4)*1024} sc1 lds")
            put(ins)
    nper = (len(regions) // 2 + 3) // 4
    run_block(blocks[0], nper)
    run_block(blocks[1], nper)
    A(f"v_cmp_gt_u32 vcc, 32, v{vLane}")
    A(f"s_waitcnt vmcnt({vm.need('q')}) lgkmcnt(0)")
    A(zero16(GACC))
    A(f"s_mov_b32 s{t}, m0")
    A(f"s_set_gpr_idx_on s{sWave}, gpr_idx(SRC0)")
    A("s_nop 0")
    for c in range(2):
        for i in range(4): A(f"v_mov_b32 v{Q1[c]+i}, v{S[0]+8*c+i}")
    A("s_set_gpr_idx_off")
    A(f"s_mov_b32 m0, s{t}")
    for c in range(2):
        A(f"v_cndmask_b32 v{Q2[c][0]}, 0, v{vQt[c]}, vcc")
        A(f"v_mov_b32 v{Q2[c][0]+1}, 0")
    b2 = blocks[2]
    ins_at = {4: qk8(0), 12: qk16(0), 20: qk8(1), 27: qk16(1), 33: zero16(GACC + 16)}
    nb2 = []
    for i, ins in enumerate(b2):
        if i in ins_at: nb2.append(ins_at[i])
        nb2.append(ins)
    run_block(nb2, nper)
    for c in range(2):
        A.many(max16(S[c], S[c], True)); A.many(half_max(S[c], S[c] + 1)); A(set_bias(c, S[c]))
    b3 = blocks[3]
    ins_at = {2: qk8(0), 10: qk16(0), 18: zero16(GACC + 32)}
    nb3 = []
    for i, ins in enumerate(b3):
        if i in ins_at: nb3.append(ins_at[i])
        nb3.append(ins)
    run_block(nb3, nper)
    assert not regions
    A(f"""
    s_lshl_b32 s{t}, s{sQi}, 2
    s_add_u32 s{t}, s{t}, s{sWave}
    s_cmp_eq_u32 s{t}, 15
    s_cselect_b32 s{sNA}, 8, 1
""")
    A.many([zero16(GACC + 48), zero16(GACC + 64), zero16(GACC + 80)])
    stamp(A, "next")

def main_loop(A):
    t = sT
    A("L_itA:")
    n = att_body(A, 'A')
    A(f"""
    s_add_u32 s{sIt}, s{sIt}, 1
    s_cmp_eq_u32 s{sIt}, 1
    s_cbranch_scc0 L_idle_next
    s_mov_b32 s{sPollOff}, {F4}
    s_waitcnt vmcnt({n})
    s_barrier
    buffer_store_dword v{vOne}, v{vFlagOff}, {sr(sWS,4)}, s{sPub} offen offset:1024 sc1
    s_cmp_eq_u32 s{sNA}, 1
    s_cbranch_scc0 L_itA
""")
    att_body(A, 'L')
    A(f"s_mov_b32 s{sIt}, 2")
    A("L_itM:")
    att_body(A, 'M')
    A(f"""
    s_add_u32 s{sIt}, s{sIt}, 1
    s_cmp_eq_u32 s{sIt}, 3
    s_cbranch_scc1 L_hchk
    s_cmp_lt_u32 s{sIt}, 8
    s_cbranch_scc1 L_itM
L_done:
""")

OL = 96
PL = 168
def ld_o(f):
    c, st = f // 9, f % 9
    return gld(vr(OL + 4 * f, 4), sHo, st * 2048 + c * 1024)

def tail(A):
    t = sT
    A(pv(15, 1))
    A(f"""
    v_lshrrev_b32 v{vT+1}, 5, v{vLane}
    v_lshl_add_u32 v{vT+1}, v{vT+1}, 30, v{vLane16}
    s_mov_b32 s{t+3}, {f2u(2.0**60):#x}
    s_nop 7
    s_nop 0
    v_add_f32 v{vT+3}, v{O[0]+10}, v{O[1]+10}
    v_cmp_nlt_f32 vcc, v{vT+3}, s{t+3}
    s_cbranch_vccnz L_fallback
L_fb_ret:
    v_rcp_f32 v{O[0]+10}, v{O[0]+10}
    v_rcp_f32 v{O[1]+10}, v{O[1]+10}
""")
    ST = [192, 200]
    for c in range(2):
        o = O[c]
        A(f"v_mul_f32 v{o+10}, v{o+10}, v{vG[c]}")
        for i in range(10): A(f"v_mul_f32 v{o+i}, v{o+i}, v{o+10}")
        for i in range(5): A(f"v_cvt_pk_bf16_f32 v{ST[c]+i}, v{o+2*i}, v{o+2*i+1}")
        A(f"buffer_store_dwordx4 {vr(ST[c],4)}, v{vLane16}, {sr(sWS,4)}, s{sO1} offen offset:{c*1024} sc1")
        A(f"buffer_store_dword v{ST[c]+4}, v{vT+1}, {sr(sWS,4)}, s{sO2} offen offset:{c*1024} sc1")
    stamp(A, 21)
    A(f"""
    s_cmp_eq_u32 s{sQi}, 3
    s_cbranch_scc1 L_helper_tail
    s_waitcnt vmcnt(4)
""")
    vm = Counter(63)
    def put(ins, tag=None):
        if ins.startswith(("buffer_", "global_")): vm.issue(tag)
        A(ins)
    NTR = KM - 48
    OST = common.OPT.get("ost", 6)
    of = 0
    for k in range(NTR):
        st = k % 8
        if k >= 8: A(f"s_waitcnt vmcnt({vm.need(f'x{k}')})")
        for c in range(2):
            for n in range(3):
                A(g_mfma(st, n, c))
                if k + 8 < NTR:
                    if c == 0 and n == 2: put(ld_h(st, k, 0), f"x{k+8}")
                    if c == 1: put(ld_w(st, k, n), f"x{k+8}")
                    if c == 1 and n == 2: put(ld_h(st, k, 1), f"x{k+8}")
                elif k == 2 and c == 1: put(ld_wo(8, n), "wo")
                elif k == 3 and c == 0 and n == 0:
                    A(f"v_sub_f32 v{vG[0]}, 1.0, v{vG[0]}"); A(f"v_sub_f32 v{vG[1]}, 1.0, v{vG[1]}")
                    A(f"s_lshl_b32 s{t}, s{sWave}, 11"); A(f"v_add_u32 v{vT+1}, s{t}, v{vLane16}")
                elif k == 3 and c == 0 and n == 1:
                    A(f"v_add_u32 v{vT+2}, {6*8192}, v{vT+1}"); A(f"s_mul_i32 s{t}, s{sWave}, {3*8192}")
                    A(f"v_add_u32 v{vT+3}, s{t}, v{vLane16}"); A(f"s_mul_i32 s{t}, s{sWave}, 6144")
                    A(f"s_add_u32 s{t+4}, s{sPart}, s{t}")
                elif k == 3 and c == 0 and n == 2:
                    A(f"s_add_u32 s{t+3}, s{t+4}, 4096"); A(f"v_mov_b32 v{vT+5}, 24576"); A("s_barrier")
                elif k >= OST and of < 18:
                    put(ld_o(of), f"o{of}"); of += 1
    while of < 18:
        put(ld_o(of), f"o{of}"); of += 1
    A("s_nop 7")
    for i in range(96): A(f"v_mul_f32 v{GACC+i}, v{GACC+i}, v{vG[i//48]}")
    stamp(A, 22)
    wq = [f"ds_write_b128 v{vT+1+q//6}, {vr(GACC+8*q+4*k,4)} offset:{(q%6)*8192 + k*1024}" for q in range(12) for k in range(2)]
    wi = 0
    def check(f):
        r = OL + 4 * f
        A(f"s_waitcnt vmcnt({vm.need(f'o{f}')})")
        A(f"L_ochk{f}:")
        A(f"v_max3_u32 v{vT}, v{r}, v{r+1}, v{r+2}")
        A(f"v_max_u32 v{vT}, v{vT}, v{r+3}")
        A(f"v_cmp_eq_u32 vcc, -1, v{vT}")
        A(f"s_cbranch_vccnz L_ore{f}")
    A(f"s_mov_b32 s{t+5}, 0x10000")
    check(0)
    for f in range(18):
        c, st = f // 9, f % 9
        for n in range(3):
            A(mfma16(gacc(n, c), wo_reg(st, n), vr(OL + 4 * f, 4), gacc(n, c)))
            if n == 0 and f + 1 < 18: check(f + 1)
            if f == 9 and n == 1: put(f"buffer_load_dword v{vPf}, v{vT+5}, {sr(sWS,4)}, s{sPart} offen sc1", "pf")
            if f >= 11 and n >= 1 and wi < 12: A(wq[wi]); wi += 1
    stamp(A, 23)
    A(f"""
    s_waitcnt vmcnt(0)
    v_cmp_eq_u32 vcc, 0, v{vPf}
    s_cbranch_vccnz L_pspin
L_pok:
""")
    for i in range(6):
        A(f"buffer_load_dwordx4 {vr(PL+4*i,4)}, v{vLane16}, {sr(sWS,4)}, s{t+4 if i < 4 else t+3} offen offset:{(i%4)*1024} sc1")
    A(f"""
    s_cmp_lt_u32 s{sWave}, 2
    s_cselect_b64 vcc, -1, 0
    v_cndmask_b32 v{vG[0]}, v{vG[1]}, v{vG[0]}, vcc
""")
    while wi < 24: A(wq[wi]); wi += 1
    A("s_waitcnt lgkmcnt(0)")
    A("s_barrier")
    stamp(A, 24)
    RD = 0
    for i in range(3):
        for w in range(4):
            for k in range(2):
                A(f"ds_read_b128 {vr(RD + (i*4+w)*8 + 4*k, 4)}, v{vT+3} offset:{i*8192 + w*2048 + k*1024}")
    for i in range(3):
        A(f"s_waitcnt lgkmcnt({min(15, 16 - 8*i)})")
        b = RD + i * 32
        for r in range(8): A(f"v_add_f32 v{b+8+r}, v{b+8+r}, v{b+16+r}")
        for r in range(8): A(f"v_add_f32 v{b+r}, v{b+r}, v{b+24+r}")
        for r in range(8): A(f"v_add_f32 v{b+r}, v{b+r}, v{b+8+r}")
        A(f"s_waitcnt vmcnt({4 - i})")
        for r in range(8): A(f"v_fma_f32 v{b+r}, v{PL+8*i+r}, v{vG[0]}, v{b+r}")
        for r in range(4): A(f"v_cvt_pk_bf16_f32 v{b+16+r}, v{b+2*r}, v{b+2*r+1}")
        A(f"buffer_store_dwordx4 {vr(b+16,4)}, v{vQa}, {sr(sOUT,4)}, s{sOutOff} offen offset:{i*32}")
    A("L_fin:")
    stamp(A, 25)
    if common.STAMPS: A("s_waitcnt vmcnt(0)")
    stamp(A, 26)

def fallback(A):
    t = sT
    M = [vT + 2, vT + 3]
    def rebase():
        A(f"v_add_u32 v{AK}, {-16*KV_GS & 0xffffffff:#x}, v{AK}")
        A(f"v_add_u32 v{AV}, {-16*KV_GS & 0xffffffff:#x}, v{AV}")
        A(f"v_add_u32 v{AK2}, {-16*KV_GS & 0xffffffff:#x}, v{AK2}")
        A(f"s_mov_b32 s{t}, 16")
    def loop(name, work, needv):
        A(f"L_{name}:")
        A(f"ds_read_b128 {vr(K2[0],4)}, v{AK2} offset:{off_k2(0)}")
        for tt in range(4):
            A(f"ds_read_b128 {vr(K1[tt%2],4)}, v{AK} offset:{off_k1(tt)}")
            if needv:
                for f in range(2): A(f"ds_read_b128 {vr(V[tt%2]+4*f,4)}, v{AV} offset:{off_v(tt,f)}")
            A("s_waitcnt lgkmcnt(0)")
            A.many([qk8(2*tt), qk8(2*tt+1), "s_nop 15", qk16(2*tt), qk16(2*tt+1), "s_nop 15"])
            for c in range(2): work(2*tt + c)
        A(f"v_add_u32 v{AK}, {KV_GS}, v{AK}"); A(f"v_add_u32 v{AV}, {KV_GS}, v{AV}"); A(f"v_add_u32 v{AK2}, {KV_GS}, v{AK2}")
        A(f"s_sub_u32 s{t}, s{t}, 1"); A(f"s_cmp_lg_u32 s{t}, 0"); A(f"s_cbranch_scc1 L_{name}")
    A("L_fallback:")
    A(f"v_cmp_gt_u32 vcc, 32, v{vLane}")
    rebase()
    for c in range(2):
        A(f"v_cndmask_b32 v{Q2[c][0]}, 0, v{vQt[c]}, vcc"); A(f"v_mov_b32 v{Q2[c][0]+1}, 0")
        A(f"v_mov_b32 v{Q2[c][1]}, 0"); A(f"v_cndmask_b32 v{Q2[c][1]+1}, 0, v{vQt[c]}, vcc")
        A(f"v_mov_b32 v{M[c]}, 0xff800000")
    loop("fbmax", lambda u: A.many(max16(S[u & 1], M[u & 1], False)), False)
    for c in range(2):
        A.many(half_max(M[c], vT)); A(set_bias(c, M[c]))
    for i in range(32): A(f"v_mov_b32 v{O[0]+i}, 0")
    rebase()
    def work(u):
        s, p = S[u & 1], P[u & 1]
        for i in range(16): A(f"v_exp_f32 v{s+i}, v{s+i}")
        A("s_nop 0")
        for i in range(8): A(f"v_cvt_pk_bf16_f32 v{p+i}, v{s+2*i}, v{s+2*i+1}")
        A.many(["s_nop 1", pv(u, 0), pv(u, 1)])
    loop("fbexp", work, True)
    A(f"""
    v_lshrrev_b32 v{vT+1}, 5, v{vLane}
    v_lshl_add_u32 v{vT+1}, v{vT+1}, 30, v{vLane16}
    s_nop 15
    s_branch L_fb_ret
""")

def out_of_line(A):
    t = sT
    A(f"""
L_idle_next:
    s_cmp_lt_u32 s{sIt}, 8
    s_cbranch_scc1 L_itA
    s_branch L_done
L_hchk:
    s_mov_b32 s{sPollOff}, {FOOB}
    s_mov_b32 s{t}, {F4}
    {flag_min()[0]}
    {flag_min()[1]}
    v_cmp_eq_u32 vcc, 0, v{vPoll}
    s_cbranch_vccz L_itM
""")
    p1.spin(A, f"s{t}", "hspin", "L_itM")
    p1.spin(A, f"s{sPollOff}", "qspin", "L_qok")
    A(f"""
L_helper_tail:
    s_cmp_eq_u32 s{sWave}, 3
    s_cbranch_scc1 L_fin
    s_waitcnt vmcnt(4)
""")
    for st in range(8):
        for c in range(2):
            for n in range(3): A(g_mfma(st, n, c))
    A(f"""
    v_mov_b32 v{vT+5}, 24576
    s_nop 0
    s_mov_b32 s{t+4}, s{sPart}
    s_nop 3
""")
    for i in range(24):
        if i and i % 4 == 0: A(f"s_add_u32 s{t+4}, s{t+4}, 4096")
        A(f"buffer_store_dwordx4 {vr(GACC+4*i,4)}, v{vLane16}, {sr(sWS,4)}, s{t+4} offen offset:{(i%4)*1024} sc1")
    A(f"""
    s_waitcnt vmcnt(0)
    buffer_store_dword v{vOne}, v{vT+5}, {sr(sWS,4)}, s{sPart} offen sc1
    s_branch L_fin
L_pspin:
    buffer_load_dword v{vPf}, v{vT+5}, {sr(sWS,4)}, s{sPart} offen sc1
    s_sub_u32 s{t+5}, s{t+5}, 1
    s_cbranch_scc1 L_pok
    s_waitcnt vmcnt(0)
    v_cmp_eq_u32 vcc, 0, v{vPf}
    s_cbranch_vccnz L_pspin
    s_branch L_pok
""")
    for f in range(18):
        A(f"""
L_ore{f}:
    s_call_b64 {sr(sLink,2)}, L_orl{f}
    s_branch L_ochk{f}
""")
    for f in range(18):
        A(f"L_orl{f}:")
        A(ld_o(f))
    A(f"""
    s_sub_u32 s{t+5}, s{t+5}, 1
    s_cbranch_scc1 L_fin
    s_waitcnt vmcnt(0)
    s_setpc_b64 {sr(sLink,2)}
""")
    fallback(A)
```

```python
import sys
from common import *
import common
import phase1 as p1
import phase2 as p2

NAME = "gated_mix__grouped_kv_mqa__glu_gated_geglu__prompt"
def kd(name):
    return f"""
.section .rodata,"a"
.p2align 6
.amdhsa_kernel {name}
  .amdhsa_next_free_vgpr 512
  .amdhsa_next_free_sgpr 102
  .amdhsa_accum_offset 256
  .amdhsa_group_segment_fixed_size 0
  .amdhsa_kernarg_size 104
  .amdhsa_user_sgpr_count 2
  .amdhsa_user_sgpr_kernarg_segment_ptr 1
  .amdhsa_system_sgpr_workgroup_id_x 1
.end_amdhsa_kernel
"""
def head(name):
    return f""".globl {name}
.p2align 12
.p2align 8
.type {name},@function
{name}:
"""
def hdr_comment():
    ref = open(f"cdna_kernels/{NAME}.s.ref").read().split("\n")
    return "\n".join(l for l in ref[:14]) + "\n"
def gen_fused():
    A = Asm()
    p1.phase1(A)
    p2.transition(A)
    p2.main_loop(A)
    p2.tail(A)
    stamp_flush(A, p1.sWS, p1.vLane4, p1.sWave)
    if common.OPT.get("dbgst") is not None:
        A(f"""
    v_readlane_b32 s0, v253, 0
    v_readlane_b32 s1, v253, 20
    s_nop 3
    v_writelane_b32 v253, s1, 8
    v_readlane_b32 s1, v253, 22
    s_nop 3
    v_writelane_b32 v253, s1, 9
    v_readlane_b32 s1, v253, 23
    s_nop 3
    v_writelane_b32 v253, s1, 10
    v_readlane_b32 s1, v253, 26
    s_nop 3
    v_writelane_b32 v253, s1, 11
    v_subrev_u32 v253, s0, v253
    s_lshl_b32 s1, s2, 2
    s_add_u32 s1, s1, s{p1.sWave}
    s_cmp_eq_u32 s1, {common.OPT["dbgst"]}
    s_cbranch_scc0 L_end
    buffer_store_dword v253, v{p1.vLane4}, s[96:99], 0 offen offset:4
""")
    A("L_end:")
    A("s_endpgm")
    p1.phase1_tail(A)
    p2.out_of_line(A)
    p1.jobtab(A)
    k = NAME + "_kernel"
    s = hdr_comment()
    s += "; @launch grid=(256,1,1) block=(256,1,1) lds=163840\n"
    s += '.amdgcn_target "amdgcn-amd-amdhsa--gfx950"\n.text\n' + head(k) + A.text() + kd(k)
    return s
if __name__ == "__main__":
    out = sys.argv[1]
    for a in sys.argv[2:]:
        if a == "stamps": common.STAMPS = True
        elif "=" in a:
            k, v = a.split("="); common.OPT[k] = int(v) if v.lstrip("-").isdigit() else v
        else: common.OPT[a] = 1
    if common.OPT.get("lead"): p1.LEAD = p2.LEAD = common.OPT["lead"]
    if common.OPT.get("pb"): p1.PB = common.OPT["pb"]
    if common.OPT.get("ntw"): p1.NT_W = " nt"
    if common.OPT.get("ntx"): p1.NT_X = " nt"
    if common.OPT.get("ntp"): p1.NT_P = " nt"
    txt = gen_fused()
    import re
    if common.OPT.get("noatom"):
        txt = re.sub(r"    buffer_atomic_or.*\n", "    s_nop 0\n", txt)
        txt = re.sub(r"    s_cbranch_vccnz L_(kvspin_.|qspin)\n", "    s_nop 0\n", txt)
        txt = txt.replace("s_cbranch_vccz L_itM", "s_branch L_itM")
    if common.OPT.get("nopoll"):
        txt = re.sub(r"    buffer_load_dword v240, v250, .*\n(?!    s_sub)", "    s_nop 0\n", txt)
    if common.OPT.get("nosc1h"):
        txt = re.sub(r"(buffer_store_dwordx4 .* s\[(48:51|56:59)\].*) sc1", r"\1", txt)
    open(out, "w").write(txt)
```

```python
from common import *
import common

S_X, S_WQ, S_WK, S_WV, S_WO, S_WG, S_WU, S_WD, S_GW, S_OUT, S_DBG, S_WS = 4, 6, 8, 10, 12, 16, 18, 20, 22, 24, 26, 28
sW, sWn, nOff, sX, sWS, sH, sP, sPD = 32, 36, 39, 40, 44, 48, 52, 56
sWave, sOff, sStep, nStep, sHoff, sHbase, sTab, sM0, sRowOff = 60, 61, 62, 63, 64, 65, 66, 68, 69
sPs0, sPs1, sPd0, sPd1, sXc, sXend = 70, 71, 72, 73, 74, 85
sT = 76
sLink, sLink2, sSpecial, sTb, sKVoff, sC2, sFb, sPub, sPar = 82, 84, 86, 87, 88, 89, 90, 92, 93
sXq, sQi = 94, 95
sDB = 96
sBase, sEnd, nStart, sSkip, sRot = 100, 101, 31, 30, 3
sPollOff = 74
nD = 75
sHp, sWp, sHo, sWo = 12, 14, 16, 18
sO1, sO2, sQoff, sGoff = 20, 21, 22, 23
sOUT = 24
sPart, sOutOff = 4, 5
SRD3 = 0x00020000
WG_SIZE = 576 * 9216
LEAD = 20
NT_W = ""
NT_X = ""
NT_P = ""

ACC = [0, 64]
AF = 128
XT = 152
GT = 184
PK = 200
PF = 208
vDma = 220
vTR = 224
vSpare, vNext, vF, vLane16, vC1, vPsrc, vPtr, vR8, vC16, vFlagOff, vOne, vLane, vQa, vAV = range(230, 244)
vT = 244
vPoll = 244
vLane4 = 250
F0, F2, F4, FOOB = WS_FL, WS_FL + 1024, WS_FL + 2048, 0x40000000

def xreg(tb2, ks):
    i = ks * 2 + tb2
    return ar(4 * i, 4) if i < 64 else vr(XT + 4 * (i - 64), 4)

def tr_reads(ks, region):
    out = []
    third = min(region // 12, 2)
    for r in range(4):
        a, rr = r // 2, r % 2
        reg = AF + (ks % 3) * 8 + a * 4 + rr * 2
        off = (region // 4 - third * 3) * 16384 + (region % 4) * 1024 + rr * 512
        out.append(f"ds_read_b64_tr_b16 {vr(reg,2)}, v{vTR + third*2 + a} offset:{off}")
    return out

def gelu_ops(accset, gt=GT, pkb=PK):
    blocks = []
    for blk in range(4):
        ops = []
        g = ACC[accset] + 16 * blk; u = g + 8
        t = gt + 8 * (blk % 2); pk = pkb + 4 * (blk % 2)
        ops += [f"v_mul_f32 v{t+i}, v{g+i}, v{g+i}" for i in range(8)]
        ops += [f"v_fma_f32 v{t+i}, v{t+i}, s{sC2}, v{vC1}" for i in range(8)]
        ops += [f"v_mul_f32 v{t+i}, v{t+i}, v{g+i}" for i in range(8)]
        for i in range(8):
            ops += [f"v_exp_f32 v{t+i}, v{t+i}", f"v_mul_f32 v{g+i}, v{g+i}, v{u+i}"]
        ops += [f"v_add_f32 v{t+i}, 1.0, v{t+i}" for i in range(8)]
        ops += [f"v_rcp_f32 v{t+i}, v{t+i}" for i in range(8)]
        ops += [f"v_mul_f32 v{g+i}, v{g+i}, v{t+i}" for i in range(8)]
        ops += [f"v_cvt_pk_bf16_f32 v{pk+i}, v{g+2*i}, v{g+2*i+1}" for i in range(4)]
        ops += [f"buffer_store_dwordx4 {vr(pk,4)}, v{vLane16}, {sr(sH,4)}, s{sHoff} offen offset:{blk*1024} sc1"]
        blocks.append(ops)
    return blocks

def w_dma(region, kpos):
    o = []
    if region % 4 == 0:
        o = [f"s_add_u32 m0, s{sM0}, {(region//4)*16384}", f"s_add_u32 s{sOff}, s{sOff}, s{sStep}"]
        if kpos > 0:
            o += [f"s_cmp_eq_u32 s{sOff}, s{sEnd}", f"s_cselect_b32 s{sOff}, s{sBase}, s{sOff}"]
    j = region % 4
    return o, f"buffer_load_dwordx4 v{vDma+j}, {sr(sW,4)}, s{sOff} offen offset:{j*1024} sc1{NT_W} lds"

def switch_ops():
    return [[f"s_mov_b64 {sr(sW,2)}, {sr(sWn,2)}", f"s_mov_b32 s{sW+2}, s{sWn+2}", f"s_mov_b32 s{sStep}, s{nStep}", f"v_mov_b32 v{vDma}, v{vNext}"],
            [f"s_mov_b32 s{sOff}, s{nStart}", f"s_mov_b32 s{sBase}, s{nOff}", f"s_mul_i32 s{sEnd}, s{nStep}, 9", f"s_add_u32 s{sEnd}, s{sEnd}, s{nOff}"],
            [f"v_add_u32 v{vDma+1}, s{nD}, v{vDma}", f"v_add_u32 v{vDma+2}, s{nD}, v{vDma+1}", f"v_add_u32 v{vDma+3}, s{nD}, v{vDma+2}"]]

def next_ops():
    t = sT
    return [[f"s_bfe_u32 s{t}, s{sTab}, 0x80018", f"s_lshl_b32 s{t+1}, s{t}, 7", f"s_add_u32 s{t+1}, s{t+1}, s{sRowOff}"],
            [f"s_cmp_eq_u32 s{t}, 0xff", f"s_cselect_b32 s{nOff}, s{sKVoff}, s{t+1}", f"s_cselect_b64 {sr(sWn,2)}, {sr(S_WS,2)}, {sr(sFb,2)}"],
            [f"s_mov_b32 s{t+1}, {WG_SIZE}", f"s_cmp_eq_u32 s{t}, 0xff", f"s_cselect_b32 s{sWn+2}, {WS_SIZE}, s{t+1}"],
            [f"s_mov_b32 s{t+1}, {64*9216}", f"s_cmp_eq_u32 s{t}, 0xff", f"s_cselect_b32 s{nStep}, 0x4000, s{t+1}", f"s_cselect_b32 s{nD}, 0, {16*9216-1024}"],
            [f"s_cmp_eq_u32 s{t}, 0xff", f"s_cselect_b64 vcc, -1, 0", f"v_cndmask_b32 v{vNext}, v{vF}, v{vLane16}, vcc"],
            [f"s_cmp_eq_u32 s{t}, 0xff", f"s_cselect_b32 s{sSkip}, 0, 1", f"s_cselect_b32 s{t+1}, -1, s{sRot}"],
            [f"s_mul_i32 s{t+1}, s{t+1}, s{nStep}", f"s_add_u32 s{nStart}, s{nOff}, s{t+1}", f"s_lshr_b64 {sr(sTab,2)}, {sr(sTab,2)}, 8"]]

def poll_ld(soff):
    return f"buffer_load_dwordx4 {vr(vPoll,4)}, v{vLane16}, {sr(sWS,4)}, {soff} offen sc1"
def flag_min():
    return [f"v_min3_u32 v{vPoll}, v{vPoll}, v{vPoll+1}, v{vPoll+2}", f"v_min_u32 v{vPoll}, v{vPoll}, v{vPoll+3}"]

def emit_stream(A, accset, pinned, pre, queue, qstart, vm, lg, budget=24, maxpin=1):
    qi = 0
    def put(ins):
        if callable(ins): ins = ins()
        tag = None
        if isinstance(ins, tuple): ins, tag = ins
        op = ins.split()[0]
        if op.startswith("ds_"): lg.issue(tag)
        if op.startswith("buffer_") or op.startswith("global_"): vm.issue(tag)
        A(ins)
        return 0 if ins.endswith(":") else cost(ins)
    for ks in range(36):
        for p in pre[ks]: put(p)
        for m in range(4):
            a, tb2 = m // 2, m % 2
            d = vr(ACC[accset] + 16 * m, 16)
            A(mfma16(d, vr(AF + (ks % 3) * 8 + a * 4, 4), xreg(tb2, ks), "0" if ks == 0 else d))
            used = 4 if m == 3 else 0
            gap = ks * 4 + m
            if gap >= qstart and qi < len(queue) and queue[qi].startswith("buffer_") and len(pinned[ks][m]) <= maxpin:
                used += put(queue[qi]); qi += 1
            for p in pinned[ks][m]: used += put(p)
            while gap >= qstart and qi < len(queue) and not queue[qi].startswith("buffer_") and used + cost(queue[qi]) <= budget:
                used += put(queue[qi]); qi += 1
    assert qi == len(queue), f"queue not drained {qi}/{len(queue)}"
    stamp(A, "next")

def body(A, odd):
    accset = 1 if odd else 0
    nm = "o" if odd else "e"
    vm = Counter(63); lg = Counter(15, ["k0"]*4 + ["k1"]*4)
    pinned = [[[] for _ in range(4)] for _ in range(36)]
    pre = [[] for _ in range(36)]
    SW = 36 - LEAD
    for ks in range(36):
        pre[ks].append(lambda ks=ks: f"s_waitcnt lgkmcnt({lg.need(f'k{ks}')})")
        if ks % 4 == 2:
            pinned[ks][0] += [f"s_waitcnt vmcnt({LEAD-6})", "s_barrier"]
        k2 = (ks + 2) % 36
        for r, ins in enumerate(tr_reads(k2, k2)):
            pinned[ks][r].append((ins, f"k{ks+2}"))
        rg = (ks + LEAD) % 36
        o, ld = w_dma(rg, rg)
        pinned[ks][1] += o
        pinned[ks][2] += [ld]
    pinned[0][0] += [f"s_and_b32 s{sT+2}, s{sTab}, 0xff", f"s_lshl_b32 s{sT+2}, s{sT+2}, 13", f"s_add_u32 s{sHoff}, s{sHbase}, s{sT+2}"]
    assert LEAD - 6 <= 14
    if odd:
        pinned[14][1] += [f"buffer_store_dword v{vOne}, v{vFlagOff}, {sr(sWS,4)}, s{sPub} offen sc1"]
        pinned[14][3] += [f"s_lshl_b32 s{sPub}, s2, 2", f"s_add_u32 s{sPub}, s{sPub}, {F2}"]
    pinned[SW-1][0] += flag_min() + [f"v_or_b32 v{vPoll}, s{sSkip}, v{vPoll}", f"v_cmp_eq_u32 vcc, 0, v{vPoll}"]
    pinned[SW-1][1] += [f"s_cbranch_vccnz L_kvspin_{nm}", f"L_kvok_{nm}:"]
    sw = switch_ops()
    pinned[SW-1][3] += sw[0]; pinned[SW][0] += sw[1]; pinned[SW][3] += sw[2]
    pinned[SW+2][1] += [f"s_mov_b32 s{sT+2}, {FOOB}", f"s_cmp_eq_u32 s{sT}, 0xff", f"s_cselect_b32 s{sPollOff}, {F0}, s{sT+2}"]
    pinned[SW+3][0] += [f"s_cmp_eq_u32 s{sSkip}, 0", f"s_cselect_b32 s{sPollOff}, {F2}, s{sPollOff}"]
    pinned[21][0] += [poll_ld(f"s{sPollOff}")]
    for i, grp in enumerate(next_ops()):
        pinned[SW + 1 + i][3] += grp
    units = [0, 1] if odd else [2]
    for n, u in enumerate(units):
        ks = 3 + 4 * n
        pinned[ks][3] += [f"s_add_u32 m0, s{sM0}, {9*16384 + n*2048}", f"s_add_u32 s{sT+3}, s{sPs0}, {u*128}",
                          (f"buffer_load_dwordx4 v{vPsrc}, {sr(sP,4)}, s{sT+3} offen{NT_P} lds", "pk")]
        pinned[ks+1][0] += [f"s_add_u32 s{sT+3}, s{sPs1}, {u*128}",
                          (f"buffer_load_dwordx4 v{vPsrc}, {sr(sP,4)}, s{sT+3} offen offset:1024{NT_P} lds", "pk")]
    for n, u in enumerate(units):
        for r in range(4):
            e, rr = r // 2, r % 2
            reg = PF + e * 4 + rr * 2
            pinned[27 + 4*n][[0,1,1,3][r]].append(
                (f"ds_read_b64_tr_b16 {vr(reg,2)}, v{vPtr} offset:{n*2048 + rr*512 + e*64}", f"p{n}"))
        for e in range(2):
            nb = 2 * u + e
            pinned[30 + 4*n][[1, 3][e]].append(
                f"buffer_store_dwordx4 {vr(PF + e*4, 4)}, v{vLane16}, {sr(sPD,4)}, s{sPd0 + nb//3} offen offset:{(nb%3)*1024} sc1")
    if not odd:
        pinned[35][1] += [f"s_mov_b32 s{sP+2}, 0", f"s_mov_b32 s{sPD+2}, 0"]
    q = sum(gelu_ops(1 - accset), [])
    emit_stream(A, accset, pinned, pre, q, 4, vm, lg)

XR = 64
GX = 80
vXd = 76
sXb = 64
def elem_dma(e):
    region = (e + 8) % 40
    if e < 72 and e % 8 < 4:
        n = e % 8
        o = []
        if n == 0:
            o = [f"s_add_u32 m0, s{sM0}, {(region//4)*16384}"]
            o += [f"s_add_u32 s{sXc}, s{sXc}, 128", f"s_cmp_eq_u32 s{sXc}, s{sXend}", f"s_cselect_b32 s{sXc}, s{sXb}, s{sXc}"] if e > 0 else ["s_nop 0"]
        return o + [(f"buffer_load_dwordx4 v{vXd+n}, {sr(sX,4)}, s{sXc} offen offset:{n*1024}{NT_X} lds", f"e{e}")]
    kpos = (e // 8) * 4 + e % 4 if e < 72 else e - 72
    o, ld = w_dma(region, kpos)
    return o + [(ld, f"e{e}")]
def x_reads(j, s):
    out = []
    base = ((8 * j + 8) % 40) * 4096
    seg = base // 57344
    for tb2 in range(2):
        out.append(f"ds_read_b128 {xreg(tb2, 4*j+s)}, v{XR + seg*4 + s} offset:{base - seg*57344 + tb2*4096}")
    return out
def wregion0(ks):
    if ks >= 36: return ks - 36
    return (8 * (ks // 4) + 4 + ks % 4 + 8) % 40
def put_elems(A, vm, es):
    for e in es:
        for ins in elem_dma(e):
            if isinstance(ins, tuple): vm.issue(ins[1]); ins = ins[0]
            A(ins)

def gate_queue():
    a = GX + 24; b = GX + 25
    q = [f"v_mov_b32 v{a}, 0"]
    for i in range(3):
        for k in range(3): q.append(f"v_dot2c_f32_bf16 v{a}, v{GX+4*i+k}, v{GX+12+4*i+k}")
    q += ["s_nop 2"]
    for dpp in ("quad_perm:[1,0,3,2]", "quad_perm:[2,3,0,1]", "row_half_mirror", "row_mirror"):
        q += [f"v_add_f32_dpp v{a}, v{a}, v{a} {dpp} row_mask:0xf bank_mask:0xf", "s_nop 1"]
    q += [f"v_mov_b32 v{b}, v{a}", "s_nop 1", f"v_permlane16_swap_b32 v{a}, v{b}", "s_nop 1",
          f"v_add_f32 v{a}, v{a}, v{b}", f"v_mul_f32 v{a}, {f2u(-math.log2(math.e)):#x}, v{a}",
          f"v_exp_f32 v{a}, v{a}", "s_nop 0", f"v_add_f32 v{a}, 1.0, v{a}", f"v_rcp_f32 v{a}, v{a}", "s_nop 0",
          f"buffer_store_dword v{a}, v{GX+26}, {sr(sWS,4)}, 0 offen sc1"]
    s = GX + 28
    for c in range(2):
        q += [f"buffer_store_dwordx4 {vr(s,4)}, v{vLane16}, {sr(sWS,4)}, s{sO1} offen offset:{c*1024} sc1",
              f"buffer_store_dword v{s}, v{GX+27}, {sr(sWS,4)}, s{sO2} offen offset:{c*1024} sc1"]
    q += [f"buffer_store_dword v{GX+32}, v{GX+33}, {sr(sWS,4)}, s{sPart} offen sc1"]
    return q

def body0(A, vm):
    lg = Counter(15)
    stamp(A, 1)
    A(f"s_waitcnt vmcnt({vm.need('e7')})")
    A("s_barrier")
    stamp(A, 2)
    for s in range(2):
        for ins in x_reads(0, s) + tr_reads(s, wregion0(s)):
            A(ins); lg.issue(f"k{s}")
    for s in range(2, 4):
        for ins in x_reads(0, s):
            A(ins); lg.issue(f"x")
    put_elems(A, vm, range(12, 20))
    pinned = [[[] for _ in range(4)] for _ in range(36)]
    pre = [[] for _ in range(36)]
    e = 20
    elast = 72 + LEAD - 1
    for ks in range(36):
        pre[ks].append(lambda ks=ks: f"s_waitcnt lgkmcnt({lg.need(f'k{ks}')})")
        j = (ks + 2) // 4
        if ks % 4 == 2:
            last = 8 * j + 7 if j < 9 else 75
            if common.OPT.get("fine"):
                pinned[ks][0] += ["s_memtime s[0:1]", "s_waitcnt lgkmcnt(0)", f"v_writelane_b32 v255, s0, {30+2*j}"]
            pinned[ks][0] += [lambda last=last: f"s_waitcnt vmcnt({vm.need(f'e{last}')})", "s_barrier"]
            if common.OPT.get("fine"):
                pinned[ks][0] += ["s_memtime s[0:1]", "s_waitcnt lgkmcnt(0)", f"v_writelane_b32 v255, s0, {31+2*j}"]
        if ks % 4 >= 2 and j < 9:
            s0 = 2 * (ks % 4 - 2)
            xs = x_reads(j, s0) + x_reads(j, s0 + 1)
            for r in range(4): pinned[ks][r].append((xs[r], "x"))
        for r, ins in enumerate(tr_reads((ks + 2) % 36, wregion0(ks + 2))):
            pinned[ks][r].append((ins, f"k{ks+2}"))
        for m in ((0, 1, 2, 3) if ks < 2 else (1, 3)):
            if e <= elast:
                assert e < 40 or e <= 40 + 8 * (j - 1) + 6
                if e == 72:
                    pinned[ks][m - 1] += sum(switch_ops(), [])
                    for i, grp in enumerate(next_ops()):
                        pinned[ks + 1 + i][2] += grp
                pinned[ks][m] += elem_dma(e); e += 1
    assert e == elast + 1, e
    pinned[22][2] += [(f"buffer_load_dword v{GX+34}, off, {sr(sDB,4)}, 0 sc1", "ini")]
    pinned[34][1] += [lambda: f"s_waitcnt vmcnt({vm.need('ini')})", f"v_cmp_eq_u32 vcc, 0, v{GX+34}"]
    pinned[34][2] += ["s_cbranch_vccnz L_inispin", "L_iniok:"]
    emit_stream(A, 0, pinned, pre, gate_queue(), 12, vm, lg, maxpin=2)

def setup_sub(A):
    t = sT
    A(f"""
L_setup:
    s_mov_b64 {sr(sWn,2)}, {sr(sFb,2)}
    s_mov_b32 s{sWn+2}, {WG_SIZE}
    s_movk_i32 s{t+1}, 9216
    s_lshl_b32 s{t+2}, s{t}, 7
    s_mov_b32 s{t+4}, 0
    s_cmp_lt_u32 s{t}, 72
    s_cbranch_scc1 L_setup_fin
    s_cmp_lt_u32 s{t}, 77
    s_cbranch_scc0 L_setup_kv
    s_mov_b64 {sr(sWn,2)}, {sr(S_WQ,2)}
    s_movk_i32 s{t+1}, 1152
    s_sub_u32 s{t+2}, s{t}, 72
    s_lshl_b32 s{t+2}, s{t+2}, 1
    s_lshr_b32 s{t+3}, s{sWave}, 1
    s_add_u32 s{t+2}, s{t+2}, s{t+3}
    s_lshl_b32 s{t+2}, s{t+2}, 7
    s_cmp_lt_u32 s{t+2}, 1152
    s_cselect_b32 s{sWn+2}, {576*1152}, 0
    s_branch L_setup_fin
L_setup_kv:
    s_cmp_eq_u32 s{t}, 77
    s_cbranch_scc0 L_setup_ret
    s_cmp_lt_u32 s{sWave}, 2
    s_cselect_b64 {sr(sWn,2)}, {sr(S_WK,2)}, {sr(S_WV,2)}
    s_sub_u32 s{sWn}, s{sWn}, 3072
    s_subb_u32 s{sWn+1}, s{sWn+1}, 0
    s_movk_i32 s{sWn+2}, {576*36 + 3072}
    s_movk_i32 s{t+1}, 36
    s_mov_b32 s{t+2}, 0
    s_movk_i32 s{t+4}, 3072
L_setup_fin:
    s_lshl_b32 s{nStep}, s{t+1}, 6
    s_lshl_b32 s{nD}, s{t+1}, 4
    s_sub_u32 s{nD}, s{nD}, 1024
    s_and_b32 s{t+3}, s{sWave}, 1
    s_mul_i32 s{t+3}, s{t+3}, s{t+1}
    s_lshl_b32 s{t+3}, s{t+3}, 3
    s_add_u32 s{nOff}, s{t+2}, s{t+3}
    s_mul_i32 s{t+3}, s{sRot}, s{nStep}
    s_add_u32 s{nStart}, s{nOff}, s{t+3}
    v_mad_u32_u24 v{vNext}, v{vR8}, s{t+1}, v{vC16}
    v_add_u32 v{vNext}, s{t+4}, v{vNext}
    s_setpc_b64 {sr(sLink2,2)}
L_setup_ret:
    s_mov_b64 {sr(sWn,2)}, {sr(S_WS,2)}
    s_mov_b32 s{sWn+2}, {WS_SIZE}
    v_mov_b32 v{vNext}, v{vLane16}
    s_setpc_b64 {sr(sLink2,2)}
""")

def special_sub(A):
    sc1 = " sc1"
    t = sT
    A(f"""
L_special:
    s_bfe_u32 s{t}, s{sTab}, 0x80010
    s_call_b64 {sr(sLink2,2)}, L_setup
    s_mov_b32 s{sH+2}, {WS_SIZE}
    s_and_b32 s{t}, s{sTab}, 0xff
    s_cmp_lt_u32 s{t}, 72
    s_cbranch_scc1 L_special_ret
    s_mov_b32 s{sH+2}, 0
    s_cmp_eq_u32 s{sPar}, 0
    s_cbranch_scc1 L_special_go
""")
    for i in range(64): A(f"v_mov_b32 v{i}, v{64+i}")
    A(f"""
L_special_go:
    s_cmp_eq_u32 s{t}, 77
    s_cbranch_scc1 L_special_kv
    s_lshl_b32 s{t+1}, s{sTb}, 1
    s_lshr_b32 s{t+2}, s{sWave}, 1
    s_add_u32 s{t+1}, s{t+1}, s{t+2}
    s_mul_i32 s{t+1}, s{t+1}, {2*36*1024}
    s_sub_u32 s{t+2}, s{t}, 72
    s_lshl_b32 s{t+2}, s{t+2}, 13
    s_add_u32 s{t+1}, s{t+1}, s{t+2}
    s_and_b32 s{t+2}, s{sWave}, 1
    s_lshl_b32 s{t+2}, s{t+2}, 11
    s_add_u32 s{t+1}, s{t+1}, s{t+2}
    s_add_u32 s{t+1}, s{t+1}, {WS_Q}
    s_add_u32 s{t+2}, s{t+1}, {36*1024}
    s_mov_b32 s{t+3}, {f2u(QSCALE):#x}
""")
    for i in range(64): A(f"v_mul_f32 v{i}, s{t+3}, v{i}")
    for i in range(32): A(f"v_cvt_pk_bf16_f32 v{64+i}, v{2*i}, v{2*i+1}")
    for half in range(2):
        if half == 1:
            A(f"s_add_u32 s{t+1}, s{t+1}, 4096")
            A(f"s_add_u32 s{t+2}, s{t+2}, 4096")
            A(f"s_cmp_eq_u32 s{t}, 76")
            A("s_cbranch_scc1 L_special_ret")
        for blk in range(4):
            a, tb2 = blk // 2, blk % 2
            A(f"buffer_store_dwordx4 {vr(64 + blk*8 + half*4, 4)}, v{vLane16}, {sr(sWS,4)}, s{t+1+tb2} offen offset:{a*1024}{sc1}")
    LB = 9 * 16384
    A(f"""
    s_branch L_special_ret
L_special_kv:
    s_barrier
    v_and_b32 v{vT}, 31, v{vLane}
    v_lshrrev_b32 v{vT+1}, 5, v{vLane}
    s_lshr_b32 s{t+2}, s{sWave}, 1
    s_mul_i32 s{t+5}, s{t+2}, {2*KV_VT}
    s_add_u32 s{t+5}, s{t+5}, {LB + KV_V}
    s_and_b32 s{t+3}, s{sWave}, 1
    s_cmp_eq_u32 s{t+3}, 0
    s_cbranch_scc1 L_special_kv0
    v_and_b32 v{vT}, 3, v{vLane}
    v_mul_u32_u24 v{vT}, {KV_VF}, v{vT}
    v_and_b32 v{vT+1}, 4, v{vLane}
    v_lshl_add_u32 v{vT}, v{vT+1}, 2, v{vT}
    v_cmp_eq_u32 vcc, 0, v{vT+1}
    v_add_u32 v{vT}, s{t+5}, v{vT}
    v_mov_b32 v65, 0x3f803f80
    v_cndmask_b32 v64, 0, v65, vcc
    v_add_u32 v{vT}, 576, v{vT}
    v_mov_b32 v{vT+1}, {LB + KV_K2 + 512}
    v_cmp_eq_u32 vcc, 8, v{vLane}
    v_mov_b32 v65, v64
    v_mov_b32 v66, v64
    v_cndmask_b32 v{vT}, v{vT}, v{vT+1}, vcc
    v_mov_b32 v67, v64
    s_mov_b64 exec, 0x1ff
    ds_write_b128 v{vT}, v[64:67]
    s_mov_b64 exec, -1
    s_branch L_special_kv1
L_special_kv0:
""")
    for i in range(32): A(f"v_cvt_pk_bf16_f32 v{64+i}, v{2*i}, v{2*i+1}")
    A(f"""
    s_lshl_b32 s{t+3}, s{t+2}, 11
    s_add_u32 s{t+3}, s{t+3}, {LB}
    s_lshl_b32 s{t+4}, s{t+2}, 3
    s_add_u32 s{t+4}, s{t+4}, {LB + KV_K2}    ; K2 base
    v_lshrrev_b32 v{vT+2}, 4, v{vT}
    v_mul_u32_u24 v{vT+2}, {KV_VF}, v{vT+2}
    v_bfe_u32 v{vT+3}, v{vT}, 2, 1
    v_mul_u32_u24 v{vT+3}, 288, v{vT+3}
    v_add_u32 v{vT+2}, v{vT+2}, v{vT+3}
    v_and_b32 v{vT+3}, 3, v{vT}
    v_lshl_add_u32 v{vT+2}, v{vT+3}, 1, v{vT+2}
    v_and_b32 v{vT+3}, 8, v{vT}
    v_add3_u32 v{vT+2}, v{vT+2}, v{vT+3}, s{t+5}
    v_lshl_add_u32 v{vT+3}, v{vT+1}, 7, v{vT+2}   ; d = 8hh + i
    v_add_u32 v{vT+4}, s{t+3}, v{vLane16}
    v_add_u32 v{vT+5}, s{t+4}, v{vLane16}
""")
    for tb2 in range(2):
        b0 = 64 + tb2 * 8
        A(f"ds_write_b128 v{vT+4}, {vr(b0,4)} offset:{tb2*1024}")
        for i in range(8):
            op = "ds_write_b16" if i % 2 == 0 else "ds_write_b16_d16_hi"
            A(f"{op} v{vT+3}, v{b0+4+i//2} offset:{tb2*KV_VT + i*16}")
    A("s_mov_b32 exec_hi, 0")
    for tb2 in range(2):
        b1 = 64 + (2 + tb2) * 8
        A(f"ds_write_b32 v{vT+5}, v{b1} offset:{tb2*4}")
        for i in range(2):
            op = "ds_write_b16" if i % 2 == 0 else "ds_write_b16_d16_hi"
            A(f"{op} v{vT+2}, v{b1+4} offset:{tb2*KV_VT + (16+i)*16}")
    A(f"""
    s_mov_b64 exec, -1
L_special_kv1:
    s_lshl_b32 s{t+2}, s{sWave}, 10
    v_add_u32 v{vT}, s{t+2}, v{vLane16}
    v_add_u32 v{vT+1}, {LB}, v{vT}
    v_cmp_gt_u32 vcc, {KV_GS - 8192}, v{vT}
    v_mov_b32 v{vT+2}, 0x40000000
    s_mul_i32 s{t+1}, s{sTb}, {KV_GS}
    v_cndmask_b32 v{vT+2}, v{vT+2}, v{vT}, vcc
    s_add_u32 s{t+1}, s{t+1}, {WS_KV}
    s_add_u32 s{t+2}, s{t+1}, 4096
    s_add_u32 s{t+3}, s{t+1}, 8192
    s_waitcnt lgkmcnt(0)
    s_barrier
    ds_read_b128 v[64:67], v{vT+1}
    ds_read_b128 v[68:71], v{vT+1} offset:4096
    ds_read_b128 v[72:75], v{vT+1} offset:8192
    s_waitcnt lgkmcnt(0)
    buffer_store_dwordx4 v[64:67], v{vT}, {sr(sWS,4)}, s{t+1} offen{sc1}
    buffer_store_dwordx4 v[68:71], v{vT}, {sr(sWS,4)}, s{t+2} offen{sc1}
    buffer_store_dwordx4 v[72:75], v{vT+2}, {sr(sWS,4)}, s{t+3} offen{sc1}
L_special_ret:
    s_nop 1
    s_setpc_b64 {sr(sLink,2)}
""")

def spin(A, soff, name, back):
    A(f"""
L_{name}:
    s_mov_b32 s{sT+5}, 0x40000
L_{name}_l:
    {poll_ld(soff)}
    s_sub_u32 s{sT+5}, s{sT+5}, 1
    s_cbranch_scc1 {back}
    s_waitcnt vmcnt(0)
""")
    A.many(flag_min())
    A(f"""
    v_cmp_eq_u32 vcc, 0, v{vPoll}
    s_cbranch_vccz {back}
    s_sleep 8
    s_branch L_{name}_l
""")

def phase1(A):
    t = sT
    stamp(A, 0)
    A(f"""
    s_cmp_ge_u32 s2, 256
    s_cbranch_scc1 L_end
    s_load_dwordx16 s[4:19], s[0:1], 0
    s_load_dwordx8 s[20:27], s[0:1], 64
    s_load_dwordx2 s[28:29], s[0:1], 96
    s_getpc_b64 {sr(sLink,2)}
L_pc1:
    s_bfe_u32 s{sXq}, s2, 0x20001
    s_lshr_b32 s{sQi}, s2, 6
    s_lshl_b32 s{t}, s{sXq}, 2
    s_add_u32 s{t}, s{t}, s{sQi}            ; jg
    s_lshl_b32 s{t+1}, s{t}, 3
    s_add_u32 s{t+1}, s{t+1}, L_jobtab-L_pc1
    s_load_dwordx2 {sr(sTab,2)}, {sr(sLink,2)}, s{t+1}
    v_lshrrev_b32 v1, 6, v0
    v_and_b32 v{vLane}, 63, v0
    v_readfirstlane_b32 s{sWave}, v1
    v_lshlrev_b32 v{vLane16}, 4, v{vLane}
    s_and_b32 s{t}, s{t}, 11
    s_cmp_eq_u32 s{t}, 3
    s_cselect_b32 s{sSpecial}, 1, 0
    s_and_b32 s{t}, s2, 1
    s_lshl_b32 s{t}, s{t}, 3
    s_bfe_u32 s{t+1}, s2, 0x30003
    s_add_u32 s{sTb}, s{t}, s{t+1}
    s_lshl_b32 s{t}, s{sQi}, 1
    s_add_u32 s{t}, s{t}, s{t+1}
    s_cmp_ge_u32 s{t}, 9
    s_cselect_b32 s{t+1}, 9, 0
    s_sub_u32 s{t+5}, s{t}, s{t+1}
    {"s_mov_b32 s%d, 0" % (t+5) if common.OPT.get("norot") else ""}
    s_sub_u32 s{sRot}, s{t+5}, 1
    v_lshrrev_b32 v{vR8}, 3, v{vLane}
    v_and_b32 v1, 7, v{vLane}
    s_lshl_b32 s{sM0}, s{sWave}, 12
    s_lshr_b32 s{t+2}, s{sWave}, 1
    s_and_b32 s{t+3}, s{sWave}, 1
    v_and_b32 v2, 2, v{vR8}
    v_xor_b32 v2, v1, v2
    s_lshl_b32 s{t+4}, s{t+2}, 2
    v_xor_b32 v2, s{t+4}, v2
    v_lshlrev_b32 v{vC16}, 4, v2
    v_lshrrev_b32 v2, 1, v{vR8}
    v_xor_b32 v2, v1, v2
    v_lshlrev_b32 v2, 4, v2
    v_mul_u32_u24 v3, 1152, v{vR8}
    v_add_u32 v{vXd}, v2, v3
    v_xor_b32 v2, 64, v{vXd}
    v_add_u32 v{vXd+1}, {8*1152-1024}, v2
    v_add_u32 v{vXd+2}, {2*(8*1152-1024)}, v{vXd}
    v_add_u32 v{vXd+3}, {3*(8*1152-1024)}, v2
    s_lshl_b32 s{t+4}, s{sTb}, 2
    s_add_u32 s{t+4}, s{t+4}, s{sWave}
    s_mul_i32 s{sXb}, s{t+4}, {32*1152}
    s_lshl_b32 s{t+5}, s{t+5}, 7
    s_add_u32 s{sXc}, s{sXb}, s{t+5}
    s_mov_b32 s{sX+2}, {2048*1152}
    s_mov_b32 s{sX+3}, {SRD3}
    s_mov_b32 s{sW+3}, {SRD3}
    s_waitcnt lgkmcnt(0)
    s_mov_b64 {sr(sX,2)}, {sr(S_X,2)}
""")
    vm = Counter(63)
    if common.OPT.get("fine"): stamp(A, 27)
    put_elems(A, vm, range(0, 4))
    A(f"""
    s_cmp_lt_u32 s{sWave}, 2
    s_cselect_b64 {sr(sFb,2)}, {sr(S_WG,2)}, {sr(S_WU,2)}
    s_bfe_u32 s{t}, s{sTab}, 0x80008
    s_call_b64 {sr(sLink2,2)}, L_setup
""")
    for g in switch_ops(): A.many(g)
    put_elems(A, vm, range(4, 8))
    A(f"""
    s_bfe_u32 s{t}, s{sTab}, 0x80010
    s_call_b64 {sr(sLink2,2)}, L_setup
    s_add_u32 s{sXend}, s{sXb}, 1152
""")
    put_elems(A, vm, range(8, 12))
    if common.OPT.get("fine"): stamp(A, 28)
    W = sPar
    A(f"""
    s_mov_b64 {sr(sWS,2)}, {sr(S_WS,2)}
    s_mov_b32 s{sWS+2}, {WS_SIZE}
    s_mov_b32 s{sWS+3}, {SRD3}
    s_mov_b64 {sr(sDB,2)}, {sr(S_DBG,2)}
    s_movk_i32 s{sDB+2}, 256
    s_mov_b32 s{sDB+3}, {SRD3}
    s_mov_b32 s{sOUT+2}, {2048*1152}
    s_mov_b32 s{sOUT+3}, {SRD3}
    s_mov_b64 {sr(sH,2)}, {sr(S_WS,2)}
    s_mov_b32 s{sH+2}, {WS_SIZE}
    s_mov_b32 s{sH+3}, {SRD3}
    s_mov_b64 {sr(sPD,2)}, {sr(S_WS,2)}
    s_mov_b32 s{sPD+3}, {SRD3}
    s_mov_b32 s{sP+3}, {SRD3}
    s_mov_b32 s{sC2}, {f2u(GC2):#x}
    v_mov_b32 v{vC1}, {f2u(GC1):#x}
    s_movk_i32 s{t+4}, 9216
    v_mad_u32_u24 v{vF}, v{vR8}, s{t+4}, v{vC16}
    s_add_u32 s{sKVoff}, s{sM0}, {WS_KV}
    s_lshl_b32 s{W}, s2, 2
    s_add_u32 s{W}, s{W}, s{sWave}
    s_lshr_b32 s{t+2}, s{sWave}, 1
    s_and_b32 s{t+3}, s{sWave}, 1
    s_mul_i32 s{sRowOff}, s{t+3}, {8*9216}
    s_lshl_b32 s{t}, s{sTb}, 1
    s_add_u32 s{t}, s{t}, s{t+2}
    s_mul_i32 s{sHbase}, s{t}, {HO_G}
    s_lshl_b32 s{t}, s{t+3}, 12
    s_add_u32 s{sHbase}, s{sHbase}, s{t}
    v_and_b32 v32, 3, v{vLane}              ; c
    v_lshrrev_b32 v33, 1, v32
    v_and_b32 v32, 1, v32
    v_lshl_add_u32 v32, v32, 1, v33         ; perm(c)
    v_lshlrev_b32 v32, 3, v32
    v_bfe_u32 v33, v{vLane}, 2, 2           ; r4
    v_lshl_add_u32 v32, v33, 7, v32
    v_bfe_u32 v34, v{vLane}, 4, 1
    v_lshrrev_b32 v35, 5, v{vLane}          ; hh
    v_lshl_add_u32 v36, v34, 5, v32
    v_lshl_add_u32 v36, v35, 10, v36
    s_add_u32 s{t}, s{sM0}, {9*16384}
    v_add_u32 v{vPtr}, s{t}, v36
    v_lshrrev_b32 v33, 1, v33
    v_lshl_add_u32 v33, v34, 1, v33
    s_lshl_b32 s{t}, s{t+3}, 1
    v_xor_b32 v33, s{t}, v33
    v_lshl_add_u32 v32, v33, 5, v32
    v_lshl_add_u32 v32, v34, 13, v32
    v_lshl_add_u32 v{vTR}, v35, 12, v32
    v_xor_b32 v{vTR+1}, 32, v{vTR}
    v_add_u32 v{vTR+2}, {12*4096}, v{vTR}
    v_add_u32 v{vTR+3}, {12*4096}, v{vTR+1}
    v_add_u32 v{vTR+4}, {24*4096}, v{vTR}
    v_add_u32 v{vTR+5}, {24*4096}, v{vTR+1}
    v_and_b32 v37, 31, v{vLane}             ; n
    v_bfe_u32 v33, v{vLane}, 1, 3
    v_xor_b32 v33, v33, v35
    v_lshlrev_b32 v33, 4, v33
    v_lshl_add_u32 v32, v37, 7, v33
    s_lshl_b32 s{t}, s{t+2}, 13
    v_add_u32 v{XR}, s{t}, v32
    v_xor_b32 v{XR+1}, 32, v{XR}
    v_xor_b32 v{XR+2}, 64, v{XR}
    v_xor_b32 v{XR+3}, 0x60, v{XR}
""")
    for seg in (1, 2):
        for s in range(4): A(f"v_add_u32 v{XR+seg*4+s}, {seg*57344}, v{XR+s}")
    A(f"""
    v_mul_u32_u24 v{vQa}, 1152, v37
    v_lshl_add_u32 v{vQa}, v35, 4, v{vQa}
    v_lshlrev_b32 v{vLane4}, 2, v{vLane}
    v_bfe_u32 v32, v{vLane}, 2, 1
    v_bfe_u32 v33, v{vLane}, 3, 1
    v_lshlrev_b32 v32, 3, v32
    v_lshl_add_u32 v32, v33, 2, v32
    v_and_b32 v33, 0x13, v{vLane}
    v_or_b32 v32, v32, v33
    v_mul_u32_u24 v33, 18, v35
    v_cmp_gt_u32 vcc, 18, v37
    v_add_u32 v32, v32, v33
    v_and_b32 v33, 27, v37
    v_cndmask_b32 v32, 37, v32, vcc
    v_cmp_ne_u32 vcc, 18, v33
    v_mul_u32_u24 v4, 12, v37
    s_lshl_b32 s{t+5}, s{W}, 1
    v_cndmask_b32 v32, 36, v32, vcc
    v_lshlrev_b32 v{vAV}, 4, v32
    v_add_u32 v5, s{t+5}, v35               ; token
    v_mul_u32_u24 v6, 1152, v5
    v_add_u32 v6, v6, v4
    v_cmp_eq_u32 vcc, 0, v37
    v_lshlrev_b32 v5, 2, v5
    v_add_u32 v5, {WS_G}, v5
    v_mov_b32 v33, 0x40000000
    v_cndmask_b32 v{GX+26}, v33, v5, vcc
    v_lshl_add_u32 v{GX+27}, v35, 30, v{vLane16}
    v_mov_b32 v{GX+28}, -1
    v_mov_b32 v{GX+29}, -1
    v_mov_b32 v{GX+30}, -1
    v_mov_b32 v{GX+31}, -1
    v_mov_b32 v{GX+32}, 0
    v_cmp_eq_u32 vcc, 0, v0
    v_mov_b32 v{vOne}, 1
    s_mov_b32 s{sSkip}, 1
    v_cndmask_b32 v{vFlagOff}, v33, 0, vcc
    s_lshl_b32 s{t}, s{sTb}, 2
    s_add_u32 s{t}, s{t}, {F0}
    s_bfe_u32 s{t+1}, s{sTab}, 0x80008
    s_cmp_eq_u32 s{t+1}, 77
    s_cselect_b32 s{sPub}, s{t}, {FOOB}
    ; pack params: ks = W/3, a = W%3
    s_mul_i32 s{t}, s{W}, 21846
    s_lshr_b32 s{t}, s{t}, 16
    s_mul_i32 s{t+1}, s{t}, 3
    s_sub_u32 s{t+1}, s{W}, s{t+1}
    s_mul_i32 s{sPd0}, s{t+1}, {2*WP_T}
    s_mul_i32 s{t+2}, s{t}, 3072
    s_add_u32 s{sPd0}, s{sPd0}, s{t+2}
    s_add_u32 s{sPd0}, s{sPd0}, {WS_WP}
    s_add_u32 s{sPd1}, s{sPd0}, {WP_T}
    s_cmp_lt_u32 s{t}, 324
    s_cselect_b32 s{sPD+2}, {WS_SIZE}, 0
    s_mul_i32 s{t+1}, s{t+1}, 384
    v_and_b32 v32, 7, v{vLane}
    v_lshlrev_b32 v32, 4, v32
    s_movk_i32 s{t+4}, 1152
    v_mad_u32_u24 v{vPsrc}, v{vR8}, s{t+4}, v32
    s_mov_b64 {sr(sP,2)}, {sr(S_WD,2)}
    s_mov_b32 s{sP+2}, {4608*1152}
    s_mul_i32 s{sPs0}, s{t}, {16*1152}
    s_movk_i32 s{t+3}, {8*1152}
    s_cmp_lt_u32 s{t}, 288
    s_cbranch_scc1 L_pk_done
    s_mov_b64 {sr(sP,2)}, {sr(S_WO,2)}
    s_mov_b32 s{sP+2}, {576*1152}
    s_sub_u32 s{t+2}, s{t}, 288
    s_mul_i32 s{sPs0}, s{t+2}, {18*1152}
    s_cmp_lt_u32 s{t}, 320
    s_cbranch_scc1 L_pk_done
    s_sub_u32 s{t+2}, s{t}, 320
    s_mul_i32 s{sPs0}, s{t+2}, {144*1152}
    s_add_u32 s{sPs0}, s{sPs0}, {16*1152}
    s_mov_b32 s{t+3}, {72*1152}
    v_lshrrev_b32 v34, 1, v{vR8}
    v_mul_u32_u24 v34, 18, v34
    v_and_b32 v36, 1, v{vR8}
    v_add_u32 v34, v34, v36
    v_mad_u32_u24 v{vPsrc}, v34, s{t+4}, v32
L_pk_done:
    s_add_u32 s{sPs0}, s{sPs0}, s{t+1}
    s_add_u32 s{sPs1}, s{sPs0}, s{t+3}
    s_sub_u32 s{sPs1}, s{sPs1}, 1024
    s_mov_b64 {sr(sLink,2)}, {sr(S_GW,2)}
""")
    g64, head, nt = t, t + 1, t + 2
    A(f"""
    s_and_b32 s{t+3}, s{sXq}, 1
    s_lshl_b32 s{g64}, s{sTb}, 1
    s_add_u32 s{g64}, s{g64}, s{t+3}
    s_lshr_b32 s{t+3}, s{sXq}, 1            ; nhalf
    s_lshl_b32 s{head}, s{t+3}, 2
    s_add_u32 s{head}, s{head}, s{sQi}
    s_lshl_b32 s{head}, s{head}, 2
    s_add_u32 s{head}, s{head}, s{sWave}
    s_mul_i32 s{t+3}, s{t+3}, 3
    s_mul_i32 s{t+4}, s{sWave}, {KM}
    s_cmp_eq_u32 s{sQi}, 3
    s_cselect_b32 s{nt}, s{sWave}, s{sQi}
    s_cselect_b32 s{t+4}, {4*KM}, s{t+4}
    s_add_u32 s{nt}, s{nt}, s{t+3}
    ; W side
    s_mul_i32 s{t+3}, s{nt}, {WP_T}
    s_add_u32 s{t+3}, s{t+3}, {WS_WP}
    s_mul_i32 s{t+5}, s{t+4}, 3072
    s_add_u32 s{t+5}, s{t+5}, s{t+3}
    s_add_u32 s{sWp}, s{S_WS}, s{t+5}
    s_addc_u32 s{sWp+1}, s{S_WS+1}, 0
    s_mul_i32 s{t+5}, s{sWave}, {9*3072}
    s_add_u32 s{t+5}, s{t+5}, s{t+3}
    s_add_u32 s{t+5}, s{t+5}, {288*3072}
    s_add_u32 s{sWo}, s{S_WS}, s{t+5}
    s_addc_u32 s{sWo+1}, s{S_WS+1}, 0
    ; h side
    s_mul_i32 s{t+3}, s{g64}, {HO_G}
    s_lshl_b32 s{t+5}, s{t+4}, 11
    s_add_u32 s{t+5}, s{t+5}, s{t+3}
    s_add_u32 s{sHp}, s{S_WS}, s{t+5}
    s_addc_u32 s{sHp+1}, s{S_WS+1}, 0
    s_mul_i32 s{t+5}, s{sWave}, {9*2048}
    s_add_u32 s{t+5}, s{t+5}, s{t+3}
    s_add_u32 s{t+5}, s{t+5}, {288*2048}
    s_add_u32 s{sHo}, s{S_WS}, s{t+5}
    s_addc_u32 s{sHo+1}, s{S_WS+1}, 0
    s_lshl_b32 s{sO1}, s{head}, 11
    s_add_u32 s{sO1}, s{sO1}, s{t+3}
    s_add_u32 s{sO1}, s{sO1}, {288*2048}
    s_lshr_b32 s{sO2}, s{head}, 3
    s_lshl_b32 s{sO2}, s{sO2}, 11
    s_add_u32 s{sO2}, s{sO2}, s{t+3}
    s_bfe_u32 s{t+5}, s{head}, 0x10002
    s_lshl_b32 s{t+5}, s{t+5}, 9
    s_add_u32 s{sO2}, s{sO2}, s{t+5}
    s_lshl_b32 s{t+5}, s{sWave}, 2
    s_add_u32 s{sO2}, s{sO2}, s{t+5}
    s_add_u32 s{sO2}, s{sO2}, {320*2048}
    ; q / g offsets
    s_mul_i32 s{sQoff}, s{g64}, {2*36*1024}
    s_mul_i32 s{t+5}, s{head}, 18
    s_lshr_b32 s{t+5}, s{t+5}, 3
    s_lshl_b32 s{t+5}, s{t+5}, 9
    s_add_u32 s{sQoff}, s{sQoff}, s{t+5}
    s_add_u32 s{sQoff}, s{sQoff}, {WS_Q}
    s_lshl_b32 s{sGoff}, s{g64}, 8
    s_add_u32 s{sGoff}, s{sGoff}, {WS_G}
    s_mul_i32 s{sPart}, s{g64}, 6
    s_add_u32 s{sPart}, s{sPart}, s{nt}
    s_mul_i32 s{sPart}, s{sPart}, {PART_T}
    s_add_u32 s{sPart}, s{sPart}, {WS_PART}
    s_lshl_b32 s{t+3}, s{g64}, 1
    s_lshr_b32 s{t+5}, s{sWave}, 1
    s_add_u32 s{t+3}, s{t+3}, s{t+5}
    s_mul_i32 s{sOutOff}, s{t+3}, {32*1152}
    s_mul_i32 s{t+5}, s{nt}, 192
    s_add_u32 s{sOutOff}, s{sOutOff}, s{t+5}
    s_and_b32 s{t+5}, s{sWave}, 1
    s_mul_i32 s{t+5}, s{t+5}, 96
    s_add_u32 s{sOutOff}, s{sOutOff}, s{t+5}
    s_lshl_b32 s{t+5}, s{sQi}, 2
    s_add_u32 s{t+5}, s{t+5}, s{sWave}
    s_sub_u32 s{t+5}, s{t+5}, 12
    s_cmp_lt_u32 s{t+5}, 3
    s_cselect_b32 s{t+5}, 0, 64
    v_mov_b32 v32, 24576
    v_cmp_eq_u32 vcc, s{t+5}, v{vLane}
    s_nop 1
    v_cndmask_b32 v{GX+33}, v33, v32, vcc
""")
    A(f"""
    s_cmp_eq_u32 s{W}, 771
    s_cbranch_scc1 L_flaginit
L_flaginit_ret:
""")
    if common.OPT.get("fine"): stamp(A, 29)
    for i in range(3):
        A(f"global_load_dwordx3 {vr(GX+4*i,3)}, v6, {sr(sX,2)} offset:{384*i}"); vm.issue("g")
        A(f"global_load_dwordx3 {vr(GX+12+4*i,3)}, v4, {sr(sLink,2)} offset:{384*i}"); vm.issue("g")
    body0(A, vm)
    A(f"""
L_loop:
    s_cmp_eq_u32 s{sSpecial}, 0
    s_cbranch_scc1 L_odd
    s_mov_b32 s{sPar}, 0
    s_call_b64 {sr(sLink,2)}, L_special
L_odd:
""")
    body(A, True)
    A(f"""
    s_cmp_eq_u32 s{sSpecial}, 0
    s_cbranch_scc1 L_even
    s_bfe_u32 s{t}, s{sTab}, 0x80008
    s_cmp_eq_u32 s{t}, 0xff
    s_cbranch_scc1 L_last_odd
    s_mov_b32 s{sPar}, 1
    s_call_b64 {sr(sLink,2)}, L_special
L_even:
""")
    body(A, False)
    A(f"""
    s_bfe_u32 s{t}, s{sTab}, 0x80008
    s_cmp_eq_u32 s{t}, 0xff
    s_cbranch_scc0 L_loop
L_p1_final:
""")

def phase1_tail(A):
    A("L_last_odd:")
    A("s_nop 7")
    for i in range(64): A(f"v_mov_b32 v{i}, v{64+i}")
    A(f"s_mov_b32 s{sH+2}, {WS_SIZE}")
    A("s_branch L_p1_final")
    setup_sub(A)
    special_sub(A)
    spin(A, f"s{sPollOff}", "kvspin_o", "L_kvok_o")
    spin(A, f"s{sPollOff}", "kvspin_e", "L_kvok_e")
    A(f"""
L_flaginit:
    v_cmp_lt_u32 vcc, 3, v{vLane}
    v_mov_b32 v12, 0
    v_mov_b32 v13, 0
    v_cndmask_b32 v8, 0, 1, vcc
    v_mov_b32 v14, 0
    v_mov_b32 v15, 0
    v_mov_b32 v9, v8
    v_mov_b32 v10, v8
    v_mov_b32 v11, v8
    s_mov_b32 s{sT}, {WS_FL}
    buffer_store_dwordx4 v[8:11], v{vLane16}, {sr(sWS,4)}, s{sT} offen sc1
    buffer_store_dwordx4 v[12:15], v{vLane16}, {sr(sWS,4)}, s{sT} offen offset:1024 sc1
    buffer_store_dwordx4 v[12:15], v{vLane16}, {sr(sWS,4)}, s{sT} offen offset:2048 sc1
    s_waitcnt vmcnt(0)
    buffer_store_dword v{vOne}, off, {sr(sDB,4)}, 0 sc1
    s_branch L_flaginit_ret
L_inispin:
    s_mov_b32 s{sT+5}, 0x40000
L_inispin_l:
    buffer_load_dword v{GX+34}, off, {sr(sDB,4)}, 0 sc1
    s_sub_u32 s{sT+5}, s{sT+5}, 1
    s_cbranch_scc1 L_iniok
    s_waitcnt vmcnt(0)
    v_cmp_eq_u32 vcc, 0, v{GX+34}
    s_cbranch_vccz L_iniok
    s_sleep 8
    s_branch L_inispin_l
""")

def jobtab(A):
    tab, _, _ = job_table()
    A(".p2align 3")
    A(".type L_jobtab,@object")
    A("L_jobtab:")
    for b in tab:
        A(".byte " + ", ".join(str(x) for x in b))
```

```python
from common import *
import common

S_X, S_WQ, S_WK, S_WV, S_WO, S_WG, S_WU, S_WD, S_GW, S_OUT, S_DBG, S_WS = 4, 6, 8, 10, 12, 16, 18, 20, 22, 24, 26, 28
sW, sWn, nOff, sX, sWS, sH, sP, sPD = 32, 36, 39, 40, 44, 48, 52, 56
sWave, sOff, sStep, nStep, sHoff, sHbase, sTab, sM0, sRowOff = 60, 61, 62, 63, 64, 65, 66, 68, 69
sPs0, sPs1, sPd0, sPd1, sXc, sXend = 70, 71, 72, 73, 74, 85
sT = 76
sLink, sLink2, sSpecial, sTb, sKVoff, sC2, sFb, sPub, sPar = 82, 84, 86, 87, 88, 89, 90, 92, 93
sXq, sQi = 94, 95
sDB = 96
sBase, sEnd, nStart, sSkip, sRot = 100, 101, 31, 30, 3
sPollOff = 74
nD = 75
sHp, sWp, sHo, sWo = 12, 14, 16, 18
sO1, sO2, sQoff, sGoff = 20, 21, 22, 23
sOUT = 24
sPart, sOutOff = 4, 5
SRD3 = 0x00020000
WG_SIZE = 576 * 9216
LEAD = 20
PB = 4
NT_W = ""
NT_X = ""
NT_P = ""

ACC = [0, 64]
AF = 128
XT = 152
GT = 184
PK = 200
PF = 208
vDma = 220
vTR = 224
vSpare, vNext, vF, vLane16, vC1, vPsrc, vPtr, vR8, vC16, vFlagOff, vOne, vLane, vQa, vAV = range(230, 244)
vT = 244
vPoll = 244
vLane4 = 250
F0, F2, F4, FOOB = WS_FL, WS_FL + 1024, WS_FL + 2048, 0x40000000

def xreg(tb2, ks):
    i = ks * 2 + tb2
    return ar(4 * i, 4) if i < 64 else vr(XT + 4 * (i - 64), 4)

def tr_reads(ks, region):
    out = []
    third = min(region // 12, 2)
    for r in range(4):
        a, rr = r // 2, r % 2
        reg = AF + (ks % 3) * 8 + a * 4 + rr * 2
        off = (region // 4 - third * 3) * 16384 + (region % 4) * 1024 + rr * 512
        out.append(f"ds_read_b64_tr_b16 {vr(reg,2)}, v{vTR + third*2 + a} offset:{off}")
    return out

def gelu_ops(accset, gt=GT, pkb=PK):
    blocks = []
    for blk in range(4):
        ops = []
        g = ACC[accset] + 16 * blk; u = g + 8
        t = gt + 8 * (blk % 2); pk = pkb + 4 * (blk % 2)
        ops += [f"v_mul_f32 v{t+i}, v{g+i}, v{g+i}" for i in range(8)]
        ops += [f"v_fma_f32 v{t+i}, v{t+i}, s{sC2}, v{vC1}" for i in range(8)]
        ops += [f"v_mul_f32 v{t+i}, v{t+i}, v{g+i}" for i in range(8)]
        for i in range(8):
            ops += [f"v_exp_f32 v{t+i}, v{t+i}", f"v_mul_f32 v{g+i}, v{g+i}, v{u+i}"]
        ops += [f"v_add_f32 v{t+i}, 1.0, v{t+i}" for i in range(8)]
        ops += [f"v_rcp_f32 v{t+i}, v{t+i}" for i in range(8)]
        ops += [f"v_mul_f32 v{g+i}, v{g+i}, v{t+i}" for i in range(8)]
        ops += [f"v_cvt_pk_bf16_f32 v{pk+i}, v{g+2*i}, v{g+2*i+1}" for i in range(4)]
        ops += [f"buffer_store_dwordx4 {vr(pk,4)}, v{vLane16}, {sr(sH,4)}, s{sHoff} offen offset:{blk*1024} sc1"]
        blocks.append(ops)
    return blocks

def w_dma(region, kpos):
    o = []
    if region % 4 == 0:
        o = [f"s_add_u32 m0, s{sM0}, {(region//4)*16384}", f"s_add_u32 s{sOff}, s{sOff}, s{sStep}"]
        if kpos > 0:
            o += [f"s_cmp_eq_u32 s{sOff}, s{sEnd}", f"s_cselect_b32 s{sOff}, s{sBase}, s{sOff}"]
    j = region % 4
    return o, f"buffer_load_dwordx4 v{vDma+j}, {sr(sW,4)}, s{sOff} offen offset:{j*1024} sc1{NT_W} lds"

def switch_ops():
    return [[f"s_mov_b64 {sr(sW,2)}, {sr(sWn,2)}", f"s_mov_b32 s{sW+2}, s{sWn+2}", f"s_mov_b32 s{sStep}, s{nStep}", f"v_mov_b32 v{vDma}, v{vNext}"],
            [f"s_mov_b32 s{sOff}, s{nStart}", f"s_mov_b32 s{sBase}, s{nOff}", f"s_mul_i32 s{sEnd}, s{nStep}, 9", f"s_add_u32 s{sEnd}, s{sEnd}, s{nOff}"],
            [f"v_add_u32 v{vDma+1}, s{nD}, v{vDma}", f"v_add_u32 v{vDma+2}, s{nD}, v{vDma+1}", f"v_add_u32 v{vDma+3}, s{nD}, v{vDma+2}"]]

def next_ops():
    t = sT
    return [[f"s_bfe_u32 s{t}, s{sTab}, 0x80018", f"s_lshl_b32 s{t+1}, s{t}, 7", f"s_add_u32 s{t+1}, s{t+1}, s{sRowOff}"],
            [f"s_cmp_eq_u32 s{t}, 0xff", f"s_cselect_b32 s{nOff}, s{sKVoff}, s{t+1}", f"s_cselect_b64 {sr(sWn,2)}, {sr(S_WS,2)}, {sr(sFb,2)}"],
            [f"s_mov_b32 s{t+1}, {WG_SIZE}", f"s_cmp_eq_u32 s{t}, 0xff", f"s_cselect_b32 s{sWn+2}, {WS_SIZE}, s{t+1}"],
            [f"s_mov_b32 s{t+1}, {64*9216}", f"s_cmp_eq_u32 s{t}, 0xff", f"s_cselect_b32 s{nStep}, 0x4000, s{t+1}", f"s_cselect_b32 s{nD}, 0, {16*9216-1024}"],
            [f"s_cmp_eq_u32 s{t}, 0xff", f"s_cselect_b64 vcc, -1, 0", f"v_cndmask_b32 v{vNext}, v{vF}, v{vLane16}, vcc"],
            [f"s_cmp_eq_u32 s{t}, 0xff", f"s_cselect_b32 s{sSkip}, 0, 1", f"s_cselect_b32 s{t+1}, -1, s{sRot}"],
            [f"s_mul_i32 s{t+1}, s{t+1}, s{nStep}", f"s_add_u32 s{nStart}, s{nOff}, s{t+1}", f"s_lshr_b64 {sr(sTab,2)}, {sr(sTab,2)}, 8"]]

def poll_ld(soff):
    return f"buffer_load_dwordx4 {vr(vPoll,4)}, v{vLane16}, {sr(sWS,4)}, {soff} offen sc1"
def flag_min():
    return [f"v_min3_u32 v{vPoll}, v{vPoll}, v{vPoll+1}, v{vPoll+2}", f"v_min_u32 v{vPoll}, v{vPoll}, v{vPoll+3}"]

def emit_stream(A, accset, pinned, pre, queue, qstart, vm, lg, budget=24, maxpin=1, one=False, qend=136):
    qi = 0
    total = sum(cost(x) for x in queue if not x.startswith("buffer_") and x != "BREAK"); done = 0
    def put(ins):
        if callable(ins): ins = ins()
        if ins == "FULL": return 100
        tag = None
        if isinstance(ins, tuple): ins, tag = ins
        op = ins.split()[0]
        if op.startswith("ds_"): lg.issue(tag)
        if op.startswith("buffer_") or op.startswith("global_"): vm.issue(tag)
        A(ins)
        return 0 if ins.endswith(":") else cost(ins)
    for ks in range(36):
        for p in pre[ks]: put(p)
        for m in range(4):
            a, tb2 = m // 2, m % 2
            d = vr(ACC[accset] + 16 * m, 16)
            A(mfma16(d, vr(AF + (ks % 3) * 8 + a * 4, 4), xreg(tb2, ks), "0" if ks == 0 else d))
            used = 4 if m == 3 else 0
            gap = ks * 4 + m
            if gap >= qstart and qi < len(queue) and queue[qi].startswith("buffer_") and len(pinned[ks][m]) <= maxpin:
                used += put(queue[qi]); qi += 1
            for p in pinned[ks][m]: used += put(p)
            while gap >= qstart and qi < len(queue) and not queue[qi].startswith("buffer_") and used + cost(queue[qi]) <= budget \
                    and done <= total * (gap + 1 - qstart) / (qend - qstart):
                if queue[qi] == "BREAK":
                    qi += 1; break
                c_ = put(queue[qi]); used += c_; done += c_; qi += 1
    assert qi == len(queue), f"queue not drained {qi}/{len(queue)}"
    stamp(A, "next")

def body(A, odd):
    accset = 1 if odd else 0
    nm = "o" if odd else "e"
    vm = Counter(63); lg = Counter(15, ["k0"]*4 + ["k1"]*4)
    pinned = [[[] for _ in range(4)] for _ in range(36)]
    pre = [[] for _ in range(36)]
    SW = 36 - LEAD
    N = LEAD - 2 - PB
    assert SW >= PB - 1 and N >= 6
    bars = [k for k in range(36) if k % PB == PB - 2]
    for ks in range(36):
        pre[ks].append(lambda ks=ks: f"s_waitcnt lgkmcnt({lg.need(f'k{ks}')})")
        bar = ks % PB == PB - 2
        if bar:
            pinned[ks][0] += [f"s_waitcnt vmcnt({N})", "s_barrier"] + (["FULL"] if common.OPT.get("barfree") else [])
        k2 = (ks + 2) % 36
        for r, ins in enumerate(tr_reads(k2, k2)):
            pinned[ks][[1,1,2,3][r] if bar and common.OPT.get("barfree") else r].append((ins, f"k{ks+2}"))
        rg = (ks + LEAD) % 36
        o, ld = w_dma(rg, rg)
        pinned[ks][1] += o
        pinned[ks][2] += [ld]
    pinned[0][0] += [f"s_and_b32 s{sT+2}, s{sTab}, 0xff", f"s_lshl_b32 s{sT+2}, s{sT+2}, 13", f"s_add_u32 s{sHoff}, s{sHbase}, s{sT+2}"]
    PUB = min(k for k in bars if k >= N)
    assert 36 - (SW + 5) + max(k for k in bars if k < SW) >= N
    if odd:
        pinned[PUB][1] += [f"buffer_store_dword v{vOne}, v{vFlagOff}, {sr(sWS,4)}, s{sPub} offen sc1"]
        pinned[PUB+1][1] += [f"s_lshl_b32 s{sPub}, s2, 2", f"s_add_u32 s{sPub}, s{sPub}, {F2}"]
    pinned[SW-1][0] += flag_min() + [f"v_or_b32 v{vPoll}, s{sSkip}, v{vPoll}", f"v_cmp_eq_u32 vcc, 0, v{vPoll}"]
    pinned[SW-1][1] += [f"s_cbranch_vccnz L_kvspin_{nm}", f"L_kvok_{nm}:"]
    sw = switch_ops()
    pinned[SW-1][3] += sw[0]; pinned[SW][0] += sw[1]; pinned[SW][3] += sw[2]
    pinned[SW+2][1] += [f"s_mov_b32 s{sT+2}, {FOOB}", f"s_cmp_eq_u32 s{sT}, 0xff", f"s_cselect_b32 s{sPollOff}, {F0}, s{sT+2}"]
    pinned[SW+3][0] += [f"s_cmp_eq_u32 s{sSkip}, 0", f"s_cselect_b32 s{sPollOff}, {F2}, s{sPollOff}"]
    pinned[SW+5][0] += [poll_ld(f"s{sPollOff}")]
    for i, grp in enumerate(next_ops()):
        pinned[SW + 1 + i][3] += grp
    units = [0, 1] if odd else [2]
    for n, u in enumerate(units):
        ks = 3 + 4 * n + (8 if PB > 4 else 0)
        pinned[ks][3] += [f"s_add_u32 m0, s{sM0}, {9*16384 + n*2048}", f"s_add_u32 s{sT+3}, s{sPs0}, {u*128}",
                          (f"buffer_load_dwordx4 v{vPsrc}, {sr(sP,4)}, s{sT+3} offen{NT_P} lds", "pk")]
        pinned[ks+1][0] += [f"s_add_u32 s{sT+3}, s{sPs1}, {u*128}",
                          (f"buffer_load_dwordx4 v{vPsrc}, {sr(sP,4)}, s{sT+3} offen offset:1024{NT_P} lds", "pk")]
    if max(k for k in bars if k <= 26) - (16 if PB > 4 else 8) < N: pinned[26][3].append(lambda: f"s_waitcnt vmcnt({vm.need('pk')})")
    for n, u in enumerate(units):
        for r in range(4):
            e, rr = r // 2, r % 2
            reg = PF + e * 4 + rr * 2
            pinned[27 + 4*n][[0,1,1,3][r]].append(
                (f"ds_read_b64_tr_b16 {vr(reg,2)}, v{vPtr} offset:{n*2048 + rr*512 + e*64}", f"p{n}"))
        for e in range(2):
            nb = 2 * u + e
            pinned[30 + 4*n][[1, 3][e]].append(
                f"buffer_store_dwordx4 {vr(PF + e*4, 4)}, v{vLane16}, {sr(sPD,4)}, s{sPd0 + nb//3} offen offset:{(nb%3)*1024} sc1")
    if not odd:
        pinned[35][1] += [f"s_mov_b32 s{sP+2}, 0", f"s_mov_b32 s{sPD+2}, 0"]
    q = sum(gelu_ops(1 - accset), [])
    emit_stream(A, accset, pinned, pre, q, 4, vm, lg)

XR = 64
GX = 80
vXd = 76
sXb = 64
def elem_dma(e):
    region = (e + 8) % 40
    if e < 72 and e % 8 < 4:
        n = e % 8
        o = []
        if n == 0:
            o = [f"s_add_u32 m0, s{sM0}, {(region//4)*16384}"]
            o += [f"s_add_u32 s{sXc}, s{sXc}, 128", f"s_cmp_eq_u32 s{sXc}, s{sXend}", f"s_cselect_b32 s{sXc}, s{sXb}, s{sXc}"] if e > 0 else ["s_nop 0"]
        return o + [(f"buffer_load_dwordx4 v{vXd+n}, {sr(sX,4)}, s{sXc} offen offset:{n*1024}{NT_X} lds", f"e{e}")]
    kpos = (e // 8) * 4 + e % 4 if e < 72 else e - 72
    o, ld = w_dma(region, kpos)
    return o + [(ld, f"e{e}")]
def x_reads(j, s):
    out = []
    base = ((8 * j + 8) % 40) * 4096
    seg = base // 57344
    for tb2 in range(2):
        out.append(f"ds_read_b128 {xreg(tb2, 4*j+s)}, v{XR + seg*4 + s} offset:{base - seg*57344 + tb2*4096}")
    return out
def wregion0(ks):
    if ks >= 36: return ks - 36
    return (8 * (ks // 4) + 4 + ks % 4 + 8) % 40
def put_elems(A, vm, es):
    for e in es:
        for ins in elem_dma(e):
            if isinstance(ins, tuple): vm.issue(ins[1]); ins = ins[0]
            A(ins)

def gate_queue():
    a = GX + 24; b = GX + 25
    q = [f"v_mov_b32 v{a}, 0"]
    for i in range(3):
        for k in range(3): q.append(f"v_dot2c_f32_bf16 v{a}, v{GX+4*i+k}, v{GX+12+4*i+k}")
    q += ["s_nop 0", "BREAK"]
    for dpp in ("quad_perm:[1,0,3,2]", "quad_perm:[2,3,0,1]", "row_half_mirror", "row_mirror"):
        q += [f"v_add_f32_dpp v{a}, v{a}, v{a} {dpp} row_mask:0xf bank_mask:0xf", "BREAK"]
    q += [f"v_mov_b32 v{b}, v{a}", "BREAK", f"v_permlane16_swap_b32 v{a}, v{b}", "BREAK",
          f"v_add_f32 v{a}, v{a}, v{b}", f"v_mul_f32 v{a}, {f2u(-math.log2(math.e)):#x}, v{a}",
          f"v_exp_f32 v{a}, v{a}", "BREAK", f"v_add_f32 v{a}, 1.0, v{a}", f"v_rcp_f32 v{a}, v{a}",
          f"buffer_store_dword v{a}, v{GX+26}, {sr(sWS,4)}, 0 offen sc1"]
    s = GX + 28
    for c in range(2):
        q += [f"buffer_store_dwordx4 {vr(s,4)}, v{vLane16}, {sr(sWS,4)}, s{sO1} offen offset:{c*1024} sc1",
              f"buffer_store_dword v{s}, v{GX+27}, {sr(sWS,4)}, s{sO2} offen offset:{c*1024} sc1"]
    q += [f"buffer_store_dword v{GX+32}, v{GX+33}, {sr(sWS,4)}, s{sPart} offen sc1"]
    return q

def body0(A, vm):
    lg = Counter(15)
    stamp(A, 1)
    if common.OPT.get("padmin"):
        A(f"s_lshl_b32 s0, s2, 2"); A(f"s_add_u32 s0, s0, {WS_FL + 4096}")
        A(f"buffer_store_dword v253, v{vFlagOff}, {sr(sWS,4)}, s0 offen sc1"); vm.issue("pad")
    A(f"s_waitcnt vmcnt({vm.need('e7')})")
    A("s_barrier")
    stamp(A, 2)
    for s in range(2):
        for ins in x_reads(0, s) + tr_reads(s, wregion0(s)):
            A(ins); lg.issue(f"k{s}")
    for s in range(2, 4):
        for ins in x_reads(0, s):
            A(ins); lg.issue(f"x")
    put_elems(A, vm, range(12, 20))
    pinned = [[[] for _ in range(4)] for _ in range(36)]
    pre = [[] for _ in range(36)]
    e = 20
    elast = 72 + LEAD - 1
    for ks in range(36):
        pre[ks].append(lambda ks=ks: f"s_waitcnt lgkmcnt({lg.need(f'k{ks}')})")
        j = (ks + 2) // 4
        if ks % 4 == 2:
            last = 8 * j + 7 if j < 9 else 71 + PB
            if common.OPT.get("fine"):
                pinned[ks][0] += ["s_memtime s[0:1]", "s_waitcnt lgkmcnt(0)", f"v_writelane_b32 v255, s0, {30+2*j}"]
            pinned[ks][0] += [lambda last=last: f"s_waitcnt vmcnt({vm.need(f'e{last}')})", "s_barrier"]
            if common.OPT.get("fine"):
                pinned[ks][0] += ["s_memtime s[0:1]", "s_waitcnt lgkmcnt(0)", f"v_writelane_b32 v255, s0, {31+2*j}"]
        if ks % 4 >= 2 and j < 9:
            s0 = 2 * (ks % 4 - 2)
            xs = x_reads(j, s0) + x_reads(j, s0 + 1)
            for r in range(4): pinned[ks][r].append((xs[r], "x"))
        for r, ins in enumerate(tr_reads((ks + 2) % 36, wregion0(ks + 2))):
            pinned[ks][r].append((ins, f"k{ks+2}"))
        extra = elast + 1 - e > 2 * (36 - ks) and ks >= 12
        for m in ((0, 1, 2, 3) if ks < 2 else (1, 2, 3) if extra else (1, 3)):
            if e <= elast and (e < 40 or e <= 40 + 8 * (j - 1) + 6):
                if e == 72:
                    pinned[ks][m - 1] += sum(switch_ops(), [])
                    for i, grp in enumerate(next_ops()):
                        pinned[ks + 1 + i][0 if (ks + 1 + i) % 4 != 2 else 2] += grp
                pinned[ks][m] += elem_dma(e); e += 1
    assert e == elast + 1, e
    pinned[22][2] += [(f"buffer_load_dword v{GX+34}, off, {sr(sDB,4)}, 0 sc1", "ini")]
    pinned[34][1] += [lambda: f"s_waitcnt vmcnt({vm.need('ini')})", f"v_cmp_eq_u32 vcc, 0, v{GX+34}"]
    pinned[34][2] += ["s_cbranch_vccnz L_inispin", "L_iniok:"]
    for i in range(3):
        pinned[8 + i][2] += [(f"global_load_dwordx3 {vr(GX+4*i,3)}, v{GX+36}, {sr(sX,2)} offset:{384*i}", "g"),
                             (f"global_load_dwordx3 {vr(GX+12+4*i,3)}, v{GX+35}, {sr(sLink,2)} offset:{384*i}", "g")]
    pinned[18][3] += [lambda: f"s_waitcnt vmcnt({vm.need('g')})"]
    emit_stream(A, 0, pinned, pre, gate_queue(), 19 * 4, vm, lg, maxpin=2, one=True)

def setup_sub(A):
    t = sT
    A(f"""
L_setup:
    s_mov_b64 {sr(sWn,2)}, {sr(sFb,2)}
    s_mov_b32 s{sWn+2}, {WG_SIZE}
    s_movk_i32 s{t+1}, 9216
    s_lshl_b32 s{t+2}, s{t}, 7
    s_mov_b32 s{t+4}, 0
    s_cmp_lt_u32 s{t}, 72
    s_cbranch_scc1 L_setup_fin
    s_cmp_lt_u32 s{t}, 77
    s_cbranch_scc0 L_setup_kv
    s_mov_b64 {sr(sWn,2)}, {sr(S_WQ,2)}
    s_movk_i32 s{t+1}, 1152
    s_sub_u32 s{t+2}, s{t}, 72
    s_lshl_b32 s{t+2}, s{t+2}, 1
    s_lshr_b32 s{t+3}, s{sWave}, 1
    s_add_u32 s{t+2}, s{t+2}, s{t+3}
    s_lshl_b32 s{t+2}, s{t+2}, 7
    s_cmp_lt_u32 s{t+2}, 1152
    s_cselect_b32 s{sWn+2}, {576*1152}, 0
    s_branch L_setup_fin
L_setup_kv:
    s_cmp_eq_u32 s{t}, 77
    s_cbranch_scc0 L_setup_ret
    s_cmp_lt_u32 s{sWave}, 2
    s_cselect_b64 {sr(sWn,2)}, {sr(S_WK,2)}, {sr(S_WV,2)}
    s_sub_u32 s{sWn}, s{sWn}, 3072
    s_subb_u32 s{sWn+1}, s{sWn+1}, 0
    s_movk_i32 s{sWn+2}, {576*36 + 3072}
    s_movk_i32 s{t+1}, 36
    s_mov_b32 s{t+2}, 0
    s_movk_i32 s{t+4}, 3072
L_setup_fin:
    s_lshl_b32 s{nStep}, s{t+1}, 6
    s_lshl_b32 s{nD}, s{t+1}, 4
    s_sub_u32 s{nD}, s{nD}, 1024
    s_and_b32 s{t+3}, s{sWave}, 1
    s_mul_i32 s{t+3}, s{t+3}, s{t+1}
    s_lshl_b32 s{t+3}, s{t+3}, 3
    s_add_u32 s{nOff}, s{t+2}, s{t+3}
    s_mul_i32 s{t+3}, s{sRot}, s{nStep}
    s_add_u32 s{nStart}, s{nOff}, s{t+3}
    v_mad_u32_u24 v{vNext}, v{vR8}, s{t+1}, v{vC16}
    v_add_u32 v{vNext}, s{t+4}, v{vNext}
    s_setpc_b64 {sr(sLink2,2)}
L_setup_ret:
    s_mov_b64 {sr(sWn,2)}, {sr(S_WS,2)}
    s_mov_b32 s{sWn+2}, {WS_SIZE}
    v_mov_b32 v{vNext}, v{vLane16}
    s_setpc_b64 {sr(sLink2,2)}
""")

def special_sub(A):
    sc1 = " sc1"
    t = sT
    A(f"""
L_special:
    s_bfe_u32 s{t}, s{sTab}, 0x80010
    s_call_b64 {sr(sLink2,2)}, L_setup
    s_mov_b32 s{sH+2}, {WS_SIZE}
    s_and_b32 s{t}, s{sTab}, 0xff
    s_cmp_lt_u32 s{t}, 72
    s_cbranch_scc1 L_special_ret
    s_mov_b32 s{sH+2}, 0
    s_cmp_eq_u32 s{sPar}, 0
    s_cbranch_scc1 L_special_go
""")
    for i in range(64): A(f"v_mov_b32 v{i}, v{64+i}")
    A(f"""
L_special_go:
    s_cmp_eq_u32 s{t}, 77
    s_cbranch_scc1 L_special_kv
    s_lshl_b32 s{t+1}, s{sTb}, 1
    s_lshr_b32 s{t+2}, s{sWave}, 1
    s_add_u32 s{t+1}, s{t+1}, s{t+2}
    s_mul_i32 s{t+1}, s{t+1}, {2*36*1024}
    s_sub_u32 s{t+2}, s{t}, 72
    s_lshl_b32 s{t+2}, s{t+2}, 13
    s_add_u32 s{t+1}, s{t+1}, s{t+2}
    s_and_b32 s{t+2}, s{sWave}, 1
    s_lshl_b32 s{t+2}, s{t+2}, 11
    s_add_u32 s{t+1}, s{t+1}, s{t+2}
    s_add_u32 s{t+1}, s{t+1}, {WS_Q}
    s_add_u32 s{t+2}, s{t+1}, {36*1024}
    s_mov_b32 s{t+3}, {f2u(QSCALE):#x}
""")
    for i in range(64): A(f"v_mul_f32 v{i}, s{t+3}, v{i}")
    for i in range(32): A(f"v_cvt_pk_bf16_f32 v{64+i}, v{2*i}, v{2*i+1}")
    for half in range(2):
        if half == 1:
            A(f"s_add_u32 s{t+1}, s{t+1}, 4096")
            A(f"s_add_u32 s{t+2}, s{t+2}, 4096")
            A(f"s_cmp_eq_u32 s{t}, 76")
            A("s_cbranch_scc1 L_special_ret")
        for blk in range(4):
            a, tb2 = blk // 2, blk % 2
            A(f"buffer_store_dwordx4 {vr(64 + blk*8 + half*4, 4)}, v{vLane16}, {sr(sWS,4)}, s{t+1+tb2} offen offset:{a*1024}{sc1}")
    LB = 9 * 16384
    A(f"""
    s_branch L_special_ret
L_special_kv:
    s_barrier
    v_and_b32 v{vT}, 31, v{vLane}
    v_lshrrev_b32 v{vT+1}, 5, v{vLane}
    s_lshr_b32 s{t+2}, s{sWave}, 1
    s_mul_i32 s{t+5}, s{t+2}, {2*KV_VT}
    s_add_u32 s{t+5}, s{t+5}, {LB + KV_V}
    s_and_b32 s{t+3}, s{sWave}, 1
    s_cmp_eq_u32 s{t+3}, 0
    s_cbranch_scc1 L_special_kv0
    v_and_b32 v{vT}, 3, v{vLane}
    v_mul_u32_u24 v{vT}, {KV_VF}, v{vT}
    v_and_b32 v{vT+1}, 4, v{vLane}
    v_lshl_add_u32 v{vT}, v{vT+1}, 2, v{vT}
    v_cmp_eq_u32 vcc, 0, v{vT+1}
    v_add_u32 v{vT}, s{t+5}, v{vT}
    v_mov_b32 v65, 0x3f803f80
    v_cndmask_b32 v64, 0, v65, vcc
    v_add_u32 v{vT}, 576, v{vT}
    v_mov_b32 v{vT+1}, {LB + KV_K2 + 512}
    v_cmp_eq_u32 vcc, 8, v{vLane}
    v_mov_b32 v65, v64
    v_mov_b32 v66, v64
    v_cndmask_b32 v{vT}, v{vT}, v{vT+1}, vcc
    v_mov_b32 v67, v64
    s_mov_b64 exec, 0x1ff
    ds_write_b128 v{vT}, v[64:67]
    s_mov_b64 exec, -1
    s_branch L_special_kv1
L_special_kv0:
""")
    for i in range(32): A(f"v_cvt_pk_bf16_f32 v{64+i}, v{2*i}, v{2*i+1}")
    A(f"""
    s_lshl_b32 s{t+3}, s{t+2}, 11
    s_add_u32 s{t+3}, s{t+3}, {LB}
    s_lshl_b32 s{t+4}, s{t+2}, 3
    s_add_u32 s{t+4}, s{t+4}, {LB + KV_K2}    ; K2 base
    v_lshrrev_b32 v{vT+2}, 4, v{vT}
    v_mul_u32_u24 v{vT+2}, {KV_VF}, v{vT+2}
    v_bfe_u32 v{vT+3}, v{vT}, 2, 1
    v_mul_u32_u24 v{vT+3}, 288, v{vT+3}
    v_add_u32 v{vT+2}, v{vT+2}, v{vT+3}
    v_and_b32 v{vT+3}, 3, v{vT}
    v_lshl_add_u32 v{vT+2}, v{vT+3}, 1, v{vT+2}
    v_and_b32 v{vT+3}, 8, v{vT}
    v_add3_u32 v{vT+2}, v{vT+2}, v{vT+3}, s{t+5}
    v_lshl_add_u32 v{vT+3}, v{vT+1}, 7, v{vT+2}   ; d = 8hh + i
    v_add_u32 v{vT+4}, s{t+3}, v{vLane16}
    v_add_u32 v{vT+5}, s{t+4}, v{vLane16}
""")
    for tb2 in range(2):
        b0 = 64 + tb2 * 8
        A(f"ds_write_b128 v{vT+4}, {vr(b0,4)} offset:{tb2*1024}")
        for i in range(8):
            op = "ds_write_b16" if i % 2 == 0 else "ds_write_b16_d16_hi"
            A(f"{op} v{vT+3}, v{b0+4+i//2} offset:{tb2*KV_VT + i*16}")
    A("s_mov_b32 exec_hi, 0")
    for tb2 in range(2):
        b1 = 64 + (2 + tb2) * 8
        A(f"ds_write_b32 v{vT+5}, v{b1} offset:{tb2*4}")
        for i in range(2):
            op = "ds_write_b16" if i % 2 == 0 else "ds_write_b16_d16_hi"
            A(f"{op} v{vT+2}, v{b1+4} offset:{tb2*KV_VT + (16+i)*16}")
    A(f"""
    s_mov_b64 exec, -1
L_special_kv1:
    s_lshl_b32 s{t+2}, s{sWave}, 10
    v_add_u32 v{vT}, s{t+2}, v{vLane16}
    v_add_u32 v{vT+1}, {LB}, v{vT}
    v_cmp_gt_u32 vcc, {KV_GS - 8192}, v{vT}
    v_mov_b32 v{vT+2}, 0x40000000
    s_mul_i32 s{t+1}, s{sTb}, {KV_GS}
    v_cndmask_b32 v{vT+2}, v{vT+2}, v{vT}, vcc
    s_add_u32 s{t+1}, s{t+1}, {WS_KV}
    s_add_u32 s{t+2}, s{t+1}, 4096
    s_add_u32 s{t+3}, s{t+1}, 8192
    s_waitcnt lgkmcnt(0)
    s_barrier
    ds_read_b128 v[64:67], v{vT+1}
    ds_read_b128 v[68:71], v{vT+1} offset:4096
    ds_read_b128 v[72:75], v{vT+1} offset:8192
    s_waitcnt lgkmcnt(0)
    buffer_store_dwordx4 v[64:67], v{vT}, {sr(sWS,4)}, s{t+1} offen{sc1}
    buffer_store_dwordx4 v[68:71], v{vT}, {sr(sWS,4)}, s{t+2} offen{sc1}
    buffer_store_dwordx4 v[72:75], v{vT+2}, {sr(sWS,4)}, s{t+3} offen{sc1}
L_special_ret:
    s_nop 1
    s_setpc_b64 {sr(sLink,2)}
""")

def spin(A, soff, name, back):
    A(f"""
L_{name}:
    s_mov_b32 s{sT+5}, 0x40000
L_{name}_l:
    {poll_ld(soff)}
    s_sub_u32 s{sT+5}, s{sT+5}, 1
    s_cbranch_scc1 {back}
    s_waitcnt vmcnt(0)
""")
    A.many(flag_min())
    A(f"""
    v_cmp_eq_u32 vcc, 0, v{vPoll}
    s_cbranch_vccz {back}
    s_sleep 8
    s_branch L_{name}_l
""")

def phase1(A):
    t = sT
    stamp(A, 0)
    pref = "" if common.OPT.get("nopref") else f"""
    s_mov_b64 {sr(sH,2)}, {sr(sLink,2)}
    s_mov_b32 s{sH+2}, L_jobtab-L_pc1
    s_mov_b32 s{sH+3}, {SRD3}
    v_lshrrev_b32 v2, 4, v0
    v_and_b32 v3, 15, v0
    v_lshlrev_b32 v2, 7, v2
    v_lshl_add_u32 v2, v3, 28, v2
    s_lshr_b32 s{t+1}, s2, 3
    s_lshl_b32 s{t+1}, s{t+1}, 11
    buffer_load_dword v4, v2, {sr(sH,4)}, s{t+1} offen
"""
    A(f"""
    s_cmp_ge_u32 s2, 256
    s_cbranch_scc1 L_end
    s_load_dwordx16 s[4:19], s[0:1], 0
    s_load_dwordx8 s[20:27], s[0:1], 64
    s_load_dwordx2 s[28:29], s[0:1], 96
    s_getpc_b64 {sr(sLink,2)}
L_pc1:
    s_bfe_u32 s{sXq}, s2, 0x20001
    s_lshr_b32 s{sQi}, s2, 6
    s_lshl_b32 s{t}, s{sXq}, 2
    s_add_u32 s{t}, s{t}, s{sQi}            ; jg
    s_lshl_b32 s{t+1}, s{t}, 3
    s_add_u32 s{t+1}, s{t+1}, L_jobtab-L_pc1
    s_load_dwordx2 {sr(sTab,2)}, {sr(sLink,2)}, s{t+1}
    {pref}
    v_lshrrev_b32 v1, 6, v0
    v_and_b32 v{vLane}, 63, v0
    v_readfirstlane_b32 s{sWave}, v1
    v_lshlrev_b32 v{vLane16}, 4, v{vLane}
    s_and_b32 s{t}, s{t}, 11
    s_cmp_eq_u32 s{t}, 3
    s_cselect_b32 s{sSpecial}, 1, 0
    s_and_b32 s{t}, s2, 1
    s_lshl_b32 s{t}, s{t}, 3
    s_bfe_u32 s{t+1}, s2, 0x30003
    s_add_u32 s{sTb}, s{t}, s{t+1}
    s_lshl_b32 s{t}, s{sQi}, 1
    s_add_u32 s{t}, s{t}, s{t+1}
    s_cmp_ge_u32 s{t}, 9
    s_cselect_b32 s{t+1}, 9, 0
    s_sub_u32 s{t+5}, s{t}, s{t+1}
    {"s_mov_b32 s%d, 0" % (t+5) if common.OPT.get("norot") else ""}
    s_sub_u32 s{sRot}, s{t+5}, 1
    v_lshrrev_b32 v{vR8}, 3, v{vLane}
    v_and_b32 v1, 7, v{vLane}
    s_lshl_b32 s{sM0}, s{sWave}, 12
    s_lshr_b32 s{t+2}, s{sWave}, 1
    s_and_b32 s{t+3}, s{sWave}, 1
    v_and_b32 v2, 2, v{vR8}
    v_xor_b32 v2, v1, v2
    s_lshl_b32 s{t+4}, s{t+2}, 2
    v_xor_b32 v2, s{t+4}, v2
    v_lshlrev_b32 v{vC16}, 4, v2
    v_lshrrev_b32 v2, 1, v{vR8}
    v_xor_b32 v2, v1, v2
    v_lshlrev_b32 v2, 4, v2
    v_mul_u32_u24 v3, 1152, v{vR8}
    v_add_u32 v{vXd}, v2, v3
    v_xor_b32 v2, 64, v{vXd}
    v_add_u32 v{vXd+1}, {8*1152-1024}, v2
    v_add_u32 v{vXd+2}, {2*(8*1152-1024)}, v{vXd}
    v_add_u32 v{vXd+3}, {3*(8*1152-1024)}, v2
    s_lshl_b32 s{t+4}, s{sTb}, 2
    s_add_u32 s{t+4}, s{t+4}, s{sWave}
    s_mul_i32 s{sXb}, s{t+4}, {32*1152}
    s_lshl_b32 s{t+5}, s{t+5}, 7
    s_add_u32 s{sXc}, s{sXb}, s{t+5}
    s_mov_b32 s{sX+2}, {2048*1152}
    s_mov_b32 s{sX+3}, {SRD3}
    s_mov_b32 s{sW+3}, {SRD3}
    s_waitcnt lgkmcnt(0)
    s_mov_b64 {sr(sX,2)}, {sr(S_X,2)}
""")
    vm = Counter(63)
    if common.OPT.get("fine"): stamp(A, 27)
    put_elems(A, vm, range(0, 4))
    A(f"""
    s_cmp_lt_u32 s{sWave}, 2
    s_cselect_b64 {sr(sFb,2)}, {sr(S_WG,2)}, {sr(S_WU,2)}
    s_bfe_u32 s{t}, s{sTab}, 0x80008
    s_call_b64 {sr(sLink2,2)}, L_setup
""")
    for g in switch_ops(): A.many(g)
    put_elems(A, vm, range(4, 8))
    A(f"""
    s_bfe_u32 s{t}, s{sTab}, 0x80010
    s_call_b64 {sr(sLink2,2)}, L_setup
    s_add_u32 s{sXend}, s{sXb}, 1152
""")
    put_elems(A, vm, range(8, 12))
    A("s_branch L_after_setup")
    setup_sub(A)
    A("L_after_setup:")
    if common.OPT.get("fine"): stamp(A, 28)
    W = sPar
    A(f"""
    s_mov_b64 {sr(sWS,2)}, {sr(S_WS,2)}
    s_mov_b32 s{sWS+2}, {WS_SIZE}
    s_mov_b32 s{sWS+3}, {SRD3}
    s_mov_b64 {sr(sDB,2)}, {sr(S_DBG,2)}
    s_movk_i32 s{sDB+2}, 256
    s_mov_b32 s{sDB+3}, {SRD3}
    s_mov_b32 s{sOUT+2}, {2048*1152}
    s_mov_b32 s{sOUT+3}, {SRD3}
    s_mov_b64 {sr(sH,2)}, {sr(S_WS,2)}
    s_mov_b32 s{sH+2}, {WS_SIZE}
    s_mov_b32 s{sH+3}, {SRD3}
    s_mov_b64 {sr(sPD,2)}, {sr(S_WS,2)}
    s_mov_b32 s{sPD+3}, {SRD3}
    s_mov_b32 s{sP+3}, {SRD3}
    s_mov_b32 s{sC2}, {f2u(GC2):#x}
    v_mov_b32 v{vC1}, {f2u(GC1):#x}
    s_movk_i32 s{t+4}, 9216
    v_mad_u32_u24 v{vF}, v{vR8}, s{t+4}, v{vC16}
    s_add_u32 s{sKVoff}, s{sM0}, {WS_KV}
    s_lshl_b32 s{W}, s2, 2
    s_add_u32 s{W}, s{W}, s{sWave}
    s_lshr_b32 s{t+2}, s{sWave}, 1
    s_and_b32 s{t+3}, s{sWave}, 1
    s_mul_i32 s{sRowOff}, s{t+3}, {8*9216}
    s_lshl_b32 s{t}, s{sTb}, 1
    s_add_u32 s{t}, s{t}, s{t+2}
    s_mul_i32 s{sHbase}, s{t}, {HO_G}
    s_lshl_b32 s{t}, s{t+3}, 12
    s_add_u32 s{sHbase}, s{sHbase}, s{t}
    v_and_b32 v32, 3, v{vLane}              ; c
    v_lshrrev_b32 v33, 1, v32
    v_and_b32 v32, 1, v32
    v_lshl_add_u32 v32, v32, 1, v33         ; perm(c)
    v_lshlrev_b32 v32, 3, v32
    v_bfe_u32 v33, v{vLane}, 2, 2           ; r4
    v_lshl_add_u32 v32, v33, 7, v32
    v_bfe_u32 v34, v{vLane}, 4, 1
    v_lshrrev_b32 v35, 5, v{vLane}          ; hh
    v_lshl_add_u32 v36, v34, 5, v32
    v_lshl_add_u32 v36, v35, 10, v36
    s_add_u32 s{t}, s{sM0}, {9*16384}
    v_add_u32 v{vPtr}, s{t}, v36
    v_lshrrev_b32 v33, 1, v33
    v_lshl_add_u32 v33, v34, 1, v33
    s_lshl_b32 s{t}, s{t+3}, 1
    v_xor_b32 v33, s{t}, v33
    v_lshl_add_u32 v32, v33, 5, v32
    v_lshl_add_u32 v32, v34, 13, v32
    v_lshl_add_u32 v{vTR}, v35, 12, v32
    v_xor_b32 v{vTR+1}, 32, v{vTR}
    v_add_u32 v{vTR+2}, {12*4096}, v{vTR}
    v_add_u32 v{vTR+3}, {12*4096}, v{vTR+1}
    v_add_u32 v{vTR+4}, {24*4096}, v{vTR}
    v_add_u32 v{vTR+5}, {24*4096}, v{vTR+1}
    v_and_b32 v37, 31, v{vLane}             ; n
    v_bfe_u32 v33, v{vLane}, 1, 3
    v_xor_b32 v33, v33, v35
    v_lshlrev_b32 v33, 4, v33
    v_lshl_add_u32 v32, v37, 7, v33
    s_lshl_b32 s{t}, s{t+2}, 13
    v_add_u32 v{XR}, s{t}, v32
    v_xor_b32 v{XR+1}, 32, v{XR}
    v_xor_b32 v{XR+2}, 64, v{XR}
    v_xor_b32 v{XR+3}, 0x60, v{XR}
""")
    for seg in (1, 2):
        for s in range(4): A(f"v_add_u32 v{XR+seg*4+s}, {seg*57344}, v{XR+s}")
    A(f"""
    v_mul_u32_u24 v{vQa}, 1152, v37
    v_lshl_add_u32 v{vQa}, v35, 4, v{vQa}
    v_lshlrev_b32 v{vLane4}, 2, v{vLane}
    v_bfe_u32 v32, v{vLane}, 2, 1
    v_bfe_u32 v33, v{vLane}, 3, 1
    v_lshlrev_b32 v32, 3, v32
    v_lshl_add_u32 v32, v33, 2, v32
    v_and_b32 v33, 0x13, v{vLane}
    v_or_b32 v32, v32, v33
    v_mul_u32_u24 v33, 18, v35
    v_cmp_gt_u32 vcc, 18, v37
    v_add_u32 v32, v32, v33
    v_and_b32 v33, 27, v37
    v_cndmask_b32 v32, 37, v32, vcc
    v_cmp_ne_u32 vcc, 18, v33
    v_mul_u32_u24 v{GX+35}, 12, v37
    s_lshl_b32 s{t+5}, s{sTb}, 2
    s_add_u32 s{t+5}, s{t+5}, s{sXq}
    s_lshl_b32 s{t+5}, s{t+5}, 2
    s_add_u32 s{t+5}, s{t+5}, s{sQi}
    s_lshl_b32 s{t+5}, s{t+5}, 2
    s_add_u32 s{t+5}, s{t+5}, s{sWave}
    s_lshl_b32 s{t+5}, s{t+5}, 1
    v_cndmask_b32 v32, 36, v32, vcc
    v_lshlrev_b32 v{vAV}, 4, v32
    v_add_u32 v5, s{t+5}, v35               ; token
    v_mul_u32_u24 v6, 1152, v5
    v_add_u32 v{GX+36}, v6, v{GX+35}
    v_cmp_eq_u32 vcc, 0, v37
    v_lshlrev_b32 v5, 2, v5
    v_add_u32 v5, {WS_G}, v5
    v_mov_b32 v33, 0x40000000
    v_cndmask_b32 v{GX+26}, v33, v5, vcc
    v_lshl_add_u32 v{GX+27}, v35, 30, v{vLane16}
    v_mov_b32 v{GX+28}, -1
    v_mov_b32 v{GX+29}, -1
    v_mov_b32 v{GX+30}, -1
    v_mov_b32 v{GX+31}, -1
    v_mov_b32 v{GX+32}, 0
    v_cmp_eq_u32 vcc, 0, v0
    v_mov_b32 v{vOne}, 1
    s_mov_b32 s{sSkip}, 1
    v_cndmask_b32 v{vFlagOff}, v33, 0, vcc
    s_lshl_b32 s{t}, s{sTb}, 2
    s_add_u32 s{t}, s{t}, {F0}
    s_bfe_u32 s{t+1}, s{sTab}, 0x80008
    s_cmp_eq_u32 s{t+1}, 77
    s_cselect_b32 s{sPub}, s{t}, {FOOB}
    ; pack params: ks = W/3, a = W%3
    s_mul_i32 s{t}, s{W}, 21846
    s_lshr_b32 s{t}, s{t}, 16
    s_mul_i32 s{t+1}, s{t}, 3
    s_sub_u32 s{t+1}, s{W}, s{t+1}
    s_mul_i32 s{sPd0}, s{t+1}, {2*WP_T}
    s_mul_i32 s{t+2}, s{t}, 3072
    s_add_u32 s{sPd0}, s{sPd0}, s{t+2}
    s_add_u32 s{sPd0}, s{sPd0}, {WS_WP}
    s_add_u32 s{sPd1}, s{sPd0}, {WP_T}
    s_cmp_lt_u32 s{t}, 324
    s_cselect_b32 s{sPD+2}, {WS_SIZE}, 0
    s_mul_i32 s{t+1}, s{t+1}, 384
    v_and_b32 v32, 7, v{vLane}
    v_lshlrev_b32 v32, 4, v32
    s_movk_i32 s{t+4}, 1152
    v_mad_u32_u24 v{vPsrc}, v{vR8}, s{t+4}, v32
    s_mov_b64 {sr(sP,2)}, {sr(S_WD,2)}
    s_mov_b32 s{sP+2}, {4608*1152}
    s_mul_i32 s{sPs0}, s{t}, {16*1152}
    s_movk_i32 s{t+3}, {8*1152}
    s_cmp_lt_u32 s{t}, 288
    s_cbranch_scc1 L_pk_done
    s_mov_b64 {sr(sP,2)}, {sr(S_WO,2)}
    s_mov_b32 s{sP+2}, {576*1152}
    s_sub_u32 s{t+2}, s{t}, 288
    s_mul_i32 s{sPs0}, s{t+2}, {18*1152}
    s_cmp_lt_u32 s{t}, 320
    s_cbranch_scc1 L_pk_done
    s_sub_u32 s{t+2}, s{t}, 320
    s_mul_i32 s{sPs0}, s{t+2}, {144*1152}
    s_add_u32 s{sPs0}, s{sPs0}, {16*1152}
    s_mov_b32 s{t+3}, {72*1152}
    v_lshrrev_b32 v34, 1, v{vR8}
    v_mul_u32_u24 v34, 18, v34
    v_and_b32 v36, 1, v{vR8}
    v_add_u32 v34, v34, v36
    v_mad_u32_u24 v{vPsrc}, v34, s{t+4}, v32
L_pk_done:
    s_add_u32 s{sPs0}, s{sPs0}, s{t+1}
    s_add_u32 s{sPs1}, s{sPs0}, s{t+3}
    s_sub_u32 s{sPs1}, s{sPs1}, 1024
    s_mov_b64 {sr(sLink,2)}, {sr(S_GW,2)}
""")
    g64, head, nt = t, t + 1, t + 2
    A(f"""
    s_and_b32 s{t+3}, s{sXq}, 1
    s_lshl_b32 s{g64}, s{sTb}, 1
    s_add_u32 s{g64}, s{g64}, s{t+3}
    s_lshr_b32 s{t+3}, s{sXq}, 1            ; nhalf
    s_lshl_b32 s{head}, s{t+3}, 2
    s_add_u32 s{head}, s{head}, s{sQi}
    s_lshl_b32 s{head}, s{head}, 2
    s_add_u32 s{head}, s{head}, s{sWave}
    s_mul_i32 s{t+3}, s{t+3}, 3
    s_mul_i32 s{t+4}, s{sWave}, {KM}
    s_cmp_eq_u32 s{sQi}, 3
    s_cselect_b32 s{nt}, s{sWave}, s{sQi}
    s_cselect_b32 s{t+4}, {4*KM}, s{t+4}
    s_add_u32 s{nt}, s{nt}, s{t+3}
    ; W side
    s_mul_i32 s{t+3}, s{nt}, {WP_T}
    s_add_u32 s{t+3}, s{t+3}, {WS_WP}
    s_mul_i32 s{t+5}, s{t+4}, 3072
    s_add_u32 s{t+5}, s{t+5}, s{t+3}
    s_add_u32 s{sWp}, s{S_WS}, s{t+5}
    s_addc_u32 s{sWp+1}, s{S_WS+1}, 0
    s_mul_i32 s{t+5}, s{sWave}, {9*3072}
    s_add_u32 s{t+5}, s{t+5}, s{t+3}
    s_add_u32 s{t+5}, s{t+5}, {288*3072}
    s_add_u32 s{sWo}, s{S_WS}, s{t+5}
    s_addc_u32 s{sWo+1}, s{S_WS+1}, 0
    ; h side
    s_mul_i32 s{t+3}, s{g64}, {HO_G}
    s_lshl_b32 s{t+5}, s{t+4}, 11
    s_add_u32 s{t+5}, s{t+5}, s{t+3}
    s_add_u32 s{sHp}, s{S_WS}, s{t+5}
    s_addc_u32 s{sHp+1}, s{S_WS+1}, 0
    s_mul_i32 s{t+5}, s{sWave}, {9*2048}
    s_add_u32 s{t+5}, s{t+5}, s{t+3}
    s_add_u32 s{t+5}, s{t+5}, {288*2048}
    s_add_u32 s{sHo}, s{S_WS}, s{t+5}
    s_addc_u32 s{sHo+1}, s{S_WS+1}, 0
    s_lshl_b32 s{sO1}, s{head}, 11
    s_add_u32 s{sO1}, s{sO1}, s{t+3}
    s_add_u32 s{sO1}, s{sO1}, {288*2048}
    s_lshr_b32 s{sO2}, s{head}, 3
    s_lshl_b32 s{sO2}, s{sO2}, 11
    s_add_u32 s{sO2}, s{sO2}, s{t+3}
    s_bfe_u32 s{t+5}, s{head}, 0x10002
    s_lshl_b32 s{t+5}, s{t+5}, 9
    s_add_u32 s{sO2}, s{sO2}, s{t+5}
    s_lshl_b32 s{t+5}, s{sWave}, 2
    s_add_u32 s{sO2}, s{sO2}, s{t+5}
    s_add_u32 s{sO2}, s{sO2}, {320*2048}
    ; q / g offsets
    s_mul_i32 s{sQoff}, s{g64}, {2*36*1024}
    s_mul_i32 s{t+5}, s{head}, 18
    s_lshr_b32 s{t+5}, s{t+5}, 3
    s_lshl_b32 s{t+5}, s{t+5}, 9
    s_add_u32 s{sQoff}, s{sQoff}, s{t+5}
    s_add_u32 s{sQoff}, s{sQoff}, {WS_Q}
    s_lshl_b32 s{sGoff}, s{g64}, 8
    s_add_u32 s{sGoff}, s{sGoff}, {WS_G}
    s_mul_i32 s{sPart}, s{g64}, 6
    s_add_u32 s{sPart}, s{sPart}, s{nt}
    s_mul_i32 s{sPart}, s{sPart}, {PART_T}
    s_add_u32 s{sPart}, s{sPart}, {WS_PART}
    s_lshl_b32 s{t+3}, s{g64}, 1
    s_lshr_b32 s{t+5}, s{sWave}, 1
    s_add_u32 s{t+3}, s{t+3}, s{t+5}
    s_mul_i32 s{sOutOff}, s{t+3}, {32*1152}
    s_mul_i32 s{t+5}, s{nt}, 192
    s_add_u32 s{sOutOff}, s{sOutOff}, s{t+5}
    s_and_b32 s{t+5}, s{sWave}, 1
    s_mul_i32 s{t+5}, s{t+5}, 96
    s_add_u32 s{sOutOff}, s{sOutOff}, s{t+5}
    s_lshl_b32 s{t+5}, s{sQi}, 2
    s_add_u32 s{t+5}, s{t+5}, s{sWave}
    s_sub_u32 s{t+5}, s{t+5}, 12
    s_cmp_lt_u32 s{t+5}, 3
    s_cselect_b32 s{t+5}, 0, 64
    v_mov_b32 v32, 24576
    v_cmp_eq_u32 vcc, s{t+5}, v{vLane}
    s_nop 1
    v_cndmask_b32 v{GX+33}, v33, v32, vcc
""")
    A(f"""
    s_cmp_eq_u32 s{W}, 771
    s_cbranch_scc1 L_flaginit
L_flaginit_ret:
""")
    if common.OPT.get("fine"): stamp(A, 29)
    body0(A, vm)
    A(f"""
L_loop:
    s_cmp_eq_u32 s{sSpecial}, 0
    s_cbranch_scc0 L_sp_odd
L_odd:
""")
    body(A, True)
    A(f"""
    s_cmp_eq_u32 s{sSpecial}, 0
    s_cbranch_scc0 L_sp_even
L_even:
""")
    body(A, False)
    A(f"""
    s_bfe_u32 s{t}, s{sTab}, 0x80008
    s_cmp_eq_u32 s{t}, 0xff
    s_cbranch_scc0 L_loop
L_p1_final:
""")

def phase1_tail(A):
    A(f"""
L_sp_odd:
    s_mov_b32 s{sPar}, 0
    s_call_b64 {sr(sLink,2)}, L_special
    s_branch L_odd
L_sp_even:
    s_bfe_u32 s{sT}, s{sTab}, 0x80008
    s_cmp_eq_u32 s{sT}, 0xff
    s_cbranch_scc1 L_last_odd
    s_mov_b32 s{sPar}, 1
    s_call_b64 {sr(sLink,2)}, L_special
    s_branch L_even
""")
    A("L_last_odd:")
    A("s_nop 7")
    for i in range(64): A(f"v_mov_b32 v{i}, v{64+i}")
    A(f"s_mov_b32 s{sH+2}, {WS_SIZE}")
    A("s_branch L_p1_final")
    special_sub(A)
    spin(A, f"s{sPollOff}", "kvspin_o", "L_kvok_o")
    spin(A, f"s{sPollOff}", "kvspin_e", "L_kvok_e")
    A(f"""
L_flaginit:
    v_cmp_lt_u32 vcc, 3, v{vLane}
    v_mov_b32 v12, 0
    v_mov_b32 v13, 0
    v_cndmask_b32 v8, 0, 1, vcc
    v_mov_b32 v14, 0
    v_mov_b32 v15, 0
    v_mov_b32 v9, v8
    v_mov_b32 v10, v8
    v_mov_b32 v11, v8
    s_mov_b32 s{sT}, {WS_FL}
    buffer_store_dwordx4 v[8:11], v{vLane16}, {sr(sWS,4)}, s{sT} offen sc1
    buffer_store_dwordx4 v[12:15], v{vLane16}, {sr(sWS,4)}, s{sT} offen offset:1024 sc1
    buffer_store_dwordx4 v[12:15], v{vLane16}, {sr(sWS,4)}, s{sT} offen offset:2048 sc1
    s_waitcnt vmcnt(0)
    buffer_store_dword v{vOne}, off, {sr(sDB,4)}, 0 sc1
    s_branch L_flaginit_ret
L_inispin:
    s_mov_b32 s{sT+5}, 0x40000
L_inispin_l:
    buffer_load_dword v{GX+34}, off, {sr(sDB,4)}, 0 sc1
    s_sub_u32 s{sT+5}, s{sT+5}, 1
    s_cbranch_scc1 L_iniok
    s_waitcnt vmcnt(0)
    v_cmp_eq_u32 vcc, 0, v{GX+34}
    s_cbranch_vccz L_iniok
    s_sleep 8
    s_branch L_inispin_l
""")

def jobtab(A):
    tab, _, _ = job_table()
    A(".p2align 3")
    A(".type L_jobtab,@object")
    A("L_jobtab:")
    for b in tab:
        A(".byte " + ", ".join(str(x) for x in b))
```

```python
from common import *
import common
import phase1 as p1
from phase1 import (sWS, sDB, sWave, sQi, sT, sM0, sPub, sPollOff, sLink, sTab, sHoff, sHbase, sW, sOff, sStep,
                    sHp, sWp, sHo, sWo, sO1, sO2, sQoff, sGoff, sOUT, sPart, sOutOff,
                    vLane, vLane16, vLane4, vFlagOff, vPoll, vOne, vT, vQa, vAV, vDma, LEAD,
                    F0, F2, F4, FOOB, poll_ld, flag_min)
GACC = 0
Q1 = [96, 100]; Q2 = [[104, 106], [108, 110]]
S = [112, 128]; P = [144, 152]; O = [160, 176]
K1 = [192, 196]; V = [200, 208]; K2 = [216, 220]
AK, AK2, AV = 224, 225, vAV
vO = [226, 227, 228, 229]
vG = [231, 232]
vQt = [236, 237]
vZ = 238
ZP = 246
WOA = 160
sIt, sNA = 36, 37
vPf = 251

def gld(dst, base, byteoff):
    j = byteoff // 8192
    return f"global_load_dwordx4 {dst}, v{vO[j]}, {sr(base,2)} offset:{byteoff - j*8192 - 4096} sc1"
def stage(s): return 20 * s
def gacc(n, c): return vr(GACC + (c * 3 + n) * 16, 16)
def g_mfma(st, n, c):
    return mfma16(gacc(n, c), ar(stage(st) + 8 + 4 * n, 4), ar(stage(st) + 4 * c, 4), gacc(n, c))
def ld_h(st, ks, i): return gld(ar(stage(st) + 4 * i, 4), sHp, ks * 2048 + i * 1024)
def ld_w(st, ks, n): return gld(ar(stage(st) + 8 + 4 * n, 4), sWp, ks * 3072 + n * 1024)
def wo_reg(ks, n): return ar(WOA + 12 * ks + 4 * n, 4) if ks < 8 else ar(stage(2) + 8 + 4 * n, 4)
def ld_wo(ks, n): return gld(wo_reg(ks, n), sWo, ks * 3072 + n * 1024)

def off_k1(t): return (t >> 2) * KV_GS + (t & 3) * 1024
def off_v(t, f): return (t >> 2) * KV_GS + KV_V + (t & 3) * KV_VT + f * KV_VF
def off_k2(g): return g * KV_GS + KV_K2

def qk8(u):
    c, t = u & 1, u >> 1
    return mfma8(vr(S[c], 16), vr(K2[(t // 4) % 2] + 2 * ((t % 4) // 2), 2), vr(Q2[c][t % 2], 2), "0")
def qk16(u):
    c, t = u & 1, u >> 1
    return mfma16(vr(S[c], 16), vr(K1[t % 2], 4), vr(Q1[c], 4), vr(S[c], 16))
def pv(u, f):
    c, t = u & 1, u >> 1
    return mfma16(vr(O[c], 16), vr(V[t % 2] + 4 * f, 4), vr(P[c] + 4 * f, 4), vr(O[c], 16))
def zero16(r): return mfma8(vr(r, 16), vr(ZP, 2), vr(ZP, 2), "0")

POS_M = (16, 40, 64, 84, 104, 128, 152)
POS_A = (16, 56, 88, 136)
def att_body(A, kind):
    nvm = 0
    for u in range(16):
        c, t = u & 1, u >> 1
        s, p = S[c], P[c]
        valu = [f"v_exp_f32 v{s+i}, v{s+i}" for i in range(8)] + [f"v_cvt_pk_bf16_f32 v{p+i}, v{s+2*i}, v{s+2*i+1}" for i in range(4)]
        valu += [f"v_exp_f32 v{s+i}, v{s+i}" for i in range(8, 16)] + [f"v_cvt_pk_bf16_f32 v{p+i}, v{s+2*i}, v{s+2*i+1}" for i in range(4, 8)]
        Am = [[pv(u - 1, 1)], [qk8(u + 1)], [qk16(u + 1)], [pv(u, 0)]]
        if c == 0:
            Am[0].append(f"ds_read_b128 {vr(V[(t+1)%2],4)}, v{AV} offset:{off_v(t+1,0)}")
            Am[1].append(f"ds_read_b128 {vr(V[(t+1)%2]+4,4)}, v{AV} offset:{off_v(t+1,1)}")
            Am[2].append(f"ds_read_b128 {vr(K1[t%2],4)}, v{AK} offset:{off_k1(t+2)}")
            if t % 4 == 1:
                Am[3].append(f"ds_read_b128 {vr(K2[(t//4+1)%2],4)}, v{AK2} offset:{off_k2(t//4+1)}")
        if kind == 'M':
            G = [[g_mfma(t, n, c)] for n in range(3)]
            if c == 0:
                G[2].append(ld_h(t, t, 0))
            else:
                G[0].append(ld_w(t, t, 0)); G[1].append(ld_w(t, t, 1)); G[2].append(ld_w(t, t, 2))
                Am[3].append(ld_h(t, t, 1))
                Am[3].append("s_waitcnt vmcnt(35) lgkmcnt(0)")
            if u == 0: G[0].append(poll_ld(f"s{sPollOff}"))
            ms = [Am[0], G[0], Am[1], Am[2], G[1], G[2], Am[3]]
            pos = POS_M
        else:
            if kind == 'L':
                if c == 0:
                    Am[3].insert(1, ld_h(t, t, 0))
                else:
                    Am[0].append(ld_w(t, t, 0)); Am[1].append(ld_w(t, t, 1)); Am[2].append(ld_w(t, t, 2))
                    Am[3].append(ld_h(t, t, 1))
            elif c == 1:
                for n in range(3): Am[n].append(ld_wo(t, n))
            if c == 1:
                Am[3].append("s_waitcnt vmcnt(35) lgkmcnt(0)" if (kind == 'L' and t == 7) else "s_waitcnt lgkmcnt(0)")
            ms = Am; pos = POS_A
        if u == 15:
            ms[0] += [f"v_add_u32 v{AK}, {2*KV_GS}, v{AK}", f"v_add_u32 v{AV}, {2*KV_GS}, v{AV}", f"v_add_u32 v{AK2}, {2*KV_GS}, v{AK2}"]
        acc = 0; mi = 0
        for ins in valu:
            while mi < len(ms) and acc >= pos[mi]:
                A.many(ms[mi]); mi += 1
            A(ins); acc += cost(ins)
        while mi < len(ms):
            A.many(ms[mi]); mi += 1
        nvm += sum(1 for m in ms for x in m if x.startswith(("global_", "buffer_")))
    if kind != 'A':
        A(f"""
    s_add_u32 s{sHp}, s{sHp}, {8*2048}
    s_addc_u32 s{sHp+1}, s{sHp+1}, 0
    s_add_u32 s{sWp}, s{sWp}, {8*3072}
    s_addc_u32 s{sWp+1}, s{sWp+1}, 0
""")
    stamp(A, "next")
    return nvm

def set_bias(c, m):
    a, b, d = vT, vT+1, vT+4
    return f"""
    v_and_b32 v{a}, 0xffff0000, v{m}
    v_sub_f32 v{b}, v{m}, v{a}
    v_and_b32 v{d}, 0xffff0000, v{b}
    v_sub_f32 v{b}, v{b}, v{d}
    v_lshrrev_b32 v{a}, 16, v{a}
    v_or_b32 v{a}, v{a}, v{d}
    v_xor_b32 v{a}, 0x80008000, v{a}
    v_lshrrev_b32 v{b}, 16, v{b}
    v_xor_b32 v{b}, 0x8000, v{b}
    v_cndmask_b32 v{Q2[c][0]}, v{a}, v{vQt[c]}, vcc
    v_cndmask_b32 v{Q2[c][0]+1}, v{b}, 0, vcc
    v_cndmask_b32 v{Q2[c][1]}, v{a}, 0, vcc
    v_cndmask_b32 v{Q2[c][1]+1}, v{b}, v{vQt[c]}, vcc
"""
def max16(s, dst, first):
    o = []
    if first:
        o.append(f"v_max3_f32 v{dst}, v{s}, v{s+1}, v{s+2}")
        for i in range(3, 15, 2): o.append(f"v_max3_f32 v{dst}, v{dst}, v{s+i}, v{s+i+1}")
        o.append(f"v_max_f32 v{dst}, v{dst}, v{s+15}")
    else:
        for i in range(0, 16, 2): o.append(f"v_max3_f32 v{dst}, v{dst}, v{s+i}, v{s+i+1}")
    return o
def half_max(m, tmp):
    return [f"v_mov_b32 v{tmp}, v{m}", "s_nop 1", f"v_permlane32_swap_b32 v{m}, v{tmp}", "s_nop 1", f"v_max_f32 v{m}, v{m}, v{tmp}"]

def transition(A):
    t = sT
    vm = Counter(63)
    def put(ins, tag=None):
        if ins.startswith(("buffer_", "global_")): vm.issue(tag)
        A(ins)
    stamp_set(A, 12)
    A(f"""
    s_and_b32 s{t+2}, s{sTab}, 0xff
    s_lshl_b32 s{t+2}, s{t+2}, 13
    s_add_u32 s{sHoff}, s{sHbase}, s{t+2}
    s_add_u32 s{t+1}, s{sQoff}, {36*1024}
    v_and_b32 v{vT+4}, 0x7c, v{vLane4}
    v_lshl_add_u32 v{vT+5}, s{sWave}, 2, v{vLane16}
    s_waitcnt vmcnt(1) lgkmcnt(0)
    s_barrier
    {flag_min()[0]}
    {flag_min()[1]}
    v_cmp_eq_u32 vcc, 0, v{vPoll}
    s_cbranch_vccnz L_qspin
L_qok:
""")
    fs = lambda i: stamp(A, i) if (common.OPT.get("fine") or common.OPT.get("fine2")) else None
    fs(50)
    for c in range(2):
        so = sQoff if c == 0 else t + 1
        put(f"buffer_load_dwordx4 {vr(S[0]+8*c,4)}, v{vLane16}, {sr(sWS,4)}, s{so} offen sc1", "q")
        put(f"buffer_load_dwordx4 {vr(S[0]+8*c+4,4)}, v{vLane16}, {sr(sWS,4)}, s{so} offen offset:512 sc1", "q")
        put(f"buffer_load_dword v{vQt[c]}, v{vT+5}, {sr(sWS,4)}, s{so} offen offset:1024 sc1", "q")
        put(f"buffer_load_dword v{vG[c]}, v{vT+4}, {sr(sWS,4)}, s{sGoff} offen offset:{128*c} sc1", "q")
    A(f"""
    v_min_u32 v{AK2}, 512, v{vLane16}
    v_mov_b32 v{ZP}, 0
    v_mov_b32 v{ZP+1}, 0
    s_mov_b32 s{sIt}, 0
    ds_read_b128 {vr(K1[0],4)}, v{vLane16} offset:{off_k1(0)}
    ds_read_b128 {vr(K2[0],4)}, v{AK2} offset:{off_k2(0)}
    ds_read_b128 {vr(K1[1],4)}, v{vLane16} offset:{off_k1(1)}
    ds_read_b128 {vr(V[0],4)}, v{AV} offset:{off_v(0,0)}
    ds_read_b128 {vr(V[0]+4,4)}, v{AV} offset:{off_v(0,1)}
""")
    A(zero16(O[0]))
    A(f"v_mov_b32 v{AK}, v{vLane16}")
    for j in range(4): A(f"v_add_u32 v{vO[j]}, {4096 + j*8192}, v{vLane16}")
    for r in [P[1] + 4 + i for i in range(4)] + [V[1] + 4 + i for i in range(4)]: A(f"v_mov_b32 v{r}, 0")
    A(zero16(O[1]))
    blocks = p1.gelu_ops(0, 64, 80)
    regions = list(range(LEAD, 40))
    def run_block(ops, ndma):
        step = len(ops) // (ndma + 1) if ndma else 0
        for i, ins in enumerate(ops):
            if ndma and i and i % step == 0 and regions and i // step <= ndma:
                r = regions.pop(0)
                if r % 4 == 0:
                    A(f"s_add_u32 m0, s{sM0}, {(r//4)*16384}")
                    A(f"s_add_u32 s{sOff}, s{sOff}, s{sStep}")
                put(f"buffer_load_dwordx4 v{vLane16}, {sr(sW,4)}, s{sOff} offen offset:{(r%4)*1024} sc1 lds")
                r = regions.pop(0)
                put(f"buffer_load_dwordx4 v{vLane16}, {sr(sW,4)}, s{sOff} offen offset:{(r%4)*1024} sc1 lds")
            put(ins)
    nper = (len(regions) // 2 + 3) // 4
    fs(51)
    run_block(blocks[0], nper)
    fs(52)
    run_block(blocks[1], nper)
    fs(53)
    A(f"v_cmp_gt_u32 vcc, 32, v{vLane}")
    A(f"s_waitcnt vmcnt({vm.need('q')}) lgkmcnt(0)")
    fs(54)
    A(zero16(GACC))
    A(f"s_mov_b32 s{t}, m0")
    A(f"s_set_gpr_idx_on s{sWave}, gpr_idx(SRC0)")
    A("s_nop 0")
    for c in range(2):
        for i in range(4): A(f"v_mov_b32 v{Q1[c]+i}, v{S[0]+8*c+i}")
    A("s_set_gpr_idx_off")
    A(f"s_mov_b32 m0, s{t}")
    for c in range(2):
        A(f"v_cndmask_b32 v{Q2[c][0]}, 0, v{vQt[c]}, vcc")
        A(f"v_mov_b32 v{Q2[c][0]+1}, 0")
    b2 = blocks[2]
    ins_at = {4: qk8(0), 12: qk16(0), 20: qk8(1), 27: qk16(1), 33: zero16(GACC + 16)}
    nb2 = []
    for i, ins in enumerate(b2):
        if i in ins_at: nb2.append(ins_at[i])
        nb2.append(ins)
    run_block(nb2, nper)
    fs(55)
    for c in range(2):
        A.many(max16(S[c], S[c], True)); A.many(half_max(S[c], S[c] + 1)); A(set_bias(c, S[c]))
    b3 = blocks[3]
    ins_at = {2: qk8(0), 10: qk16(0), 18: zero16(GACC + 32)}
    nb3 = []
    for i, ins in enumerate(b3):
        if i in ins_at: nb3.append(ins_at[i])
        nb3.append(ins)
    fs(56)
    run_block(nb3, nper)
    fs(57)
    assert not regions
    A(f"""
    s_lshl_b32 s{t}, s{sQi}, 2
    s_add_u32 s{t}, s{t}, s{sWave}
    s_cmp_eq_u32 s{t}, 15
    s_cselect_b32 s{sNA}, 8, 1
""")
    A.many([zero16(GACC + 48), zero16(GACC + 64), zero16(GACC + 80)])
    stamp(A, "next")

def main_loop(A):
    t = sT
    A("L_itA:")
    n = att_body(A, 'A')
    A(f"""
    s_add_u32 s{sIt}, s{sIt}, 1
    s_cmp_eq_u32 s{sIt}, 1
    s_cbranch_scc0 L_idle_next
    s_mov_b32 s{sPollOff}, {F4}
    s_waitcnt vmcnt({n})
    s_barrier
    buffer_store_dword v{vOne}, v{vFlagOff}, {sr(sWS,4)}, s{sPub} offen offset:1024 sc1
    s_cmp_eq_u32 s{sNA}, 1
    s_cbranch_scc0 L_itA
""")
    att_body(A, 'L')
    A(f"s_mov_b32 s{sIt}, 2")
    A("L_itM:")
    att_body(A, 'M')
    A(f"""
    s_add_u32 s{sIt}, s{sIt}, 1
    s_cmp_eq_u32 s{sIt}, 3
    s_cbranch_scc1 L_hchk
    s_cmp_lt_u32 s{sIt}, 8
    s_cbranch_scc1 L_itM
L_done:
""")

OL = 96
PL = 168
def ld_o(f):
    c, st = f // 9, f % 9
    return gld(vr(OL + 4 * f, 4), sHo, st * 2048 + c * 1024)

def tail(A):
    t = sT
    A(pv(15, 1))
    A(f"""
    v_lshrrev_b32 v{vT+1}, 5, v{vLane}
    v_lshl_add_u32 v{vT+1}, v{vT+1}, 30, v{vLane16}
    s_mov_b32 s{t+3}, {f2u(2.0**60):#x}
    s_nop 7
    s_nop 0
    v_add_f32 v{vT+3}, v{O[0]+10}, v{O[1]+10}
    v_cmp_nlt_f32 vcc, v{vT+3}, s{t+3}
    s_cbranch_vccnz L_fallback
L_fb_ret:
    v_rcp_f32 v{O[0]+10}, v{O[0]+10}
    v_rcp_f32 v{O[1]+10}, v{O[1]+10}
""")
    ST = [192, 200]
    for c in range(2):
        o = O[c]
        A(f"v_mul_f32 v{o+10}, v{o+10}, v{vG[c]}")
        for i in range(10): A(f"v_mul_f32 v{o+i}, v{o+i}, v{o+10}")
        for i in range(5): A(f"v_cvt_pk_bf16_f32 v{ST[c]+i}, v{o+2*i}, v{o+2*i+1}")
        A(f"buffer_store_dwordx4 {vr(ST[c],4)}, v{vLane16}, {sr(sWS,4)}, s{sO1} offen offset:{c*1024} sc1")
        A(f"buffer_store_dword v{ST[c]+4}, v{vT+1}, {sr(sWS,4)}, s{sO2} offen offset:{c*1024} sc1")
    stamp(A, 21)
    A(f"""
    s_cmp_eq_u32 s{sQi}, 3
    s_cbranch_scc1 L_helper_tail
    s_waitcnt vmcnt(4)
""")
    vm = Counter(63)
    def put(ins, tag=None):
        if ins.startswith(("buffer_", "global_")): vm.issue(tag)
        A(ins)
    NTR = KM - 48
    OST = common.OPT.get("ost", 6)
    of = 0
    for k in range(NTR):
        st = k % 8
        if k >= 8: A(f"s_waitcnt vmcnt({vm.need(f'x{k}')})")
        for c in range(2):
            for n in range(3):
                A(g_mfma(st, n, c))
                if k + 8 < NTR:
                    if c == 0 and n == 2: put(ld_h(st, k, 0), f"x{k+8}")
                    if c == 1: put(ld_w(st, k, n), f"x{k+8}")
                    if c == 1 and n == 2: put(ld_h(st, k, 1), f"x{k+8}")
                elif k == 2 and c == 1: put(ld_wo(8, n), "wo")
                elif k == 3 and c == 0 and n == 0:
                    A(f"v_sub_f32 v{vG[0]}, 1.0, v{vG[0]}"); A(f"v_sub_f32 v{vG[1]}, 1.0, v{vG[1]}")
                    A(f"s_lshl_b32 s{t}, s{sWave}, 11"); A(f"v_add_u32 v{vT+1}, s{t}, v{vLane16}")
                elif k == 3 and c == 0 and n == 1:
                    A(f"v_add_u32 v{vT+2}, {6*8192}, v{vT+1}"); A(f"s_mul_i32 s{t}, s{sWave}, {3*8192}")
                    A(f"v_add_u32 v{vT+3}, s{t}, v{vLane16}"); A(f"s_mul_i32 s{t}, s{sWave}, 6144")
                    A(f"s_add_u32 s{t+4}, s{sPart}, s{t}")
                elif k == 3 and c == 0 and n == 2:
                    A(f"s_add_u32 s{t+3}, s{t+4}, 4096"); A(f"v_mov_b32 v{vT+5}, 24576"); A("s_barrier")
                elif k >= OST and of < 18:
                    put(ld_o(of), f"o{of}"); of += 1
    while of < 18:
        put(ld_o(of), f"o{of}"); of += 1
    A("s_nop 7")
    for i in range(96): A(f"v_mul_f32 v{GACC+i}, v{GACC+i}, v{vG[i//48]}")
    stamp(A, 22)
    wq = [f"ds_write_b128 v{vT+1+q//6}, {vr(GACC+8*q+4*k,4)} offset:{(q%6)*8192 + k*1024}" for q in range(12) for k in range(2)]
    wi = 0
    def check(f):
        r = OL + 4 * f
        A(f"s_waitcnt vmcnt({vm.need(f'o{f}')})")
        A(f"L_ochk{f}:")
        A(f"v_max3_u32 v{vT}, v{r}, v{r+1}, v{r+2}")
        A(f"v_max_u32 v{vT}, v{vT}, v{r+3}")
        A(f"v_cmp_eq_u32 vcc, -1, v{vT}")
        A(f"s_cbranch_vccnz L_ore{f}")
    A(f"s_mov_b32 s{t+5}, 0x10000")
    check(0)
    for f in range(18):
        c, st = f // 9, f % 9
        for n in range(3):
            A(mfma16(gacc(n, c), wo_reg(st, n), vr(OL + 4 * f, 4), gacc(n, c)))
            if n == 0 and f + 1 < 18: check(f + 1)
            if f == 9 and n == 1: put(f"buffer_load_dword v{vPf}, v{vT+5}, {sr(sWS,4)}, s{sPart} offen sc1", "pf")
            if f >= 11 and n >= 1 and wi < 12: A(wq[wi]); wi += 1
    stamp(A, 23)
    A(f"""
    s_waitcnt vmcnt(0)
    v_cmp_eq_u32 vcc, 0, v{vPf}
    s_cbranch_vccnz L_pspin
L_pok:
""")
    for i in range(6):
        A(f"buffer_load_dwordx4 {vr(PL+4*i,4)}, v{vLane16}, {sr(sWS,4)}, s{t+4 if i < 4 else t+3} offen offset:{(i%4)*1024} sc1")
    A(f"""
    s_cmp_lt_u32 s{sWave}, 2
    s_cselect_b64 vcc, -1, 0
    v_cndmask_b32 v{vG[0]}, v{vG[1]}, v{vG[0]}, vcc
""")
    while wi < 24: A(wq[wi]); wi += 1
    A("s_waitcnt lgkmcnt(0)")
    A("s_barrier")
    stamp(A, 24)
    RD = 0
    for i in range(3):
        for w in range(4):
            for k in range(2):
                A(f"ds_read_b128 {vr(RD + (i*4+w)*8 + 4*k, 4)}, v{vT+3} offset:{i*8192 + w*2048 + k*1024}")
    for i in range(3):
        A(f"s_waitcnt lgkmcnt({min(15, 16 - 8*i)})")
        b = RD + i * 32
        for r in range(8): A(f"v_add_f32 v{b+8+r}, v{b+8+r}, v{b+16+r}")
        for r in range(8): A(f"v_add_f32 v{b+r}, v{b+r}, v{b+24+r}")
        for r in range(8): A(f"v_add_f32 v{b+r}, v{b+r}, v{b+8+r}")
        A(f"s_waitcnt vmcnt({4 - i})")
        for r in range(8): A(f"v_fma_f32 v{b+r}, v{PL+8*i+r}, v{vG[0]}, v{b+r}")
        for r in range(4): A(f"v_cvt_pk_bf16_f32 v{b+16+r}, v{b+2*r}, v{b+2*r+1}")
        A(f"buffer_store_dwordx4 {vr(b+16,4)}, v{vQa}, {sr(sOUT,4)}, s{sOutOff} offen offset:{i*32}{' ' + common.OPT['outpol'].replace('_', ' ') if 'outpol' in common.OPT else ''}")
    A("L_fin:")
    stamp(A, 25)
    if common.STAMPS: A("s_waitcnt vmcnt(0)")
    stamp(A, 26)

def fallback(A):
    t = sT
    M = [vT + 2, vT + 3]
    def rebase():
        A(f"v_add_u32 v{AK}, {-16*KV_GS & 0xffffffff:#x}, v{AK}")
        A(f"v_add_u32 v{AV}, {-16*KV_GS & 0xffffffff:#x}, v{AV}")
        A(f"v_add_u32 v{AK2}, {-16*KV_GS & 0xffffffff:#x}, v{AK2}")
        A(f"s_mov_b32 s{t}, 16")
    def loop(name, work, needv):
        A(f"L_{name}:")
        A(f"ds_read_b128 {vr(K2[0],4)}, v{AK2} offset:{off_k2(0)}")
        for tt in range(4):
            A(f"ds_read_b128 {vr(K1[tt%2],4)}, v{AK} offset:{off_k1(tt)}")
            if needv:
                for f in range(2): A(f"ds_read_b128 {vr(V[tt%2]+4*f,4)}, v{AV} offset:{off_v(tt,f)}")
            A("s_waitcnt lgkmcnt(0)")
            A.many([qk8(2*tt), qk8(2*tt+1), "s_nop 15", qk16(2*tt), qk16(2*tt+1), "s_nop 15"])
            for c in range(2): work(2*tt + c)
        A(f"v_add_u32 v{AK}, {KV_GS}, v{AK}"); A(f"v_add_u32 v{AV}, {KV_GS}, v{AV}"); A(f"v_add_u32 v{AK2}, {KV_GS}, v{AK2}")
        A(f"s_sub_u32 s{t}, s{t}, 1"); A(f"s_cmp_lg_u32 s{t}, 0"); A(f"s_cbranch_scc1 L_{name}")
    A("L_fallback:")
    A(f"v_cmp_gt_u32 vcc, 32, v{vLane}")
    rebase()
    for c in range(2):
        A(f"v_cndmask_b32 v{Q2[c][0]}, 0, v{vQt[c]}, vcc"); A(f"v_mov_b32 v{Q2[c][0]+1}, 0")
        A(f"v_mov_b32 v{Q2[c][1]}, 0"); A(f"v_cndmask_b32 v{Q2[c][1]+1}, 0, v{vQt[c]}, vcc")
        A(f"v_mov_b32 v{M[c]}, 0xff800000")
    loop("fbmax", lambda u: A.many(max16(S[u & 1], M[u & 1], False)), False)
    for c in range(2):
        A.many(half_max(M[c], vT)); A(set_bias(c, M[c]))
    for i in range(32): A(f"v_mov_b32 v{O[0]+i}, 0")
    rebase()
    def work(u):
        s, p = S[u & 1], P[u & 1]
        for i in range(16): A(f"v_exp_f32 v{s+i}, v{s+i}")
        A("s_nop 0")
        for i in range(8): A(f"v_cvt_pk_bf16_f32 v{p+i}, v{s+2*i}, v{s+2*i+1}")
        A.many(["s_nop 1", pv(u, 0), pv(u, 1)])
    loop("fbexp", work, True)
    A(f"""
    v_lshrrev_b32 v{vT+1}, 5, v{vLane}
    v_lshl_add_u32 v{vT+1}, v{vT+1}, 30, v{vLane16}
    s_nop 15
    s_branch L_fb_ret
""")

def out_of_line(A):
    t = sT
    A(f"""
L_idle_next:
    s_cmp_lt_u32 s{sIt}, 8
    s_cbranch_scc1 L_itA
    s_branch L_done
L_hchk:
    s_mov_b32 s{sPollOff}, {FOOB}
    s_mov_b32 s{t}, {F4}
    {flag_min()[0]}
    {flag_min()[1]}
    v_cmp_eq_u32 vcc, 0, v{vPoll}
    s_cbranch_vccz L_itM
""")
    p1.spin(A, f"s{t}", "hspin", "L_itM")
    p1.spin(A, f"s{sPollOff}", "qspin", "L_qok")
    A(f"""
L_helper_tail:
    s_cmp_eq_u32 s{sWave}, 3
    s_cbranch_scc1 L_fin
    s_waitcnt vmcnt(4)
""")
    for st in range(8):
        for c in range(2):
            for n in range(3): A(g_mfma(st, n, c))
    A(f"""
    v_mov_b32 v{vT+5}, 24576
    s_nop 0
    s_mov_b32 s{t+4}, s{sPart}
    s_nop 3
""")
    for i in range(24):
        if i and i % 4 == 0: A(f"s_add_u32 s{t+4}, s{t+4}, 4096")
        A(f"buffer_store_dwordx4 {vr(GACC+4*i,4)}, v{vLane16}, {sr(sWS,4)}, s{t+4} offen offset:{(i%4)*1024} sc1")
    A(f"""
    s_waitcnt vmcnt(0)
    buffer_store_dword v{vOne}, v{vT+5}, {sr(sWS,4)}, s{sPart} offen sc1
    s_branch L_fin
L_pspin:
    buffer_load_dword v{vPf}, v{vT+5}, {sr(sWS,4)}, s{sPart} offen sc1
    s_sub_u32 s{t+5}, s{t+5}, 1
    s_cbranch_scc1 L_pok
    s_waitcnt vmcnt(0)
    v_cmp_eq_u32 vcc, 0, v{vPf}
    s_cbranch_vccnz L_pspin
    s_branch L_pok
""")
    for f in range(18):
        A(f"""
L_ore{f}:
    s_call_b64 {sr(sLink,2)}, L_orl{f}
    s_branch L_ochk{f}
""")
    for f in range(18):
        A(f"L_orl{f}:")
        A(ld_o(f))
    A(f"""
    s_sub_u32 s{t+5}, s{t+5}, 1
    s_cbranch_scc1 L_fin
    s_waitcnt vmcnt(0)
    s_setpc_b64 {sr(sLink,2)}
""")
    fallback(A)
```

```python
import sys
from common import *
import common
import phase1 as p1
import phase2 as p2

NAME = "gated_mix__grouped_kv_mqa__glu_gated_geglu__prompt"
def kd(name):
    return f"""
.section .rodata,"a"
.p2align 6
.amdhsa_kernel {name}
  .amdhsa_next_free_vgpr 512
  .amdhsa_next_free_sgpr 102
  .amdhsa_accum_offset 256
  .amdhsa_group_segment_fixed_size 0
  .amdhsa_kernarg_size 104
  .amdhsa_user_sgpr_count 2
  .amdhsa_user_sgpr_kernarg_segment_ptr 1
  .amdhsa_system_sgpr_workgroup_id_x 1
.end_amdhsa_kernel
"""
def head(name):
    return f""".globl {name}
.p2align 12
.p2align 8
.type {name},@function
{name}:
"""
def hdr_comment():
    ref = open(f"cdna_kernels/{NAME}.s.ref").read().split("\n")
    return "\n".join(l for l in ref[:14]) + "\n"
def gen_fused():
    A = Asm()
    vm = p1.phase1(A)
    p2.transition(A, vm)
    p2.main_loop(A)
    p2.tail(A)
    stamp_flush(A, p1.sWS, p1.vLane4, p1.sWave)
    if common.OPT.get("dbgst") is not None:
        A(f"""
    v_readlane_b32 s0, v253, 0
    v_readlane_b32 s1, v253, 20
    s_nop 3
    v_writelane_b32 v253, s1, 8
    v_readlane_b32 s1, v253, 22
    s_nop 3
    v_writelane_b32 v253, s1, 9
    v_readlane_b32 s1, v253, 23
    s_nop 3
    v_writelane_b32 v253, s1, 10
    v_readlane_b32 s1, v253, 26
    s_nop 3
    v_writelane_b32 v253, s1, 11
    v_subrev_u32 v253, s0, v253
    s_lshl_b32 s1, s2, 2
    s_add_u32 s1, s1, s{p1.sWave}
    s_cmp_eq_u32 s1, {common.OPT["dbgst"]}
    s_cbranch_scc0 L_end
    buffer_store_dword v253, v{p1.vLane4}, s[96:99], 0 offen offset:4
""")
    if common.OPT.get("padto"):
        A(f"""
    v_readlane_b32 s10, v253, {common.OPT.get("probe", 0)}
    s_cmp_eq_u32 s{p1.sSpecial}, {common.OPT.get("pskip", 5)}
    s_cbranch_scc1 L_end
L_pad:
    s_memrealtime s[0:1]
    s_waitcnt lgkmcnt(0)
    s_sub_u32 s0, s0, s10
    s_cmp_lt_u32 s0, {common.OPT["padto"]}
    s_cbranch_scc1 L_pad
""")
    if common.OPT.get("padmin"):
        A(f"""
    s_mov_b32 s10, {WS_FL + 4096}
    buffer_load_dwordx4 v[0:3], v{p1.vLane16}, s[44:47], s10 offen sc1
    s_waitcnt vmcnt(0)
    s_mov_b32 s11, {common.OPT["padmin"]}
L_pad2:
    s_memrealtime s[0:1]
    s_waitcnt lgkmcnt(0)
    v_sub_u32 v4, s0, v0
    v_sub_u32 v5, s0, v1
    v_sub_u32 v6, s0, v2
    v_sub_u32 v7, s0, v3
    v_max3_u32 v4, v4, v5, v6
    v_max_u32 v4, v4, v7
    v_cmp_le_u32 vcc, s11, v4
    s_cbranch_vccz L_pad2
""")
    A("L_end:")
    A("s_endpgm")
    p1.phase1_tail(A)
    p2.out_of_line(A)
    p1.jobtab(A)
    k = NAME + "_kernel"
    s = hdr_comment()
    s += "; @launch grid=(256,1,1) block=(256,1,1) lds=163840\n"
    s += '.amdgcn_target "amdgcn-amd-amdhsa--gfx950"\n.text\n' + head(k) + A.text() + kd(k)
    return s
if __name__ == "__main__":
    out = sys.argv[1]
    for a in sys.argv[2:]:
        if a == "stamps": common.STAMPS = True
        elif "=" in a:
            k, v = a.split("="); common.OPT[k] = int(v) if v.lstrip("-").isdigit() else v
        else: common.OPT[a] = 1
    if common.OPT.get("lead"): p1.LEAD = p2.LEAD = common.OPT["lead"]
    if common.OPT.get("pb"): p1.PB = common.OPT["pb"]
    if common.OPT.get("ntt"): p1.NT_T = " nt"
    if common.OPT.get("ntw"): p1.NT_W = " nt"
    if common.OPT.get("ntx"): p1.NT_X = " nt"
    if common.OPT.get("ntp"): p1.NT_P = " nt"
    txt = gen_fused()
    import re
    if common.OPT.get("noatom"):
        txt = re.sub(r"    buffer_atomic_or.*\n", "    s_nop 0\n", txt)
        txt = re.sub(r"    s_cbranch_vccnz L_(kvspin_.|qspin)\n", "    s_nop 0\n", txt)
        txt = txt.replace("s_cbranch_vccz L_itM", "s_branch L_itM")
    if common.OPT.get("nopoll"):
        txt = re.sub(r"    buffer_load_dword v240, v250, .*\n(?!    s_sub)", "    s_nop 0\n", txt)
    if common.OPT.get("nosc1h"):
        txt = re.sub(r"(buffer_store_dwordx4 .* s\[(48:51|56:59)\].*) sc1", r"\1", txt)
    open(out, "w").write(txt)
```

```python
from common import *
import common

S_X, S_WQ, S_WK, S_WV, S_WO, S_WG, S_WU, S_WD, S_GW, S_OUT, S_DBG, S_WS = 4, 6, 8, 10, 12, 16, 18, 20, 22, 24, 26, 28
sW, sWn, nOff, sX, sWS, sH, sP, sPD = 32, 36, 88, 40, 44, 48, 52, 56
sTch = 94
sWave, sOff, sStep, nStep, sHoff, sHbase, sTab, sM0, sRowOff = 60, 61, 62, 63, 64, 65, 66, 68, 69
sPs0, sPs1, sPd0, sPd1, sXc, sXend = 70, 71, 72, 73, 74, 85
sT = 76
sLink, sLink2, sSpecial, sTb, sC2, sFb, sPub, sPar = 82, 84, 86, 87, 89, 90, 92, 93
sXq, sQi = 94, 95
sDB = 96
sBase, sEnd, nStart, sSkip, sRot = 100, 101, 31, 30, 3
sPollOff = 74
nD = 75
sHp, sWp, sHo, sWo = 12, 14, 16, 18
sO1, sO2, sQoff, sGoff = 20, 21, 22, 23
sOUT = 24
sPart, sOutOff = 4, 5
SRD3 = 0x00020000
WG_SIZE = 576 * 9216
LEAD = 12
PB = 4
NT_W = ""
NT_X = ""
NT_P = ""
NT_T = ""

ACC = [0, 64]
AF = 128
XT = 152
GT = 184
PK = 200
PF = 208
vDma = 220
vTR = 224
vTW, vNext, vF, vLane16, vC1, vPsrc, vPtr, vR8, vC16, vFlagOff, vOne, vLane, vQa, vAV = range(230, 244)
vT = 244
vPoll = 244
vLane4 = 250
vDummy = 251
F0, F2, F4, FOOB = WS_FL, WS_FL + 1024, WS_FL + 2048, 0x40000000

def xreg(tb2, ks):
    i = ks * 2 + tb2
    return ar(4 * i, 4) if i < 64 else vr(XT + 4 * (i - 64), 4)

def tr_reads(ks, region):
    out = []
    third = min(region // 12, 2)
    for r in range(4):
        a, rr = r // 2, r % 2
        reg = AF + (ks % 3) * 8 + a * 4 + rr * 2
        off = (region // 4 - third * 3) * 16384 + (region % 4) * 1024 + rr * 512
        out.append(f"ds_read_b64_tr_b16 {vr(reg,2)}, v{vTR + third*2 + a} offset:{off}")
    return out

def gelu_ops(accset, gt=GT, pkb=PK):
    blocks = []
    for blk in range(4):
        ops = []
        g = ACC[accset] + 16 * blk; u = g + 8
        t = gt; pk = pkb + 4 * (blk % 2)
        ops += [f"v_mul_f32 v{t+i}, v{g+i}, v{g+i}" for i in range(8)]
        ops += [f"v_fma_f32 v{t+i}, v{t+i}, s{sC2}, v{vC1}" for i in range(8)]
        ops += [f"v_mul_f32 v{t+i}, v{t+i}, v{g+i}" for i in range(8)]
        for i in range(8):
            ops += [f"v_exp_f32 v{t+i}, v{t+i}", f"v_mul_f32 v{g+i}, v{g+i}, v{u+i}"]
        ops += [f"v_add_f32 v{t+i}, 1.0, v{t+i}" for i in range(8)]
        ops += [f"v_rcp_f32 v{t+i}, v{t+i}" for i in range(8)]
        ops += [f"v_mul_f32 v{g+i}, v{g+i}, v{t+i}" for i in range(8)]
        ops += [f"v_cvt_pk_bf16_f32 v{pk+i}, v{g+2*i}, v{g+2*i+1}" for i in range(4)]
        ops += [f"buffer_store_dwordx4 {vr(pk,4)}, v{vLane16}, {sr(sH,4)}, s{sHoff} offen offset:{blk*1024} sc1"]
        blocks.append(ops)
    return blocks

def w_dma(region, kpos):
    o = []
    if region % 4 == 0:
        o = [f"s_add_u32 m0, s{sM0}, {(region//4)*16384}", f"s_add_u32 s{sOff}, s{sOff}, s{sStep}"]
        if kpos > 0:
            o += [f"s_cmp_eq_u32 s{sOff}, s{sEnd}", f"s_cselect_b32 s{sOff}, s{sBase}, s{sOff}"]
    j = region % 4
    return o, f"buffer_load_dwordx4 v{vDma+j}, {sr(sW,4)}, s{sOff} offen offset:{j*1024} sc1{NT_W} lds"

def switch_ops():
    return [[f"s_mov_b64 {sr(sW,2)}, {sr(sWn,2)}", f"s_mov_b32 s{sW+2}, s{sWn+2}", f"s_mov_b32 s{sStep}, s{nStep}", f"v_mov_b32 v{vDma}, v{vNext}"],
            [f"s_mov_b32 s{sOff}, s{nStart}", f"s_mov_b32 s{sBase}, s{nOff}", f"s_mul_i32 s{sEnd}, s{nStep}, 9", f"s_add_u32 s{sEnd}, s{sEnd}, s{nOff}"],
            [f"v_add_u32 v{vDma+1}, s{nD}, v{vDma}", f"v_add_u32 v{vDma+2}, s{nD}, v{vDma+1}", f"v_add_u32 v{vDma+3}, s{nD}, v{vDma+2}"]]

def next_ops():
    t = sT
    return [[f"s_bfe_u32 s{t}, s{sTab}, 0x80018", f"s_lshl_b32 s{t+1}, s{t}, 7", f"s_add_u32 s{t+1}, s{t+1}, s{sRowOff}"],
            [f"s_add_u32 s{t+2}, s{sM0}, {WS_KV}", f"s_cmp_eq_u32 s{t}, 0xff", f"s_cselect_b32 s{nOff}, s{t+2}, s{t+1}", f"s_cselect_b64 {sr(sWn,2)}, {sr(S_WS,2)}, {sr(sFb,2)}"],
            [f"s_mov_b32 s{t+1}, {WG_SIZE}", f"s_cmp_eq_u32 s{t}, 0xff", f"s_cselect_b32 s{sWn+2}, {WS_SIZE}, s{t+1}"],
            [f"s_mov_b32 s{t+1}, {64*9216}", f"s_cmp_eq_u32 s{t}, 0xff", f"s_cselect_b32 s{nStep}, 0x4000, s{t+1}", f"s_cselect_b32 s{nD}, 0, {16*9216-1024}"],
            [f"s_cmp_eq_u32 s{t}, 0xff", f"s_cselect_b64 vcc, -1, 0", f"v_cndmask_b32 v{vNext}, v{vF}, v{vLane16}, vcc"],
            [f"s_cmp_eq_u32 s{t}, 0xff", f"s_cselect_b32 s{sSkip}, 0, 1", f"s_cselect_b32 s{t+1}, -1, s{sRot}"],
            [f"s_mul_i32 s{t+1}, s{t+1}, s{nStep}", f"s_add_u32 s{nStart}, s{nOff}, s{t+1}", f"s_lshr_b64 {sr(sTab,2)}, {sr(sTab,2)}, 8"]]

def poll_ld(soff):
    return f"buffer_load_dwordx4 {vr(vPoll,4)}, v{vLane16}, {sr(sWS,4)}, {soff} offen sc1"
def flag_min():
    return [f"v_min3_u32 v{vPoll}, v{vPoll}, v{vPoll+1}, v{vPoll+2}", f"v_min_u32 v{vPoll}, v{vPoll}, v{vPoll+3}"]

def emit_stream(A, accset, pinned, pre, queue, qstart, vm, lg, budget=24, maxpin=1, one=False, qend=136):
    qi = 0
    total = sum(cost(x) for x in queue if not x.startswith("buffer_") and x != "BREAK"); done = 0
    def put(ins):
        if callable(ins): ins = ins()
        if ins == "FULL": return 100
        tag = None
        if isinstance(ins, tuple): ins, tag = ins
        op = ins.split()[0]
        if op.startswith("ds_"): lg.issue(tag)
        if op.startswith("buffer_") or op.startswith("global_"): vm.issue(tag)
        A(ins)
        return 0 if ins.endswith(":") else cost(ins)
    for ks in range(36):
        for p in pre[ks]: put(p)
        for m in range(4):
            a, tb2 = m // 2, m % 2
            d = vr(ACC[accset] + 16 * m, 16)
            A(mfma16(d, vr(AF + (ks % 3) * 8 + a * 4, 4), xreg(tb2, ks), "0" if ks == 0 else d))
            used = 4 if m == 3 else 0
            gap = ks * 4 + m
            if gap >= qstart and qi < len(queue) and queue[qi].startswith("buffer_") and len(pinned[ks][m]) <= maxpin:
                used += put(queue[qi]); qi += 1
            for p in pinned[ks][m]: used += put(p)
            while gap >= qstart and qi < len(queue) and not queue[qi].startswith("buffer_") and used + cost(queue[qi]) <= budget \
                    and done <= total * (gap + 1 - qstart) / (qend - qstart):
                if queue[qi] == "BREAK":
                    qi += 1; break
                c_ = put(queue[qi]); used += c_; done += c_; qi += 1
    assert qi == len(queue), f"queue not drained {qi}/{len(queue)}"
    stamp(A, "next")

def touch_w():
    return [[f"s_add_u32 s{sT+3}, s{nOff}, s{sTch}", f"s_cmp_eq_u32 s{sSkip}, 0", f"s_cselect_b32 s{sT+3}, {FOOB}, s{sT+3}"],
            [(f"buffer_load_dword v{vDummy}, v{vTW}, {sr(sWn,4)}, s{sT+3} offen{NT_T}", "tch")]]

def body(A, odd):
    accset = 1 if odd else 0
    nm = "o" if odd else "e"
    vm = Counter(63); lg = Counter(15, ["k0"]*4 + ["k1"]*4)
    pinned = [[[] for _ in range(4)] for _ in range(36)]
    pre = [[] for _ in range(36)]
    assert LEAD == 12
    bars = {10: "d19", 18: "d31", 30: "d47"}
    for ks in range(36):
        pre[ks].append(lambda ks=ks: f"s_waitcnt lgkmcnt({lg.need(f'k{ks}')})")
        bar = ks in bars
        if bar:
            pinned[ks][0] += [lambda ks=ks: f"s_waitcnt vmcnt({vm.need(bars[ks])})", "s_barrier", "FULL"]
        k2 = (ks + 2) % 36
        for r, ins in enumerate(tr_reads(k2, k2)):
            pinned[ks][[1,1,2,3][r] if bar else r].append((ins, f"k{ks+2}"))
    slots = sorted([(k, 2) for k in range(24)] + [(k, 0) for k in range(1, 24, 2)])
    SW = 16
    sw = switch_ops()
    pinned[SW-1][3] += sw[0]; pinned[SW][0] += sw[1]; pinned[SW][3] += sw[2]
    for i, (k, g) in enumerate(slots):
        rho = LEAD + i
        o, ld = w_dma(rho % 36, rho % 36)
        if g == 2: pinned[k][1] += o
        else: pinned[k-1][3] += o
        pinned[k][g] += [(ld, f"d{rho}")]
        if rho == 36: assert (k, g) == (SW, 2)
    pinned[0][0] += [f"s_and_b32 s{sT+2}, s{sTab}, 0xff", f"s_lshl_b32 s{sT+2}, s{sT+2}, 13", f"s_add_u32 s{sHoff}, s{sHbase}, s{sT+2}"]
    if odd:
        pinned[18][1] += [f"buffer_store_dword v{vOne}, v{vFlagOff}, {sr(sWS,4)}, s{sPub} offen sc1"]
        pinned[26][1] += [f"s_lshl_b32 s{sPub}, s2, 2", f"s_add_u32 s{sPub}, s{sPub}, {F2}"]
    pinned[14][0] += flag_min() + [f"v_or_b32 v{vPoll}, s{sSkip}, v{vPoll}", f"v_cmp_eq_u32 vcc, 0, v{vPoll}"]
    pinned[14][1] += [f"s_cbranch_vccnz L_kvspin_{nm}", f"L_kvok_{nm}:"]
    nx = next_ops()
    pinned[17][1] += nx[0]
    pinned[17][3] += [f"s_mov_b32 s{sT+2}, {FOOB}", f"s_cmp_eq_u32 s{sT}, 0xff", f"s_cselect_b32 s{sPollOff}, {F0}, s{sT+2}"]
    pinned[19][1] += [f"s_cmp_eq_u32 s{sSkip}, 0", f"s_cselect_b32 s{sPollOff}, {F2}, s{sPollOff}"]
    for grp, (k, g) in zip(nx[1:], [(19,3), (20,0), (20,1), (20,3), (21,3), (22,0)]): pinned[k][g] += grp
    pinned[31][0] += [poll_ld(f"s{sPollOff}")]
    units = [0, 1] if odd else [2]
    pos = [(24,2), (24,3), (25,0), (25,1)]
    for n, u in enumerate(units):
        for e in range(2):
            k, g = pos[2*n + e]
            if e == 0: pinned[k][g] += [f"s_add_u32 m0, s{sM0}, {9*16384 + n*2048}"]
            pinned[k][g] += [f"s_add_u32 s{sT+3}, s{sPs0+e}, {u*128}",
                             (f"buffer_load_dwordx4 v{vPsrc}, {sr(sP,4)}, s{sT+3} offen offset:{e*1024}{NT_P} lds", "pk")]
    if not common.OPT.get("notouch"):
        tw = touch_w()
        pinned[24][0] += tw[0]; pinned[24][1] += tw[1]
    for n, u in enumerate([2] if odd else [0, 1]):
        pf = [PF, GT + 8][n]
        for r in range(4):
            e, rr = r // 2, r % 2
            k, g = [[(10,1), (10,2), (11,1), (11,1)], [(14,3), (14,3), (15,1), (15,1)]][n][r]
            pinned[k][g].append(
                (f"ds_read_b64_tr_b16 {vr(pf + e*4 + rr*2,2)}, v{vPtr} offset:{n*2048 + rr*512 + e*64}", f"p{n}"))
        for e in range(2):
            nb = 2 * u + e
            k, g = [[(12,1), (12,3)], [(22,1), (22,3)]][n][e]
            if n == 0 and e == 0: pinned[k][g].append(lambda: f"s_waitcnt lgkmcnt({lg.need('p0')})")
            pinned[k][g].append(
                f"buffer_store_dwordx4 {vr(pf + e*4, 4)}, v{vLane16}, {sr(sPD,4)}, s{sPd0 + nb//3} offen offset:{(nb%3)*1024} sc1")
    if odd:
        pinned[35][1] += [f"s_cmp_lg_u32 s{sP+2}, 0", f"s_cselect_b32 s{sPD+2}, {WS_SIZE}, 0"]
    else:
        pinned[35][1] += [f"s_mov_b32 s{sP+2}, 0"]
    q = sum(gelu_ops(1 - accset), [])
    emit_stream(A, accset, pinned, pre, q, 4, vm, lg)

XR = 64
GX = 80
vXd = 76
sXb = 64
def elem_dma(e):
    region = (e + 8) % 40
    if e < 72 and e % 8 < 4:
        n = e % 8
        o = []
        if n == 0:
            o = [f"s_add_u32 m0, s{sM0}, {(region//4)*16384}"]
            o += [f"s_add_u32 s{sXc}, s{sXc}, 128", f"s_cmp_eq_u32 s{sXc}, s{sXend}", f"s_cselect_b32 s{sXc}, s{sXb}, s{sXc}"] if e > 0 else ["s_nop 0"]
        return o + [(f"buffer_load_dwordx4 v{vXd+n}, {sr(sX,4)}, s{sXc} offen offset:{n*1024}{NT_X} lds", f"e{e}")]
    kpos = (e // 8) * 4 + e % 4 if e < 72 else e - 72
    o, ld = w_dma(region, kpos)
    return o + [(ld, f"e{e}")]
def x_reads(j, s):
    out = []
    base = ((8 * j + 8) % 40) * 4096
    seg = base // 57344
    for tb2 in range(2):
        out.append(f"ds_read_b128 {xreg(tb2, 4*j+s)}, v{XR + seg*4 + s} offset:{base - seg*57344 + tb2*4096}")
    return out
def wregion0(ks):
    if ks >= 36: return ks - 36
    return (8 * (ks // 4) + 4 + ks % 4 + 8) % 40
def put_elems(A, vm, es):
    for e in es:
        for ins in elem_dma(e):
            if isinstance(ins, tuple): vm.issue(ins[1]); ins = ins[0]
            A(ins)

def gate_queue():
    a = GX + 24; b = GX + 25
    q = [f"v_mov_b32 v{a}, 0"]
    for i in range(3):
        for k in range(3): q.append(f"v_dot2c_f32_bf16 v{a}, v{GX+4*i+k}, v{GX+12+4*i+k}")
    q += ["s_nop 0", "BREAK"]
    for dpp in ("quad_perm:[1,0,3,2]", "quad_perm:[2,3,0,1]", "row_half_mirror", "row_mirror"):
        q += [f"v_add_f32_dpp v{a}, v{a}, v{a} {dpp} row_mask:0xf bank_mask:0xf", "BREAK"]
    q += [f"v_mov_b32 v{b}, v{a}", "BREAK", f"v_permlane16_swap_b32 v{a}, v{b}", "BREAK",
          f"v_add_f32 v{a}, v{a}, v{b}", f"v_mul_f32 v{a}, {f2u(-math.log2(math.e)):#x}, v{a}",
          f"v_exp_f32 v{a}, v{a}", "BREAK", f"v_add_f32 v{a}, 1.0, v{a}", f"v_rcp_f32 v{a}, v{a}",
          f"buffer_store_dword v{a}, v{GX+26}, {sr(sWS,4)}, 0 offen sc1"]
    s = GX + 28
    for c in range(2):
        q += [f"buffer_store_dwordx4 {vr(s,4)}, v{vLane16}, {sr(sWS,4)}, s{sO1} offen offset:{c*1024} sc1",
              f"buffer_store_dword v{s}, v{GX+27}, {sr(sWS,4)}, s{sO2} offen offset:{c*1024} sc1"]
    q += [f"buffer_store_dword v{GX+32}, v{GX+33}, {sr(sWS,4)}, s{sPart} offen sc1"]
    return q

def body0(A, vm):
    lg = Counter(15)
    stamp(A, 1)
    if common.OPT.get("padmin"):
        A(f"s_lshl_b32 s0, s2, 2"); A(f"s_add_u32 s0, s0, {WS_FL + 4096}")
        A(f"buffer_store_dword v253, v{vFlagOff}, {sr(sWS,4)}, s0 offen sc1"); vm.issue("pad")
    A(f"s_waitcnt vmcnt({vm.need('e7')})")
    A("s_barrier")
    stamp(A, 2)
    for s in range(2):
        for ins in x_reads(0, s) + tr_reads(s, wregion0(s)):
            A(ins); lg.issue(f"k{s}")
    for s in range(2, 4):
        for ins in x_reads(0, s):
            A(ins); lg.issue(f"x")
    put_elems(A, vm, range(12, 16))
    if common.OPT.get("touch0"):
        A(f"buffer_load_dword v{vDummy}, v{GX+37}, {sr(sX,4)}, 0 offen"); vm.issue("t")
        A(f"buffer_load_dword v{vDummy}, v{GX+38}, {sr(sW,4)}, s{sBase} offen"); vm.issue("t")
        tw = touch_w(); A.many(tw[0]); A(tw[1][0][0]); vm.issue("t")
    put_elems(A, vm, range(16, 20))
    pinned = [[[] for _ in range(4)] for _ in range(36)]
    pre = [[] for _ in range(36)]
    e = 20
    elast = 72 + LEAD - 1
    for ks in range(36):
        pre[ks].append(lambda ks=ks: f"s_waitcnt lgkmcnt({lg.need(f'k{ks}')})")
        j = (ks + 2) // 4
        if ks % 4 == 2:
            last = 8 * j + 7 if j < 9 else elast
            if common.OPT.get("fine"):
                pinned[ks][0] += ["s_memtime s[0:1]", "s_waitcnt lgkmcnt(0)", f"v_writelane_b32 v255, s0, {30+2*j}"]
            pinned[ks][0] += [lambda last=last: f"s_waitcnt vmcnt({vm.need(f'e{last}')})", "s_barrier"]
            if common.OPT.get("fine"):
                pinned[ks][0] += ["s_memtime s[0:1]", "s_waitcnt lgkmcnt(0)", f"v_writelane_b32 v255, s0, {31+2*j}"]
        if ks % 4 >= 2 and j < 9:
            s0 = 2 * (ks % 4 - 2)
            xs = x_reads(j, s0) + x_reads(j, s0 + 1)
            for r in range(4): pinned[ks][r].append((xs[r], "x"))
        for r, ins in enumerate(tr_reads((ks + 2) % 36, wregion0(ks + 2))):
            pinned[ks][r].append((ins, f"k{ks+2}"))
        extra = elast + 1 - e > 2 * (36 - ks) and ks >= 12
        for m in ((0, 1, 2, 3) if ks < 2 else (1, 2, 3) if extra else (1, 3)):
            if e <= elast and (e < 40 or e <= 40 + 8 * (j - 1) + 6):
                if e == 72:
                    sw = switch_ops()
                    pinned[23][3] += sw[0][:2]; pinned[24][0] += sw[0][2:] + sw[1][:2]; pinned[24][2] += sw[2]; pinned[25][1] = sw[1][2:] + pinned[25][1]
                    assert ks == 24
                    for grp, (k, g) in zip(next_ops(), [(25,0), (25,2), (26,2), (27,0), (28,0), (28,2), (29,0)]): pinned[k][g] += grp
                pinned[ks][m] += elem_dma(e); e += 1
    assert e == elast + 1, e
    if not common.OPT.get("notouch"):
        tw = touch_w()
        pinned[29][2] += tw[0]; pinned[30][1] += tw[1]
    pinned[22][2] += [(f"buffer_load_dword v{GX+34}, off, {sr(sDB,4)}, 0 sc1", "ini")]
    pinned[34][1] += [lambda: f"s_waitcnt vmcnt({vm.need('ini')})", f"v_cmp_eq_u32 vcc, 0, v{GX+34}"]
    pinned[34][2] += ["s_cbranch_vccnz L_inispin", "L_iniok:"]
    for i in range(3):
        pinned[4 + i][2] += [(f"global_load_dwordx3 {vr(GX+4*i,3)}, v{GX+36}, {sr(sX,2)} offset:{384*i}", "g"),
                             (f"global_load_dwordx3 {vr(GX+12+4*i,3)}, v{GX+35}, {sr(sLink,2)} offset:{384*i}", "g")]
    pinned[12][3] += [lambda: f"s_waitcnt vmcnt({vm.need('g')})"]
    emit_stream(A, 0, pinned, pre, gate_queue(), 13 * 4, vm, lg, maxpin=2, qend=21 * 4)

def setup_sub(A):
    t = sT
    A(f"""
L_setup:
    s_mov_b64 {sr(sWn,2)}, {sr(sFb,2)}
    s_mov_b32 s{sWn+2}, {WG_SIZE}
    s_movk_i32 s{t+1}, 9216
    s_lshl_b32 s{t+2}, s{t}, 7
    s_mov_b32 s{t+4}, 0
    s_cmp_lt_u32 s{t}, 72
    s_cbranch_scc1 L_setup_fin
    s_cmp_lt_u32 s{t}, 77
    s_cbranch_scc0 L_setup_kv
    s_mov_b64 {sr(sWn,2)}, {sr(S_WQ,2)}
    s_movk_i32 s{t+1}, 1152
    s_sub_u32 s{t+2}, s{t}, 72
    s_lshl_b32 s{t+2}, s{t+2}, 1
    s_lshr_b32 s{t+3}, s{sWave}, 1
    s_add_u32 s{t+2}, s{t+2}, s{t+3}
    s_lshl_b32 s{t+2}, s{t+2}, 7
    s_cmp_lt_u32 s{t+2}, 1152
    s_cselect_b32 s{sWn+2}, {576*1152}, 0
    s_branch L_setup_fin
L_setup_kv:
    s_cmp_eq_u32 s{t}, 77
    s_cbranch_scc0 L_setup_ret
    s_cmp_lt_u32 s{sWave}, 2
    s_cselect_b64 {sr(sWn,2)}, {sr(S_WK,2)}, {sr(S_WV,2)}
    s_sub_u32 s{sWn}, s{sWn}, 3072
    s_subb_u32 s{sWn+1}, s{sWn+1}, 0
    s_movk_i32 s{sWn+2}, {576*36 + 3072}
    s_movk_i32 s{t+1}, 36
    s_mov_b32 s{t+2}, 0
    s_movk_i32 s{t+4}, 3072
L_setup_fin:
    s_lshl_b32 s{nStep}, s{t+1}, 6
    s_lshl_b32 s{nD}, s{t+1}, 4
    s_sub_u32 s{nD}, s{nD}, 1024
    s_and_b32 s{t+3}, s{sWave}, 1
    s_mul_i32 s{t+3}, s{t+3}, s{t+1}
    s_lshl_b32 s{t+3}, s{t+3}, 3
    s_add_u32 s{nOff}, s{t+2}, s{t+3}
    s_mul_i32 s{t+3}, s{sRot}, s{nStep}
    s_add_u32 s{nStart}, s{nOff}, s{t+3}
    v_mad_u32_u24 v{vNext}, v{vR8}, s{t+1}, v{vC16}
    v_add_u32 v{vNext}, s{t+4}, v{vNext}
    s_setpc_b64 {sr(sLink2,2)}
L_setup_ret:
    s_mov_b64 {sr(sWn,2)}, {sr(S_WS,2)}
    s_mov_b32 s{sWn+2}, {WS_SIZE}
    v_mov_b32 v{vNext}, v{vLane16}
    s_setpc_b64 {sr(sLink2,2)}
""")

def special_sub(A):
    sc1 = " sc1"
    t = sT
    A(f"""
L_special:
    s_bfe_u32 s{t}, s{sTab}, 0x80010
    s_call_b64 {sr(sLink2,2)}, L_setup
    s_mov_b32 s{sH+2}, {WS_SIZE}
    s_and_b32 s{t}, s{sTab}, 0xff
    s_cmp_lt_u32 s{t}, 72
    s_cbranch_scc1 L_special_ret
    s_mov_b32 s{sH+2}, 0
    s_cmp_eq_u32 s{t}, 77
    s_cbranch_scc1 L_special_kv
    s_lshl_b32 s{t+1}, s{sTb}, 1
    s_lshr_b32 s{t+2}, s{sWave}, 1
    s_add_u32 s{t+1}, s{t+1}, s{t+2}
    s_mul_i32 s{t+1}, s{t+1}, {2*36*1024}
    s_sub_u32 s{t+2}, s{t}, 72
    s_lshl_b32 s{t+2}, s{t+2}, 13
    s_add_u32 s{t+1}, s{t+1}, s{t+2}
    s_and_b32 s{t+2}, s{sWave}, 1
    s_lshl_b32 s{t+2}, s{t+2}, 11
    s_add_u32 s{t+1}, s{t+1}, s{t+2}
    s_add_u32 s{t+1}, s{t+1}, {WS_Q}
    s_add_u32 s{t+2}, s{t+1}, {36*1024}
    s_mov_b32 s{t+3}, {f2u(QSCALE):#x}
    s_cmp_eq_u32 s{sPar}, 0
    s_cbranch_scc1 L_special_q0
""")
    for i in range(64): A(f"v_mul_f32 v{i}, s{t+3}, v{64+i}")
    A("s_branch L_special_q1")
    A("L_special_q0:")
    for i in range(64): A(f"v_mul_f32 v{i}, s{t+3}, v{i}")
    A("L_special_q1:")
    for i in range(32): A(f"v_cvt_pk_bf16_f32 v{64+i}, v{2*i}, v{2*i+1}")
    for half in range(2):
        if half == 1:
            A(f"s_add_u32 s{t+1}, s{t+1}, 4096")
            A(f"s_add_u32 s{t+2}, s{t+2}, 4096")
            A(f"s_cmp_eq_u32 s{t}, 76")
            A("s_cbranch_scc1 L_special_ret")
        for blk in range(4):
            a, tb2 = blk // 2, blk % 2
            A(f"buffer_store_dwordx4 {vr(64 + blk*8 + half*4, 4)}, v{vLane16}, {sr(sWS,4)}, s{t+1+tb2} offen offset:{a*1024}{sc1}")
    LB = 9 * 16384
    A(f"""
    s_branch L_special_ret
L_special_kv:
    s_barrier
    v_and_b32 v{vT}, 31, v{vLane}
    v_lshrrev_b32 v{vT+1}, 5, v{vLane}
    s_lshr_b32 s{t+2}, s{sWave}, 1
    s_mul_i32 s{t+5}, s{t+2}, {2*KV_VT}
    s_add_u32 s{t+5}, s{t+5}, {LB + KV_V}
    s_and_b32 s{t+3}, s{sWave}, 1
    s_cmp_eq_u32 s{t+3}, 0
    s_cbranch_scc1 L_special_kv0
    v_and_b32 v{vT}, 3, v{vLane}
    v_mul_u32_u24 v{vT}, {KV_VF}, v{vT}
    v_and_b32 v{vT+1}, 4, v{vLane}
    v_lshl_add_u32 v{vT}, v{vT+1}, 2, v{vT}
    v_cmp_eq_u32 vcc, 0, v{vT+1}
    v_add_u32 v{vT}, s{t+5}, v{vT}
    v_mov_b32 v65, 0x3f803f80
    v_cndmask_b32 v64, 0, v65, vcc
    v_add_u32 v{vT}, 576, v{vT}
    v_mov_b32 v{vT+1}, {LB + KV_K2 + 512}
    v_cmp_eq_u32 vcc, 8, v{vLane}
    v_mov_b32 v65, v64
    v_mov_b32 v66, v64
    v_cndmask_b32 v{vT}, v{vT}, v{vT+1}, vcc
    v_mov_b32 v67, v64
    s_mov_b64 exec, 0x1ff
    ds_write_b128 v{vT}, v[64:67]
    s_mov_b64 exec, -1
    s_branch L_special_kv1
L_special_kv0:
""")
    for i in range(32): A(f"v_cvt_pk_bf16_f32 v{64+i}, v{2*i}, v{2*i+1}")
    A(f"""
    s_lshl_b32 s{t+3}, s{t+2}, 11
    s_add_u32 s{t+3}, s{t+3}, {LB}
    s_lshl_b32 s{t+4}, s{t+2}, 3
    s_add_u32 s{t+4}, s{t+4}, {LB + KV_K2}    ; K2 base
    v_lshrrev_b32 v{vT+2}, 4, v{vT}
    v_mul_u32_u24 v{vT+2}, {KV_VF}, v{vT+2}
    v_bfe_u32 v{vT+3}, v{vT}, 2, 1
    v_mul_u32_u24 v{vT+3}, 288, v{vT+3}
    v_add_u32 v{vT+2}, v{vT+2}, v{vT+3}
    v_and_b32 v{vT+3}, 3, v{vT}
    v_lshl_add_u32 v{vT+2}, v{vT+3}, 1, v{vT+2}
    v_and_b32 v{vT+3}, 8, v{vT}
    v_add3_u32 v{vT+2}, v{vT+2}, v{vT+3}, s{t+5}
    v_lshl_add_u32 v{vT+3}, v{vT+1}, 7, v{vT+2}   ; d = 8hh + i
    v_add_u32 v{vT+4}, s{t+3}, v{vLane16}
    v_add_u32 v{vT+5}, s{t+4}, v{vLane16}
""")
    for tb2 in range(2):
        b0 = 64 + tb2 * 8
        A(f"ds_write_b128 v{vT+4}, {vr(b0,4)} offset:{tb2*1024}")
        for i in range(8):
            op = "ds_write_b16" if i % 2 == 0 else "ds_write_b16_d16_hi"
            A(f"{op} v{vT+3}, v{b0+4+i//2} offset:{tb2*KV_VT + i*16}")
    A("s_mov_b32 exec_hi, 0")
    for tb2 in range(2):
        b1 = 64 + (2 + tb2) * 8
        A(f"ds_write_b32 v{vT+5}, v{b1} offset:{tb2*4}")
        for i in range(2):
            op = "ds_write_b16" if i % 2 == 0 else "ds_write_b16_d16_hi"
            A(f"{op} v{vT+2}, v{b1+4} offset:{tb2*KV_VT + (16+i)*16}")
    A(f"""
    s_mov_b64 exec, -1
L_special_kv1:
    s_lshl_b32 s{t+2}, s{sWave}, 10
    v_add_u32 v{vT}, s{t+2}, v{vLane16}
    v_add_u32 v{vT+1}, {LB}, v{vT}
    v_cmp_gt_u32 vcc, {KV_GS - 8192}, v{vT}
    v_mov_b32 v{vT+2}, 0x40000000
    s_mul_i32 s{t+1}, s{sTb}, {KV_GS}
    v_cndmask_b32 v{vT+2}, v{vT+2}, v{vT}, vcc
    s_add_u32 s{t+1}, s{t+1}, {WS_KV}
    s_add_u32 s{t+2}, s{t+1}, 4096
    s_add_u32 s{t+3}, s{t+1}, 8192
    s_waitcnt lgkmcnt(0)
    s_barrier
    ds_read_b128 v[64:67], v{vT+1}
    ds_read_b128 v[68:71], v{vT+1} offset:4096
    ds_read_b128 v[72:75], v{vT+1} offset:8192
    s_waitcnt lgkmcnt(0)
    buffer_store_dwordx4 v[64:67], v{vT}, {sr(sWS,4)}, s{t+1} offen{sc1}
    buffer_store_dwordx4 v[68:71], v{vT}, {sr(sWS,4)}, s{t+2} offen{sc1}
    buffer_store_dwordx4 v[72:75], v{vT+2}, {sr(sWS,4)}, s{t+3} offen{sc1}
L_special_ret:
    s_nop 1
    s_setpc_b64 {sr(sLink,2)}
""")

def spin(A, soff, name, back):
    A(f"""
L_{name}:
    s_mov_b32 s{sT+5}, 0x40000
L_{name}_l:
    {poll_ld(soff)}
    s_sub_u32 s{sT+5}, s{sT+5}, 1
    s_cbranch_scc1 {back}
    s_waitcnt vmcnt(0)
""")
    A.many(flag_min())
    A(f"""
    v_cmp_eq_u32 vcc, 0, v{vPoll}
    s_cbranch_vccz {back}
    s_sleep 8
    s_branch L_{name}_l
""")

def phase1(A):
    t = sT
    stamp(A, 0)
    pref = "" if common.OPT.get("nopref") else f"""
    s_mov_b64 {sr(sH,2)}, {sr(sLink,2)}
    s_mov_b32 s{sH+2}, L_jobtab-L_pc1
    s_mov_b32 s{sH+3}, {SRD3}
    v_lshrrev_b32 v2, 4, v0
    v_and_b32 v3, 15, v0
    v_lshlrev_b32 v2, 7, v2
    v_lshl_add_u32 v2, v3, 28, v2
    s_lshr_b32 s{t+1}, s2, 3
    s_lshl_b32 s{t+1}, s{t+1}, 11
    buffer_load_dword v4, v2, {sr(sH,4)}, s{t+1} offen
"""
    A(f"""
    s_cmp_ge_u32 s2, 256
    s_cbranch_scc1 L_end
    s_load_dwordx16 s[4:19], s[0:1], 0
    s_load_dwordx8 s[20:27], s[0:1], 64
    s_load_dwordx2 s[28:29], s[0:1], 96
    s_getpc_b64 {sr(sLink,2)}
L_pc1:
    s_bfe_u32 s{sXq}, s2, 0x20001
    s_lshr_b32 s{sQi}, s2, 6
    s_lshl_b32 s{t}, s{sXq}, 2
    s_add_u32 s{t}, s{t}, s{sQi}            ; jg
    s_lshl_b32 s{t+1}, s{t}, 3
    s_add_u32 s{t+1}, s{t+1}, L_jobtab-L_pc1
    s_load_dwordx2 {sr(sTab,2)}, {sr(sLink,2)}, s{t+1}
    {pref}
    v_lshrrev_b32 v1, 6, v0
    v_and_b32 v{vLane}, 63, v0
    v_readfirstlane_b32 s{sWave}, v1
    v_lshlrev_b32 v{vLane16}, 4, v{vLane}
    s_and_b32 s{t}, s{t}, 11
    s_cmp_eq_u32 s{t}, 3
    s_cselect_b32 s{sSpecial}, 1, 0
    s_and_b32 s{t}, s2, 1
    s_lshl_b32 s{t}, s{t}, 3
    s_bfe_u32 s{t+1}, s2, 0x30003
    s_add_u32 s{sTb}, s{t}, s{t+1}
    s_lshl_b32 s{t}, s{sQi}, 1
    s_add_u32 s{t}, s{t}, s{t+1}
    s_cmp_ge_u32 s{t}, 9
    s_cselect_b32 s{t+1}, 9, 0
    s_sub_u32 s{t+5}, s{t}, s{t+1}
    {"s_mov_b32 s%d, 0" % (t+5) if common.OPT.get("norot") else ""}
    s_sub_u32 s{sRot}, s{t+5}, 1
    v_lshrrev_b32 v{vR8}, 3, v{vLane}
    v_and_b32 v1, 7, v{vLane}
    s_lshl_b32 s{sM0}, s{sWave}, 12
    s_lshr_b32 s{t+2}, s{sWave}, 1
    s_and_b32 s{t+3}, s{sWave}, 1
    v_and_b32 v2, 2, v{vR8}
    v_xor_b32 v2, v1, v2
    s_lshl_b32 s{t+4}, s{t+2}, 2
    v_xor_b32 v2, s{t+4}, v2
    v_lshlrev_b32 v{vC16}, 4, v2
    v_lshrrev_b32 v2, 1, v{vR8}
    v_xor_b32 v2, v1, v2
    v_lshlrev_b32 v2, 4, v2
    v_mul_u32_u24 v3, 1152, v{vR8}
    v_add_u32 v{vXd}, v2, v3
    v_xor_b32 v2, 64, v{vXd}
    v_add_u32 v{vXd+1}, {8*1152-1024}, v2
    v_add_u32 v{vXd+2}, {2*(8*1152-1024)}, v{vXd}
    v_add_u32 v{vXd+3}, {3*(8*1152-1024)}, v2
    s_lshl_b32 s{t+4}, s{sTb}, 2
    s_add_u32 s{t+4}, s{t+4}, s{sWave}
    s_mul_i32 s{sXb}, s{t+4}, {32*1152}
    s_lshl_b32 s{t+5}, s{t+5}, 7
    s_add_u32 s{sXc}, s{sXb}, s{t+5}
    s_mov_b32 s{sX+2}, {2048*1152}
    s_mov_b32 s{sX+3}, {SRD3}
    s_mov_b32 s{sW+3}, s{sX+3}
    s_mov_b32 s{sW+2}, {WG_SIZE}
    s_movk_i32 s{t+4}, 9216
    v_mad_u32_u24 v{vDma}, v{vR8}, s{t+4}, v{vC16}
    s_mov_b32 s{nD}, {16*9216-1024}
    s_mov_b32 s{sStep}, {64*9216}
    v_add_u32 v{vDma+1}, s{nD}, v{vDma}
    s_mul_i32 s{sRowOff}, s{t+3}, {8*9216}
    v_add_u32 v{vDma+2}, s{nD}, v{vDma+1}
    s_mul_i32 s{nStart}, s{sRot}, s{sStep}
    v_add_u32 v{vDma+3}, s{nD}, v{vDma+2}
    s_add_u32 s{sXend}, s{sXb}, 1152
    s_waitcnt lgkmcnt(0)
    s_mov_b64 {sr(sX,2)}, {sr(S_X,2)}
""")
    vm = Counter(63)
    if common.OPT.get("fine"): stamp(A, 27)
    put_elems(A, vm, range(0, 4))
    A(f"""
    s_cmp_lt_u32 s{sWave}, 2
    s_cselect_b64 {sr(sFb,2)}, {sr(S_WG,2)}, {sr(S_WU,2)}
    s_cselect_b64 {sr(sW,2)}, {sr(S_WG,2)}, {sr(S_WU,2)}
    s_bfe_u32 s{t}, s{sTab}, 0x80008
    s_lshl_b32 s{t+1}, s{t}, 7
    s_add_u32 s{sBase}, s{t+1}, s{sRowOff}
    s_add_u32 s{sOff}, s{sBase}, s{nStart}
    v_mov_b32 v{vF}, v{vDma}
    s_cmp_eq_u32 s{sSpecial}, 0
    s_cbranch_scc0 L_sp_first
L_sp_first_ret:
""")
    put_elems(A, vm, range(4, 12))
    if common.OPT.get("fine"): stamp(A, 28)
    A(f"""
    s_mul_i32 s{sEnd}, s{sStep}, 9
    s_add_u32 s{sEnd}, s{sEnd}, s{sBase}
    s_cmp_eq_u32 s{sSpecial}, 0
    s_cbranch_scc0 L_sp_skip
    s_bfe_u32 s{t}, s{sTab}, 0x80010
    s_lshl_b32 s{t+1}, s{t}, 7
    s_add_u32 s{nOff}, s{t+1}, s{sRowOff}
    s_add_u32 s{nStart}, s{nStart}, s{nOff}
    s_mov_b32 s{nStep}, s{sStep}
    s_mov_b64 {sr(sWn,2)}, {sr(sFb,2)}
    s_mov_b32 s{sWn+2}, s{sW+2}
    v_mov_b32 v{vNext}, v{vF}
L_sp_skip:
""")
    W = sPar
    A(f"""
    s_mov_b64 {sr(sWS,2)}, {sr(S_WS,2)}
    s_mov_b32 s{sWS+2}, {WS_SIZE}
    s_mov_b32 s{sWS+3}, {SRD3}
    s_mov_b64 {sr(sDB,2)}, {sr(S_DBG,2)}
    s_movk_i32 s{sDB+2}, 256
    s_mov_b32 s{sDB+3}, {SRD3}
    s_mov_b32 s{sOUT+2}, {2048*1152}
    s_mov_b32 s{sOUT+3}, {SRD3}
    s_mov_b64 {sr(sH,2)}, {sr(S_WS,2)}
    s_mov_b32 s{sH+2}, {WS_SIZE}
    s_mov_b32 s{sH+3}, {SRD3}
    s_mov_b64 {sr(sPD,2)}, {sr(S_WS,2)}
    s_mov_b32 s{sPD+3}, {SRD3}
    s_mov_b32 s{sP+3}, {SRD3}
    s_mov_b32 s{sC2}, {f2u(GC2):#x}
    v_mov_b32 v{vC1}, {f2u(GC1):#x}
    s_mov_b32 s{sWn+3}, {SRD3}
    s_lshl_b32 s{W}, s2, 2
    s_add_u32 s{W}, s{W}, s{sWave}
    s_lshr_b32 s{t+2}, s{sWave}, 1
    s_and_b32 s{t+3}, s{sWave}, 1
    s_lshl_b32 s{t}, s{sTb}, 1
    s_add_u32 s{t}, s{t}, s{t+2}
    s_mul_i32 s{sHbase}, s{t}, {HO_G}
    s_lshl_b32 s{t}, s{t+3}, 12
    s_add_u32 s{sHbase}, s{sHbase}, s{t}
    v_and_b32 v32, 3, v{vLane}              ; c
    v_lshrrev_b32 v33, 1, v32
    v_and_b32 v32, 1, v32
    v_lshl_add_u32 v32, v32, 1, v33         ; perm(c)
    v_lshlrev_b32 v32, 3, v32
    v_bfe_u32 v33, v{vLane}, 2, 2           ; r4
    v_lshl_add_u32 v32, v33, 7, v32
    v_bfe_u32 v34, v{vLane}, 4, 1
    v_lshrrev_b32 v35, 5, v{vLane}          ; hh
    v_lshl_add_u32 v36, v34, 5, v32
    v_lshl_add_u32 v36, v35, 10, v36
    s_add_u32 s{t}, s{sM0}, {9*16384}
    v_add_u32 v{vPtr}, s{t}, v36
    v_lshrrev_b32 v33, 1, v33
    v_lshl_add_u32 v33, v34, 1, v33
    s_lshl_b32 s{t}, s{t+3}, 1
    v_xor_b32 v33, s{t}, v33
    v_lshl_add_u32 v32, v33, 5, v32
    v_lshl_add_u32 v32, v34, 13, v32
    v_lshl_add_u32 v{vTR}, v35, 12, v32
    v_xor_b32 v{vTR+1}, 32, v{vTR}
    v_add_u32 v{vTR+2}, {12*4096}, v{vTR}
    v_add_u32 v{vTR+3}, {12*4096}, v{vTR+1}
    v_add_u32 v{vTR+4}, {24*4096}, v{vTR}
    v_add_u32 v{vTR+5}, {24*4096}, v{vTR+1}
    v_and_b32 v37, 31, v{vLane}             ; n
    v_bfe_u32 v33, v{vLane}, 1, 3
    v_xor_b32 v33, v33, v35
    v_lshlrev_b32 v33, 4, v33
    v_lshl_add_u32 v32, v37, 7, v33
    s_lshl_b32 s{t}, s{t+2}, 13
    v_add_u32 v{XR}, s{t}, v32
    v_xor_b32 v{XR+1}, 32, v{XR}
    v_xor_b32 v{XR+2}, 64, v{XR}
    v_xor_b32 v{XR+3}, 0x60, v{XR}
""")
    for seg in (1, 2):
        for s in range(4): A(f"v_add_u32 v{XR+seg*4+s}, {seg*57344}, v{XR+s}")
    A(f"""
    v_mul_u32_u24 v{vQa}, 1152, v37
    v_lshl_add_u32 v{vQa}, v35, 4, v{vQa}
    v_lshlrev_b32 v{vLane4}, 2, v{vLane}
    v_bfe_u32 v32, v{vLane}, 2, 1
    v_bfe_u32 v33, v{vLane}, 3, 1
    v_lshlrev_b32 v32, 3, v32
    v_lshl_add_u32 v32, v33, 2, v32
    v_and_b32 v33, 0x13, v{vLane}
    v_or_b32 v32, v32, v33
    v_mul_u32_u24 v33, 18, v35
    v_cmp_gt_u32 vcc, 18, v37
    v_add_u32 v32, v32, v33
    v_and_b32 v33, 27, v37
    v_cndmask_b32 v32, 37, v32, vcc
    v_cmp_ne_u32 vcc, 18, v33
    v_mul_u32_u24 v{GX+35}, 12, v37
    s_lshl_b32 s{t+5}, s{sTb}, 2
    s_add_u32 s{t+5}, s{t+5}, s{sXq}
    s_lshl_b32 s{t+5}, s{t+5}, 2
    s_add_u32 s{t+5}, s{t+5}, s{sQi}
    s_lshl_b32 s{t+5}, s{t+5}, 2
    s_add_u32 s{t+5}, s{t+5}, s{sWave}
    s_lshl_b32 s{t+5}, s{t+5}, 1
    v_cndmask_b32 v32, 36, v32, vcc
    v_lshlrev_b32 v{vAV}, 4, v32
    v_add_u32 v5, s{t+5}, v35               ; token
    v_mul_u32_u24 v6, 1152, v5
    v_add_u32 v{GX+36}, v6, v{GX+35}
    v_cmp_eq_u32 vcc, 0, v37
    v_lshlrev_b32 v5, 2, v5
    v_add_u32 v5, {WS_G}, v5
    v_mov_b32 v33, 0x40000000
    v_cndmask_b32 v{GX+26}, v33, v5, vcc
    v_lshl_add_u32 v{GX+27}, v35, 30, v{vLane16}
    v_mov_b32 v{GX+28}, -1
    v_mov_b32 v{GX+29}, -1
    v_mov_b32 v{GX+30}, -1
    v_mov_b32 v{GX+31}, -1
    v_mov_b32 v{GX+32}, 0
    v_cmp_eq_u32 vcc, 0, v0
    v_mov_b32 v{vOne}, 1
    s_mov_b32 s{sSkip}, 1
    v_cndmask_b32 v{vFlagOff}, v33, 0, vcc
    s_lshl_b32 s{t}, s{sTb}, 2
    s_add_u32 s{t}, s{t}, {F0}
    s_bfe_u32 s{t+1}, s{sTab}, 0x80008
    s_cmp_eq_u32 s{t+1}, 77
    s_cselect_b32 s{sPub}, s{t}, {FOOB}
    ; pack params: ks = W/3, a = W%3
    s_mul_i32 s{t}, s{W}, 21846
    s_lshr_b32 s{t}, s{t}, 16
    s_mul_i32 s{t+1}, s{t}, 3
    s_sub_u32 s{t+1}, s{W}, s{t+1}
    s_mul_i32 s{sPd0}, s{t+1}, {2*WP_T}
    s_mul_i32 s{t+2}, s{t}, 3072
    s_add_u32 s{sPd0}, s{sPd0}, s{t+2}
    s_add_u32 s{sPd0}, s{sPd0}, {WS_WP}
    s_add_u32 s{sPd1}, s{sPd0}, {WP_T}
    s_mov_b32 s{sPD+2}, 0
    s_mul_i32 s{t+1}, s{t+1}, 384
    v_and_b32 v32, 7, v{vLane}
    v_lshlrev_b32 v32, 4, v32
    s_movk_i32 s{t+4}, 1152
    v_mad_u32_u24 v{vPsrc}, v{vR8}, s{t+4}, v32
    s_mov_b64 {sr(sP,2)}, {sr(S_WD,2)}
    s_mov_b32 s{sP+2}, {4608*1152}
    s_mul_i32 s{sPs0}, s{t}, {16*1152}
    s_movk_i32 s{t+3}, {8*1152}
    s_cmp_lt_u32 s{t}, 288
    s_cbranch_scc1 L_pk_done
    s_mov_b64 {sr(sP,2)}, {sr(S_WO,2)}
    s_mov_b32 s{sP+2}, {576*1152}
    s_sub_u32 s{t+2}, s{t}, 288
    s_mul_i32 s{sPs0}, s{t+2}, {18*1152}
    s_cmp_lt_u32 s{t}, 320
    s_cbranch_scc1 L_pk_done
    s_sub_u32 s{t+2}, s{t}, 320
    s_mul_i32 s{sPs0}, s{t+2}, {144*1152}
    s_add_u32 s{sPs0}, s{sPs0}, {16*1152}
    s_mov_b32 s{t+3}, {72*1152}
    v_lshrrev_b32 v34, 1, v{vR8}
    v_mul_u32_u24 v34, 18, v34
    v_and_b32 v36, 1, v{vR8}
    v_add_u32 v34, v34, v36
    v_mad_u32_u24 v{vPsrc}, v34, s{t+4}, v32
    s_cmp_lt_u32 s{t}, 324
    s_cselect_b32 s{sP+2}, s{sP+2}, 0
L_pk_done:
    s_add_u32 s{sPs0}, s{sPs0}, s{t+1}
    s_add_u32 s{sPs1}, s{sPs0}, s{t+3}
    s_sub_u32 s{sPs1}, s{sPs1}, 1024
    s_mov_b64 {sr(sLink,2)}, {sr(S_GW,2)}
""")
    g64, head, nt = t, t + 1, t + 2
    A(f"""
    s_and_b32 s{t+3}, s{sXq}, 1
    s_lshl_b32 s{g64}, s{sTb}, 1
    s_add_u32 s{g64}, s{g64}, s{t+3}
    s_lshr_b32 s{t+3}, s{sXq}, 1            ; nhalf
    s_lshl_b32 s{head}, s{t+3}, 2
    s_add_u32 s{head}, s{head}, s{sQi}
    s_lshl_b32 s{head}, s{head}, 2
    s_add_u32 s{head}, s{head}, s{sWave}
    s_mul_i32 s{t+3}, s{t+3}, 3
    s_mul_i32 s{t+4}, s{sWave}, {KM}
    s_cmp_eq_u32 s{sQi}, 3
    s_cselect_b32 s{nt}, s{sWave}, s{sQi}
    s_cselect_b32 s{t+4}, {4*KM}, s{t+4}
    s_add_u32 s{nt}, s{nt}, s{t+3}
    ; W side
    s_mul_i32 s{t+3}, s{nt}, {WP_T}
    s_add_u32 s{t+3}, s{t+3}, {WS_WP}
    s_mul_i32 s{t+5}, s{t+4}, 3072
    s_add_u32 s{t+5}, s{t+5}, s{t+3}
    s_add_u32 s{sWp}, s{S_WS}, s{t+5}
    s_addc_u32 s{sWp+1}, s{S_WS+1}, 0
    s_mul_i32 s{t+5}, s{sWave}, {9*3072}
    s_add_u32 s{t+5}, s{t+5}, s{t+3}
    s_add_u32 s{t+5}, s{t+5}, {288*3072}
    s_add_u32 s{sWo}, s{S_WS}, s{t+5}
    s_addc_u32 s{sWo+1}, s{S_WS+1}, 0
    ; h side
    s_mul_i32 s{t+3}, s{g64}, {HO_G}
    s_lshl_b32 s{t+5}, s{t+4}, 11
    s_add_u32 s{t+5}, s{t+5}, s{t+3}
    s_add_u32 s{sHp}, s{S_WS}, s{t+5}
    s_addc_u32 s{sHp+1}, s{S_WS+1}, 0
    s_mul_i32 s{t+5}, s{sWave}, {9*2048}
    s_add_u32 s{t+5}, s{t+5}, s{t+3}
    s_add_u32 s{t+5}, s{t+5}, {288*2048}
    s_add_u32 s{sHo}, s{S_WS}, s{t+5}
    s_addc_u32 s{sHo+1}, s{S_WS+1}, 0
    s_lshl_b32 s{sO1}, s{head}, 11
    s_add_u32 s{sO1}, s{sO1}, s{t+3}
    s_add_u32 s{sO1}, s{sO1}, {288*2048}
    s_lshr_b32 s{sO2}, s{head}, 3
    s_lshl_b32 s{sO2}, s{sO2}, 11
    s_add_u32 s{sO2}, s{sO2}, s{t+3}
    s_bfe_u32 s{t+5}, s{head}, 0x10002
    s_lshl_b32 s{t+5}, s{t+5}, 9
    s_add_u32 s{sO2}, s{sO2}, s{t+5}
    s_lshl_b32 s{t+5}, s{sWave}, 2
    s_add_u32 s{sO2}, s{sO2}, s{t+5}
    s_add_u32 s{sO2}, s{sO2}, {320*2048}
    ; q / g offsets
    s_mul_i32 s{sQoff}, s{g64}, {2*36*1024}
    s_mul_i32 s{t+5}, s{head}, 18
    s_lshr_b32 s{t+5}, s{t+5}, 3
    s_lshl_b32 s{t+5}, s{t+5}, 9
    s_add_u32 s{sQoff}, s{sQoff}, s{t+5}
    s_add_u32 s{sQoff}, s{sQoff}, {WS_Q}
    s_lshl_b32 s{sGoff}, s{g64}, 8
    s_add_u32 s{sGoff}, s{sGoff}, {WS_G}
    s_mul_i32 s{sPart}, s{g64}, 6
    s_add_u32 s{sPart}, s{sPart}, s{nt}
    s_mul_i32 s{sPart}, s{sPart}, {PART_T}
    s_add_u32 s{sPart}, s{sPart}, {WS_PART}
    s_lshl_b32 s{t+3}, s{g64}, 1
    s_lshr_b32 s{t+5}, s{sWave}, 1
    s_add_u32 s{t+3}, s{t+3}, s{t+5}
    s_mul_i32 s{sOutOff}, s{t+3}, {32*1152}
    s_mul_i32 s{t+5}, s{nt}, 192
    s_add_u32 s{sOutOff}, s{sOutOff}, s{t+5}
    s_and_b32 s{t+5}, s{sWave}, 1
    s_mul_i32 s{t+5}, s{t+5}, 96
    s_add_u32 s{sOutOff}, s{sOutOff}, s{t+5}
    s_lshl_b32 s{t+5}, s{sQi}, 2
    s_add_u32 s{t+5}, s{t+5}, s{sWave}
    s_sub_u32 s{t+5}, s{t+5}, 12
    s_cmp_lt_u32 s{t+5}, 3
    s_cselect_b32 s{t+5}, 0, 64
    v_mov_b32 v32, 24576
    v_cmp_eq_u32 vcc, s{t+5}, v{vLane}
    s_nop 1
    v_cndmask_b32 v{GX+33}, v33, v32, vcc
""")
    A(f"""
    s_bfe_u32 s{t}, s2, 0x30003             ; a
    s_and_b32 s{t+1}, s{sWave}, 1
    s_mul_i32 s{t+2}, s{t}, 72
    s_mul_i32 s{t+3}, s{t+1}, 28
    s_add_u32 s{t+2}, s{t+2}, s{t+3}
    s_mul_i32 s{sTch}, s{t+2}, 9216
    v_mul_u32_u24 v32, 9216, v{vLane}
    v_cmp_gt_u32 vcc, 36, v{vLane}
    s_lshl_b32 s{t+2}, s{sQi}, 1
    s_sub_u32 s{t+2}, s{t+2}, 1
    v_cndmask_b32 v{vTW}, v33, v32, vcc
    s_cselect_b32 s{t+2}, 8, s{t+2}         ; (8+2b) mod 9
    s_lshl_b32 s{t+2}, s{t+2}, 3
    s_add_u32 s{t+2}, s{t+2}, s{t}
    s_lshl_b32 s{t+2}, s{t+2}, 1
    s_sub_u32 s{t+2}, s{t+2}, s{t+1}
    s_mul_i32 s{t+2}, s{t+2}, {4*9216}      ; (64c + 8a - 4(w&1)) rows
    v_cmp_gt_u32 vcc, 4, v{vLane}
    v_add_u32 v32, s{t+2}, v32
    s_sub_u32 s{t+2}, s{t}, 1
    v_cndmask_b32 v{GX+38}, v33, v32, vcc
    s_cselect_b32 s{t+2}, 8, s{t+2}         ; (a+8) mod 9
    s_lshl_b32 s{t+2}, s{t+2}, 7
    s_lshl_b32 s{t+3}, s{sTb}, 2
    s_add_u32 s{t+3}, s{t+3}, s{sQi}
    s_lshl_b32 s{t+3}, s{t+3}, 2
    s_add_u32 s{t+3}, s{t+3}, s{sWave}
    s_mul_i32 s{t+3}, s{t+3}, {8*1152}
    s_add_u32 s{t+2}, s{t+2}, s{t+3}
    v_mul_u32_u24 v32, 1152, v{vLane}
    v_cmp_gt_u32 vcc, 8, v{vLane}
    v_add_u32 v32, s{t+2}, v32
    v_and_b32 v34, 3, v{vLane}
    v_cndmask_b32 v{GX+37}, v33, v32, vcc
    s_cmp_eq_u32 s{W}, 771
    s_cbranch_scc1 L_flaginit
L_flaginit_ret:
""")
    if common.OPT.get("fine"): stamp(A, 29)
    body0(A, vm)
    A(f"""
L_loop:
    s_cmp_eq_u32 s{sSpecial}, 0
    s_cbranch_scc0 L_sp_odd
L_odd:
""")
    body(A, True)
    A(f"""
    s_cmp_eq_u32 s{sSpecial}, 0
    s_cbranch_scc0 L_sp_even
L_even:
""")
    body(A, False)
    A(f"""
    s_bfe_u32 s{t}, s{sTab}, 0x80008
    s_cmp_eq_u32 s{t}, 0xff
    s_cbranch_scc0 L_loop
L_p1_final:
""")

def phase1_tail(A):
    A(f"""
L_sp_odd:
    s_mov_b32 s{sPar}, 0
    s_call_b64 {sr(sLink,2)}, L_special
    s_branch L_odd
L_sp_even:
    s_bfe_u32 s{sT}, s{sTab}, 0x80008
    s_cmp_eq_u32 s{sT}, 0xff
    s_cbranch_scc1 L_last_odd
    s_mov_b32 s{sPar}, 1
    s_call_b64 {sr(sLink,2)}, L_special
    s_branch L_even
""")
    A(f"""
L_sp_first:
    s_call_b64 {sr(sLink2,2)}, L_setup
""")
    for g in switch_ops(): A.many(g)
    A(f"""
    s_bfe_u32 s{sT}, s{sTab}, 0x80010
    s_call_b64 {sr(sLink2,2)}, L_setup
    s_add_u32 s{sXend}, s{sXb}, 1152
    s_branch L_sp_first_ret
""")
    setup_sub(A)
    A("L_last_odd:")
    A("s_nop 7")
    for i in range(64): A(f"v_mov_b32 v{i}, v{64+i}")
    A(f"s_mov_b32 s{sH+2}, {WS_SIZE}")
    A("s_branch L_p1_final")
    special_sub(A)
    spin(A, f"s{sPollOff}", "kvspin_o", "L_kvok_o")
    spin(A, f"s{sPollOff}", "kvspin_e", "L_kvok_e")
    A(f"""
L_flaginit:
    v_cmp_lt_u32 vcc, 3, v{vLane}
    v_mov_b32 v12, 0
    v_mov_b32 v13, 0
    v_cndmask_b32 v8, 0, 1, vcc
    v_mov_b32 v14, 0
    v_mov_b32 v15, 0
    v_mov_b32 v9, v8
    v_mov_b32 v10, v8
    v_mov_b32 v11, v8
    s_mov_b32 s{sT}, {WS_FL}
    buffer_store_dwordx4 v[8:11], v{vLane16}, {sr(sWS,4)}, s{sT} offen sc1
    buffer_store_dwordx4 v[12:15], v{vLane16}, {sr(sWS,4)}, s{sT} offen offset:1024 sc1
    buffer_store_dwordx4 v[12:15], v{vLane16}, {sr(sWS,4)}, s{sT} offen offset:2048 sc1
    s_waitcnt vmcnt(0)
    buffer_store_dword v{vOne}, off, {sr(sDB,4)}, 0 sc1
    s_branch L_flaginit_ret
L_inispin:
    s_mov_b32 s{sT+5}, 0x40000
L_inispin_l:
    buffer_load_dword v{GX+34}, off, {sr(sDB,4)}, 0 sc1
    s_sub_u32 s{sT+5}, s{sT+5}, 1
    s_cbranch_scc1 L_iniok
    s_waitcnt vmcnt(0)
    v_cmp_eq_u32 vcc, 0, v{GX+34}
    s_cbranch_vccz L_iniok
    s_sleep 8
    s_branch L_inispin_l
""")

def jobtab(A):
    tab, _, _ = job_table()
    A(".p2align 3")
    A(".type L_jobtab,@object")
    A("L_jobtab:")
    for b in tab:
        A(".byte " + ", ".join(str(x) for x in b))
```

```python
import math, struct

def f2u(x):
    return struct.unpack("<I", struct.pack("<f", x))[0]

class Asm:
    def __init__(self):
        self.lines = []
    def __call__(self, s):
        for l in s.split("\n"):
            l = l.strip()
            if not l: continue
            if l.endswith(":") or l.startswith("."):
                self.lines.append(l)
            else:
                self.lines.append("    " + l)
    def many(self, ls):
        for l in ls: self(l)
    def text(self):
        return "\n".join(self.lines) + "\n"

def vr(b, n=1, f="v"):
    return f"{f}{b}" if n == 1 else f"{f}[{b}:{b+n-1}]"
def sr(b, n=1):
    return vr(b, n, "s")
def ar(b, n=1):
    return vr(b, n, "a")

def mfma16(d, a, b, c):
    return f"v_mfma_f32_32x32x16_bf16 {d}, {a}, {b}, {c}"
def mfma8(d, a, b, c):
    return f"v_mfma_f32_32x32x8_bf16 {d}, {a}, {b}, {c}"

def cost(ins):
    op = ins.split()[0]
    if op.startswith(("v_mfma_f32_32x32x16", "v_mfma_f32_16x16x32")): return 8
    if op.startswith("v_mfma"): return 4
    if op in ("v_exp_f32", "v_rcp_f32", "v_log_f32", "v_rsq_f32", "v_sqrt_f32"): return 8
    if op.startswith(("buffer_", "v_permlane")): return 8
    return 4

class Counter:
    def __init__(self, maxv, init=()):
        self.ops = list(init); self.maxv = maxv
    def issue(self, tag): self.ops.append(tag)
    def need(self, tag):
        idx = max(i for i, t in enumerate(self.ops) if t == tag)
        return min(len(self.ops) - 1 - idx, self.maxv)

HO_G   = 324 * 2048
WS_HO  = 0
WS_WP  = 0x1500000
WP_T   = 324 * 3072
WS_Q   = 0x1B00000
WS_KV  = 0x1E00000
KV_GS  = 9600
KV_K2  = 4096
KV_V   = 4096 + 528
KV_VT  = 1216
KV_VF  = 608
WS_G   = 0x1E40000
WS_FL  = 0x1E50000
WS_PART= 0x1F00000
WS_SIZE= 0x2600000
QSCALE = (18 ** -0.5) * math.log2(math.e)
GC1 = -2.0 * math.sqrt(2.0 / math.pi) * math.log2(math.e)
GC2 = GC1 * 0.044715

STAMPS = False
WS_ST = 0x2400000
vStamp = 255
OPT = {}
PART_T = 24576 + 128
def stamp(A, idx):
    import common
    if not common.STAMPS: return
    r = 76 if idx == 0 else 0
    if idx == 0: A("v_mov_b32 v252, 3")
    if idx == "next":
        A("v_readfirstlane_b32 s0, v252")
        A("v_add_u32 v252, 1, v252")
        A("s_mov_b32 m0, s0")
        idx = "m0"
    A(f"s_memtime s[{r}:{r+1}]")
    A("s_waitcnt lgkmcnt(0)")
    A(f"v_writelane_b32 v{vStamp}, s{r}, {idx}")
    A(f"s_memrealtime s[{r}:{r+1}]")
    A("s_waitcnt lgkmcnt(0)")
    A(f"v_writelane_b32 v{vStamp-2}, s{r}, {idx}")
def stamp_set(A, n):
    import common
    if common.STAMPS: A(f"v_mov_b32 v252, {n}")
def stamp_flush(A, srd, vlane4, swave):
    import common
    if not common.STAMPS: return
    A(f"""
    s_lshl_b32 s0, s2, 2
    s_add_u32 s0, s0, s{swave}
    s_lshl_b32 s0, s0, 9
    s_add_u32 s0, s0, {WS_ST}
    buffer_store_dword v{vStamp}, v{vlane4}, s[{srd}:{srd+3}], s0 offen
    buffer_store_dword v{vStamp-2}, v{vlane4}, s[{srd}:{srd+3}], s0 offen offset:256
""")

KM, KH = 59, 52
def job_table():
    starts = [0] + [KH + KM * w for w in range(4)]
    def pos(ks): return ks - max(s for s in starts if s <= ks)
    order = sorted(range(72), key=lambda f: (min(pos(4*f+i) for i in range(4)), f))
    special = {7: [77, 72, 73], 15: [74, 75, 76]}
    tab = {g: list(special.get(g, [])) for g in range(16)}
    it = iter(order)
    for rnd in range(5):
        for g in range(16):
            if g in special:
                if rnd == 3: tab[g].append(next(it))
            else:
                tab[g].append(next(it))
    rounds = {}
    for g in range(16):
        for r, j in enumerate(tab[g]):
            if j < 72: rounds[j] = r
    out = []
    for g in range(16):
        b = [0xFE] + tab[g] + [0xFF] * 8
        out.append(b[:8])
    bits = max(rounds[ks // 4] for ks in range(288) if pos(ks) < 19)
    assert bits <= 1
    return out, rounds, bits

if __name__ == "__main__":
    t, rounds, bits = job_table()
    for g, b in enumerate(t): print(g, b)
    print(bits)
```

```python
from common import *
import common

S_X, S_WQ, S_WK, S_WV, S_WO, S_WG, S_WU, S_WD, S_GW, S_OUT, S_DBG, S_WS = 4, 6, 8, 10, 12, 16, 18, 20, 22, 24, 26, 28
sW, sWn, nOff, sX, sWS, sH, sP, sPD = 32, 36, 88, 40, 44, 48, 52, 56
sTch = 94
sWave, sOff, sStep, nStep, sHoff, sHbase, sTab, sM0, sRowOff = 60, 61, 62, 63, 64, 65, 66, 68, 69
sPs0, sPs1, sPd0, sPd1, sXc, sXend = 70, 71, 72, 73, 74, 85
sT = 76
sLink, sLink2, sSpecial, sTb, sC2, sFb, sPub, sPar = 82, 84, 86, 87, 89, 90, 92, 93
sXq, sQi = 94, 95
sDB = 96
sBase, sEnd, nStart, sSkip, sRot = 100, 101, 31, 30, 3
sPollOff = 74
nD = 75
sHp, sWp, sHo, sWo = 12, 14, 16, 18
sO1, sO2, sQoff, sGoff = 20, 21, 22, 23
sOUT = 24
sPart, sOutOff = 4, 5
SRD3 = 0x00020000
WG_SIZE = 576 * 9216
LEAD = 12
PB = 4
NT_W = ""
NT_X = ""
NT_P = ""
NT_T = ""

ACC = [0, 64]
AF = 128
XT = 152
GT = 184
PK = 200
PF = 208
vDma = 220
vTR = 224
vTW, vNext, vF, vLane16, vC1, vPsrc, vPtr, vR8, vC16, vFlagOff, vOne, vLane, vQa, vAV = range(230, 244)
vT = 244
vPoll = 244
vLane4 = 250
vDummy = 251
F0, F2, F4, FOOB = WS_FL, WS_FL + 1024, WS_FL + 2048, 0x40000000

def xreg(tb2, ks):
    i = ks * 2 + tb2
    return ar(4 * i, 4) if i < 64 else vr(XT + 4 * (i - 64), 4)

def tr_reads(ks, region):
    out = []
    third = min(region // 12, 2)
    for r in range(4):
        a, rr = r // 2, r % 2
        reg = AF + (ks % 3) * 8 + a * 4 + rr * 2
        off = (region // 4 - third * 3) * 16384 + (region % 4) * 1024 + rr * 512
        out.append(f"ds_read_b64_tr_b16 {vr(reg,2)}, v{vTR + third*2 + a} offset:{off}")
    return out

def gelu_ops(accset, gt=GT, pkb=PK):
    blocks = []
    for blk in range(4):
        ops = []
        g = ACC[accset] + 16 * blk; u = g + 8
        t = gt; pk = pkb + 4 * (blk % 2)
        ops += [f"v_mul_f32 v{t+i}, v{g+i}, v{g+i}" for i in range(8)]
        ops += [f"v_fma_f32 v{t+i}, v{t+i}, s{sC2}, v{vC1}" for i in range(8)]
        ops += [f"v_mul_f32 v{t+i}, v{t+i}, v{g+i}" for i in range(8)]
        for i in range(8):
            ops += [f"v_exp_f32 v{t+i}, v{t+i}", f"v_mul_f32 v{g+i}, v{g+i}, v{u+i}"]
        ops += [f"v_add_f32 v{t+i}, 1.0, v{t+i}" for i in range(8)]
        ops += [f"v_rcp_f32 v{t+i}, v{t+i}" for i in range(8)]
        ops += [f"v_mul_f32 v{g+i}, v{g+i}, v{t+i}" for i in range(8)]
        ops += [f"v_cvt_pk_bf16_f32 v{pk+i}, v{g+2*i}, v{g+2*i+1}" for i in range(4)]
        ops += [f"buffer_store_dwordx4 {vr(pk,4)}, v{vLane16}, {sr(sH,4)}, s{sHoff} offen offset:{blk*1024} sc1"]
        blocks.append(ops)
    return blocks

def w_dma(region, kpos):
    o = []
    if region % 4 == 0:
        o = [f"s_add_u32 m0, s{sM0}, {(region//4)*16384}", f"s_add_u32 s{sOff}, s{sOff}, s{sStep}"]
        if kpos > 0:
            o += [f"s_cmp_eq_u32 s{sOff}, s{sEnd}", f"s_cselect_b32 s{sOff}, s{sBase}, s{sOff}"]
    j = region % 4
    return o, f"buffer_load_dwordx4 v{vDma+j}, {sr(sW,4)}, s{sOff} offen offset:{j*1024} sc1{NT_W} lds"

def switch_ops():
    return [[f"s_mov_b64 {sr(sW,2)}, {sr(sWn,2)}", f"s_mov_b32 s{sW+2}, s{sWn+2}", f"s_mov_b32 s{sStep}, s{nStep}", f"v_mov_b32 v{vDma}, v{vNext}"],
            [f"s_mov_b32 s{sOff}, s{nStart}", f"s_mov_b32 s{sBase}, s{nOff}", f"s_mul_i32 s{sEnd}, s{nStep}, 9", f"s_add_u32 s{sEnd}, s{sEnd}, s{nOff}"],
            [f"v_add_u32 v{vDma+1}, s{nD}, v{vDma}", f"v_add_u32 v{vDma+2}, s{nD}, v{vDma+1}", f"v_add_u32 v{vDma+3}, s{nD}, v{vDma+2}"]]

def next_ops():
    t = sT
    return [[f"s_bfe_u32 s{t}, s{sTab}, 0x80018", f"s_lshl_b32 s{t+1}, s{t}, 7", f"s_add_u32 s{nOff}, s{t+1}, s{sRowOff}"],
            [f"s_cmp_lt_u32 s{t}, 72", f"s_cselect_b32 s{sSkip}, 1, 0", f"s_mul_i32 s{t+1}, s{sRot}, {64*9216}"],
            [f"s_add_u32 s{nStart}, s{nOff}, s{t+1}", f"s_lshr_b64 {sr(sTab,2)}, {sr(sTab,2)}, 8"],
            [f"s_mov_b64 {sr(sWn,2)}, {sr(sFb,2)}", f"s_mov_b32 s{sWn+2}, {WG_SIZE}"]]

def poll_ld(soff):
    return f"buffer_load_dwordx4 {vr(vPoll,4)}, v{vLane16}, {sr(sWS,4)}, {soff} offen sc1"
def flag_min():
    return [f"v_min3_u32 v{vPoll}, v{vPoll}, v{vPoll+1}, v{vPoll+2}", f"v_min_u32 v{vPoll}, v{vPoll}, v{vPoll+3}"]

def emit_stream(A, accset, pinned, pre, queue, qstart, vm, lg, budget=24, maxpin=1, one=False, qend=136):
    qi = 0
    total = sum(cost(x) for x in queue if not x.startswith("buffer_") and x != "BREAK"); done = 0
    def put(ins):
        if callable(ins): ins = ins()
        if ins == "FULL": return 100
        tag = None
        if isinstance(ins, tuple): ins, tag = ins
        op = ins.split()[0]
        if op.startswith("ds_"): lg.issue(tag)
        if op.startswith("buffer_") or op.startswith("global_"): vm.issue(tag)
        A(ins)
        return 0 if ins.endswith(":") else cost(ins)
    for ks in range(36):
        for p in pre[ks]: put(p)
        for m in range(4):
            a, tb2 = m // 2, m % 2
            d = vr(ACC[accset] + 16 * m, 16)
            A(mfma16(d, vr(AF + (ks % 3) * 8 + a * 4, 4), xreg(tb2, ks), "0" if ks == 0 else d))
            used = 4 if m == 3 else 0
            gap = ks * 4 + m
            if gap >= qstart and qi < len(queue) and queue[qi].startswith("buffer_") and len(pinned[ks][m]) <= maxpin:
                used += put(queue[qi]); qi += 1
            for p in pinned[ks][m]: used += put(p)
            while gap >= qstart and qi < len(queue) and not queue[qi].startswith("buffer_") and used + cost(queue[qi]) <= budget \
                    and done <= total * (gap + 1 - qstart) / (qend - qstart):
                if queue[qi] == "BREAK":
                    qi += 1; break
                c_ = put(queue[qi]); used += c_; done += c_; qi += 1
    assert qi == len(queue), f"queue not drained {qi}/{len(queue)}"
    stamp(A, "next")

def touch_w():
    return [[f"s_add_u32 s{sT+3}, s{nOff}, s{sTch}", f"s_cmp_eq_u32 s{sSkip}, 0", f"s_cselect_b32 s{sT+3}, {FOOB}, s{sT+3}"],
            [(f"buffer_load_dword v{vDummy}, v{vTW}, {sr(sWn,4)}, s{sT+3} offen{NT_T}", "tch")]]

def kv_dma(r):
    o = []
    if r % 4 == 0:
        o = [f"s_add_u32 m0, s{sM0}, {(r//4)*16384}", f"s_add_u32 s{sEnd}, s{sM0}, {WS_KV + (r//4)*16384}"]
    return o, f"buffer_load_dwordx4 v{vLane16}, {sr(sX,4)}, s{sEnd} offen offset:{(r%4)*1024} sc1 lds"
KVL = 32

def body(A, kind):
    odd, last = kind == "o", kind == "l"
    accset = 1 if odd else 0
    vm = Counter(63); lg = Counter(15, ["k0"]*4 + ["k1"]*4)
    pinned = [[[] for _ in range(4)] for _ in range(36)]
    pre = [[] for _ in range(36)]
    assert LEAD == 12
    bars = {10: "d19", 18: "d31", 30: "d47"} if not last else {10: "d19", 18: "d31", 26: "d35", 32: "v7"}
    for ks in range(36):
        pre[ks].append(lambda ks=ks: f"s_waitcnt lgkmcnt({lg.need(f'k{ks}')})")
        bar = ks in bars
        if bar:
            pinned[ks][0] += [lambda ks=ks: f"s_waitcnt vmcnt({vm.need(bars[ks])})", "s_barrier", "FULL"]
        if last and ks >= 34: continue
        k2 = (ks + 2) % 36
        for r, ins in enumerate(tr_reads(k2, k2)):
            pinned[ks][[1,1,2,3][r] if bar else r].append((ins, f"k{ks+2}"))
    slots = sorted([(k, 2) for k in range(36)] + [(k, 0) for k in range(1, 36, 2)])
    SW = 16
    if not last:
        sw = switch_ops()
        pinned[SW-1][3] += sw[0]; pinned[SW][0] += sw[1]; pinned[SW][3] += sw[2]
    def place(k, g, o, ld):
        if g == 0: pinned[k-1][3] += o
        else: pinned[k][g-1] += o
        pinned[k][g] += [ld]
    for i, (k, g) in enumerate(slots[:24 if last else 36]):
        rho = LEAD + i
        o, ld = w_dma(rho % 36, rho % 36)
        place(k, g, o, (ld, f"d{rho}"))
        if rho == 36: assert (k, g) == (SW, 2)
    if last:
        ks_ = [x for x in slots[24:] if x[0] < 32] + [(32,2), (33,0), (33,2), (34,0), (34,1), (34,3), (35,1), (35,3)]
        assert len(ks_) == KVL
        for r, (k, g) in enumerate(ks_):
            assert r <= max(x for x in bars if (x, 0) < (k, g))
            o, ld = kv_dma(r)
            place(k, g, o, (ld, f"v{r}"))
    pinned[0][0] += [f"s_and_b32 s{sT+2}, s{sTab}, 0xff", f"s_lshl_b32 s{sT+2}, s{sT+2}, 13", f"s_add_u32 s{sHoff}, s{sHbase}, s{sT+2}"]
    if odd or last:
        pinned[18][1] += [f"buffer_store_dword v{vOne}, v{vFlagOff}, {sr(sWS,4)}, s{sPub} offen sc1"]
    if odd:
        pinned[26][1] += [f"s_lshl_b32 s{sPub}, s2, 2", f"s_add_u32 s{sPub}, s{sPub}, {F2}", f"s_cmp_lg_u32 s{sP+2}, 1", f"s_cselect_b32 s{sPub}, s{sPub}, {FOOB}"]
    if last:
        pinned[14][0] += flag_min() + [f"v_cmp_eq_u32 vcc, 0, v{vPoll}"]
        pinned[14][1] += [f"s_cbranch_vccnz L_kvspin", f"L_kvok:"]
        pinned[12][0] += [f"s_mov_b64 {sr(sX,2)}, {sr(S_WS,2)}", f"s_mov_b32 s{sX+2}, {WS_KV + 16*KV_GS}"]
        pinned[2][0] += [f"s_mov_b32 s{sPollOff}, {F0}", poll_ld(f"s{sPollOff}")]
        pinned[30][0] += [f"s_mov_b32 s{sPollOff}, {F2}", (poll_ld(f"s{sPollOff}"), "poll")]
    else:
        nx = next_ops()
        for grp, (k, g) in zip(nx, [(17,1), (17,3), (19,1), (19,3)]): pinned[k][g] += grp
        units = [0, 1] if odd else [2]
        pos = [(24,2), (24,3), (25,0), (25,1)]
        for n, u in enumerate(units):
            for e in range(2):
                k, g = pos[2*n + e]
                if e == 0: pinned[k][g] += [f"s_add_u32 m0, s{sM0}, {9*16384 + n*2048}"]
                pinned[k][g] += [f"s_add_u32 s{sT+3}, s{sPs0+e}, {u*128}",
                                 (f"buffer_load_dwordx4 v{vPsrc}, {sr(sP,4)}, s{sT+3} offen offset:{e*1024}{NT_P} lds", "pk")]
        tw = touch_w()
        pinned[24][0] += tw[0]; pinned[24][1] += tw[1]
    for n, u in enumerate([0, 1] if kind == "e" else [2]):
        pf = [PF, GT + 8][n]
        for r in range(4):
            e, rr = r // 2, r % 2
            k, g = [[(10,1), (10,2), (11,1), (11,1)], [(14,3), (14,3), (15,1), (15,1)]][n][r]
            pinned[k][g].append(
                (f"ds_read_b64_tr_b16 {vr(pf + e*4 + rr*2,2)}, v{vPtr} offset:{n*2048 + rr*512 + e*64}", f"p{n}"))
        for e in range(2):
            nb = 2 * u + e
            k, g = [[(12,1), (12,3)], [(22,1), (22,3)]][n][e]
            if n == 0 and e == 0: pinned[k][g].append(lambda: f"s_waitcnt lgkmcnt({lg.need('p0')})")
            pinned[k][g].append(
                f"buffer_store_dwordx4 {vr(pf + e*4, 4)}, v{vLane16}, {sr(sPD,4)}, s{sPd0 + nb//3} offen offset:{(nb%3)*1024} sc1")
    if odd:
        pinned[35][1] += [f"s_cmp_gt_u32 s{sP+2}, 1", f"s_cselect_b32 s{sPD+2}, {WS_SIZE}, 0"]
    elif not last:
        pinned[35][1] += [f"s_mov_b32 s{sP+2}, 1"]
    q = sum(gelu_ops(1 - accset), [])
    emit_stream(A, accset, pinned, pre, q, 4, vm, lg)
    return vm

XR = 64
GX = 80
vXd = 76
sXb = 64
def elem_dma(e):
    region = (e + 8) % 40
    if e < 72 and e % 8 < 4:
        n = e % 8
        o = []
        if n == 0:
            o = [f"s_add_u32 m0, s{sM0}, {(region//4)*16384}"]
            o += [f"s_add_u32 s{sXc}, s{sXc}, 128", f"s_cmp_eq_u32 s{sXc}, s{sXend}", f"s_cselect_b32 s{sXc}, s{sXb}, s{sXc}"] if e > 0 else ["s_nop 0"]
        return o + [(f"buffer_load_dwordx4 v{vXd+n}, {sr(sX,4)}, s{sXc} offen offset:{n*1024}{NT_X} lds", f"e{e}")]
    kpos = (e // 8) * 4 + e % 4 if e < 72 else e - 72
    o, ld = w_dma(region, kpos)
    return o + [(ld, f"e{e}")]
def x_reads(j, s):
    out = []
    base = ((8 * j + 8) % 40) * 4096
    seg = base // 57344
    for tb2 in range(2):
        out.append(f"ds_read_b128 {xreg(tb2, 4*j+s)}, v{XR + seg*4 + s} offset:{base - seg*57344 + tb2*4096}")
    return out
def wregion0(ks):
    if ks >= 36: return ks - 36
    return (8 * (ks // 4) + 4 + ks % 4 + 8) % 40
def put_elems(A, vm, es):
    for e in es:
        for ins in elem_dma(e):
            if isinstance(ins, tuple): vm.issue(ins[1]); ins = ins[0]
            A(ins)

def gate_queue():
    a = GX + 24; b = GX + 25
    q = [f"v_mov_b32 v{a}, 0"]
    for i in range(3):
        for k in range(3): q.append(f"v_dot2c_f32_bf16 v{a}, v{GX+4*i+k}, v{GX+12+4*i+k}")
    q += ["s_nop 0", "BREAK"]
    for dpp in ("quad_perm:[1,0,3,2]", "quad_perm:[2,3,0,1]", "row_half_mirror", "row_mirror"):
        q += [f"v_add_f32_dpp v{a}, v{a}, v{a} {dpp} row_mask:0xf bank_mask:0xf", "BREAK"]
    q += [f"v_mov_b32 v{b}, v{a}", "BREAK", f"v_permlane16_swap_b32 v{a}, v{b}", "BREAK",
          f"v_add_f32 v{a}, v{a}, v{b}", f"v_mul_f32 v{a}, {f2u(-math.log2(math.e)):#x}, v{a}",
          f"v_exp_f32 v{a}, v{a}", "BREAK", f"v_add_f32 v{a}, 1.0, v{a}", f"v_rcp_f32 v{a}, v{a}",
          f"buffer_store_dword v{a}, v{GX+26}, {sr(sWS,4)}, 0 offen sc1"]
    s = GX + 28
    for c in range(2):
        q += [f"buffer_store_dwordx4 {vr(s,4)}, v{vLane16}, {sr(sWS,4)}, s{sO1} offen offset:{c*1024} sc1",
              f"buffer_store_dword v{s}, v{GX+27}, {sr(sWS,4)}, s{sO2} offen offset:{c*1024} sc1"]
    q += [f"buffer_store_dword v{GX+32}, v{GX+33}, {sr(sWS,4)}, s{sPart} offen sc1"]
    return q

def body0(A, vm):
    lg = Counter(15)
    stamp(A, 1)
    if common.OPT.get("padmin"):
        A(f"s_lshl_b32 s0, s2, 2"); A(f"s_add_u32 s0, s0, {WS_FL + 4096}")
        A(f"buffer_store_dword v253, v{vFlagOff}, {sr(sWS,4)}, s0 offen sc1"); vm.issue("pad")
    A(f"s_waitcnt vmcnt({vm.need('e7')})")
    A("s_barrier")
    stamp(A, 2)
    for s in range(2):
        for ins in x_reads(0, s) + tr_reads(s, wregion0(s)):
            A(ins); lg.issue(f"k{s}")
    for s in range(2, 4):
        for ins in x_reads(0, s):
            A(ins); lg.issue(f"x")
    put_elems(A, vm, range(12, 16))
    if common.OPT.get("touch0"):
        A(f"buffer_load_dword v{vDummy}, v{GX+37}, {sr(sX,4)}, 0 offen"); vm.issue("t")
        A(f"buffer_load_dword v{vDummy}, v{GX+38}, {sr(sW,4)}, s{sBase} offen"); vm.issue("t")
        tw = touch_w(); A.many(tw[0]); A(tw[1][0][0]); vm.issue("t")
    put_elems(A, vm, range(16, 20))
    pinned = [[[] for _ in range(4)] for _ in range(36)]
    pre = [[] for _ in range(36)]
    e = 20
    elast = 72 + LEAD - 1
    for ks in range(36):
        pre[ks].append(lambda ks=ks: f"s_waitcnt lgkmcnt({lg.need(f'k{ks}')})")
        j = (ks + 2) // 4
        if ks % 4 == 2:
            last = 8 * j + 7 if j < 9 else elast
            if common.OPT.get("fine"):
                pinned[ks][0] += ["s_memtime s[0:1]", "s_waitcnt lgkmcnt(0)", f"v_writelane_b32 v255, s0, {30+2*j}"]
            pinned[ks][0] += [lambda last=last: f"s_waitcnt vmcnt({vm.need(f'e{last}')})", "s_barrier"]
            if common.OPT.get("fine"):
                pinned[ks][0] += ["s_memtime s[0:1]", "s_waitcnt lgkmcnt(0)", f"v_writelane_b32 v255, s0, {31+2*j}"]
        if ks % 4 >= 2 and j < 9:
            s0 = 2 * (ks % 4 - 2)
            xs = x_reads(j, s0) + x_reads(j, s0 + 1)
            for r in range(4): pinned[ks][r].append((xs[r], "x"))
        for r, ins in enumerate(tr_reads((ks + 2) % 36, wregion0(ks + 2))):
            pinned[ks][r].append((ins, f"k{ks+2}"))
        extra = elast + 1 - e > 2 * (36 - ks) and ks >= 12
        for m in ((0, 1, 2, 3) if ks < 2 else (1, 2, 3) if extra else (1, 3)):
            if e <= elast and (e < 40 or e <= 40 + 8 * (j - 1) + 6):
                if e == 72:
                    sw = switch_ops()
                    pinned[23][3] += sw[0][:2]; pinned[24][0] += sw[0][2:] + sw[1][:2]; pinned[24][2] += sw[2]; pinned[25][1] = sw[1][2:] + pinned[25][1]
                    assert ks == 24
                    for grp, (k, g) in zip(next_ops(), [(25,2), (27,0), (28,0), (28,2)]): pinned[k][g] += grp
                pinned[ks][m] += elem_dma(e); e += 1
    assert e == elast + 1, e
    if not common.OPT.get("notouch"):
        tw = touch_w()
        pinned[29][2] += tw[0]; pinned[30][1] += tw[1]
    pinned[22][2] += [(f"buffer_load_dword v{GX+34}, off, {sr(sDB,4)}, 0 sc1", "ini")]
    pinned[34][1] += [lambda: f"s_waitcnt vmcnt({vm.need('ini')})", f"v_cmp_eq_u32 vcc, 0, v{GX+34}"]
    pinned[34][2] += ["s_cbranch_vccnz L_inispin", "L_iniok:"]
    for i in range(3):
        pinned[4 + i][2] += [(f"global_load_dwordx3 {vr(GX+4*i,3)}, v{GX+36}, {sr(sX,2)} offset:{384*i}", "g"),
                             (f"global_load_dwordx3 {vr(GX+12+4*i,3)}, v{GX+35}, {sr(sLink,2)} offset:{384*i}", "g")]
    pinned[12][3] += [lambda: f"s_waitcnt vmcnt({vm.need('g')})"]
    emit_stream(A, 0, pinned, pre, gate_queue(), 13 * 4, vm, lg, maxpin=2, qend=21 * 4)

def setup_sub(A):
    t = sT
    A(f"""
L_setup:
    s_mov_b64 {sr(sWn,2)}, {sr(sFb,2)}
    s_mov_b32 s{sWn+2}, {WG_SIZE}
    s_movk_i32 s{t+1}, 9216
    s_lshl_b32 s{t+2}, s{t}, 7
    s_mov_b32 s{t+4}, 0
    s_cmp_lt_u32 s{t}, 72
    s_cbranch_scc1 L_setup_fin
    s_cmp_lt_u32 s{t}, 77
    s_cbranch_scc0 L_setup_kv
    s_mov_b64 {sr(sWn,2)}, {sr(S_WQ,2)}
    s_movk_i32 s{t+1}, 1152
    s_sub_u32 s{t+2}, s{t}, 72
    s_lshl_b32 s{t+2}, s{t+2}, 1
    s_lshr_b32 s{t+3}, s{sWave}, 1
    s_add_u32 s{t+2}, s{t+2}, s{t+3}
    s_lshl_b32 s{t+2}, s{t+2}, 7
    s_cmp_lt_u32 s{t+2}, 1152
    s_cselect_b32 s{sWn+2}, {576*1152}, 0
    s_branch L_setup_fin
L_setup_kv:
    s_cmp_eq_u32 s{t}, 77
    s_cbranch_scc0 L_setup_ret
    s_cmp_lt_u32 s{sWave}, 2
    s_cselect_b64 {sr(sWn,2)}, {sr(S_WK,2)}, {sr(S_WV,2)}
    s_sub_u32 s{sWn}, s{sWn}, 3072
    s_subb_u32 s{sWn+1}, s{sWn+1}, 0
    s_movk_i32 s{sWn+2}, {576*36 + 3072}
    s_movk_i32 s{t+1}, 36
    s_mov_b32 s{t+2}, 0
    s_movk_i32 s{t+4}, 3072
L_setup_fin:
    s_lshl_b32 s{nStep}, s{t+1}, 6
    s_lshl_b32 s{nD}, s{t+1}, 4
    s_sub_u32 s{nD}, s{nD}, 1024
    s_and_b32 s{t+3}, s{sWave}, 1
    s_mul_i32 s{t+3}, s{t+3}, s{t+1}
    s_lshl_b32 s{t+3}, s{t+3}, 3
    s_add_u32 s{nOff}, s{t+2}, s{t+3}
    s_mul_i32 s{t+3}, s{sRot}, s{nStep}
    s_add_u32 s{nStart}, s{nOff}, s{t+3}
    v_mad_u32_u24 v{vNext}, v{vR8}, s{t+1}, v{vC16}
    v_add_u32 v{vNext}, s{t+4}, v{vNext}
    s_setpc_b64 {sr(sLink2,2)}
L_setup_ret:
    s_mov_b64 {sr(sWn,2)}, {sr(S_WS,2)}
    s_mov_b32 s{sWn+2}, {WS_SIZE}
    v_mov_b32 v{vNext}, v{vLane16}
    s_setpc_b64 {sr(sLink2,2)}
""")

def special_sub(A):
    sc1 = " sc1"
    t = sT
    A(f"""
L_special:
    s_bfe_u32 s{t}, s{sTab}, 0x80010
    s_call_b64 {sr(sLink2,2)}, L_setup
    s_mov_b32 s{sH+2}, {WS_SIZE}
    s_and_b32 s{t}, s{sTab}, 0xff
    s_cmp_lt_u32 s{t}, 72
    s_cbranch_scc1 L_special_ret
    s_mov_b32 s{sH+2}, 0
    s_cmp_eq_u32 s{t}, 77
    s_cbranch_scc1 L_special_kv
    s_lshl_b32 s{t+1}, s{sTb}, 1
    s_lshr_b32 s{t+2}, s{sWave}, 1
    s_add_u32 s{t+1}, s{t+1}, s{t+2}
    s_mul_i32 s{t+1}, s{t+1}, {2*36*1024}
    s_sub_u32 s{t+2}, s{t}, 72
    s_lshl_b32 s{t+2}, s{t+2}, 13
    s_add_u32 s{t+1}, s{t+1}, s{t+2}
    s_and_b32 s{t+2}, s{sWave}, 1
    s_lshl_b32 s{t+2}, s{t+2}, 11
    s_add_u32 s{t+1}, s{t+1}, s{t+2}
    s_add_u32 s{t+1}, s{t+1}, {WS_Q}
    s_add_u32 s{t+2}, s{t+1}, {36*1024}
    s_mov_b32 s{t+3}, {f2u(QSCALE):#x}
    s_cmp_eq_u32 s{sPar}, 0
    s_cbranch_scc1 L_special_q0
""")
    for i in range(64): A(f"v_mul_f32 v{i}, s{t+3}, v{64+i}")
    A("s_branch L_special_q1")
    A("L_special_q0:")
    for i in range(64): A(f"v_mul_f32 v{i}, s{t+3}, v{i}")
    A("L_special_q1:")
    for i in range(32): A(f"v_cvt_pk_bf16_f32 v{64+i}, v{2*i}, v{2*i+1}")
    for half in range(2):
        if half == 1:
            A(f"s_add_u32 s{t+1}, s{t+1}, 4096")
            A(f"s_add_u32 s{t+2}, s{t+2}, 4096")
            A(f"s_cmp_eq_u32 s{t}, 76")
            A("s_cbranch_scc1 L_special_ret")
        for blk in range(4):
            a, tb2 = blk // 2, blk % 2
            A(f"buffer_store_dwordx4 {vr(64 + blk*8 + half*4, 4)}, v{vLane16}, {sr(sWS,4)}, s{t+1+tb2} offen offset:{a*1024}{sc1}")
    LB = 9 * 16384
    A(f"""
    s_branch L_special_ret
L_special_kv:
    s_barrier
    v_and_b32 v{vT}, 31, v{vLane}
    v_lshrrev_b32 v{vT+1}, 5, v{vLane}
    s_lshr_b32 s{t+2}, s{sWave}, 1
    s_mul_i32 s{t+5}, s{t+2}, {2*KV_VT}
    s_add_u32 s{t+5}, s{t+5}, {LB + KV_V}
    s_and_b32 s{t+3}, s{sWave}, 1
    s_cmp_eq_u32 s{t+3}, 0
    s_cbranch_scc1 L_special_kv0
    v_and_b32 v{vT}, 3, v{vLane}
    v_mul_u32_u24 v{vT}, {KV_VF}, v{vT}
    v_and_b32 v{vT+1}, 4, v{vLane}
    v_lshl_add_u32 v{vT}, v{vT+1}, 2, v{vT}
    v_cmp_eq_u32 vcc, 0, v{vT+1}
    v_add_u32 v{vT}, s{t+5}, v{vT}
    v_mov_b32 v65, 0x3f803f80
    v_cndmask_b32 v64, 0, v65, vcc
    v_add_u32 v{vT}, 576, v{vT}
    v_mov_b32 v{vT+1}, {LB + KV_K2 + 512}
    v_cmp_eq_u32 vcc, 8, v{vLane}
    v_mov_b32 v65, v64
    v_mov_b32 v66, v64
    v_cndmask_b32 v{vT}, v{vT}, v{vT+1}, vcc
    v_mov_b32 v67, v64
    s_mov_b64 exec, 0x1ff
    ds_write_b128 v{vT}, v[64:67]
    s_mov_b64 exec, -1
    s_branch L_special_kv1
L_special_kv0:
""")
    for i in range(32): A(f"v_cvt_pk_bf16_f32 v{64+i}, v{2*i}, v{2*i+1}")
    A(f"""
    s_lshl_b32 s{t+3}, s{t+2}, 11
    s_add_u32 s{t+3}, s{t+3}, {LB}
    s_lshl_b32 s{t+4}, s{t+2}, 3
    s_add_u32 s{t+4}, s{t+4}, {LB + KV_K2}    ; K2 base
    v_lshrrev_b32 v{vT+2}, 4, v{vT}
    v_mul_u32_u24 v{vT+2}, {KV_VF}, v{vT+2}
    v_bfe_u32 v{vT+3}, v{vT}, 2, 1
    v_mul_u32_u24 v{vT+3}, 288, v{vT+3}
    v_add_u32 v{vT+2}, v{vT+2}, v{vT+3}
    v_and_b32 v{vT+3}, 3, v{vT}
    v_lshl_add_u32 v{vT+2}, v{vT+3}, 1, v{vT+2}
    v_and_b32 v{vT+3}, 8, v{vT}
    v_add3_u32 v{vT+2}, v{vT+2}, v{vT+3}, s{t+5}
    v_lshl_add_u32 v{vT+3}, v{vT+1}, 7, v{vT+2}   ; d = 8hh + i
    v_add_u32 v{vT+4}, s{t+3}, v{vLane16}
    v_add_u32 v{vT+5}, s{t+4}, v{vLane16}
""")
    for tb2 in range(2):
        b0 = 64 + tb2 * 8
        A(f"ds_write_b128 v{vT+4}, {vr(b0,4)} offset:{tb2*1024}")
        for i in range(8):
            op = "ds_write_b16" if i % 2 == 0 else "ds_write_b16_d16_hi"
            A(f"{op} v{vT+3}, v{b0+4+i//2} offset:{tb2*KV_VT + i*16}")
    A("s_mov_b32 exec_hi, 0")
    for tb2 in range(2):
        b1 = 64 + (2 + tb2) * 8
        A(f"ds_write_b32 v{vT+5}, v{b1} offset:{tb2*4}")
        for i in range(2):
            op = "ds_write_b16" if i % 2 == 0 else "ds_write_b16_d16_hi"
            A(f"{op} v{vT+2}, v{b1+4} offset:{tb2*KV_VT + (16+i)*16}")
    A(f"""
    s_mov_b64 exec, -1
L_special_kv1:
    s_lshl_b32 s{t+2}, s{sWave}, 10
    v_add_u32 v{vT}, s{t+2}, v{vLane16}
    v_add_u32 v{vT+1}, {LB}, v{vT}
    v_cmp_gt_u32 vcc, {KV_GS - 8192}, v{vT}
    v_mov_b32 v{vT+2}, 0x40000000
    s_mul_i32 s{t+1}, s{sTb}, {KV_GS}
    v_cndmask_b32 v{vT+2}, v{vT+2}, v{vT}, vcc
    s_add_u32 s{t+1}, s{t+1}, {WS_KV}
    s_add_u32 s{t+2}, s{t+1}, 4096
    s_add_u32 s{t+3}, s{t+1}, 8192
    s_waitcnt lgkmcnt(0)
    s_barrier
    ds_read_b128 v[64:67], v{vT+1}
    ds_read_b128 v[68:71], v{vT+1} offset:4096
    ds_read_b128 v[72:75], v{vT+1} offset:8192
    s_waitcnt lgkmcnt(0)
    buffer_store_dwordx4 v[64:67], v{vT}, {sr(sWS,4)}, s{t+1} offen{sc1}
    buffer_store_dwordx4 v[68:71], v{vT}, {sr(sWS,4)}, s{t+2} offen{sc1}
    buffer_store_dwordx4 v[72:75], v{vT+2}, {sr(sWS,4)}, s{t+3} offen{sc1}
L_special_ret:
    s_nop 1
    s_setpc_b64 {sr(sLink,2)}
""")

def spin(A, soff, name, back):
    A(f"""
L_{name}:
    s_mov_b32 s{sT+5}, 0x40000
L_{name}_l:
    {poll_ld(soff)}
    s_sub_u32 s{sT+5}, s{sT+5}, 1
    s_cbranch_scc1 {back}
    s_waitcnt vmcnt(0)
""")
    A.many(flag_min())
    A(f"""
    v_cmp_eq_u32 vcc, 0, v{vPoll}
    s_cbranch_vccz {back}
    s_sleep 8
    s_branch L_{name}_l
""")

def phase1(A):
    t = sT
    stamp(A, 0)
    pref = "" if common.OPT.get("nopref") else f"""
    s_mov_b64 {sr(sH,2)}, {sr(sLink,2)}
    s_mov_b32 s{sH+2}, L_jobtab-L_pc1
    s_mov_b32 s{sH+3}, {SRD3}
    v_lshrrev_b32 v2, 4, v0
    v_and_b32 v3, 15, v0
    v_lshlrev_b32 v2, 7, v2
    v_lshl_add_u32 v2, v3, 28, v2
    s_lshr_b32 s{t+1}, s2, 3
    s_lshl_b32 s{t+1}, s{t+1}, 11
    buffer_load_dword v4, v2, {sr(sH,4)}, s{t+1} offen
"""
    A(f"""
    s_cmp_ge_u32 s2, 256
    s_cbranch_scc1 L_end
    s_load_dwordx16 s[4:19], s[0:1], 0
    s_load_dwordx8 s[20:27], s[0:1], 64
    s_load_dwordx2 s[28:29], s[0:1], 96
    s_getpc_b64 {sr(sLink,2)}
L_pc1:
    s_bfe_u32 s{sXq}, s2, 0x20001
    s_lshr_b32 s{sQi}, s2, 6
    s_lshl_b32 s{t}, s{sXq}, 2
    s_add_u32 s{t}, s{t}, s{sQi}            ; jg
    s_lshl_b32 s{t+1}, s{t}, 3
    s_add_u32 s{t+1}, s{t+1}, L_jobtab-L_pc1
    s_load_dwordx2 {sr(sTab,2)}, {sr(sLink,2)}, s{t+1}
    {pref}
    v_lshrrev_b32 v1, 6, v0
    v_and_b32 v{vLane}, 63, v0
    v_readfirstlane_b32 s{sWave}, v1
    v_lshlrev_b32 v{vLane16}, 4, v{vLane}
    s_and_b32 s{t}, s{t}, 11
    s_cmp_eq_u32 s{t}, 3
    s_cselect_b32 s{sSpecial}, 1, 0
    s_and_b32 s{t}, s2, 1
    s_lshl_b32 s{t}, s{t}, 3
    s_bfe_u32 s{t+1}, s2, 0x30003
    s_add_u32 s{sTb}, s{t}, s{t+1}
    s_lshl_b32 s{t}, s{sQi}, 1
    s_add_u32 s{t}, s{t}, s{t+1}
    s_cmp_ge_u32 s{t}, 9
    s_cselect_b32 s{t+1}, 9, 0
    s_sub_u32 s{t+5}, s{t}, s{t+1}
    {"s_mov_b32 s%d, 0" % (t+5) if common.OPT.get("norot") else ""}
    s_sub_u32 s{sRot}, s{t+5}, 1
    v_lshrrev_b32 v{vR8}, 3, v{vLane}
    v_and_b32 v1, 7, v{vLane}
    s_lshl_b32 s{sM0}, s{sWave}, 12
    s_lshr_b32 s{t+2}, s{sWave}, 1
    s_and_b32 s{t+3}, s{sWave}, 1
    v_and_b32 v2, 2, v{vR8}
    v_xor_b32 v2, v1, v2
    s_lshl_b32 s{t+4}, s{t+2}, 2
    v_xor_b32 v2, s{t+4}, v2
    v_lshlrev_b32 v{vC16}, 4, v2
    v_lshrrev_b32 v2, 1, v{vR8}
    v_xor_b32 v2, v1, v2
    v_lshlrev_b32 v2, 4, v2
    v_mul_u32_u24 v3, 1152, v{vR8}
    v_add_u32 v{vXd}, v2, v3
    v_xor_b32 v2, 64, v{vXd}
    v_add_u32 v{vXd+1}, {8*1152-1024}, v2
    v_add_u32 v{vXd+2}, {2*(8*1152-1024)}, v{vXd}
    v_add_u32 v{vXd+3}, {3*(8*1152-1024)}, v2
    s_lshl_b32 s{t+4}, s{sTb}, 2
    s_add_u32 s{t+4}, s{t+4}, s{sWave}
    s_mul_i32 s{sXb}, s{t+4}, {32*1152}
    s_lshl_b32 s{t+5}, s{t+5}, 7
    s_add_u32 s{sXc}, s{sXb}, s{t+5}
    s_mov_b32 s{sX+2}, {2048*1152}
    s_mov_b32 s{sX+3}, {SRD3}
    s_mov_b32 s{sW+3}, s{sX+3}
    s_mov_b32 s{sW+2}, {WG_SIZE}
    s_movk_i32 s{t+4}, 9216
    v_mad_u32_u24 v{vDma}, v{vR8}, s{t+4}, v{vC16}
    s_mov_b32 s{nD}, {16*9216-1024}
    s_mov_b32 s{sStep}, {64*9216}
    v_add_u32 v{vDma+1}, s{nD}, v{vDma}
    s_mul_i32 s{sRowOff}, s{t+3}, {8*9216}
    v_add_u32 v{vDma+2}, s{nD}, v{vDma+1}
    s_mul_i32 s{nStart}, s{sRot}, s{sStep}
    v_add_u32 v{vDma+3}, s{nD}, v{vDma+2}
    s_add_u32 s{sXend}, s{sXb}, 1152
    s_waitcnt lgkmcnt(0)
    s_mov_b64 {sr(sX,2)}, {sr(S_X,2)}
""")
    vm = Counter(63)
    if common.OPT.get("fine"): stamp(A, 27)
    put_elems(A, vm, range(0, 4))
    A(f"""
    s_cmp_lt_u32 s{sWave}, 2
    s_cselect_b64 {sr(sFb,2)}, {sr(S_WG,2)}, {sr(S_WU,2)}
    s_cselect_b64 {sr(sW,2)}, {sr(S_WG,2)}, {sr(S_WU,2)}
    s_bfe_u32 s{t}, s{sTab}, 0x80008
    s_lshl_b32 s{t+1}, s{t}, 7
    s_add_u32 s{sBase}, s{t+1}, s{sRowOff}
    s_add_u32 s{sOff}, s{sBase}, s{nStart}
    v_mov_b32 v{vF}, v{vDma}
    s_cmp_eq_u32 s{sSpecial}, 0
    s_cbranch_scc0 L_sp_first
L_sp_first_ret:
""")
    put_elems(A, vm, range(4, 12))
    if common.OPT.get("fine"): stamp(A, 28)
    A(f"""
    s_mul_i32 s{sEnd}, s{sStep}, 9
    s_add_u32 s{sEnd}, s{sEnd}, s{sBase}
    s_cmp_eq_u32 s{sSpecial}, 0
    s_cbranch_scc0 L_sp_skip
    s_bfe_u32 s{t}, s{sTab}, 0x80010
    s_lshl_b32 s{t+1}, s{t}, 7
    s_add_u32 s{nOff}, s{t+1}, s{sRowOff}
    s_add_u32 s{nStart}, s{nStart}, s{nOff}
    s_mov_b32 s{nStep}, s{sStep}
    s_mov_b64 {sr(sWn,2)}, {sr(sFb,2)}
    s_mov_b32 s{sWn+2}, s{sW+2}
    v_mov_b32 v{vNext}, v{vF}
L_sp_skip:
""")
    W = sPar
    A(f"""
    s_mov_b64 {sr(sWS,2)}, {sr(S_WS,2)}
    s_mov_b32 s{sWS+2}, {WS_SIZE}
    s_mov_b32 s{sWS+3}, {SRD3}
    s_mov_b64 {sr(sDB,2)}, {sr(S_DBG,2)}
    s_movk_i32 s{sDB+2}, 256
    s_mov_b32 s{sDB+3}, {SRD3}
    s_mov_b32 s{sOUT+2}, {2048*1152}
    s_mov_b32 s{sOUT+3}, {SRD3}
    s_mov_b64 {sr(sH,2)}, {sr(S_WS,2)}
    s_mov_b32 s{sH+2}, {WS_SIZE}
    s_mov_b32 s{sH+3}, {SRD3}
    s_mov_b64 {sr(sPD,2)}, {sr(S_WS,2)}
    s_mov_b32 s{sPD+3}, {SRD3}
    s_mov_b32 s{sP+3}, {SRD3}
    s_mov_b32 s{sC2}, {f2u(GC2):#x}
    v_mov_b32 v{vC1}, {f2u(GC1):#x}
    s_mov_b32 s{sWn+3}, {SRD3}
    s_lshl_b32 s{W}, s2, 2
    s_add_u32 s{W}, s{W}, s{sWave}
    s_lshr_b32 s{t+2}, s{sWave}, 1
    s_and_b32 s{t+3}, s{sWave}, 1
    s_lshl_b32 s{t}, s{sTb}, 1
    s_add_u32 s{t}, s{t}, s{t+2}
    s_mul_i32 s{sHbase}, s{t}, {HO_G}
    s_lshl_b32 s{t}, s{t+3}, 12
    s_add_u32 s{sHbase}, s{sHbase}, s{t}
    v_and_b32 v32, 3, v{vLane}              ; c
    v_lshrrev_b32 v33, 1, v32
    v_and_b32 v32, 1, v32
    v_lshl_add_u32 v32, v32, 1, v33         ; perm(c)
    v_lshlrev_b32 v32, 3, v32
    v_bfe_u32 v33, v{vLane}, 2, 2           ; r4
    v_lshl_add_u32 v32, v33, 7, v32
    v_bfe_u32 v34, v{vLane}, 4, 1
    v_lshrrev_b32 v35, 5, v{vLane}          ; hh
    v_lshl_add_u32 v36, v34, 5, v32
    v_lshl_add_u32 v36, v35, 10, v36
    s_add_u32 s{t}, s{sM0}, {9*16384}
    v_add_u32 v{vPtr}, s{t}, v36
    v_lshrrev_b32 v33, 1, v33
    v_lshl_add_u32 v33, v34, 1, v33
    s_lshl_b32 s{t}, s{t+3}, 1
    v_xor_b32 v33, s{t}, v33
    v_lshl_add_u32 v32, v33, 5, v32
    v_lshl_add_u32 v32, v34, 13, v32
    v_lshl_add_u32 v{vTR}, v35, 12, v32
    v_xor_b32 v{vTR+1}, 32, v{vTR}
    v_add_u32 v{vTR+2}, {12*4096}, v{vTR}
    v_add_u32 v{vTR+3}, {12*4096}, v{vTR+1}
    v_add_u32 v{vTR+4}, {24*4096}, v{vTR}
    v_add_u32 v{vTR+5}, {24*4096}, v{vTR+1}
    v_and_b32 v37, 31, v{vLane}             ; n
    v_bfe_u32 v33, v{vLane}, 1, 3
    v_xor_b32 v33, v33, v35
    v_lshlrev_b32 v33, 4, v33
    v_lshl_add_u32 v32, v37, 7, v33
    s_lshl_b32 s{t}, s{t+2}, 13
    v_add_u32 v{XR}, s{t}, v32
    v_xor_b32 v{XR+1}, 32, v{XR}
    v_xor_b32 v{XR+2}, 64, v{XR}
    v_xor_b32 v{XR+3}, 0x60, v{XR}
""")
    for seg in (1, 2):
        for s in range(4): A(f"v_add_u32 v{XR+seg*4+s}, {seg*57344}, v{XR+s}")
    A(f"""
    v_mul_u32_u24 v{vQa}, 1152, v37
    v_lshl_add_u32 v{vQa}, v35, 4, v{vQa}
    v_lshlrev_b32 v{vLane4}, 2, v{vLane}
    v_bfe_u32 v32, v{vLane}, 2, 1
    v_bfe_u32 v33, v{vLane}, 3, 1
    v_lshlrev_b32 v32, 3, v32
    v_lshl_add_u32 v32, v33, 2, v32
    v_and_b32 v33, 0x13, v{vLane}
    v_or_b32 v32, v32, v33
    v_mul_u32_u24 v33, 18, v35
    v_cmp_gt_u32 vcc, 18, v37
    v_add_u32 v32, v32, v33
    v_and_b32 v33, 27, v37
    v_cndmask_b32 v32, 37, v32, vcc
    v_cmp_ne_u32 vcc, 18, v33
    v_mul_u32_u24 v{GX+35}, 12, v37
    s_lshl_b32 s{t+5}, s{sTb}, 2
    s_add_u32 s{t+5}, s{t+5}, s{sXq}
    s_lshl_b32 s{t+5}, s{t+5}, 2
    s_add_u32 s{t+5}, s{t+5}, s{sQi}
    s_lshl_b32 s{t+5}, s{t+5}, 2
    s_add_u32 s{t+5}, s{t+5}, s{sWave}
    s_lshl_b32 s{t+5}, s{t+5}, 1
    v_cndmask_b32 v32, 36, v32, vcc
    v_lshlrev_b32 v{vAV}, 4, v32
    v_add_u32 v5, s{t+5}, v35               ; token
    v_mul_u32_u24 v6, 1152, v5
    v_add_u32 v{GX+36}, v6, v{GX+35}
    v_cmp_eq_u32 vcc, 0, v37
    v_lshlrev_b32 v5, 2, v5
    v_add_u32 v5, {WS_G}, v5
    v_mov_b32 v33, 0x40000000
    v_cndmask_b32 v{GX+26}, v33, v5, vcc
    v_lshl_add_u32 v{GX+27}, v35, 30, v{vLane16}
    v_mov_b32 v{GX+28}, -1
    v_mov_b32 v{GX+29}, -1
    v_mov_b32 v{GX+30}, -1
    v_mov_b32 v{GX+31}, -1
    v_mov_b32 v{GX+32}, 0
    v_cmp_eq_u32 vcc, 0, v0
    v_mov_b32 v{vOne}, 1
    s_mov_b32 s{sSkip}, 1
    v_cndmask_b32 v{vFlagOff}, v33, 0, vcc
    s_lshl_b32 s{t}, s{sTb}, 2
    s_add_u32 s{t}, s{t}, {F0}
    s_bfe_u32 s{t+1}, s{sTab}, 0x80008
    s_cmp_eq_u32 s{t+1}, 77
    s_cselect_b32 s{sPub}, s{t}, {FOOB}
    ; pack params: ks = W/3, a = W%3
    s_mul_i32 s{t}, s{W}, 21846
    s_lshr_b32 s{t}, s{t}, 16
    s_mul_i32 s{t+1}, s{t}, 3
    s_sub_u32 s{t+1}, s{W}, s{t+1}
    s_mul_i32 s{sPd0}, s{t+1}, {2*WP_T}
    s_mul_i32 s{t+2}, s{t}, 3072
    s_add_u32 s{sPd0}, s{sPd0}, s{t+2}
    s_add_u32 s{sPd0}, s{sPd0}, {WS_WP}
    s_add_u32 s{sPd1}, s{sPd0}, {WP_T}
    s_mov_b32 s{sPD+2}, 0
    s_mul_i32 s{t+1}, s{t+1}, 384
    v_and_b32 v32, 7, v{vLane}
    v_lshlrev_b32 v32, 4, v32
    s_movk_i32 s{t+4}, 1152
    v_mad_u32_u24 v{vPsrc}, v{vR8}, s{t+4}, v32
    s_mov_b64 {sr(sP,2)}, {sr(S_WD,2)}
    s_mov_b32 s{sP+2}, {4608*1152}
    s_mul_i32 s{sPs0}, s{t}, {16*1152}
    s_movk_i32 s{t+3}, {8*1152}
    s_cmp_lt_u32 s{t}, 288
    s_cbranch_scc1 L_pk_done
    s_mov_b64 {sr(sP,2)}, {sr(S_WO,2)}
    s_mov_b32 s{sP+2}, {576*1152}
    s_sub_u32 s{t+2}, s{t}, 288
    s_mul_i32 s{sPs0}, s{t+2}, {18*1152}
    s_cmp_lt_u32 s{t}, 320
    s_cbranch_scc1 L_pk_done
    s_sub_u32 s{t+2}, s{t}, 320
    s_mul_i32 s{sPs0}, s{t+2}, {144*1152}
    s_add_u32 s{sPs0}, s{sPs0}, {16*1152}
    s_mov_b32 s{t+3}, {72*1152}
    v_lshrrev_b32 v34, 1, v{vR8}
    v_mul_u32_u24 v34, 18, v34
    v_and_b32 v36, 1, v{vR8}
    v_add_u32 v34, v34, v36
    v_mad_u32_u24 v{vPsrc}, v34, s{t+4}, v32
    s_cmp_lt_u32 s{t}, 324
    s_cselect_b32 s{sP+2}, s{sP+2}, 0
L_pk_done:
    s_add_u32 s{sPs0}, s{sPs0}, s{t+1}
    s_add_u32 s{sPs1}, s{sPs0}, s{t+3}
    s_sub_u32 s{sPs1}, s{sPs1}, 1024
    s_mov_b64 {sr(sLink,2)}, {sr(S_GW,2)}
""")
    g64, head, nt = t, t + 1, t + 2
    A(f"""
    s_and_b32 s{t+3}, s{sXq}, 1
    s_lshl_b32 s{g64}, s{sTb}, 1
    s_add_u32 s{g64}, s{g64}, s{t+3}
    s_lshr_b32 s{t+3}, s{sXq}, 1            ; nhalf
    s_lshl_b32 s{head}, s{t+3}, 2
    s_add_u32 s{head}, s{head}, s{sQi}
    s_lshl_b32 s{head}, s{head}, 2
    s_add_u32 s{head}, s{head}, s{sWave}
    s_mul_i32 s{t+3}, s{t+3}, 3
    s_mul_i32 s{t+4}, s{sWave}, {KM}
    s_add_u32 s{t+4}, s{t+4}, {KH}
    s_cmp_eq_u32 s{sQi}, 3
    s_cselect_b32 s{nt}, s{sWave}, s{sQi}
    s_cselect_b32 s{t+4}, 0, s{t+4}
    s_add_u32 s{nt}, s{nt}, s{t+3}
    ; W side
    s_mul_i32 s{t+3}, s{nt}, {WP_T}
    s_add_u32 s{t+3}, s{t+3}, {WS_WP}
    s_mul_i32 s{t+5}, s{t+4}, 3072
    s_add_u32 s{t+5}, s{t+5}, s{t+3}
    s_add_u32 s{sWp}, s{S_WS}, s{t+5}
    s_addc_u32 s{sWp+1}, s{S_WS+1}, 0
    s_mul_i32 s{t+5}, s{sWave}, {9*3072}
    s_add_u32 s{t+5}, s{t+5}, s{t+3}
    s_add_u32 s{t+5}, s{t+5}, {288*3072}
    s_add_u32 s{sWo}, s{S_WS}, s{t+5}
    s_addc_u32 s{sWo+1}, s{S_WS+1}, 0
    ; h side
    s_mul_i32 s{t+3}, s{g64}, {HO_G}
    s_lshl_b32 s{t+5}, s{t+4}, 11
    s_add_u32 s{t+5}, s{t+5}, s{t+3}
    s_add_u32 s{sHp}, s{S_WS}, s{t+5}
    s_addc_u32 s{sHp+1}, s{S_WS+1}, 0
    s_mul_i32 s{t+5}, s{sWave}, {9*2048}
    s_add_u32 s{t+5}, s{t+5}, s{t+3}
    s_add_u32 s{t+5}, s{t+5}, {288*2048}
    s_add_u32 s{sHo}, s{S_WS}, s{t+5}
    s_addc_u32 s{sHo+1}, s{S_WS+1}, 0
    s_lshl_b32 s{sO1}, s{head}, 11
    s_add_u32 s{sO1}, s{sO1}, s{t+3}
    s_add_u32 s{sO1}, s{sO1}, {288*2048}
    s_lshr_b32 s{sO2}, s{head}, 3
    s_lshl_b32 s{sO2}, s{sO2}, 11
    s_add_u32 s{sO2}, s{sO2}, s{t+3}
    s_bfe_u32 s{t+5}, s{head}, 0x10002
    s_lshl_b32 s{t+5}, s{t+5}, 9
    s_add_u32 s{sO2}, s{sO2}, s{t+5}
    s_lshl_b32 s{t+5}, s{sWave}, 2
    s_add_u32 s{sO2}, s{sO2}, s{t+5}
    s_add_u32 s{sO2}, s{sO2}, {320*2048}
    ; q / g offsets
    s_mul_i32 s{sQoff}, s{g64}, {2*36*1024}
    s_mul_i32 s{t+5}, s{head}, 18
    s_lshr_b32 s{t+5}, s{t+5}, 3
    s_lshl_b32 s{t+5}, s{t+5}, 9
    s_add_u32 s{sQoff}, s{sQoff}, s{t+5}
    s_add_u32 s{sQoff}, s{sQoff}, {WS_Q}
    s_lshl_b32 s{sGoff}, s{g64}, 8
    s_add_u32 s{sGoff}, s{sGoff}, {WS_G}
    s_mul_i32 s{sPart}, s{g64}, 6
    s_add_u32 s{sPart}, s{sPart}, s{nt}
    s_mul_i32 s{sPart}, s{sPart}, {PART_T}
    s_add_u32 s{sPart}, s{sPart}, {WS_PART}
    s_mul_i32 s{sOutOff}, s{g64}, {64*1152}
    s_mul_i32 s{t+5}, s{nt}, 192
    s_add_u32 s{sOutOff}, s{sOutOff}, s{t+5}
    s_lshl_b32 s{t+5}, s{sWave}, 5
    s_add_u32 s{sOutOff}, s{sOutOff}, s{t+5}
    s_lshl_b32 s{t+5}, s{sQi}, 2
    s_add_u32 s{t+5}, s{t+5}, s{sWave}
    s_sub_u32 s{t+5}, s{t+5}, 12
    s_cmp_lt_u32 s{t+5}, 3
    s_cselect_b32 s{t+5}, 0, 64
    v_mov_b32 v32, 24576
    v_cmp_eq_u32 vcc, s{t+5}, v{vLane}
    s_nop 1
    v_cndmask_b32 v{GX+33}, v33, v32, vcc
""")
    A(f"""
    s_bfe_u32 s{t}, s2, 0x30003             ; a
    s_and_b32 s{t+1}, s{sWave}, 1
    s_mul_i32 s{t+2}, s{t}, 72
    s_mul_i32 s{t+3}, s{t+1}, 28
    s_add_u32 s{t+2}, s{t+2}, s{t+3}
    s_mul_i32 s{sTch}, s{t+2}, 9216
    v_mul_u32_u24 v32, 9216, v{vLane}
    v_cmp_gt_u32 vcc, 36, v{vLane}
    s_lshl_b32 s{t+2}, s{sQi}, 1
    s_sub_u32 s{t+2}, s{t+2}, 1
    v_cndmask_b32 v{vTW}, v33, v32, vcc
    s_cselect_b32 s{t+2}, 8, s{t+2}         ; (8+2b) mod 9
    s_lshl_b32 s{t+2}, s{t+2}, 3
    s_add_u32 s{t+2}, s{t+2}, s{t}
    s_lshl_b32 s{t+2}, s{t+2}, 1
    s_sub_u32 s{t+2}, s{t+2}, s{t+1}
    s_mul_i32 s{t+2}, s{t+2}, {4*9216}      ; (64c + 8a - 4(w&1)) rows
    v_cmp_gt_u32 vcc, 4, v{vLane}
    v_add_u32 v32, s{t+2}, v32
    s_sub_u32 s{t+2}, s{t}, 1
    v_cndmask_b32 v{GX+38}, v33, v32, vcc
    s_cselect_b32 s{t+2}, 8, s{t+2}         ; (a+8) mod 9
    s_lshl_b32 s{t+2}, s{t+2}, 7
    s_lshl_b32 s{t+3}, s{sTb}, 2
    s_add_u32 s{t+3}, s{t+3}, s{sQi}
    s_lshl_b32 s{t+3}, s{t+3}, 2
    s_add_u32 s{t+3}, s{t+3}, s{sWave}
    s_mul_i32 s{t+3}, s{t+3}, {8*1152}
    s_add_u32 s{t+2}, s{t+2}, s{t+3}
    v_mul_u32_u24 v32, 1152, v{vLane}
    v_cmp_gt_u32 vcc, 8, v{vLane}
    v_add_u32 v32, s{t+2}, v32
    v_and_b32 v34, 3, v{vLane}
    v_cndmask_b32 v{GX+37}, v33, v32, vcc
    s_cmp_eq_u32 s{W}, 771
    s_cbranch_scc1 L_flaginit
L_flaginit_ret:
""")
    if common.OPT.get("fine"): stamp(A, 29)
    body0(A, vm)
    A(f"""
L_loop:
    s_cmp_eq_u32 s{sSpecial}, 0
    s_cbranch_scc0 L_sp_odd
L_odd:
""")
    body(A, "o")
    A(f"""
    s_cmp_eq_u32 s{sP+2}, 1
    s_cbranch_scc0 L_first_odd
L_last:
""")
    return body(A, "l")

def phase1_tail(A):
    A(f"""
L_first_odd:
    s_cmp_eq_u32 s{sSpecial}, 0
    s_cbranch_scc0 L_sp_even
L_even:
""")
    body(A, "e")
    A(f"""
    s_cmp_eq_u32 s{sSpecial}, 0
    s_cbranch_scc1 L_odd
    s_mov_b32 s{sPar}, 0
    s_call_b64 {sr(sLink,2)}, L_special
    s_branch L_last
L_sp_odd:
    s_mov_b32 s{sPar}, 0
    s_call_b64 {sr(sLink,2)}, L_special
    s_branch L_odd
L_sp_even:
    s_mov_b32 s{sPar}, 1
    s_call_b64 {sr(sLink,2)}, L_special
    s_branch L_even
""")
    A(f"""
L_sp_first:
    s_call_b64 {sr(sLink2,2)}, L_setup
""")
    for g in switch_ops(): A.many(g)
    A(f"""
    s_bfe_u32 s{sT}, s{sTab}, 0x80010
    s_call_b64 {sr(sLink2,2)}, L_setup
    s_add_u32 s{sXend}, s{sXb}, 1152
    s_branch L_sp_first_ret
""")
    setup_sub(A)
    special_sub(A)
    spin(A, f"s{sPollOff}", "kvspin", "L_kvok")
    A(f"""
L_flaginit:
    v_cmp_lt_u32 vcc, 3, v{vLane}
    v_mov_b32 v12, 0
    v_mov_b32 v13, 0
    v_cndmask_b32 v8, 0, 1, vcc
    v_mov_b32 v14, 0
    v_mov_b32 v15, 0
    v_mov_b32 v9, v8
    v_mov_b32 v10, v8
    v_mov_b32 v11, v8
    s_mov_b32 s{sT}, {WS_FL}
    buffer_store_dwordx4 v[8:11], v{vLane16}, {sr(sWS,4)}, s{sT} offen sc1
    buffer_store_dwordx4 v[12:15], v{vLane16}, {sr(sWS,4)}, s{sT} offen offset:1024 sc1
    buffer_store_dwordx4 v[12:15], v{vLane16}, {sr(sWS,4)}, s{sT} offen offset:2048 sc1
    s_waitcnt vmcnt(0)
    buffer_store_dword v{vOne}, off, {sr(sDB,4)}, 0 sc1
    s_branch L_flaginit_ret
L_inispin:
    s_mov_b32 s{sT+5}, 0x40000
L_inispin_l:
    buffer_load_dword v{GX+34}, off, {sr(sDB,4)}, 0 sc1
    s_sub_u32 s{sT+5}, s{sT+5}, 1
    s_cbranch_scc1 L_iniok
    s_waitcnt vmcnt(0)
    v_cmp_eq_u32 vcc, 0, v{GX+34}
    s_cbranch_vccz L_iniok
    s_sleep 8
    s_branch L_inispin_l
""")

def jobtab(A):
    tab, _, _ = job_table()
    A(".p2align 3")
    A(".type L_jobtab,@object")
    A("L_jobtab:")
    for b in tab:
        A(".byte " + ", ".join(str(x) for x in b))
```

```python
from common import *
import common
import phase1 as p1
from phase1 import (sWS, sDB, sWave, sQi, sT, sM0, sPub, sPollOff, sLink, sTab, sHoff, sHbase, sW, sOff, sStep,
                    sHp, sWp, sHo, sWo, sO1, sO2, sQoff, sGoff, sOUT, sPart, sOutOff,
                    vLane, vLane16, vLane4, vFlagOff, vPoll, vOne, vT, vQa, vAV, vDma, LEAD,
                    F0, F2, F4, FOOB, poll_ld, flag_min)
GACC = 0
Q1 = [96, 100]; Q2 = [[104, 106], [108, 110]]
S = [112, 128]; P = [144, 152]; O = [160, 176]
K1 = [192, 196]; V = [200, 208]; K2 = [216, 220]
AK, AK2, AV = 224, 225, vAV
vO = [226, 227, 228, 229]
vG = [231, 232]
vQt = [236, 237]
vZ = 238
ZP = 246
WOA = 140
sIt, sNA = 36, 37
vPf = 251
vW = [235, 234, 238]

def gld(dst, base, byteoff):
    j = byteoff // 8192
    return f"global_load_dwordx4 {dst}, v{vO[j]}, {sr(base,2)} offset:{byteoff - j*8192 - 4096} sc1"
def stage(s): return 20 * s
def gacc(n, c): return vr(GACC + (c * 3 + n) * 16, 16)
def g_mfma(st, n, c):
    return mfma16(gacc(n, c), ar(stage(st) + 8 + 4 * n, 4), ar(stage(st) + 4 * c, 4), gacc(n, c))
def ld_h(st, ks, i): return gld(ar(stage(st) + 4 * i, 4), sHp, ks * 2048 + i * 1024)
def ld_w(st, ks, n): return gld(ar(stage(st) + 8 + 4 * n, 4), sWp, ks * 3072 + n * 1024)
def wo_reg(ks, n): return ar(WOA + 12 * ks + 4 * n, 4)
def ld_wo(ks, n): return gld(wo_reg(ks, n), sWo, ks * 3072 + n * 1024)

def pre_lds(k): return [ld_h(4+k, k, 0), ld_h(4+k, k, 1)] + [ld_w(4+k, k, n) for n in range(3)]
def off_k1(t): return (t >> 2) * KV_GS + (t & 3) * 1024
def off_v(t, f): return (t >> 2) * KV_GS + KV_V + (t & 3) * KV_VT + f * KV_VF
def off_k2(g): return g * KV_GS + KV_K2

def qk8(u):
    c, t = u & 1, u >> 1
    return mfma8(vr(S[c], 16), vr(K2[(t // 4) % 2] + 2 * ((t % 4) // 2), 2), vr(Q2[c][t % 2], 2), "0")
def qk16(u):
    c, t = u & 1, u >> 1
    return mfma16(vr(S[c], 16), vr(K1[t % 2], 4), vr(Q1[c], 4), vr(S[c], 16))
def pv(u, f):
    c, t = u & 1, u >> 1
    return mfma16(vr(O[c], 16), vr(V[t % 2] + 4 * f, 4), vr(P[c] + 4 * f, 4), vr(O[c], 16))
def zero16(r): return mfma8(vr(r, 16), vr(ZP, 2), vr(ZP, 2), "0")

def kv_dma(r):
    o, ld = p1.kv_dma(r)
    return o + [ld]
KVT = 40
WOT = 0
PRT = 1

def att_body(A, kind):
    ops = []
    def E(u, i): return f"v_exp_f32 v{S[u&1]+i}, v{S[u&1]+i}"
    def Cv(u, i): return f"v_cvt_pk_bf16_f32 v{P[u&1]+i}, v{S[u&1]+2*i}, v{S[u&1]+2*i+1}"
    kvr = list(range(KVT, 40))
    wol = [x for k in range(PRT, 3) for x in pre_lds(k)] + [ld_wo(k, n) for k in range(WOT, 9) for n in range(3)]
    nw = len(wol)
    for u in range(16):
        c, t = u & 1, u >> 1
        kd = kind if kind != 'LM' else ('L' if t < 4 else 'M')
        st = t % 4
        valu = [[E(u,0), E(u,1), Cv(u-1,7)], [E(u,2), E(u,3), E(u,4), Cv(u,0)], [E(u,5), E(u,6), Cv(u,1)],
                [E(u,7), E(u,8), Cv(u,2), Cv(u,3)], [E(u,9), E(u,10), E(u,11)], [E(u,12), E(u,13), Cv(u,4)],
                [E(u,14), E(u,15), Cv(u,5), Cv(u,6)]]
        G = [g_mfma(st, n, c) for n in range(3)] if kd == 'M' else [None] * 3
        M = [G[0], qk8(u + 1), pv(u - 1, 1), qk16(u + 1), G[1], pv(u, 0), G[2]]
        mem = [[] for _ in range(7)]
        rv0 = f"ds_read_b128 {vr(V[(t+1)%2],4)}, v{AV} offset:{off_v(t+1,0)}"
        rv1 = f"ds_read_b128 {vr(V[(t+1)%2]+4,4)}, v{AV} offset:{off_v(t+1,1)}"
        rk1 = f"ds_read_b128 {vr(K1[t%2],4)}, v{AK} offset:{off_k1(t+2)}"
        rk2 = [f"ds_read_b128 {vr(K2[(t//4+1)%2],4)}, v{AK2} offset:{off_k2(t//4+1)}"] if t % 4 == 1 else []
        if kd == 'M':
            if c == 0:
                mem[0] += [rv0]; mem[2] += [rv1]; mem[5] += [rk1]; mem[4] += rk2
            else:
                mem[0] += [ld_h(st, t, 0)]; mem[2] += [ld_w(st, t, 0)]; mem[5] += [ld_w(st, t, 1)]
                mem[6] += [ld_w(st, t, 2), ld_h(st, t, 1), "s_waitcnt vmcnt(15) lgkmcnt(0)"]
                if kind == 'LM' and t == 7: mem[6] += [poll_ld(f"s{sPollOff}")]
        else:
            if c == 0:
                mem[1] += [rv0]; mem[2] += [rv1]; mem[3] += [rk1]; mem[5] += rk2
            if kd == 'L':
                if c == 0: mem[5] += [ld_h(st, t, 0)]
                else:
                    mem[1] += [ld_w(st, t, 0)]; mem[2] += [ld_w(st, t, 1)]; mem[3] += [ld_w(st, t, 2)]; mem[5] += [ld_h(st, t, 1)]
            else:
                for g in ((5,) if c == 0 else (2, 1, 3, 5)):
                    if wol: mem[g] += [wol.pop(0)]
            if c == 1:
                mem[5] += ["s_waitcnt vmcnt(15) lgkmcnt(0)" if (kd == 'L' and t == 3) else "s_waitcnt lgkmcnt(0)"]
        if u == 15:
            valu[3] = valu[3] + [f"v_add_u32 v{AK}, {2*KV_GS}, v{AK}", f"v_add_u32 v{AV}, {2*KV_GS}, v{AV}", f"v_add_u32 v{AK2}, {2*KV_GS}, v{AK2}"]
        for g in range(7):
            if M[g]: ops.append(M[g])
            ops += mem[g] + valu[g]
    if kind == 'A': assert not kvr and not wol, (kvr, wol)
    A.many(ops)
    if kind != 'A':
        A(f"""
    s_add_u32 s{sHp}, s{sHp}, {8*2048}
    s_addc_u32 s{sHp+1}, s{sHp+1}, 0
    s_add_u32 s{sWp}, s{sWp}, {8*3072}
    s_addc_u32 s{sWp+1}, s{sWp+1}, 0
""")
    stamp(A, "next")

def set_bias(c, m):
    a, b, d = vT, vT+1, vT+4
    return f"""
    v_and_b32 v{a}, 0xffff0000, v{m}
    v_sub_f32 v{b}, v{m}, v{a}
    v_and_b32 v{d}, 0xffff0000, v{b}
    v_sub_f32 v{b}, v{b}, v{d}
    v_lshrrev_b32 v{a}, 16, v{a}
    v_or_b32 v{a}, v{a}, v{d}
    v_xor_b32 v{a}, 0x80008000, v{a}
    v_lshrrev_b32 v{b}, 16, v{b}
    v_xor_b32 v{b}, 0x8000, v{b}
    v_cndmask_b32 v{Q2[c][0]}, v{a}, v{vQt[c]}, vcc
    v_cndmask_b32 v{Q2[c][0]+1}, v{b}, 0, vcc
    v_cndmask_b32 v{Q2[c][1]}, v{a}, 0, vcc
    v_cndmask_b32 v{Q2[c][1]+1}, v{b}, v{vQt[c]}, vcc
"""
def max16(s, dst, first):
    o = []
    if first:
        o.append(f"v_max3_f32 v{dst}, v{s}, v{s+1}, v{s+2}")
        for i in range(3, 15, 2): o.append(f"v_max3_f32 v{dst}, v{dst}, v{s+i}, v{s+i+1}")
        o.append(f"v_max_f32 v{dst}, v{dst}, v{s+15}")
    else:
        for i in range(0, 16, 2): o.append(f"v_max3_f32 v{dst}, v{dst}, v{s+i}, v{s+i+1}")
    return o
def half_max(m, tmp):
    return [f"v_mov_b32 v{tmp}, v{m}", "s_nop 1", f"v_permlane32_swap_b32 v{m}, v{tmp}", "s_nop 1", f"v_max_f32 v{m}, v{m}, v{tmp}"]

def transition(A, vm):
    t = sT
    def put(ins, tag=None):
        if ins.startswith(("buffer_", "global_")): vm.issue(tag)
        A(ins)
    stamp_set(A, 12)
    A(f"""
    s_bfe_u32 s{t+2}, s{sTab}, 0x80008
    s_mov_b32 s{p1.sH+2}, {WS_SIZE}
    s_lshl_b32 s{t+2}, s{t+2}, 13
    s_add_u32 s{sHoff}, s{sHbase}, s{t+2}
    s_add_u32 s{t+1}, s{sQoff}, {36*1024}
    v_and_b32 v{vT+4}, 0x7c, v{vLane4}
    v_lshl_add_u32 v{vT+5}, s{sWave}, 2, v{vLane16}
    s_waitcnt vmcnt({vm.need('poll')})
    s_barrier
    {flag_min()[0]}
    {flag_min()[1]}
    v_cmp_eq_u32 vcc, 0, v{vPoll}
    s_cbranch_vccnz L_qspin
L_qok:
""")
    fs = lambda i: stamp(A, i) if (common.OPT.get("fine") or common.OPT.get("fine2")) else None
    fs(50)
    for c in range(2):
        so = sQoff if c == 0 else t + 1
        put(f"buffer_load_dwordx4 {vr(S[0]+8*c,4)}, v{vLane16}, {sr(sWS,4)}, s{so} offen sc1", "q")
        put(f"buffer_load_dwordx4 {vr(S[0]+8*c+4,4)}, v{vLane16}, {sr(sWS,4)}, s{so} offen offset:512 sc1", "q")
        put(f"buffer_load_dword v{vQt[c]}, v{vT+5}, {sr(sWS,4)}, s{so} offen offset:1024 sc1", "q")
        put(f"buffer_load_dword v{vG[c]}, v{vT+4}, {sr(sWS,4)}, s{sGoff} offen offset:{128*c} sc1", "q")
    A(f"""
    v_min_u32 v{AK2}, 512, v{vLane16}
    v_mov_b32 v{ZP}, 0
    v_mov_b32 v{ZP+1}, 0
    s_mov_b32 s{sIt}, 0
    ds_read_b128 {vr(K1[0],4)}, v{vLane16} offset:{off_k1(0)}
    ds_read_b128 {vr(K2[0],4)}, v{AK2} offset:{off_k2(0)}
    ds_read_b128 {vr(K1[1],4)}, v{vLane16} offset:{off_k1(1)}
    ds_read_b128 {vr(V[0],4)}, v{AV} offset:{off_v(0,0)}
    ds_read_b128 {vr(V[0]+4,4)}, v{AV} offset:{off_v(0,1)}
""")
    A(zero16(O[0]))
    A(f"v_mov_b32 v{AK}, v{vLane16}")
    for j in range(4): A(f"v_add_u32 v{vO[j]}, {4096 + j*8192}, v{vLane16}")
    for r in [P[1] + 4 + i for i in range(4)] + [V[1] + 4 + i for i in range(4)]: A(f"v_mov_b32 v{r}, 0")
    A(zero16(O[1]))
    blocks = p1.gelu_ops(0, 64, 80)
    groups = [sum((kv_dma(r) for r in range(r0, r0 + 4)), []) for r0 in range(p1.KVL, KVT, 4)]
    for k in range(PRT): groups.append(pre_lds(k))
    for k in range(WOT): groups.append([ld_wo(k, n) for n in range(3)])
    def run_block(ops, ndma):
        for i, ins in enumerate(ops):
            if i == 40 and groups:
                for x in groups.pop(0): put(x)
            put(ins)
    nper = 0
    fs(51)
    run_block(blocks[0], nper)
    fs(52)
    run_block(blocks[1], nper)
    fs(53)
    A(f"v_cmp_gt_u32 vcc, 32, v{vLane}")
    A(f"s_waitcnt vmcnt({vm.need('q')}) lgkmcnt(0)")
    fs(54)
    A(zero16(GACC))
    A(f"s_set_gpr_idx_on s{sWave}, gpr_idx(SRC0)")
    A("s_nop 0")
    for c in range(2):
        for i in range(4): A(f"v_mov_b32 v{Q1[c]+i}, v{S[0]+8*c+i}")
    A("s_set_gpr_idx_off")
    for c in range(2):
        A(f"v_cndmask_b32 v{Q2[c][0]}, 0, v{vQt[c]}, vcc")
        A(f"v_mov_b32 v{Q2[c][0]+1}, 0")
    for c in range(2):
        w = vW[2 * c]
        A.many([f"v_sub_f32 v{w}, 1.0, v{vG[c]}", f"v_max_f32 v{w}, {f2u(2.0**-40):#x}, v{w}", f"v_rcp_f32 v{vT+c}, v{w}"])
    A("s_nop 0")
    for c in range(2): A(f"v_mul_f32 v{vG[c]}, v{vG[c]}, v{vT+c}")
    b2 = blocks[2]
    ins_at = {4: qk8(0), 12: qk16(0), 20: qk8(1), 27: qk16(1), 33: zero16(GACC + 16)}
    nb2 = []
    for i, ins in enumerate(b2):
        if i in ins_at: nb2.append(ins_at[i])
        nb2.append(ins)
    run_block(nb2, nper)
    fs(55)
    for c in range(2):
        A.many(max16(S[c], S[c], True)); A.many(half_max(S[c], S[c] + 1)); A(set_bias(c, S[c]))
    b3 = blocks[3]
    ins_at = {2: qk8(0), 10: qk16(0), 18: zero16(GACC + 32)}
    nb3 = []
    for i, ins in enumerate(b3):
        if i in ins_at: nb3.append(ins_at[i])
        nb3.append(ins)
    fs(56)
    run_block(nb3, nper)
    fs(57)
    assert not groups
    A(f"""
    s_lshl_b32 s{t}, s{sQi}, 2
    s_add_u32 s{t}, s{t}, s{sWave}
    s_cmp_eq_u32 s{t}, 15
    s_cselect_b32 s{sNA}, 8, 1
""")
    A.many([zero16(GACC + 48), zero16(GACC + 64), zero16(GACC + 80)])
    stamp(A, "next")

def main_loop(A):
    t = sT
    A("L_itA:")
    att_body(A, 'A')
    A(f"""
    s_add_u32 s{sIt}, s{sIt}, 1
    s_cmp_eq_u32 s{sIt}, 1
    s_cbranch_scc0 L_idle_next
    s_mov_b32 s{sPollOff}, {F4}
    s_lshl_b32 s{sPub}, s2, 2
    s_add_u32 s{sPub}, s{sPub}, {F4}
    s_waitcnt vmcnt({3*(9-WOT) + 5*(3-PRT)})
    s_barrier
    buffer_store_dword v{vOne}, v{vFlagOff}, {sr(sWS,4)}, s{sPub} offen sc1
    s_cmp_eq_u32 s{sNA}, 1
    s_cbranch_scc0 L_itA
    s_mov_b32 s{sIt}, 0
    s_cmp_eq_u32 s{sQi}, 3
    s_cselect_b32 s{t}, 0, {3*1024}
    s_lshl_b32 s{t+1}, s{t}, 1
    s_mul_i32 s{t}, s{t}, 3
    s_add_u32 s{sHp}, s{sHp}, s{t+1}
    s_addc_u32 s{sHp+1}, s{sHp+1}, 0
    s_add_u32 s{sWp}, s{sWp}, s{t}
    s_addc_u32 s{sWp+1}, s{sWp+1}, 0
""")
    att_body(A, 'LM')
    A("L_itM:")
    att_body(A, 'M')
    A(f"""
    s_sub_u32 s{sIt}, s{sIt}, 1
    s_cbranch_scc0 L_itM
    s_cmp_eq_u32 s{sNA}, 1
    s_cbranch_scc1 L_hchk
L_done:
""")

NRE = [9, 12, 15, 18, 18, 18]
OL = 96
PL = 168
def ld_o(f):
    c, st = f // 9, f % 9
    return gld(vr(OL + 4 * f, 4), sHo, st * 2048 + c * 1024)

ST = [192, 200]
vR = 230
def o_valu(c):
    o = O[c]
    ops = [f"v_rcp_f32 v{vR}, v{o+10}", "s_nop 0", f"v_mul_f32 v{vR}, v{vR}, v{vG[c]}"]
    ops += [f"v_mul_f32 v{o+i}, v{o+i}, v{vR}" for i in range(10)]
    ops += [f"v_cvt_pk_bf16_f32 v{ST[c]+i}, v{o+2*i}, v{o+2*i+1}" for i in range(5)]
    return ops
def o_stores(c):
    return [f"buffer_store_dwordx4 {vr(ST[c],4)}, v{vLane16}, {sr(sWS,4)}, s{sO1} offen offset:{c*1024} sc1",
            f"buffer_store_dword v{ST[c]+4}, v{vT+1}, {sr(sWS,4)}, s{sO2} offen offset:{c*1024} sc1"]

def tail(A):
    t = sT
    vm = Counter(63, [f"x{k}" for k in range(4) for _ in range(5)]); lg = Counter(15)
    def put(ins, tag=None):
        if ins.startswith(("buffer_", "global_")): vm.issue(tag)
        if ins.startswith("ds_"): lg.issue(tag)
        A(ins)
    fs = lambda i: stamp(A, i) if common.OPT.get("fine3") else None
    order = [4, 5, 6, 0, 1, 2, 3]
    OST = common.OPT.get("ost", 24)
    fill = {m: [] for m in range(42)}
    def spread(ops, m0, per):
        for i, x in enumerate(ops): fill[m0 + i // per].append((x, None))
    chk = [f"s_mov_b32 s{t+3}, {f2u(2.0**60):#x}", f"v_add_f32 v{vT+3}, v{O[0]+10}, v{O[1]+10}", f"v_cmp_nlt_f32 vcc, v{vT+3}, s{t+3}"]
    v0, v1 = o_valu(0), o_valu(1)
    spread(v0[5:], 0, 6)
    fill[2] += [(x, None) for x in chk]
    fill[3] += [("s_cbranch_vccnz L_fallback", None), ("L_fb_ret:", None)] + [(x, "st") for x in o_stores(0)]
    spread(v1, 4, 6)
    fill[7] += [(x, "st") for x in o_stores(1)]
    misc = [f"s_lshl_b32 s{t}, s{sWave}, 11", f"v_add_u32 v{vT+1}, s{t}, v{vLane16}", f"v_add_u32 v{vT+2}, {6*8192}, v{vT+1}",
            f"s_add_u32 s{t+4}, s{sPart}, s{t}", f"s_lshl_b32 s{t}, s{sWave}, 13", f"v_add_u32 v{vT+3}, s{t}, v{vLane16}",
            f"v_add_u32 v{vT+4}, 0x10000, v{vT+3}", f"v_mov_b32 v{vT+5}, 24576", f"s_mov_b32 s{t+5}, 0x10000",
            f"s_add_u32 s{t+2}, s{sOutOff}, {36864+64}", f"s_movk_i32 s{t+1}, 128"]
    spread(misc, 8, 3)
    fill[12] += [(x, None) for x in [f"s_cmp_lt_u32 s{sWave}, 2", f"s_cselect_b32 s{t+1}, s{t+1}, {36864-64}", "s_cselect_b64 vcc, -1, 0"]]
    fill[13] += [(x, None) for x in [f"v_cndmask_b32 v{vW[1]}, v{vW[2]}, v{vW[0]}, vcc", f"s_add_u32 s{t+1}, s{t+1}, s{sOutOff}"]]
    fill[14] += [("s_barrier", None)]
    A(f"v_cvt_pk_bf16_f32 v{P[1]+7}, v{S[1]+14}, v{S[1]+15}")
    A(f"v_lshrrev_b32 v{vT+1}, 5, v{vLane}")
    A(f"v_lshl_add_u32 v{vT+1}, v{vT+1}, 30, v{vLane16}")
    A(pv(15, 1))
    A.many(v0[:5])
    A(f"s_cmp_eq_u32 s{sQi}, 3"); A("s_cbranch_scc1 L_helper_tail")
    olist = list(range(18))
    m = 0
    for k, st in enumerate(order):
        if st < 4 and st > 0: A(f"s_waitcnt vmcnt({vm.need(f'x{st}')})")
        fs(30 + k)
        for j in range(6):
            A(g_mfma(st, j % 3, j // 3))
            for ins, tag in fill[m]: put(ins, tag)
            if m >= OST and (m - OST) % 2 == 0 and olist:
                f = olist.pop(0); put(ld_o(f), f"o{f}")
            m += 1
        if k == 1: stamp(A, 21)
    stamp(A, 22)
    def check(g):
        r = OL + 12 * g
        pre = [lambda: f"s_waitcnt vmcnt({vm.need(f'o{3*g+2}')})", f"v_max3_u32 v{vT}, v{r}, v{r+1}, v{r+2}"]
        pre += [f"v_max3_u32 v{vT}, v{vT}, v{r+i}, v{r+i+1}" for i in range(3, 11, 2)]
        pre += [f"v_max_u32 v{vT}, v{vT}, v{r+11}", f"v_cmp_eq_u32 vcc, -1, v{vT}"]
        return pre, [f"s_cbranch_vccnz L_ore{g}", f"L_ook{g}:"]
    def wr(q, k): return f"ds_write_b128 v{vT+1+q//6}, {vr(GACC+8*q+4*k,4)} offset:{(q%6)*8192 + k*1024}"
    def rd(i, w, k): return f"ds_read_b128 {vr(32*i + 8*w + 4*k, 4)}, v{vT+3+i//2} offset:{(i%2)*32768 + w*2048 + k*1024}"
    def adds(i):
        b = 32 * i
        return [f"v_add_f32 v{b+r}, v{b+r}, v{b+8+r}" for r in range(8)] + [f"v_add_f32 v{b+16+r}, v{b+16+r}, v{b+24+r}" for r in range(8)] + \
               [f"v_add_f32 v{b+r}, v{b+r}, v{b+16+r}" for r in range(8)]
    def fin(i):
        b = 32 * i
        so = [sOutOff, t + 1, t + 2][i]
        return [f"v_add_f32 v{b+r}, v{b+r}, v{PL+8*i+r}" for r in range(8)] + [f"v_mul_f32 v{b+r}, v{b+r}, v{vW[i]}" for r in range(8)] + \
               [f"v_cvt_pk_bf16_f32 v{b+16+r}, v{b+2*r}, v{b+2*r+1}" for r in range(4)] + \
               [f"buffer_store_dwordx4 {vr(b+16,4)}, v{vQa}, {sr(sOUT,4)}, s{so} offen"]
    seq = [(0, n, st) for st in range(9) for n in range(2)] + [(0, 2, st) for st in range(9)] + \
          [(1, n, st) for n in range(3) for st in range(9)]
    g = {m: [] for m in range(54)}
    def at(m, ops, per=99):
        for i, x in enumerate(ops): g[m + i // per].append(x)
    for i, f in enumerate(olist): at(2 * i, [(ld_o(f), f"o{f}")])
    for grp, m0 in ((1, 3), (2, 9), (3, 17), (4, 20), (5, 23)):
        pre, post = check(grp)
        at(m0, pre, 4); at(m0 + 2, post)
    wpos = [21, 22, 24, 25, 26, 27, 28, 29,  33, 35, 37, 38,  40, 41, 43, 44,  49, 50, 52, 53]
    for i, m0 in enumerate(wpos): at(m0, [(wr(i // 2, i % 2), f"w{i//8}")])
    at(26, [(f"buffer_load_dword v{vPf}, v{vT+5}, {sr(sWS,4)}, s{sPart} offen sc1", "pf")])
    at(32, [lambda: f"s_waitcnt lgkmcnt({lg.need('w0')})", "s_barrier"])
    at(33, [(rd(0, j // 2, j % 2), "r0") for j in range(8)], 4)
    at(36, [lambda: f"s_waitcnt lgkmcnt({lg.need('r0')})"] + adds(0), 5)
    at(41, ["s_waitcnt vmcnt(0)", f"v_cmp_eq_u32 vcc, 0, v{vPf}"]); at(42, ["s_cbranch_vccnz L_pspin", "L_pok:"])
    for i in range(3):
        at([42, 45, 46][i], [(f"buffer_load_dwordx4 {vr(PL+8*i+4*k,4)}, v{vLane16}, {sr(sWS,4)}, s{t+4} offen offset:{k*1024} sc1", f"pl{i}") for k in range(2)]
           + [f"s_add_u32 s{t+4}, s{t+4}, 8192"])
    at(47, [lambda: f"s_waitcnt lgkmcnt({lg.need('w1')})", "s_barrier"])
    at(48, [(rd(1, j // 2, j % 2), "r1") for j in range(8)], 4)
    a1 = adds(1)
    at(51, [lambda: f"s_waitcnt lgkmcnt({lg.need('r1')})"] + a1[:12], 5)
    def emit(x):
        if callable(x): x = x()
        if isinstance(x, tuple): put(*x)
        else: put(x)
    pre, post = check(0)
    for x in pre + post: emit(x)
    for m, (c, n, st) in enumerate(seq):
        A(mfma16(gacc(n, c), wo_reg(st, n), vr(OL + 4 * (c * 9 + st), 4), gacc(n, c)))
        for x in g[m]: emit(x)
        if m % 9 == 8: fs(40 + m // 9)
    stamp(A, 23)
    for x in a1[12:]: put(x)
    for j in range(4): put(wr(10 + j // 2, j % 2), "w")
    A(f"s_waitcnt vmcnt({vm.need('pl1')})")
    for x in fin(0): put(x)
    A("s_waitcnt lgkmcnt(0)")
    A("s_barrier")
    stamp(A, 24)
    for j in range(8): put(rd(2, j // 2, j % 2), "r")
    for x in fin(1): put(x)
    A(f"s_waitcnt vmcnt({vm.need('pl2')}) lgkmcnt(0)")
    for x in adds(2) + fin(2): put(x)
    A("L_fin:")
    stamp(A, 25)
    if common.STAMPS: A("s_waitcnt vmcnt(0)")
    stamp(A, 26)

def fallback(A):
    t = sT
    M = [vT + 2, vT + 3]
    def rebase():
        A(f"v_add_u32 v{AK}, {-16*KV_GS & 0xffffffff:#x}, v{AK}")
        A(f"v_add_u32 v{AV}, {-16*KV_GS & 0xffffffff:#x}, v{AV}")
        A(f"v_add_u32 v{AK2}, {-16*KV_GS & 0xffffffff:#x}, v{AK2}")
        A(f"s_mov_b32 s{t}, 16")
    def loop(name, work, needv):
        A(f"L_{name}:")
        A(f"ds_read_b128 {vr(K2[0],4)}, v{AK2} offset:{off_k2(0)}")
        for tt in range(4):
            A(f"ds_read_b128 {vr(K1[tt%2],4)}, v{AK} offset:{off_k1(tt)}")
            if needv:
                for f in range(2): A(f"ds_read_b128 {vr(V[tt%2]+4*f,4)}, v{AV} offset:{off_v(tt,f)}")
            A("s_waitcnt lgkmcnt(0)")
            A.many([qk8(2*tt), qk8(2*tt+1), "s_nop 15", qk16(2*tt), qk16(2*tt+1), "s_nop 15"])
            for c in range(2): work(2*tt + c)
        A(f"v_add_u32 v{AK}, {KV_GS}, v{AK}"); A(f"v_add_u32 v{AV}, {KV_GS}, v{AV}"); A(f"v_add_u32 v{AK2}, {KV_GS}, v{AK2}")
        A(f"s_sub_u32 s{t}, s{t}, 1"); A(f"s_cmp_lg_u32 s{t}, 0"); A(f"s_cbranch_scc1 L_{name}")
    A("L_fallback:")
    A(f"v_cmp_gt_u32 vcc, 32, v{vLane}")
    rebase()
    for c in range(2):
        A(f"v_cndmask_b32 v{Q2[c][0]}, 0, v{vQt[c]}, vcc"); A(f"v_mov_b32 v{Q2[c][0]+1}, 0")
        A(f"v_mov_b32 v{Q2[c][1]}, 0"); A(f"v_cndmask_b32 v{Q2[c][1]+1}, 0, v{vQt[c]}, vcc")
        A(f"v_mov_b32 v{M[c]}, 0xff800000")
    loop("fbmax", lambda u: A.many(max16(S[u & 1], M[u & 1], False)), False)
    for c in range(2):
        A.many(half_max(M[c], vT)); A(set_bias(c, M[c]))
    for i in range(32): A(f"v_mov_b32 v{O[0]+i}, 0")
    rebase()
    def work(u):
        s, p = S[u & 1], P[u & 1]
        for i in range(16): A(f"v_exp_f32 v{s+i}, v{s+i}")
        A("s_nop 0")
        for i in range(8): A(f"v_cvt_pk_bf16_f32 v{p+i}, v{s+2*i}, v{s+2*i+1}")
        A.many(["s_nop 1", pv(u, 0), pv(u, 1)])
    loop("fbexp", work, True)
    A(f"""
    v_lshrrev_b32 v{vT+1}, 5, v{vLane}
    v_lshl_add_u32 v{vT+1}, v{vT+1}, 30, v{vLane16}
    s_nop 15
""")
    A.many(o_valu(0))
    A(f"s_cmp_eq_u32 s{sQi}, 3")
    A("s_cbranch_scc1 L_fb_ret_h")
    A("s_branch L_fb_ret")

def out_of_line(A):
    t = sT
    A(f"""
L_idle_next:
    s_cmp_lt_u32 s{sIt}, 8
    s_cbranch_scc1 L_itA
    s_branch L_done
L_hchk:
    s_mov_b32 s{sNA}, 0
    s_mov_b32 s{sIt}, 4
    {flag_min()[0]}
    {flag_min()[1]}
    v_cmp_eq_u32 vcc, 0, v{vPoll}
    s_cbranch_vccz L_itM
""")
    p1.spin(A, f"s{sPollOff}", "hspin", "L_itM")
    p1.spin(A, f"s{sPollOff}", "qspin", "L_qok")
    A(f"""
L_helper_tail:
""")
    A.many(o_valu(0)[5:])
    A(f"""
    s_mov_b32 s{t+3}, {f2u(2.0**60):#x}
    v_add_f32 v{vT+3}, v{O[0]+10}, v{O[1]+10}
    v_cmp_nlt_f32 vcc, v{vT+3}, s{t+3}
    s_cbranch_vccnz L_fallback
L_fb_ret_h:
""")
    A.many(o_stores(0) + o_valu(1) + o_stores(1))
    A(f"""
    s_cmp_eq_u32 s{sWave}, 3
    s_cbranch_scc1 L_fin
    v_mov_b32 v{vT+5}, 24576
    s_nop 0
    s_mov_b32 s{t+4}, s{sPart}
    s_nop 3
""")
    for i in range(24):
        if i and i % 4 == 0: A(f"s_add_u32 s{t+4}, s{t+4}, 4096")
        A(f"buffer_store_dwordx4 {vr(GACC+4*i,4)}, v{vLane16}, {sr(sWS,4)}, s{t+4} offen offset:{(i%4)*1024} sc1")
    A(f"""
    s_waitcnt vmcnt(0)
    buffer_store_dword v{vOne}, v{vT+5}, {sr(sWS,4)}, s{sPart} offen sc1
    s_branch L_fin
L_pspin:
    buffer_load_dword v{vPf}, v{vT+5}, {sr(sWS,4)}, s{sPart} offen sc1
    s_sub_u32 s{t+5}, s{t+5}, 1
    s_cbranch_scc1 L_pok
    s_waitcnt vmcnt(0)
    v_cmp_eq_u32 vcc, 0, v{vPf}
    s_cbranch_vccnz L_pspin
    s_branch L_pok
""")
    for g in range(6):
        r = OL + 12 * g
        A(f"L_ore{g}:")
        for f in range(3 * g, NRE[g]): A(ld_o(f))
        A(f"""
    s_sub_u32 s{t+5}, s{t+5}, 1
    s_cbranch_scc1 L_fin
    s_waitcnt vmcnt(0)
    v_max3_u32 v{vT}, v{r}, v{r+1}, v{r+2}
""")
        for i in range(3, 11, 2): A(f"v_max3_u32 v{vT}, v{vT}, v{r+i}, v{r+i+1}")
        A(f"""
    v_max_u32 v{vT}, v{vT}, v{r+11}
    v_cmp_eq_u32 vcc, -1, v{vT}
    s_cbranch_vccnz L_ore{g}
    s_branch L_ook{g}
""")
    fallback(A)
```

```python
from common import *
import common

S_X, S_WQ, S_WK, S_WV, S_WO, S_WG, S_WU, S_WD, S_GW, S_OUT, S_DBG, S_WS = 4, 6, 8, 10, 12, 16, 18, 20, 22, 24, 26, 28
sW, sWn, nOff, sX, sWS, sH, sP, sPD = 32, 36, 88, 40, 44, 48, 52, 56
sTch = 94
sWave, sOff, sStep, nStep, sHoff, sHbase, sTab, sM0, sRowOff = 60, 61, 62, 63, 64, 65, 66, 68, 69
sPs0, sPs1, sPd0, sPd1, sXc, sXend = 70, 71, 72, 73, 74, 85
sT = 76
sLink, sLink2, sSpecial, sTb, sC2, sFb, sPub, sPar = 82, 84, 86, 87, 89, 90, 92, 93
sXq, sQi = 94, 95
sDB = 96
sBase, sEnd, nStart, sSkip, sRot = 100, 101, 31, 30, 3
sPollOff = 74
nD = 75
sHp, sWp, sHo, sWo = 12, 14, 16, 18
sO1, sO2, sQoff, sGoff = 20, 21, 22, 23
sOUT = 24
sPart, sOutOff = 4, 5
SRD3 = 0x00020000
WG_SIZE = 576 * 9216
LEAD = 12
PB = 4
NT_W = ""
NT_X = ""
NT_P = ""
NT_T = ""

ACC = [0, 64]
AF = 128
XT = 152
GT = 184
PK = 200
PF = 208
vDma = 220
vTR = 224
vTW, vNext, vF, vLane16, vC1, vPsrc, vPtr, vR8, vC16, vFlagOff, vOne, vLane, vQa, vAV = range(230, 244)
vT = 244
vPoll = 244
vLane4 = 250
vDummy = 251
F0, F2, F4, FOOB = WS_FL, WS_FL + 1024, WS_FL + 2048, 0x40000000

def xreg(tb2, ks):
    i = ks * 2 + tb2
    return ar(4 * i, 4) if i < 64 else vr(XT + 4 * (i - 64), 4)

def tr_reads(ks, region):
    out = []
    third = min(region // 12, 2)
    for r in range(4):
        a, rr = r // 2, r % 2
        reg = AF + (ks % 3) * 8 + a * 4 + rr * 2
        off = (region // 4 - third * 3) * 16384 + (region % 4) * 1024 + rr * 512
        out.append(f"ds_read_b64_tr_b16 {vr(reg,2)}, v{vTR + third*2 + a} offset:{off}")
    return out

def gelu_ops(accset, gt=GT, pkb=PK):
    blocks = []
    for blk in range(4):
        ops = []
        g = ACC[accset] + 16 * blk; u = g + 8
        t = gt; pk = pkb + 4 * (blk % 2)
        ops += [f"v_mul_f32 v{t+i}, v{g+i}, v{g+i}" for i in range(8)]
        ops += [f"v_fma_f32 v{t+i}, v{t+i}, s{sC2}, v{vC1}" for i in range(8)]
        ops += [f"v_mul_f32 v{t+i}, v{t+i}, v{g+i}" for i in range(8)]
        for i in range(8):
            ops += [f"v_exp_f32 v{t+i}, v{t+i}", f"v_mul_f32 v{g+i}, v{g+i}, v{u+i}"]
        ops += [f"v_add_f32 v{t+i}, 1.0, v{t+i}" for i in range(8)]
        ops += [f"v_rcp_f32 v{t+i}, v{t+i}" for i in range(8)]
        ops += [f"v_mul_f32 v{g+i}, v{g+i}, v{t+i}" for i in range(8)]
        ops += [f"v_cvt_pk_bf16_f32 v{pk+i}, v{g+2*i}, v{g+2*i+1}" for i in range(4)]
        ops += [f"buffer_store_dwordx4 {vr(pk,4)}, v{vLane16}, {sr(sH,4)}, s{sHoff} offen offset:{blk*1024} sc1"]
        blocks.append(ops)
    return blocks

def w_dma(region, kpos):
    o = []
    if region % 4 == 0:
        o = [f"s_add_u32 m0, s{sM0}, {(region//4)*16384}", f"s_add_u32 s{sOff}, s{sOff}, s{sStep}"]
        if kpos > 0:
            o += [f"s_cmp_eq_u32 s{sOff}, s{sEnd}", f"s_cselect_b32 s{sOff}, s{sBase}, s{sOff}"]
    j = region % 4
    return o, f"buffer_load_dwordx4 v{vDma+j}, {sr(sW,4)}, s{sOff} offen offset:{j*1024} sc1{NT_W} lds"

def switch_ops():
    return [[f"s_mov_b64 {sr(sW,2)}, {sr(sWn,2)}", f"s_mov_b32 s{sW+2}, s{sWn+2}", f"s_mov_b32 s{sStep}, s{nStep}", f"v_mov_b32 v{vDma}, v{vNext}"],
            [f"s_mov_b32 s{sOff}, s{nStart}", f"s_mov_b32 s{sBase}, s{nOff}", f"s_mul_i32 s{sEnd}, s{nStep}, 9", f"s_add_u32 s{sEnd}, s{sEnd}, s{nOff}"],
            [f"v_add_u32 v{vDma+1}, s{nD}, v{vDma}", f"v_add_u32 v{vDma+2}, s{nD}, v{vDma+1}", f"v_add_u32 v{vDma+3}, s{nD}, v{vDma+2}"]]

def next_ops():
    t = sT
    return [[f"s_bfe_u32 s{t}, s{sTab}, 0x80018", f"s_lshl_b32 s{t+1}, s{t}, 7", f"s_add_u32 s{nOff}, s{t+1}, s{sRowOff}"],
            [f"s_cmp_lt_u32 s{t}, 72", f"s_cselect_b32 s{sSkip}, 1, 0", f"s_mul_i32 s{t+1}, s{sRot}, {64*9216}"],
            [f"s_add_u32 s{nStart}, s{nOff}, s{t+1}", f"s_lshr_b64 {sr(sTab,2)}, {sr(sTab,2)}, 8"],
            [f"s_mov_b64 {sr(sWn,2)}, {sr(sFb,2)}", f"s_mov_b32 s{sWn+2}, {WG_SIZE}"]]

def poll_ld(soff):
    return f"buffer_load_dwordx4 {vr(vPoll,4)}, v{vLane16}, {sr(sWS,4)}, {soff} offen sc1"
def flag_min():
    return [f"v_min3_u32 v{vPoll}, v{vPoll}, v{vPoll+1}, v{vPoll+2}", f"v_min_u32 v{vPoll}, v{vPoll}, v{vPoll+3}"]

def emit_stream(A, accset, pinned, pre, queue, qstart, vm, lg, budget=24, maxpin=1, one=False, qend=136):
    qi = 0
    total = sum(cost(x) for x in queue if not x.startswith("buffer_") and x != "BREAK"); done = 0
    def put(ins):
        if callable(ins): ins = ins()
        if ins == "FULL": return 100
        tag = None
        if isinstance(ins, tuple): ins, tag = ins
        op = ins.split()[0]
        if op.startswith("ds_"): lg.issue(tag)
        if op.startswith("buffer_") or op.startswith("global_"): vm.issue(tag)
        A(ins)
        return 0 if ins.endswith(":") else cost(ins)
    for ks in range(36):
        for p in pre[ks]: put(p)
        for m in range(4):
            a, tb2 = m // 2, m % 2
            d = vr(ACC[accset] + 16 * m, 16)
            A(mfma16(d, vr(AF + (ks % 3) * 8 + a * 4, 4), xreg(tb2, ks), "0" if ks == 0 else d))
            used = 4 if m == 3 else 0
            gap = ks * 4 + m
            if gap >= qstart and qi < len(queue) and queue[qi].startswith("buffer_") and len(pinned[ks][m]) <= maxpin:
                used += put(queue[qi]); qi += 1
            for p in pinned[ks][m]: used += put(p)
            while gap >= qstart and qi < len(queue) and not queue[qi].startswith("buffer_") and used + cost(queue[qi]) <= budget \
                    and done <= total * (gap + 1 - qstart) / (qend - qstart):
                if queue[qi] == "BREAK":
                    qi += 1; break
                c_ = put(queue[qi]); used += c_; done += c_; qi += 1
    assert qi == len(queue), f"queue not drained {qi}/{len(queue)}"
    stamp(A, "next")

def touch_w():
    return [[f"s_add_u32 s{sT+3}, s{nOff}, s{sTch}", f"s_cmp_eq_u32 s{sSkip}, 0", f"s_cselect_b32 s{sT+3}, {FOOB}, s{sT+3}"],
            [(f"buffer_load_dword v{vDummy}, v{vTW}, {sr(sWn,4)}, s{sT+3} offen{NT_T}", "tch")]]

def kv_dma(r):
    o = []
    if r % 4 == 0:
        o = [f"s_add_u32 m0, s{sM0}, {(r//4)*16384}", f"s_add_u32 s{sEnd}, s{sM0}, {WS_KV + (r//4)*16384}"]
    return o, f"buffer_load_dwordx4 v{vLane16}, {sr(sX,4)}, s{sEnd} offen offset:{(r%4)*1024} sc1 lds"
KVL = 32

def body(A, kind):
    odd, last = kind == "o", kind == "l"
    accset = 1 if odd else 0
    vm = Counter(63); lg = Counter(15, ["k0"]*4 + ["k1"]*4)
    pinned = [[[] for _ in range(4)] for _ in range(36)]
    pre = [[] for _ in range(36)]
    assert LEAD == 12
    bars = {10: "d19", 18: "d31", 30: "d47"} if not last else {10: "d19", 18: "d31", 26: "d35", 32: "v7"}
    for ks in range(36):
        pre[ks].append(lambda ks=ks: f"s_waitcnt lgkmcnt({lg.need(f'k{ks}')})")
        bar = ks in bars
        if bar:
            pinned[ks][0] += [lambda ks=ks: f"s_waitcnt vmcnt({vm.need(bars[ks])})", "s_barrier", "FULL"]
        if last and ks >= 34: continue
        k2 = (ks + 2) % 36
        for r, ins in enumerate(tr_reads(k2, k2)):
            pinned[ks][[1,1,2,3][r] if bar else r].append((ins, f"k{ks+2}"))
    slots = sorted([(k, 2) for k in range(36)] + [(k, 0) for k in range(1, 36, 2)])
    SW = 16
    if not last:
        sw = switch_ops()
        pinned[SW-1][3] += sw[0]; pinned[SW][0] += sw[1]; pinned[SW][3] += sw[2]
    def place(k, g, o, ld):
        if g == 0: pinned[k-1][3] += o
        else: pinned[k][g-1] += o
        pinned[k][g] += [ld]
    for i, (k, g) in enumerate(slots[:24 if last else 36]):
        rho = LEAD + i
        o, ld = w_dma(rho % 36, rho % 36)
        place(k, g, o, (ld, f"d{rho}"))
        if rho == 36: assert (k, g) == (SW, 2)
    if last:
        ks_ = [x for x in slots[24:] if x[0] < 32] + [(32,2), (33,0), (33,2), (34,0), (34,1), (34,3), (35,1), (35,3)]
        assert len(ks_) == KVL
        for r, (k, g) in enumerate(ks_):
            assert r <= max(x for x in bars if (x, 0) < (k, g))
            o, ld = kv_dma(r)
            place(k, g, o, (ld, f"v{r}"))
    pinned[0][0] += [f"s_and_b32 s{sT+2}, s{sTab}, 0xff", f"s_lshl_b32 s{sT+2}, s{sT+2}, 13", f"s_add_u32 s{sHoff}, s{sHbase}, s{sT+2}"]
    if odd or last:
        pinned[18][1] += [f"buffer_store_dword v{vOne}, v{vFlagOff}, {sr(sWS,4)}, s{sPub} offen sc1"]
    if odd:
        pinned[26][1] += [f"s_lshl_b32 s{sPub}, s2, 2", f"s_add_u32 s{sPub}, s{sPub}, {F2}", f"s_cmp_lg_u32 s{sP+2}, 1", f"s_cselect_b32 s{sPub}, s{sPub}, {FOOB}"]
    if last:
        pinned[14][0] += flag_min() + [f"v_cmp_eq_u32 vcc, 0, v{vPoll}"]
        pinned[14][1] += [f"s_cbranch_vccnz L_kvspin", f"L_kvok:"]
        pinned[12][0] += [f"s_mov_b64 {sr(sX,2)}, {sr(S_WS,2)}", f"s_mov_b32 s{sX+2}, {WS_KV + 16*KV_GS}"]
        pinned[2][0] += [f"s_mov_b32 s{sPollOff}, {F0}", poll_ld(f"s{sPollOff}")]
        pinned[30][0] += [f"s_mov_b32 s{sPollOff}, {F2}", (poll_ld(f"s{sPollOff}"), "poll")]
    else:
        nx = next_ops()
        for grp, (k, g) in zip(nx, [(17,1), (17,3), (19,1), (19,3)]): pinned[k][g] += grp
        units = [0, 1] if odd else [2]
        pos = [(24,2), (24,3), (25,0), (25,1)]
        for n, u in enumerate(units):
            for e in range(2):
                k, g = pos[2*n + e]
                if e == 0: pinned[k][g] += [f"s_add_u32 m0, s{sM0}, {9*16384 + n*2048}"]
                pinned[k][g] += [f"s_add_u32 s{sT+3}, s{sPs0+e}, {u*128}",
                                 (f"buffer_load_dwordx4 v{vPsrc}, {sr(sP,4)}, s{sT+3} offen offset:{e*1024}{NT_P} lds", "pk")]
        tw = touch_w()
        pinned[24][0] += tw[0]; pinned[24][1] += tw[1]
    for n, u in enumerate([0, 1] if kind == "e" else [2]):
        pf = [PF, GT + 8][n]
        for r in range(4):
            e, rr = r // 2, r % 2
            k, g = [[(10,1), (10,2), (11,1), (11,1)], [(14,3), (14,3), (15,1), (15,1)]][n][r]
            pinned[k][g].append(
                (f"ds_read_b64_tr_b16 {vr(pf + e*4 + rr*2,2)}, v{vPtr} offset:{n*2048 + rr*512 + e*64}", f"p{n}"))
        for e in range(2):
            nb = 2 * u + e
            k, g = [[(12,1), (12,3)], [(22,1), (22,3)]][n][e]
            if n == 0 and e == 0: pinned[k][g].append(lambda: f"s_waitcnt lgkmcnt({lg.need('p0')})")
            pinned[k][g].append(
                f"buffer_store_dwordx4 {vr(pf + e*4, 4)}, v{vLane16}, {sr(sPD,4)}, s{sPd0 + nb//3} offen offset:{(nb%3)*1024} sc1")
    if odd:
        pinned[35][1] += [f"s_cmp_gt_u32 s{sP+2}, 1", f"s_cselect_b32 s{sPD+2}, {WS_SIZE}, 0"]
    elif not last:
        pinned[35][1] += [f"s_mov_b32 s{sP+2}, 1"]
    q = sum(gelu_ops(1 - accset), [])
    emit_stream(A, accset, pinned, pre, q, 4, vm, lg)
    return vm

XR = 64
GX = 80
vXd = 76
sXb = 64
def elem_dma(e):
    region = (e + 8) % 40
    if e < 72 and e % 8 < 4:
        n = e % 8
        o = []
        if n == 0:
            o = [f"s_add_u32 m0, s{sM0}, {(region//4)*16384}"]
            o += [f"s_add_u32 s{sXc}, s{sXc}, 128", f"s_cmp_eq_u32 s{sXc}, s{sXend}", f"s_cselect_b32 s{sXc}, s{sXb}, s{sXc}"] if e > 0 else ["s_nop 0"]
        return o + [(f"buffer_load_dwordx4 v{vXd+n}, {sr(sX,4)}, s{sXc} offen offset:{n*1024}{NT_X} lds", f"e{e}")]
    kpos = (e // 8) * 4 + e % 4 if e < 72 else e - 72
    o, ld = w_dma(region, kpos)
    return o + [(ld, f"e{e}")]
def x_reads(j, s):
    out = []
    base = ((8 * j + 8) % 40) * 4096
    seg = base // 57344
    for tb2 in range(2):
        out.append(f"ds_read_b128 {xreg(tb2, 4*j+s)}, v{XR + seg*4 + s} offset:{base - seg*57344 + tb2*4096}")
    return out
def wregion0(ks):
    if ks >= 36: return ks - 36
    return (8 * (ks // 4) + 4 + ks % 4 + 8) % 40
def put_elems(A, vm, es):
    for e in es:
        for ins in elem_dma(e):
            if isinstance(ins, tuple): vm.issue(ins[1]); ins = ins[0]
            A(ins)

def gate_queue():
    a = GX + 24; b = GX + 25
    q = [f"v_mov_b32 v{a}, 0"]
    for i in range(3):
        for k in range(3): q.append(f"v_dot2c_f32_bf16 v{a}, v{GX+4*i+k}, v{GX+12+4*i+k}")
    q += ["s_nop 0", "BREAK"]
    for dpp in ("quad_perm:[1,0,3,2]", "quad_perm:[2,3,0,1]", "row_half_mirror", "row_mirror"):
        q += [f"v_add_f32_dpp v{a}, v{a}, v{a} {dpp} row_mask:0xf bank_mask:0xf", "BREAK"]
    q += [f"v_mov_b32 v{b}, v{a}", "BREAK", f"v_permlane16_swap_b32 v{a}, v{b}", "BREAK",
          f"v_add_f32 v{a}, v{a}, v{b}", f"v_mul_f32 v{a}, {f2u(-math.log2(math.e)):#x}, v{a}",
          f"v_exp_f32 v{a}, v{a}", "BREAK", f"v_add_f32 v{a}, 1.0, v{a}", f"v_rcp_f32 v{a}, v{a}",
          f"buffer_store_dword v{a}, v{GX+26}, {sr(sWS,4)}, 0 offen sc1"]
    s = GX + 28
    for c in range(2):
        q += [f"buffer_store_dwordx4 {vr(s,4)}, v{vLane16}, {sr(sWS,4)}, s{sO1} offen offset:{c*1024} sc1",
              f"buffer_store_dword v{s}, v{GX+27}, {sr(sWS,4)}, s{sO2} offen offset:{c*1024} sc1"]
    q += [f"buffer_store_dword v{GX+32}, v{GX+33}, {sr(sWS,4)}, s{sPart} offen sc1"]
    return q

def body0(A, vm):
    lg = Counter(15)
    stamp(A, 1)
    if common.OPT.get("padmin"):
        A(f"s_lshl_b32 s0, s2, 2"); A(f"s_add_u32 s0, s0, {WS_FL + 4096}")
        A(f"buffer_store_dword v253, v{vFlagOff}, {sr(sWS,4)}, s0 offen sc1"); vm.issue("pad")
    A(f"s_waitcnt vmcnt({vm.need('e7')})")
    A("s_barrier")
    stamp(A, 2)
    for s in range(2):
        for ins in x_reads(0, s) + tr_reads(s, wregion0(s)):
            A(ins); lg.issue(f"k{s}")
    for s in range(2, 4):
        for ins in x_reads(0, s):
            A(ins); lg.issue(f"x")
    put_elems(A, vm, range(12, 16))
    if common.OPT.get("touch0"):
        A(f"buffer_load_dword v{vDummy}, v{GX+37}, {sr(sX,4)}, 0 offen"); vm.issue("t")
        A(f"buffer_load_dword v{vDummy}, v{GX+38}, {sr(sW,4)}, s{sBase} offen"); vm.issue("t")
        tw = touch_w(); A.many(tw[0]); A(tw[1][0][0]); vm.issue("t")
    put_elems(A, vm, range(16, 20))
    pinned = [[[] for _ in range(4)] for _ in range(36)]
    pre = [[] for _ in range(36)]
    e = 20
    elast = 72 + LEAD - 1
    for ks in range(36):
        pre[ks].append(lambda ks=ks: f"s_waitcnt lgkmcnt({lg.need(f'k{ks}')})")
        j = (ks + 2) // 4
        if ks % 4 == 2:
            last = 8 * j + 7 if j < 9 else elast
            if common.OPT.get("fine"):
                pinned[ks][0] += ["s_memtime s[0:1]", "s_waitcnt lgkmcnt(0)", f"v_writelane_b32 v255, s0, {30+2*j}"]
            pinned[ks][0] += [lambda last=last: f"s_waitcnt vmcnt({vm.need(f'e{last}')})", "s_barrier"]
            if common.OPT.get("fine"):
                pinned[ks][0] += ["s_memtime s[0:1]", "s_waitcnt lgkmcnt(0)", f"v_writelane_b32 v255, s0, {31+2*j}"]
        if ks % 4 >= 2 and j < 9:
            s0 = 2 * (ks % 4 - 2)
            xs = x_reads(j, s0) + x_reads(j, s0 + 1)
            for r in range(4): pinned[ks][r].append((xs[r], "x"))
        for r, ins in enumerate(tr_reads((ks + 2) % 36, wregion0(ks + 2))):
            pinned[ks][r].append((ins, f"k{ks+2}"))
        extra = elast + 1 - e > 2 * (36 - ks) and ks >= 12
        for m in ((0, 1, 2, 3) if ks < 2 else (1, 2, 3) if extra else (1, 3)):
            if e <= elast and (e < 40 or e <= 40 + 8 * (j - 1) + 6):
                if e == 72:
                    sw = switch_ops()
                    pinned[23][3] += sw[0][:2]; pinned[24][0] += sw[0][2:] + sw[1][:2]; pinned[24][2] += sw[2]; pinned[25][1] = sw[1][2:] + pinned[25][1]
                    assert ks == 24
                    for grp, (k, g) in zip(next_ops(), [(25,2), (27,0), (28,0), (28,2)]): pinned[k][g] += grp
                pinned[ks][m] += elem_dma(e); e += 1
    assert e == elast + 1, e
    if not common.OPT.get("notouch"):
        tw = touch_w()
        pinned[29][2] += tw[0]; pinned[30][1] += tw[1]
    if common.OPT.get("pref2"):
        pinned[31][0] += [f"s_getpc_b64 {sr(sX,2)}", "L_pc2:", f"s_mov_b32 s{sX+2}, L_jobtab-L_pc2"]
        pinned[31][1] += [f"buffer_load_dword v{vDummy}, v{GX+39}, {sr(sX,4)}, 0 offen"]
    pinned[22][2] += [(f"buffer_load_dword v{GX+34}, off, {sr(sDB,4)}, 0 sc1", "ini")]
    pinned[34][1] += [lambda: f"s_waitcnt vmcnt({vm.need('ini')})", f"v_cmp_eq_u32 vcc, 0, v{GX+34}"]
    pinned[34][2] += ["s_cbranch_vccnz L_inispin", "L_iniok:"]
    for i in range(3):
        pinned[4 + i][2] += [(f"global_load_dwordx3 {vr(GX+4*i,3)}, v{GX+36}, {sr(sX,2)} offset:{384*i}", "g"),
                             (f"global_load_dwordx3 {vr(GX+12+4*i,3)}, v{GX+35}, {sr(sLink,2)} offset:{384*i}", "g")]
    pinned[12][3] += [lambda: f"s_waitcnt vmcnt({vm.need('g')})"]
    emit_stream(A, 0, pinned, pre, gate_queue(), 13 * 4, vm, lg, maxpin=2, qend=21 * 4)

def setup_sub(A):
    t = sT
    A(f"""
L_setup:
    s_mov_b64 {sr(sWn,2)}, {sr(sFb,2)}
    s_mov_b32 s{sWn+2}, {WG_SIZE}
    s_movk_i32 s{t+1}, 9216
    s_lshl_b32 s{t+2}, s{t}, 7
    s_mov_b32 s{t+4}, 0
    s_cmp_lt_u32 s{t}, 72
    s_cbranch_scc1 L_setup_fin
    s_cmp_lt_u32 s{t}, 77
    s_cbranch_scc0 L_setup_kv
    s_mov_b64 {sr(sWn,2)}, {sr(S_WQ,2)}
    s_movk_i32 s{t+1}, 1152
    s_sub_u32 s{t+2}, s{t}, 72
    s_lshl_b32 s{t+2}, s{t+2}, 1
    s_lshr_b32 s{t+3}, s{sWave}, 1
    s_add_u32 s{t+2}, s{t+2}, s{t+3}
    s_lshl_b32 s{t+2}, s{t+2}, 7
    s_cmp_lt_u32 s{t+2}, 1152
    s_cselect_b32 s{sWn+2}, {576*1152}, 0
    s_branch L_setup_fin
L_setup_kv:
    s_cmp_eq_u32 s{t}, 77
    s_cbranch_scc0 L_setup_ret
    s_cmp_lt_u32 s{sWave}, 2
    s_cselect_b64 {sr(sWn,2)}, {sr(S_WK,2)}, {sr(S_WV,2)}
    s_sub_u32 s{sWn}, s{sWn}, 3072
    s_subb_u32 s{sWn+1}, s{sWn+1}, 0
    s_movk_i32 s{sWn+2}, {576*36 + 3072}
    s_movk_i32 s{t+1}, 36
    s_mov_b32 s{t+2}, 0
    s_movk_i32 s{t+4}, 3072
L_setup_fin:
    s_lshl_b32 s{nStep}, s{t+1}, 6
    s_lshl_b32 s{nD}, s{t+1}, 4
    s_sub_u32 s{nD}, s{nD}, 1024
    s_and_b32 s{t+3}, s{sWave}, 1
    s_mul_i32 s{t+3}, s{t+3}, s{t+1}
    s_lshl_b32 s{t+3}, s{t+3}, 3
    s_add_u32 s{nOff}, s{t+2}, s{t+3}
    s_mul_i32 s{t+3}, s{sRot}, s{nStep}
    s_add_u32 s{nStart}, s{nOff}, s{t+3}
    v_mad_u32_u24 v{vNext}, v{vR8}, s{t+1}, v{vC16}
    v_add_u32 v{vNext}, s{t+4}, v{vNext}
    s_setpc_b64 {sr(sLink2,2)}
L_setup_ret:
    s_mov_b64 {sr(sWn,2)}, {sr(S_WS,2)}
    s_mov_b32 s{sWn+2}, {WS_SIZE}
    v_mov_b32 v{vNext}, v{vLane16}
    s_setpc_b64 {sr(sLink2,2)}
""")

def special_sub(A):
    sc1 = " sc1"
    t = sT
    A(f"""
L_special:
    s_bfe_u32 s{t}, s{sTab}, 0x80010
    s_call_b64 {sr(sLink2,2)}, L_setup
    s_mov_b32 s{sH+2}, {WS_SIZE}
    s_and_b32 s{t}, s{sTab}, 0xff
    s_cmp_lt_u32 s{t}, 72
    s_cbranch_scc1 L_special_ret
    s_mov_b32 s{sH+2}, 0
    s_cmp_eq_u32 s{t}, 77
    s_cbranch_scc1 L_special_kv
    s_lshl_b32 s{t+1}, s{sTb}, 1
    s_lshr_b32 s{t+2}, s{sWave}, 1
    s_add_u32 s{t+1}, s{t+1}, s{t+2}
    s_mul_i32 s{t+1}, s{t+1}, {2*36*1024}
    s_sub_u32 s{t+2}, s{t}, 72
    s_lshl_b32 s{t+2}, s{t+2}, 13
    s_add_u32 s{t+1}, s{t+1}, s{t+2}
    s_and_b32 s{t+2}, s{sWave}, 1
    s_lshl_b32 s{t+2}, s{t+2}, 11
    s_add_u32 s{t+1}, s{t+1}, s{t+2}
    s_add_u32 s{t+1}, s{t+1}, {WS_Q}
    s_add_u32 s{t+2}, s{t+1}, {36*1024}
    s_mov_b32 s{t+3}, {f2u(QSCALE):#x}
    s_cmp_eq_u32 s{sPar}, 0
    s_cbranch_scc1 L_special_q0
""")
    for i in range(64): A(f"v_mul_f32 v{i}, s{t+3}, v{64+i}")
    A("s_branch L_special_q1")
    A("L_special_q0:")
    for i in range(64): A(f"v_mul_f32 v{i}, s{t+3}, v{i}")
    A("L_special_q1:")
    for i in range(32): A(f"v_cvt_pk_bf16_f32 v{64+i}, v{2*i}, v{2*i+1}")
    for half in range(2):
        if half == 1:
            A(f"s_add_u32 s{t+1}, s{t+1}, 4096")
            A(f"s_add_u32 s{t+2}, s{t+2}, 4096")
            A(f"s_cmp_eq_u32 s{t}, 76")
            A("s_cbranch_scc1 L_special_ret")
        for blk in range(4):
            a, tb2 = blk // 2, blk % 2
            A(f"buffer_store_dwordx4 {vr(64 + blk*8 + half*4, 4)}, v{vLane16}, {sr(sWS,4)}, s{t+1+tb2} offen offset:{a*1024}{sc1}")
    LB = 9 * 16384
    A(f"""
    s_branch L_special_ret
L_special_kv:
    s_barrier
    v_and_b32 v{vT}, 31, v{vLane}
    v_lshrrev_b32 v{vT+1}, 5, v{vLane}
    s_lshr_b32 s{t+2}, s{sWave}, 1
    s_mul_i32 s{t+5}, s{t+2}, {2*KV_VT}
    s_add_u32 s{t+5}, s{t+5}, {LB + KV_V}
    s_and_b32 s{t+3}, s{sWave}, 1
    s_cmp_eq_u32 s{t+3}, 0
    s_cbranch_scc1 L_special_kv0
    v_and_b32 v{vT}, 3, v{vLane}
    v_mul_u32_u24 v{vT}, {KV_VF}, v{vT}
    v_and_b32 v{vT+1}, 4, v{vLane}
    v_lshl_add_u32 v{vT}, v{vT+1}, 2, v{vT}
    v_cmp_eq_u32 vcc, 0, v{vT+1}
    v_add_u32 v{vT}, s{t+5}, v{vT}
    v_mov_b32 v65, 0x3f803f80
    v_cndmask_b32 v64, 0, v65, vcc
    v_add_u32 v{vT}, 576, v{vT}
    v_mov_b32 v{vT+1}, {LB + KV_K2 + 512}
    v_cmp_eq_u32 vcc, 8, v{vLane}
    v_mov_b32 v65, v64
    v_mov_b32 v66, v64
    v_cndmask_b32 v{vT}, v{vT}, v{vT+1}, vcc
    v_mov_b32 v67, v64
    s_mov_b64 exec, 0x1ff
    ds_write_b128 v{vT}, v[64:67]
    s_mov_b64 exec, -1
    s_branch L_special_kv1
L_special_kv0:
""")
    for i in range(32): A(f"v_cvt_pk_bf16_f32 v{64+i}, v{2*i}, v{2*i+1}")
    A(f"""
    s_lshl_b32 s{t+3}, s{t+2}, 11
    s_add_u32 s{t+3}, s{t+3}, {LB}
    s_lshl_b32 s{t+4}, s{t+2}, 3
    s_add_u32 s{t+4}, s{t+4}, {LB + KV_K2}    ; K2 base
    v_lshrrev_b32 v{vT+2}, 4, v{vT}
    v_mul_u32_u24 v{vT+2}, {KV_VF}, v{vT+2}
    v_bfe_u32 v{vT+3}, v{vT}, 2, 1
    v_mul_u32_u24 v{vT+3}, 288, v{vT+3}
    v_add_u32 v{vT+2}, v{vT+2}, v{vT+3}
    v_and_b32 v{vT+3}, 3, v{vT}
    v_lshl_add_u32 v{vT+2}, v{vT+3}, 1, v{vT+2}
    v_and_b32 v{vT+3}, 8, v{vT}
    v_add3_u32 v{vT+2}, v{vT+2}, v{vT+3}, s{t+5}
    v_lshl_add_u32 v{vT+3}, v{vT+1}, 7, v{vT+2}   ; d = 8hh + i
    v_add_u32 v{vT+4}, s{t+3}, v{vLane16}
    v_add_u32 v{vT+5}, s{t+4}, v{vLane16}
""")
    for tb2 in range(2):
        b0 = 64 + tb2 * 8
        A(f"ds_write_b128 v{vT+4}, {vr(b0,4)} offset:{tb2*1024}")
        for i in range(8):
            op = "ds_write_b16" if i % 2 == 0 else "ds_write_b16_d16_hi"
            A(f"{op} v{vT+3}, v{b0+4+i//2} offset:{tb2*KV_VT + i*16}")
    A("s_mov_b32 exec_hi, 0")
    for tb2 in range(2):
        b1 = 64 + (2 + tb2) * 8
        A(f"ds_write_b32 v{vT+5}, v{b1} offset:{tb2*4}")
        for i in range(2):
            op = "ds_write_b16" if i % 2 == 0 else "ds_write_b16_d16_hi"
            A(f"{op} v{vT+2}, v{b1+4} offset:{tb2*KV_VT + (16+i)*16}")
    A(f"""
    s_mov_b64 exec, -1
L_special_kv1:
    s_lshl_b32 s{t+2}, s{sWave}, 10
    v_add_u32 v{vT}, s{t+2}, v{vLane16}
    v_add_u32 v{vT+1}, {LB}, v{vT}
    v_cmp_gt_u32 vcc, {KV_GS - 8192}, v{vT}
    v_mov_b32 v{vT+2}, 0x40000000
    s_mul_i32 s{t+1}, s{sTb}, {KV_GS}
    v_cndmask_b32 v{vT+2}, v{vT+2}, v{vT}, vcc
    s_add_u32 s{t+1}, s{t+1}, {WS_KV}
    s_add_u32 s{t+2}, s{t+1}, 4096
    s_add_u32 s{t+3}, s{t+1}, 8192
    s_waitcnt lgkmcnt(0)
    s_barrier
    ds_read_b128 v[64:67], v{vT+1}
    ds_read_b128 v[68:71], v{vT+1} offset:4096
    ds_read_b128 v[72:75], v{vT+1} offset:8192
    s_waitcnt lgkmcnt(0)
    buffer_store_dwordx4 v[64:67], v{vT}, {sr(sWS,4)}, s{t+1} offen{sc1}
    buffer_store_dwordx4 v[68:71], v{vT}, {sr(sWS,4)}, s{t+2} offen{sc1}
    buffer_store_dwordx4 v[72:75], v{vT+2}, {sr(sWS,4)}, s{t+3} offen{sc1}
L_special_ret:
    s_nop 1
    s_setpc_b64 {sr(sLink,2)}
""")

def spin(A, soff, name, back):
    A(f"""
L_{name}:
    s_mov_b32 s{sT+5}, 0x40000
L_{name}_l:
    {poll_ld(soff)}
    s_sub_u32 s{sT+5}, s{sT+5}, 1
    s_cbranch_scc1 {back}
    s_waitcnt vmcnt(0)
""")
    A.many(flag_min())
    A(f"""
    v_cmp_eq_u32 vcc, 0, v{vPoll}
    s_cbranch_vccz {back}
    s_sleep 8
    s_branch L_{name}_l
""")

def phase1(A):
    t = sT
    stamp(A, 0)
    pref = "" if common.OPT.get("nopref") else f"""
    s_mov_b64 {sr(sH,2)}, {sr(sLink,2)}
    s_mov_b32 s{sH+2}, L_jobtab-L_pc1
    s_mov_b32 s{sH+3}, {SRD3}
    v_lshrrev_b32 v2, 4, v0
    v_and_b32 v3, 15, v0
    v_lshlrev_b32 v2, 7, v2
    v_lshl_add_u32 v2, v3, 28, v2
    s_lshr_b32 s{t+1}, s2, 3
    s_lshl_b32 s{t+1}, s{t+1}, 11
    buffer_load_dword v4, v2, {sr(sH,4)}, s{t+1} offen
"""
    A(f"""
    s_cmp_ge_u32 s2, 256
    s_cbranch_scc1 L_end
    s_load_dwordx16 s[4:19], s[0:1], 0
    s_load_dwordx8 s[20:27], s[0:1], 64
    s_load_dwordx2 s[28:29], s[0:1], 96
    s_getpc_b64 {sr(sLink,2)}
L_pc1:
    s_bfe_u32 s{sXq}, s2, 0x20001
    s_lshr_b32 s{sQi}, s2, 6
    s_lshl_b32 s{t}, s{sXq}, 2
    s_add_u32 s{t}, s{t}, s{sQi}            ; jg
    s_lshl_b32 s{t+1}, s{t}, 3
    s_add_u32 s{t+1}, s{t+1}, L_jobtab-L_pc1
    s_load_dwordx2 {sr(sTab,2)}, {sr(sLink,2)}, s{t+1}
    {pref}
    v_lshrrev_b32 v1, 6, v0
    v_and_b32 v{vLane}, 63, v0
    v_readfirstlane_b32 s{sWave}, v1
    v_lshlrev_b32 v{vLane16}, 4, v{vLane}
    s_and_b32 s{t}, s{t}, 11
    s_cmp_eq_u32 s{t}, 3
    s_cselect_b32 s{sSpecial}, 1, 0
    s_and_b32 s{t}, s2, 1
    s_lshl_b32 s{t}, s{t}, 3
    s_bfe_u32 s{t+1}, s2, 0x30003
    s_add_u32 s{sTb}, s{t}, s{t+1}
    s_lshl_b32 s{t}, s{sQi}, 1
    s_add_u32 s{t}, s{t}, s{t+1}
    s_cmp_ge_u32 s{t}, 9
    s_cselect_b32 s{t+1}, 9, 0
    s_sub_u32 s{t+5}, s{t}, s{t+1}
    {"s_mov_b32 s%d, 0" % (t+5) if common.OPT.get("norot") else ""}
    s_sub_u32 s{sRot}, s{t+5}, 1
    v_lshrrev_b32 v{vR8}, 3, v{vLane}
    v_and_b32 v1, 7, v{vLane}
    s_lshl_b32 s{sM0}, s{sWave}, 12
    s_lshr_b32 s{t+2}, s{sWave}, 1
    s_and_b32 s{t+3}, s{sWave}, 1
    v_and_b32 v2, 2, v{vR8}
    v_xor_b32 v2, v1, v2
    s_lshl_b32 s{t+4}, s{t+2}, 2
    v_xor_b32 v2, s{t+4}, v2
    v_lshlrev_b32 v{vC16}, 4, v2
    v_lshrrev_b32 v2, 1, v{vR8}
    v_xor_b32 v2, v1, v2
    v_lshlrev_b32 v2, 4, v2
    v_mul_u32_u24 v3, 1152, v{vR8}
    v_add_u32 v{vXd}, v2, v3
    v_xor_b32 v2, 64, v{vXd}
    v_add_u32 v{vXd+1}, {8*1152-1024}, v2
    v_add_u32 v{vXd+2}, {2*(8*1152-1024)}, v{vXd}
    v_add_u32 v{vXd+3}, {3*(8*1152-1024)}, v2
    s_lshl_b32 s{t+4}, s{sTb}, 2
    s_add_u32 s{t+4}, s{t+4}, s{sWave}
    s_mul_i32 s{sXb}, s{t+4}, {32*1152}
    s_lshl_b32 s{t+5}, s{t+5}, 7
    s_add_u32 s{sXc}, s{sXb}, s{t+5}
    s_mov_b32 s{sX+2}, {2048*1152}
    s_mov_b32 s{sX+3}, {SRD3}
    s_mov_b32 s{sW+3}, s{sX+3}
    s_mov_b32 s{sW+2}, {WG_SIZE}
    s_movk_i32 s{t+4}, 9216
    v_mad_u32_u24 v{vDma}, v{vR8}, s{t+4}, v{vC16}
    s_mov_b32 s{nD}, {16*9216-1024}
    s_mov_b32 s{sStep}, {64*9216}
    v_add_u32 v{vDma+1}, s{nD}, v{vDma}
    s_mul_i32 s{sRowOff}, s{t+3}, {8*9216}
    v_add_u32 v{vDma+2}, s{nD}, v{vDma+1}
    s_mul_i32 s{nStart}, s{sRot}, s{sStep}
    v_add_u32 v{vDma+3}, s{nD}, v{vDma+2}
    s_add_u32 s{sXend}, s{sXb}, 1152
    s_waitcnt lgkmcnt(0)
    s_mov_b64 {sr(sX,2)}, {sr(S_X,2)}
""")
    vm = Counter(63)
    if common.OPT.get("fine"): stamp(A, 27)
    put_elems(A, vm, range(0, 4))
    A(f"""
    s_cmp_lt_u32 s{sWave}, 2
    s_cselect_b64 {sr(sFb,2)}, {sr(S_WG,2)}, {sr(S_WU,2)}
    s_cselect_b64 {sr(sW,2)}, {sr(S_WG,2)}, {sr(S_WU,2)}
    s_bfe_u32 s{t}, s{sTab}, 0x80008
    s_lshl_b32 s{t+1}, s{t}, 7
    s_add_u32 s{sBase}, s{t+1}, s{sRowOff}
    s_add_u32 s{sOff}, s{sBase}, s{nStart}
    v_mov_b32 v{vF}, v{vDma}
    s_cmp_eq_u32 s{sSpecial}, 0
    s_cbranch_scc0 L_sp_first
L_sp_first_ret:
""")
    put_elems(A, vm, range(4, 12))
    if common.OPT.get("fine"): stamp(A, 28)
    A(f"""
    s_mul_i32 s{sEnd}, s{sStep}, 9
    s_add_u32 s{sEnd}, s{sEnd}, s{sBase}
    s_cmp_eq_u32 s{sSpecial}, 0
    s_cbranch_scc0 L_sp_skip
    s_bfe_u32 s{t}, s{sTab}, 0x80010
    s_lshl_b32 s{t+1}, s{t}, 7
    s_add_u32 s{nOff}, s{t+1}, s{sRowOff}
    s_add_u32 s{nStart}, s{nStart}, s{nOff}
    s_mov_b32 s{nStep}, s{sStep}
    s_mov_b64 {sr(sWn,2)}, {sr(sFb,2)}
    s_mov_b32 s{sWn+2}, s{sW+2}
    v_mov_b32 v{vNext}, v{vF}
L_sp_skip:
""")
    W = sPar
    A(f"""
    s_mov_b64 {sr(sWS,2)}, {sr(S_WS,2)}
    s_mov_b32 s{sWS+2}, {WS_SIZE}
    s_mov_b32 s{sWS+3}, {SRD3}
    s_mov_b64 {sr(sDB,2)}, {sr(S_DBG,2)}
    s_movk_i32 s{sDB+2}, 256
    s_mov_b32 s{sDB+3}, {SRD3}
    s_mov_b32 s{sOUT+2}, {2048*1152}
    s_mov_b32 s{sOUT+3}, {SRD3}
    s_mov_b64 {sr(sH,2)}, {sr(S_WS,2)}
    s_mov_b32 s{sH+2}, {WS_SIZE}
    s_mov_b32 s{sH+3}, {SRD3}
    s_mov_b64 {sr(sPD,2)}, {sr(S_WS,2)}
    s_mov_b32 s{sPD+3}, {SRD3}
    s_mov_b32 s{sP+3}, {SRD3}
    s_mov_b32 s{sC2}, {f2u(GC2):#x}
    v_mov_b32 v{vC1}, {f2u(GC1):#x}
    s_mov_b32 s{sWn+3}, {SRD3}
    s_lshl_b32 s{W}, s2, 2
    s_add_u32 s{W}, s{W}, s{sWave}
    s_lshr_b32 s{t+2}, s{sWave}, 1
    s_and_b32 s{t+3}, s{sWave}, 1
    s_lshl_b32 s{t}, s{sTb}, 1
    s_add_u32 s{t}, s{t}, s{t+2}
    s_mul_i32 s{sHbase}, s{t}, {HO_G}
    s_lshl_b32 s{t}, s{t+3}, 12
    s_add_u32 s{sHbase}, s{sHbase}, s{t}
    v_and_b32 v32, 3, v{vLane}              ; c
    v_lshrrev_b32 v33, 1, v32
    v_and_b32 v32, 1, v32
    v_lshl_add_u32 v32, v32, 1, v33         ; perm(c)
    v_lshlrev_b32 v32, 3, v32
    v_bfe_u32 v33, v{vLane}, 2, 2           ; r4
    v_lshl_add_u32 v32, v33, 7, v32
    v_bfe_u32 v34, v{vLane}, 4, 1
    v_lshrrev_b32 v35, 5, v{vLane}          ; hh
    v_lshl_add_u32 v36, v34, 5, v32
    v_lshl_add_u32 v36, v35, 10, v36
    s_add_u32 s{t}, s{sM0}, {9*16384}
    v_add_u32 v{vPtr}, s{t}, v36
    v_lshrrev_b32 v33, 1, v33
    v_lshl_add_u32 v33, v34, 1, v33
    s_lshl_b32 s{t}, s{t+3}, 1
    v_xor_b32 v33, s{t}, v33
    v_lshl_add_u32 v32, v33, 5, v32
    v_lshl_add_u32 v32, v34, 13, v32
    v_lshl_add_u32 v{vTR}, v35, 12, v32
    v_xor_b32 v{vTR+1}, 32, v{vTR}
    v_add_u32 v{vTR+2}, {12*4096}, v{vTR}
    v_add_u32 v{vTR+3}, {12*4096}, v{vTR+1}
    v_add_u32 v{vTR+4}, {24*4096}, v{vTR}
    v_add_u32 v{vTR+5}, {24*4096}, v{vTR+1}
    v_and_b32 v37, 31, v{vLane}             ; n
    v_bfe_u32 v33, v{vLane}, 1, 3
    v_xor_b32 v33, v33, v35
    v_lshlrev_b32 v33, 4, v33
    v_lshl_add_u32 v32, v37, 7, v33
    s_lshl_b32 s{t}, s{t+2}, 13
    v_add_u32 v{XR}, s{t}, v32
    v_xor_b32 v{XR+1}, 32, v{XR}
    v_xor_b32 v{XR+2}, 64, v{XR}
    v_xor_b32 v{XR+3}, 0x60, v{XR}
""")
    for seg in (1, 2):
        for s in range(4): A(f"v_add_u32 v{XR+seg*4+s}, {seg*57344}, v{XR+s}")
    A(f"""
    v_mul_u32_u24 v{vQa}, 1152, v37
    v_lshl_add_u32 v{vQa}, v35, 4, v{vQa}
    v_lshlrev_b32 v{vLane4}, 2, v{vLane}
    v_bfe_u32 v32, v{vLane}, 2, 1
    v_bfe_u32 v33, v{vLane}, 3, 1
    v_lshlrev_b32 v32, 3, v32
    v_lshl_add_u32 v32, v33, 2, v32
    v_and_b32 v33, 0x13, v{vLane}
    v_or_b32 v32, v32, v33
    v_mul_u32_u24 v33, 18, v35
    v_cmp_gt_u32 vcc, 18, v37
    v_add_u32 v32, v32, v33
    v_and_b32 v33, 27, v37
    v_cndmask_b32 v32, 37, v32, vcc
    v_cmp_ne_u32 vcc, 18, v33
    v_mul_u32_u24 v{GX+35}, 12, v37
    s_lshl_b32 s{t+5}, s{sTb}, 2
    s_add_u32 s{t+5}, s{t+5}, s{sXq}
    s_lshl_b32 s{t+5}, s{t+5}, 2
    s_add_u32 s{t+5}, s{t+5}, s{sQi}
    s_lshl_b32 s{t+5}, s{t+5}, 2
    s_add_u32 s{t+5}, s{t+5}, s{sWave}
    s_lshl_b32 s{t+5}, s{t+5}, 1
    v_cndmask_b32 v32, 36, v32, vcc
    v_lshlrev_b32 v{vAV}, 4, v32
    v_add_u32 v5, s{t+5}, v35               ; token
    v_mul_u32_u24 v6, 1152, v5
    v_add_u32 v{GX+36}, v6, v{GX+35}
    v_cmp_eq_u32 vcc, 0, v37
    v_lshlrev_b32 v5, 2, v5
    v_add_u32 v5, {WS_G}, v5
    v_mov_b32 v33, 0x40000000
    v_cndmask_b32 v{GX+26}, v33, v5, vcc
    v_lshl_add_u32 v{GX+27}, v35, 30, v{vLane16}
    v_mov_b32 v{GX+28}, -1
    v_mov_b32 v{GX+29}, -1
    v_mov_b32 v{GX+30}, -1
    v_mov_b32 v{GX+31}, -1
    v_mov_b32 v{GX+32}, 0
    v_cmp_eq_u32 vcc, 0, v0
    v_mov_b32 v{vOne}, 1
    s_mov_b32 s{sSkip}, 1
    v_cndmask_b32 v{vFlagOff}, v33, 0, vcc
    s_lshl_b32 s{t}, s{sTb}, 2
    s_add_u32 s{t}, s{t}, {F0}
    s_bfe_u32 s{t+1}, s{sTab}, 0x80008
    s_cmp_eq_u32 s{t+1}, 77
    s_cselect_b32 s{sPub}, s{t}, {FOOB}
    ; pack params: ks = W/3, a = W%3
    s_mul_i32 s{t}, s{W}, 21846
    s_lshr_b32 s{t}, s{t}, 16
    s_mul_i32 s{t+1}, s{t}, 3
    s_sub_u32 s{t+1}, s{W}, s{t+1}
    s_mul_i32 s{sPd0}, s{t+1}, {2*WP_T}
    s_mul_i32 s{t+2}, s{t}, 3072
    s_add_u32 s{sPd0}, s{sPd0}, s{t+2}
    s_add_u32 s{sPd0}, s{sPd0}, {WS_WP}
    s_add_u32 s{sPd1}, s{sPd0}, {WP_T}
    s_mov_b32 s{sPD+2}, 0
    s_mul_i32 s{t+1}, s{t+1}, 384
    v_and_b32 v32, 7, v{vLane}
    v_lshlrev_b32 v32, 4, v32
    s_movk_i32 s{t+4}, 1152
    v_mad_u32_u24 v{vPsrc}, v{vR8}, s{t+4}, v32
    s_mov_b64 {sr(sP,2)}, {sr(S_WD,2)}
    s_mov_b32 s{sP+2}, {4608*1152}
    s_mul_i32 s{sPs0}, s{t}, {16*1152}
    s_movk_i32 s{t+3}, {8*1152}
    s_cmp_lt_u32 s{t}, 288
    s_cbranch_scc1 L_pk_done
    s_mov_b64 {sr(sP,2)}, {sr(S_WO,2)}
    s_mov_b32 s{sP+2}, {576*1152}
    s_sub_u32 s{t+2}, s{t}, 288
    s_mul_i32 s{sPs0}, s{t+2}, {18*1152}
    s_cmp_lt_u32 s{t}, 320
    s_cbranch_scc1 L_pk_done
    s_sub_u32 s{t+2}, s{t}, 320
    s_mul_i32 s{sPs0}, s{t+2}, {144*1152}
    s_add_u32 s{sPs0}, s{sPs0}, {16*1152}
    s_mov_b32 s{t+3}, {72*1152}
    v_lshrrev_b32 v34, 1, v{vR8}
    v_mul_u32_u24 v34, 18, v34
    v_and_b32 v36, 1, v{vR8}
    v_add_u32 v34, v34, v36
    v_mad_u32_u24 v{vPsrc}, v34, s{t+4}, v32
    s_cmp_lt_u32 s{t}, 324
    s_cselect_b32 s{sP+2}, s{sP+2}, 0
L_pk_done:
    s_add_u32 s{sPs0}, s{sPs0}, s{t+1}
    s_add_u32 s{sPs1}, s{sPs0}, s{t+3}
    s_sub_u32 s{sPs1}, s{sPs1}, 1024
    s_mov_b64 {sr(sLink,2)}, {sr(S_GW,2)}
""")
    g64, head, nt = t, t + 1, t + 2
    A(f"""
    s_and_b32 s{t+3}, s{sXq}, 1
    s_lshl_b32 s{g64}, s{sTb}, 1
    s_add_u32 s{g64}, s{g64}, s{t+3}
    s_lshr_b32 s{t+3}, s{sXq}, 1            ; nhalf
    s_lshl_b32 s{head}, s{t+3}, 2
    s_add_u32 s{head}, s{head}, s{sQi}
    s_lshl_b32 s{head}, s{head}, 2
    s_add_u32 s{head}, s{head}, s{sWave}
    s_mul_i32 s{t+3}, s{t+3}, 3
    s_mul_i32 s{t+4}, s{sWave}, {KM}
    s_add_u32 s{t+4}, s{t+4}, {KH}
    s_cmp_eq_u32 s{sQi}, 3
    s_cselect_b32 s{nt}, s{sWave}, s{sQi}
    s_cselect_b32 s{t+4}, 0, s{t+4}
    s_add_u32 s{nt}, s{nt}, s{t+3}
    ; W side
    s_mul_i32 s{t+3}, s{nt}, {WP_T}
    s_add_u32 s{t+3}, s{t+3}, {WS_WP}
    s_mul_i32 s{t+5}, s{t+4}, 3072
    s_add_u32 s{t+5}, s{t+5}, s{t+3}
    s_add_u32 s{sWp}, s{S_WS}, s{t+5}
    s_addc_u32 s{sWp+1}, s{S_WS+1}, 0
    s_mul_i32 s{t+5}, s{sWave}, {9*3072}
    s_add_u32 s{t+5}, s{t+5}, s{t+3}
    s_add_u32 s{t+5}, s{t+5}, {288*3072}
    s_add_u32 s{sWo}, s{S_WS}, s{t+5}
    s_addc_u32 s{sWo+1}, s{S_WS+1}, 0
    ; h side
    s_mul_i32 s{t+3}, s{g64}, {HO_G}
    s_lshl_b32 s{t+5}, s{t+4}, 11
    s_add_u32 s{t+5}, s{t+5}, s{t+3}
    s_add_u32 s{sHp}, s{S_WS}, s{t+5}
    s_addc_u32 s{sHp+1}, s{S_WS+1}, 0
    s_mul_i32 s{t+5}, s{sWave}, {9*2048}
    s_add_u32 s{t+5}, s{t+5}, s{t+3}
    s_add_u32 s{t+5}, s{t+5}, {288*2048}
    s_add_u32 s{sHo}, s{S_WS}, s{t+5}
    s_addc_u32 s{sHo+1}, s{S_WS+1}, 0
    s_lshl_b32 s{sO1}, s{head}, 11
    s_add_u32 s{sO1}, s{sO1}, s{t+3}
    s_add_u32 s{sO1}, s{sO1}, {288*2048}
    s_lshr_b32 s{sO2}, s{head}, 3
    s_lshl_b32 s{sO2}, s{sO2}, 11
    s_add_u32 s{sO2}, s{sO2}, s{t+3}
    s_bfe_u32 s{t+5}, s{head}, 0x10002
    s_lshl_b32 s{t+5}, s{t+5}, 9
    s_add_u32 s{sO2}, s{sO2}, s{t+5}
    s_lshl_b32 s{t+5}, s{sWave}, 2
    s_add_u32 s{sO2}, s{sO2}, s{t+5}
    s_add_u32 s{sO2}, s{sO2}, {320*2048}
    ; q / g offsets
    s_mul_i32 s{sQoff}, s{g64}, {2*36*1024}
    s_mul_i32 s{t+5}, s{head}, 18
    s_lshr_b32 s{t+5}, s{t+5}, 3
    s_lshl_b32 s{t+5}, s{t+5}, 9
    s_add_u32 s{sQoff}, s{sQoff}, s{t+5}
    s_add_u32 s{sQoff}, s{sQoff}, {WS_Q}
    s_lshl_b32 s{sGoff}, s{g64}, 8
    s_add_u32 s{sGoff}, s{sGoff}, {WS_G}
    s_mul_i32 s{sPart}, s{g64}, 6
    s_add_u32 s{sPart}, s{sPart}, s{nt}
    s_mul_i32 s{sPart}, s{sPart}, {PART_T}
    s_add_u32 s{sPart}, s{sPart}, {WS_PART}
    s_mul_i32 s{sOutOff}, s{g64}, {64*1152}
    s_mul_i32 s{t+5}, s{nt}, 192
    s_add_u32 s{sOutOff}, s{sOutOff}, s{t+5}
    s_lshl_b32 s{t+5}, s{sWave}, 5
    s_add_u32 s{sOutOff}, s{sOutOff}, s{t+5}
    s_lshl_b32 s{t+5}, s{sQi}, 2
    s_add_u32 s{t+5}, s{t+5}, s{sWave}
    s_sub_u32 s{t+5}, s{t+5}, 12
    s_cmp_lt_u32 s{t+5}, 3
    s_cselect_b32 s{t+5}, 0, 64
    v_mov_b32 v32, 24576
    v_cmp_eq_u32 vcc, s{t+5}, v{vLane}
    s_nop 1
    v_cndmask_b32 v{GX+33}, v33, v32, vcc
""")
    A(f"""
    s_bfe_u32 s{t}, s2, 0x30003             ; a
    s_and_b32 s{t+1}, s{sWave}, 1
    s_mul_i32 s{t+2}, s{t}, 72
    s_mul_i32 s{t+3}, s{t+1}, 28
    s_add_u32 s{t+2}, s{t+2}, s{t+3}
    s_mul_i32 s{sTch}, s{t+2}, 9216
    v_mul_u32_u24 v32, 9216, v{vLane}
    v_cmp_gt_u32 vcc, 36, v{vLane}
    s_lshl_b32 s{t+2}, s{sQi}, 1
    s_sub_u32 s{t+2}, s{t+2}, 1
    v_cndmask_b32 v{vTW}, v33, v32, vcc
    s_cselect_b32 s{t+2}, 8, s{t+2}         ; (8+2b) mod 9
    s_lshl_b32 s{t+2}, s{t+2}, 3
    s_add_u32 s{t+2}, s{t+2}, s{t}
    s_lshl_b32 s{t+2}, s{t+2}, 1
    s_sub_u32 s{t+2}, s{t+2}, s{t+1}
    s_mul_i32 s{t+2}, s{t+2}, {4*9216}      ; (64c + 8a - 4(w&1)) rows
    v_cmp_gt_u32 vcc, 4, v{vLane}
    v_add_u32 v32, s{t+2}, v32
    s_sub_u32 s{t+2}, s{t}, 1
    v_cndmask_b32 v{GX+38}, v33, v32, vcc
    s_cselect_b32 s{t+2}, 8, s{t+2}         ; (a+8) mod 9
    s_lshl_b32 s{t+2}, s{t+2}, 7
    s_lshl_b32 s{t+3}, s{sTb}, 2
    s_add_u32 s{t+3}, s{t+3}, s{sQi}
    s_lshl_b32 s{t+3}, s{t+3}, 2
    s_add_u32 s{t+3}, s{t+3}, s{sWave}
    s_mul_i32 s{t+3}, s{t+3}, {8*1152}
    s_add_u32 s{t+2}, s{t+2}, s{t+3}
    v_mul_u32_u24 v32, 1152, v{vLane}
    v_cmp_gt_u32 vcc, 8, v{vLane}
    v_add_u32 v32, s{t+2}, v32
    v_and_b32 v34, 3, v{vLane}
    v_cndmask_b32 v{GX+37}, v33, v32, vcc
    v_lshrrev_b32 v32, 4, v0
    v_and_b32 v34, 15, v0
    v_lshlrev_b32 v32, 7, v32
    v_lshl_add_u32 v32, v34, 28, v32
    s_lshr_b32 s{t+1}, s2, 3
    s_lshl_b32 s{t+1}, s{t+1}, 11
    v_add_u32 v{GX+39}, s{t+1}, v32
    s_cmp_eq_u32 s{W}, 771
    s_cbranch_scc1 L_flaginit
L_flaginit_ret:
""")
    if common.OPT.get("fine"): stamp(A, 29)
    body0(A, vm)
    A(f"""
L_loop:
    s_cmp_eq_u32 s{sSpecial}, 0
    s_cbranch_scc0 L_sp_odd
L_odd:
""")
    body(A, "o")
    A(f"""
    s_cmp_eq_u32 s{sP+2}, 1
    s_cbranch_scc0 L_first_odd
L_last:
""")
    return body(A, "l")

def phase1_tail(A):
    A(f"""
L_first_odd:
    s_cmp_eq_u32 s{sSpecial}, 0
    s_cbranch_scc0 L_sp_even
L_even:
""")
    body(A, "e")
    A(f"""
    s_cmp_eq_u32 s{sSpecial}, 0
    s_cbranch_scc1 L_odd
    s_mov_b32 s{sPar}, 0
    s_call_b64 {sr(sLink,2)}, L_special
    s_branch L_last
L_sp_odd:
    s_mov_b32 s{sPar}, 0
    s_call_b64 {sr(sLink,2)}, L_special
    s_branch L_odd
L_sp_even:
    s_mov_b32 s{sPar}, 1
    s_call_b64 {sr(sLink,2)}, L_special
    s_branch L_even
""")
    A(f"""
L_sp_first:
    s_call_b64 {sr(sLink2,2)}, L_setup
""")
    for g in switch_ops(): A.many(g)
    A(f"""
    s_bfe_u32 s{sT}, s{sTab}, 0x80010
    s_call_b64 {sr(sLink2,2)}, L_setup
    s_add_u32 s{sXend}, s{sXb}, 1152
    s_branch L_sp_first_ret
""")
    setup_sub(A)
    special_sub(A)
    spin(A, f"s{sPollOff}", "kvspin", "L_kvok")
    A(f"""
L_flaginit:
    v_cmp_lt_u32 vcc, 3, v{vLane}
    v_mov_b32 v12, 0
    v_mov_b32 v13, 0
    v_cndmask_b32 v8, 0, 1, vcc
    v_mov_b32 v14, 0
    v_mov_b32 v15, 0
    v_mov_b32 v9, v8
    v_mov_b32 v10, v8
    v_mov_b32 v11, v8
    s_mov_b32 s{sT}, {WS_FL}
    buffer_store_dwordx4 v[8:11], v{vLane16}, {sr(sWS,4)}, s{sT} offen sc1
    buffer_store_dwordx4 v[12:15], v{vLane16}, {sr(sWS,4)}, s{sT} offen offset:1024 sc1
    buffer_store_dwordx4 v[12:15], v{vLane16}, {sr(sWS,4)}, s{sT} offen offset:2048 sc1
    s_waitcnt vmcnt(0)
    buffer_store_dword v{vOne}, off, {sr(sDB,4)}, 0 sc1
    s_branch L_flaginit_ret
L_inispin:
    s_mov_b32 s{sT+5}, 0x40000
L_inispin_l:
    buffer_load_dword v{GX+34}, off, {sr(sDB,4)}, 0 sc1
    s_sub_u32 s{sT+5}, s{sT+5}, 1
    s_cbranch_scc1 L_iniok
    s_waitcnt vmcnt(0)
    v_cmp_eq_u32 vcc, 0, v{GX+34}
    s_cbranch_vccz L_iniok
    s_sleep 8
    s_branch L_inispin_l
""")

def jobtab(A):
    tab, _, _ = job_table()
    A(".p2align 3")
    A(".type L_jobtab,@object")
    A("L_jobtab:")
    for b in tab:
        A(".byte " + ", ".join(str(x) for x in b))
```

```python
from common import *
import common
import phase1 as p1
from phase1 import (sWS, sDB, sWave, sQi, sT, sM0, sPub, sPollOff, sLink, sTab, sHoff, sHbase, sW, sOff, sStep,
                    sHp, sWp, sHo, sWo, sO1, sO2, sQoff, sGoff, sOUT, sPart, sOutOff,
                    vLane, vLane16, vLane4, vFlagOff, vPoll, vOne, vT, vQa, vAV, vDma, LEAD,
                    F0, F2, F4, FOOB, poll_ld, flag_min)
GACC = 0
Q1 = [96, 100]; Q2 = [[104, 106], [108, 110]]
S = [112, 128]; P = [144, 152]; O = [160, 176]
K1 = [192, 196]; V = [200, 208]; K2 = [216, 220]
AK, AK2, AV = 224, 225, vAV
vO = [226, 227, 228, 229]
vG = [231, 232]
vQt = [236, 237]
vZ = 238
ZP = 246
WOA = 140
sIt, sNA = 36, 37
vPf = 251
vW = [235, 234, 238]

def gld(dst, base, byteoff):
    j = byteoff // 8192
    return f"global_load_dwordx4 {dst}, v{vO[j]}, {sr(base,2)} offset:{byteoff - j*8192 - 4096} sc1"
def stage(s): return 20 * s
def gacc(n, c): return vr(GACC + (c * 3 + n) * 16, 16)
def g_mfma(st, n, c):
    return mfma16(gacc(n, c), ar(stage(st) + 8 + 4 * n, 4), ar(stage(st) + 4 * c, 4), gacc(n, c))
def ld_h(st, ks, i): return gld(ar(stage(st) + 4 * i, 4), sHp, ks * 2048 + i * 1024)
def ld_w(st, ks, n): return gld(ar(stage(st) + 8 + 4 * n, 4), sWp, ks * 3072 + n * 1024)
def wo_reg(ks, n): return ar(WOA + 12 * ks + 4 * n, 4)
def ld_wo(ks, n): return gld(wo_reg(ks, n), sWo, ks * 3072 + n * 1024)

def pre_lds(k): return [ld_h(4+k, k, 0), ld_h(4+k, k, 1)] + [ld_w(4+k, k, n) for n in range(3)]
def off_k1(t): return (t >> 2) * KV_GS + (t & 3) * 1024
def off_v(t, f): return (t >> 2) * KV_GS + KV_V + (t & 3) * KV_VT + f * KV_VF
def off_k2(g): return g * KV_GS + KV_K2

def qk8(u):
    c, t = u & 1, u >> 1
    return mfma8(vr(S[c], 16), vr(K2[(t // 4) % 2] + 2 * ((t % 4) // 2), 2), vr(Q2[c][t % 2], 2), "0")
def qk16(u):
    c, t = u & 1, u >> 1
    return mfma16(vr(S[c], 16), vr(K1[t % 2], 4), vr(Q1[c], 4), vr(S[c], 16))
def pv(u, f):
    c, t = u & 1, u >> 1
    return mfma16(vr(O[c], 16), vr(V[t % 2] + 4 * f, 4), vr(P[c] + 4 * f, 4), vr(O[c], 16))
def zero16(r): return mfma8(vr(r, 16), vr(ZP, 2), vr(ZP, 2), "0")

def kv_dma(r):
    o, ld = p1.kv_dma(r)
    return o + [ld]
KVT = 40
WOT = 0
PRT = 1

def att_body(A, kind):
    ops = []
    def E(u, i): return f"v_exp_f32 v{S[u&1]+i}, v{S[u&1]+i}"
    def Cv(u, i): return f"v_cvt_pk_bf16_f32 v{P[u&1]+i}, v{S[u&1]+2*i}, v{S[u&1]+2*i+1}"
    kvr = list(range(KVT, 40))
    wol = [x for k in range(PRT, 3) for x in pre_lds(k)] + [ld_wo(k, n) for k in range(WOT, 9) for n in range(3)]
    nw = len(wol)
    for u in range(16):
        c, t = u & 1, u >> 1
        kd = kind if kind != 'LM' else ('L' if t < 4 else 'M')
        st = t % 4
        valu = [[E(u,0), E(u,1), Cv(u-1,7)], [E(u,2), E(u,3), E(u,4), Cv(u,0)], [E(u,5), E(u,6), Cv(u,1)],
                [E(u,7), E(u,8), Cv(u,2), Cv(u,3)], [E(u,9), E(u,10), E(u,11)], [E(u,12), E(u,13), Cv(u,4)],
                [E(u,14), E(u,15), Cv(u,5), Cv(u,6)]]
        G = [g_mfma(st, n, c) for n in range(3)] if kd == 'M' else [None] * 3
        M = [G[0], qk8(u + 1), pv(u - 1, 1), qk16(u + 1), G[1], pv(u, 0), G[2]]
        mem = [[] for _ in range(7)]
        rv0 = f"ds_read_b128 {vr(V[(t+1)%2],4)}, v{AV} offset:{off_v(t+1,0)}"
        rv1 = f"ds_read_b128 {vr(V[(t+1)%2]+4,4)}, v{AV} offset:{off_v(t+1,1)}"
        rk1 = f"ds_read_b128 {vr(K1[t%2],4)}, v{AK} offset:{off_k1(t+2)}"
        rk2 = [f"ds_read_b128 {vr(K2[(t//4+1)%2],4)}, v{AK2} offset:{off_k2(t//4+1)}"] if t % 4 == 1 else []
        if kd == 'M':
            if c == 0:
                mem[0] += [rv0]; mem[2] += [rv1]; mem[5] += [rk1]; mem[4] += rk2
            else:
                mem[0] += [ld_h(st, t, 0)]; mem[2] += [ld_w(st, t, 0)]; mem[5] += [ld_w(st, t, 1)]
                mem[6] += [ld_w(st, t, 2), ld_h(st, t, 1), "s_waitcnt vmcnt(15) lgkmcnt(0)"]
                if kind == 'LM' and t == 7: mem[6] += [poll_ld(f"s{sPollOff}")]
        else:
            if c == 0:
                mem[1] += [rv0]; mem[2] += [rv1]; mem[3] += [rk1]; mem[5] += rk2
            if kd == 'L':
                if c == 0: mem[5] += [ld_h(st, t, 0)]
                else:
                    mem[1] += [ld_w(st, t, 0)]; mem[2] += [ld_w(st, t, 1)]; mem[3] += [ld_w(st, t, 2)]; mem[5] += [ld_h(st, t, 1)]
            else:
                for g in ((5,) if c == 0 else (2, 1, 3, 5)):
                    if wol: mem[g] += [wol.pop(0)]
            if c == 1:
                mem[5] += ["s_waitcnt vmcnt(15) lgkmcnt(0)" if (kd == 'L' and t == 3) else "s_waitcnt lgkmcnt(0)"]
        if u == 15:
            valu[3] = valu[3] + [f"v_add_u32 v{AK}, {2*KV_GS}, v{AK}", f"v_add_u32 v{AV}, {2*KV_GS}, v{AV}", f"v_add_u32 v{AK2}, {2*KV_GS}, v{AK2}"]
        for g in range(7):
            if M[g]: ops.append(M[g])
            ops += mem[g] + valu[g]
    if kind == 'A': assert not kvr and not wol, (kvr, wol)
    A.many(ops)
    if kind != 'A':
        A(f"""
    s_add_u32 s{sHp}, s{sHp}, {8*2048}
    s_addc_u32 s{sHp+1}, s{sHp+1}, 0
    s_add_u32 s{sWp}, s{sWp}, {8*3072}
    s_addc_u32 s{sWp+1}, s{sWp+1}, 0
""")
    stamp(A, "next")

def set_bias(c, m):
    a, b, d = vT, vT+1, vT+4
    return f"""
    v_and_b32 v{a}, 0xffff0000, v{m}
    v_sub_f32 v{b}, v{m}, v{a}
    v_and_b32 v{d}, 0xffff0000, v{b}
    v_sub_f32 v{b}, v{b}, v{d}
    v_lshrrev_b32 v{a}, 16, v{a}
    v_or_b32 v{a}, v{a}, v{d}
    v_xor_b32 v{a}, 0x80008000, v{a}
    v_lshrrev_b32 v{b}, 16, v{b}
    v_xor_b32 v{b}, 0x8000, v{b}
    v_cndmask_b32 v{Q2[c][0]}, v{a}, v{vQt[c]}, vcc
    v_cndmask_b32 v{Q2[c][0]+1}, v{b}, 0, vcc
    v_cndmask_b32 v{Q2[c][1]}, v{a}, 0, vcc
    v_cndmask_b32 v{Q2[c][1]+1}, v{b}, v{vQt[c]}, vcc
"""
def max16(s, dst, first):
    o = []
    if first:
        o.append(f"v_max3_f32 v{dst}, v{s}, v{s+1}, v{s+2}")
        for i in range(3, 15, 2): o.append(f"v_max3_f32 v{dst}, v{dst}, v{s+i}, v{s+i+1}")
        o.append(f"v_max_f32 v{dst}, v{dst}, v{s+15}")
    else:
        for i in range(0, 16, 2): o.append(f"v_max3_f32 v{dst}, v{dst}, v{s+i}, v{s+i+1}")
    return o
def half_max(m, tmp):
    return [f"v_mov_b32 v{tmp}, v{m}", "s_nop 1", f"v_permlane32_swap_b32 v{m}, v{tmp}", "s_nop 1", f"v_max_f32 v{m}, v{m}, v{tmp}"]

def transition(A, vm):
    t = sT
    def put(ins, tag=None):
        if ins.startswith(("buffer_", "global_")): vm.issue(tag)
        A(ins)
    stamp_set(A, 12)
    A(f"""
    s_bfe_u32 s{t+2}, s{sTab}, 0x80008
    s_mov_b32 s{p1.sH+2}, {WS_SIZE}
    s_lshl_b32 s{t+2}, s{t+2}, 13
    s_add_u32 s{sHoff}, s{sHbase}, s{t+2}
    s_add_u32 s{t+1}, s{sQoff}, {36*1024}
    v_and_b32 v{vT+4}, 0x7c, v{vLane4}
    v_lshl_add_u32 v{vT+5}, s{sWave}, 2, v{vLane16}
    s_waitcnt vmcnt({vm.need('poll')})
    s_barrier
    {flag_min()[0]}
    {flag_min()[1]}
    v_cmp_eq_u32 vcc, 0, v{vPoll}
    s_cbranch_vccnz L_qspin
L_qok:
""")
    fs = lambda i: stamp(A, i) if (common.OPT.get("fine") or common.OPT.get("fine2")) else None
    fs(50)
    for c in range(2):
        so = sQoff if c == 0 else t + 1
        put(f"buffer_load_dwordx4 {vr(S[0]+8*c,4)}, v{vLane16}, {sr(sWS,4)}, s{so} offen sc1", "q")
        put(f"buffer_load_dwordx4 {vr(S[0]+8*c+4,4)}, v{vLane16}, {sr(sWS,4)}, s{so} offen offset:512 sc1", "q")
        put(f"buffer_load_dword v{vQt[c]}, v{vT+5}, {sr(sWS,4)}, s{so} offen offset:1024 sc1", "q")
        put(f"buffer_load_dword v{vG[c]}, v{vT+4}, {sr(sWS,4)}, s{sGoff} offen offset:{128*c} sc1", "q")
    A(f"""
    v_min_u32 v{AK2}, 512, v{vLane16}
    v_mov_b32 v{ZP}, 0
    v_mov_b32 v{ZP+1}, 0
    s_mov_b32 s{sIt}, 0
    ds_read_b128 {vr(K1[0],4)}, v{vLane16} offset:{off_k1(0)}
    ds_read_b128 {vr(K2[0],4)}, v{AK2} offset:{off_k2(0)}
    ds_read_b128 {vr(K1[1],4)}, v{vLane16} offset:{off_k1(1)}
    ds_read_b128 {vr(V[0],4)}, v{AV} offset:{off_v(0,0)}
    ds_read_b128 {vr(V[0]+4,4)}, v{AV} offset:{off_v(0,1)}
""")
    A(zero16(O[0]))
    A(f"v_mov_b32 v{AK}, v{vLane16}")
    for j in range(4): A(f"v_add_u32 v{vO[j]}, {4096 + j*8192}, v{vLane16}")
    for r in [P[1] + 4 + i for i in range(4)] + [V[1] + 4 + i for i in range(4)]: A(f"v_mov_b32 v{r}, 0")
    A(zero16(O[1]))
    blocks = p1.gelu_ops(0, 64, 80)
    groups = [sum((kv_dma(r) for r in range(r0, r0 + 4)), []) for r0 in range(p1.KVL, KVT, 4)]
    for k in range(PRT): groups.append(pre_lds(k))
    for k in range(WOT): groups.append([ld_wo(k, n) for n in range(3)])
    def run_block(ops, ndma):
        for i, ins in enumerate(ops):
            if i == 40 and groups:
                for x in groups.pop(0): put(x)
            put(ins)
    nper = 0
    fs(51)
    run_block(blocks[0], nper)
    fs(52)
    run_block(blocks[1], nper)
    fs(53)
    A(f"v_cmp_gt_u32 vcc, 32, v{vLane}")
    A(f"s_waitcnt vmcnt({vm.need('q')}) lgkmcnt(0)")
    fs(54)
    A(zero16(GACC))
    A(f"s_set_gpr_idx_on s{sWave}, gpr_idx(SRC0)")
    A("s_nop 0")
    for c in range(2):
        for i in range(4): A(f"v_mov_b32 v{Q1[c]+i}, v{S[0]+8*c+i}")
    A("s_set_gpr_idx_off")
    for c in range(2):
        A(f"v_cndmask_b32 v{Q2[c][0]}, 0, v{vQt[c]}, vcc")
        A(f"v_mov_b32 v{Q2[c][0]+1}, 0")
    for c in range(2):
        w = vW[2 * c]
        A.many([f"v_sub_f32 v{w}, 1.0, v{vG[c]}", f"v_max_f32 v{w}, {f2u(2.0**-40):#x}, v{w}", f"v_rcp_f32 v{vT+c}, v{w}"])
    A("s_nop 0")
    for c in range(2): A(f"v_mul_f32 v{vG[c]}, v{vG[c]}, v{vT+c}")
    b2 = blocks[2]
    ins_at = {4: qk8(0), 12: qk16(0), 20: qk8(1), 27: qk16(1), 33: zero16(GACC + 16)}
    nb2 = []
    for i, ins in enumerate(b2):
        if i in ins_at: nb2.append(ins_at[i])
        nb2.append(ins)
    run_block(nb2, nper)
    fs(55)
    for c in range(2):
        A.many(max16(S[c], S[c], True)); A.many(half_max(S[c], S[c] + 1)); A(set_bias(c, S[c]))
    b3 = blocks[3]
    ins_at = {2: qk8(0), 10: qk16(0), 18: zero16(GACC + 32)}
    nb3 = []
    for i, ins in enumerate(b3):
        if i in ins_at: nb3.append(ins_at[i])
        nb3.append(ins)
    fs(56)
    run_block(nb3, nper)
    fs(57)
    assert not groups
    A(f"""
    s_lshl_b32 s{t}, s{sQi}, 2
    s_add_u32 s{t}, s{t}, s{sWave}
    s_cmp_eq_u32 s{t}, 15
    s_cselect_b32 s{sNA}, 8, 1
""")
    A.many([zero16(GACC + 48), zero16(GACC + 64), zero16(GACC + 80)])
    stamp(A, "next")

def main_loop(A):
    t = sT
    A("L_itA:")
    att_body(A, 'A')
    A(f"""
    s_add_u32 s{sIt}, s{sIt}, 1
    s_cmp_eq_u32 s{sIt}, 1
    s_cbranch_scc0 L_idle_next
    s_mov_b32 s{sPollOff}, {F4}
    s_lshl_b32 s{sPub}, s2, 2
    s_add_u32 s{sPub}, s{sPub}, {F4}
    s_waitcnt vmcnt({3*(9-WOT) + 5*(3-PRT)})
    s_barrier
    buffer_store_dword v{vOne}, v{vFlagOff}, {sr(sWS,4)}, s{sPub} offen sc1
    s_cmp_eq_u32 s{sNA}, 1
    s_cbranch_scc0 L_itA
    s_mov_b32 s{sIt}, 0
    s_cmp_eq_u32 s{sQi}, 3
    s_cselect_b32 s{t}, 0, {3*1024}
    s_lshl_b32 s{t+1}, s{t}, 1
    s_mul_i32 s{t}, s{t}, 3
    s_add_u32 s{sHp}, s{sHp}, s{t+1}
    s_addc_u32 s{sHp+1}, s{sHp+1}, 0
    s_add_u32 s{sWp}, s{sWp}, s{t}
    s_addc_u32 s{sWp+1}, s{sWp+1}, 0
""")
    att_body(A, 'LM')
    A("L_itM:")
    att_body(A, 'M')
    A(f"""
    s_sub_u32 s{sIt}, s{sIt}, 1
    s_cbranch_scc0 L_itM
    s_cmp_eq_u32 s{sNA}, 1
    s_cbranch_scc1 L_hchk
L_done:
""")

NRE = [9, 12, 15, 18, 18, 18]
OL = 96
PL = 168
def ld_o(f):
    c, st = f // 9, f % 9
    return gld(vr(OL + 4 * f, 4), sHo, st * 2048 + c * 1024)

ST = [192, 200]
vR = 230
def o_valu(c):
    o = O[c]
    ops = [f"v_rcp_f32 v{vR}, v{o+10}", "s_nop 0", f"v_mul_f32 v{vR}, v{vR}, v{vG[c]}"]
    ops += [f"v_mul_f32 v{o+i}, v{o+i}, v{vR}" for i in range(10)]
    ops += [f"v_cvt_pk_bf16_f32 v{ST[c]+i}, v{o+2*i}, v{o+2*i+1}" for i in range(5)]
    return ops
def o_stores(c):
    return [f"buffer_store_dwordx4 {vr(ST[c],4)}, v{vLane16}, {sr(sWS,4)}, s{sO1} offen offset:{c*1024} sc1",
            f"buffer_store_dword v{ST[c]+4}, v{vT+1}, {sr(sWS,4)}, s{sO2} offen offset:{c*1024} sc1"]

def tail(A):
    t = sT
    vm = Counter(63, [f"x{k}" for k in range(4) for _ in range(5)]); lg = Counter(15)
    def put(ins, tag=None):
        if ins.startswith(("buffer_", "global_")): vm.issue(tag)
        if ins.startswith("ds_"): lg.issue(tag)
        if ins.startswith("L_ook"): NRE[int(ins[5])] = sum(1 for x in vm.ops if x and x[0] == "o")
        A(ins)
    fs = lambda i: stamp(A, i) if common.OPT.get("fine3") else None
    order = [4, 5, 6, 0, 1, 2, 3]
    OST = common.OPT.get("ost", 24)
    fill = {m: [] for m in range(42)}
    def spread(ops, m0, per):
        for i, x in enumerate(ops): fill[m0 + i // per].append((x, None))
    chk = [f"s_mov_b32 s{t+3}, {f2u(2.0**60):#x}", f"v_add_f32 v{vT+3}, v{O[0]+10}, v{O[1]+10}", f"v_cmp_nlt_f32 vcc, v{vT+3}, s{t+3}"]
    v0, v1 = o_valu(0), o_valu(1)
    spread(v0[5:], 0, 6)
    fill[2] += [(x, None) for x in chk]
    fill[3] += [("s_cbranch_vccnz L_fallback", None), ("L_fb_ret:", None)] + [(x, "st") for x in o_stores(0)]
    spread(v1, 4, 6)
    fill[7] += [(x, "st") for x in o_stores(1)]
    misc = [f"s_lshl_b32 s{t}, s{sWave}, 11", f"v_add_u32 v{vT+1}, s{t}, v{vLane16}", f"v_add_u32 v{vT+2}, {6*8192}, v{vT+1}",
            f"s_add_u32 s{t+4}, s{sPart}, s{t}", f"s_lshl_b32 s{t}, s{sWave}, 13", f"v_add_u32 v{vT+3}, s{t}, v{vLane16}",
            f"v_add_u32 v{vT+4}, 0x10000, v{vT+3}", f"v_mov_b32 v{vT+5}, 24576", f"s_mov_b32 s{t+5}, 0x10000",
            f"s_add_u32 s{t+2}, s{sOutOff}, {36864+64}", f"s_movk_i32 s{t+1}, 128"]
    spread(misc, 8, 3)
    fill[12] += [(x, None) for x in [f"s_cmp_lt_u32 s{sWave}, 2", f"s_cselect_b32 s{t+1}, s{t+1}, {36864-64}", "s_cselect_b64 vcc, -1, 0"]]
    fill[13] += [(x, None) for x in [f"v_cndmask_b32 v{vW[1]}, v{vW[2]}, v{vW[0]}, vcc", f"s_add_u32 s{t+1}, s{t+1}, s{sOutOff}"]]
    fill[14] += [("s_barrier", None)]
    A(f"v_cvt_pk_bf16_f32 v{P[1]+7}, v{S[1]+14}, v{S[1]+15}")
    A(f"v_lshrrev_b32 v{vT+1}, 5, v{vLane}")
    A(f"v_lshl_add_u32 v{vT+1}, v{vT+1}, 30, v{vLane16}")
    A(pv(15, 1))
    A.many(v0[:5])
    A(f"s_cmp_eq_u32 s{sQi}, 3"); A("s_cbranch_scc1 L_helper_tail")
    olist = list(range(18))
    m = 0
    for k, st in enumerate(order):
        if st < 4 and st > 0: A(f"s_waitcnt vmcnt({vm.need(f'x{st}')})")
        fs(30 + k)
        for j in range(6):
            A(g_mfma(st, j % 3, j // 3))
            for ins, tag in fill[m]: put(ins, tag)
            if m >= OST and (m - OST) % 2 == 0 and olist:
                f = olist.pop(0); put(ld_o(f), f"o{f}")
            m += 1
        if k == 1: stamp(A, 21)
    stamp(A, 22)
    def check(g):
        r = OL + 12 * g
        pre = [lambda: f"s_waitcnt vmcnt({vm.need(f'o{3*g+2}')})", f"v_max3_u32 v{vT}, v{r}, v{r+1}, v{r+2}"]
        pre += [f"v_max3_u32 v{vT}, v{vT}, v{r+i}, v{r+i+1}" for i in range(3, 11, 2)]
        pre += [f"v_max_u32 v{vT}, v{vT}, v{r+11}", f"v_cmp_eq_u32 vcc, -1, v{vT}"]
        return pre, [f"s_cbranch_vccnz L_ore{g}", f"L_ook{g}:"]
    def wr(q, k): return f"ds_write_b128 v{vT+1+q//6}, {vr(GACC+8*q+4*k,4)} offset:{(q%6)*8192 + k*1024}"
    def rd(i, w, k): return f"ds_read_b128 {vr(32*i + 8*w + 4*k, 4)}, v{vT+3+i//2} offset:{(i%2)*32768 + w*2048 + k*1024}"
    def adds(i):
        b = 32 * i
        return [f"v_add_f32 v{b+r}, v{b+r}, v{b+8+r}" for r in range(8)] + [f"v_add_f32 v{b+16+r}, v{b+16+r}, v{b+24+r}" for r in range(8)] + \
               [f"v_add_f32 v{b+r}, v{b+r}, v{b+16+r}" for r in range(8)]
    def fin(i):
        b = 32 * i
        so = [sOutOff, t + 1, t + 2][i]
        return [f"v_add_f32 v{b+r}, v{b+r}, v{PL+8*i+r}" for r in range(8)] + [f"v_mul_f32 v{b+r}, v{b+r}, v{vW[i]}" for r in range(8)] + \
               [f"v_cvt_pk_bf16_f32 v{b+16+r}, v{b+2*r}, v{b+2*r+1}" for r in range(4)] + \
               [f"buffer_store_dwordx4 {vr(b+16,4)}, v{vQa}, {sr(sOUT,4)}, s{so} offen"]
    seq = [(0, n, st) for st in range(9) for n in range(2)] + [(0, 2, st) for st in range(9)] + \
          [(1, n, st) for n in range(3) for st in range(9)]
    g = {m: [] for m in range(54)}
    def at(m, ops, per=99):
        for i, x in enumerate(ops): g[m + i // per].append(x)
    for i, f in enumerate(olist): at(2 * i, [(ld_o(f), f"o{f}")])
    for grp, m0 in ((1, 3), (2, 9), (3, 17), (4, 20), (5, 23)):
        pre, post = check(grp)
        at(m0, pre, 4); at(m0 + 2, post)
    wpos = [21, 22, 24, 25, 26, 27, 28, 29,  33, 35, 37, 38,  40, 41, 43, 44,  49, 50, 52, 53]
    for i, m0 in enumerate(wpos): at(m0, [(wr(i // 2, i % 2), f"w{i//8}")])
    at(26, [(f"buffer_load_dword v{vPf}, v{vT+5}, {sr(sWS,4)}, s{sPart} offen sc1", "pf")])
    at(32, [lambda: f"s_waitcnt lgkmcnt({lg.need('w0')})", "s_barrier"])
    at(33, [(rd(0, j // 2, j % 2), "r0") for j in range(8)], 4)
    at(36, [lambda: f"s_waitcnt lgkmcnt({lg.need('r0')})"] + adds(0), 5)
    at(41, ["s_waitcnt vmcnt(0)", f"v_cmp_eq_u32 vcc, 0, v{vPf}"]); at(42, ["s_cbranch_vccnz L_pspin", "L_pok:"])
    for i in range(3):
        at([42, 45, 46][i], [(f"buffer_load_dwordx4 {vr(PL+8*i+4*k,4)}, v{vLane16}, {sr(sWS,4)}, s{t+4} offen offset:{k*1024} sc1", f"pl{i}") for k in range(2)]
           + [f"s_add_u32 s{t+4}, s{t+4}, 8192"])
    at(47, [lambda: f"s_waitcnt lgkmcnt({lg.need('w1')})", "s_barrier"])
    at(48, [(rd(1, j // 2, j % 2), "r1") for j in range(8)], 4)
    a1 = adds(1)
    at(51, [lambda: f"s_waitcnt lgkmcnt({lg.need('r1')})"] + a1[:12], 5)
    def emit(x):
        if callable(x): x = x()
        if isinstance(x, tuple): put(*x)
        else: put(x)
    pre, post = check(0)
    for x in pre + post: emit(x)
    for m, (c, n, st) in enumerate(seq):
        A(mfma16(gacc(n, c), wo_reg(st, n), vr(OL + 4 * (c * 9 + st), 4), gacc(n, c)))
        for x in g[m]: emit(x)
        if m % 9 == 8: fs(40 + m // 9)
    stamp(A, 23)
    for x in a1[12:]: put(x)
    for j in range(4): put(wr(10 + j // 2, j % 2), "w")
    A(f"s_waitcnt vmcnt({vm.need('pl1')})")
    for x in fin(0): put(x)
    A("s_waitcnt lgkmcnt(0)")
    A("s_barrier")
    stamp(A, 24)
    for j in range(8): put(rd(2, j // 2, j % 2), "r")
    for x in fin(1): put(x)
    A(f"s_waitcnt vmcnt({vm.need('pl2')}) lgkmcnt(0)")
    for x in adds(2) + fin(2): put(x)
    A("L_fin:")
    stamp(A, 25)
    if common.STAMPS: A("s_waitcnt vmcnt(0)")
    stamp(A, 26)

def fallback(A):
    t = sT
    M = [vT + 2, vT + 3]
    def rebase():
        A(f"v_add_u32 v{AK}, {-16*KV_GS & 0xffffffff:#x}, v{AK}")
        A(f"v_add_u32 v{AV}, {-16*KV_GS & 0xffffffff:#x}, v{AV}")
        A(f"v_add_u32 v{AK2}, {-16*KV_GS & 0xffffffff:#x}, v{AK2}")
        A(f"s_mov_b32 s{t}, 16")
    def loop(name, work, needv):
        A(f"L_{name}:")
        A(f"ds_read_b128 {vr(K2[0],4)}, v{AK2} offset:{off_k2(0)}")
        for tt in range(4):
            A(f"ds_read_b128 {vr(K1[tt%2],4)}, v{AK} offset:{off_k1(tt)}")
            if needv:
                for f in range(2): A(f"ds_read_b128 {vr(V[tt%2]+4*f,4)}, v{AV} offset:{off_v(tt,f)}")
            A("s_waitcnt lgkmcnt(0)")
            A.many([qk8(2*tt), qk8(2*tt+1), "s_nop 15", qk16(2*tt), qk16(2*tt+1), "s_nop 15"])
            for c in range(2): work(2*tt + c)
        A(f"v_add_u32 v{AK}, {KV_GS}, v{AK}"); A(f"v_add_u32 v{AV}, {KV_GS}, v{AV}"); A(f"v_add_u32 v{AK2}, {KV_GS}, v{AK2}")
        A(f"s_sub_u32 s{t}, s{t}, 1"); A(f"s_cmp_lg_u32 s{t}, 0"); A(f"s_cbranch_scc1 L_{name}")
    A("L_fallback:")
    A(f"v_cmp_gt_u32 vcc, 32, v{vLane}")
    rebase()
    for c in range(2):
        A(f"v_cndmask_b32 v{Q2[c][0]}, 0, v{vQt[c]}, vcc"); A(f"v_mov_b32 v{Q2[c][0]+1}, 0")
        A(f"v_mov_b32 v{Q2[c][1]}, 0"); A(f"v_cndmask_b32 v{Q2[c][1]+1}, 0, v{vQt[c]}, vcc")
        A(f"v_mov_b32 v{M[c]}, 0xff800000")
    loop("fbmax", lambda u: A.many(max16(S[u & 1], M[u & 1], False)), False)
    for c in range(2):
        A.many(half_max(M[c], vT)); A(set_bias(c, M[c]))
    for i in range(32): A(f"v_mov_b32 v{O[0]+i}, 0")
    rebase()
    def work(u):
        s, p = S[u & 1], P[u & 1]
        for i in range(16): A(f"v_exp_f32 v{s+i}, v{s+i}")
        A("s_nop 0")
        for i in range(8): A(f"v_cvt_pk_bf16_f32 v{p+i}, v{s+2*i}, v{s+2*i+1}")
        A.many(["s_nop 1", pv(u, 0), pv(u, 1)])
    loop("fbexp", work, True)
    A(f"""
    v_lshrrev_b32 v{vT+1}, 5, v{vLane}
    v_lshl_add_u32 v{vT+1}, v{vT+1}, 30, v{vLane16}
    s_nop 15
""")
    A.many(o_valu(0))
    A(f"s_cmp_eq_u32 s{sQi}, 3")
    A("s_cbranch_scc1 L_fb_ret_h")
    A("s_branch L_fb_ret")

def out_of_line(A):
    t = sT
    A(f"""
L_idle_next:
    s_cmp_lt_u32 s{sIt}, 8
    s_cbranch_scc1 L_itA
    s_branch L_done
L_hchk:
    s_mov_b32 s{sNA}, 0
    s_mov_b32 s{sIt}, 4
    {flag_min()[0]}
    {flag_min()[1]}
    v_cmp_eq_u32 vcc, 0, v{vPoll}
    s_cbranch_vccz L_itM
""")
    p1.spin(A, f"s{sPollOff}", "hspin", "L_itM")
    p1.spin(A, f"s{sPollOff}", "qspin", "L_qok")
    A(f"""
L_helper_tail:
""")
    A.many(o_valu(0)[5:])
    A(f"""
    s_mov_b32 s{t+3}, {f2u(2.0**60):#x}
    v_add_f32 v{vT+3}, v{O[0]+10}, v{O[1]+10}
    v_cmp_nlt_f32 vcc, v{vT+3}, s{t+3}
    s_cbranch_vccnz L_fallback
L_fb_ret_h:
""")
    A.many(o_stores(0) + o_valu(1) + o_stores(1))
    A(f"""
    s_cmp_eq_u32 s{sWave}, 3
    s_cbranch_scc1 L_fin
    v_mov_b32 v{vT+5}, 24576
    s_nop 0
    s_mov_b32 s{t+4}, s{sPart}
    s_nop 3
""")
    for i in range(24):
        if i and i % 4 == 0: A(f"s_add_u32 s{t+4}, s{t+4}, 4096")
        A(f"buffer_store_dwordx4 {vr(GACC+4*i,4)}, v{vLane16}, {sr(sWS,4)}, s{t+4} offen offset:{(i%4)*1024} sc1")
    A(f"""
    s_waitcnt vmcnt(0)
    buffer_store_dword v{vOne}, v{vT+5}, {sr(sWS,4)}, s{sPart} offen sc1
    s_branch L_fin
L_pspin:
    s_sleep 2
    buffer_load_dword v{vPf}, v{vT+5}, {sr(sWS,4)}, s{sPart} offen sc1
    s_sub_u32 s{t+5}, s{t+5}, 1
    s_cbranch_scc1 L_pok
    s_waitcnt vmcnt(0)
    v_cmp_eq_u32 vcc, 0, v{vPf}
    s_cbranch_vccnz L_pspin
    s_branch L_pok
""")
    for g in range(6):
        r = OL + 12 * g
        A(f"L_ore{g}:")
        A(f"s_sleep {common.OPT.get('osleep', 4)}")
        for f in range(3 * g, 3 * g + 3): A(ld_o(f))
        A(f"""
    s_sub_u32 s{t+5}, s{t+5}, 1
    s_cbranch_scc1 L_fin
    s_waitcnt vmcnt(0)
    v_max3_u32 v{vT}, v{r}, v{r+1}, v{r+2}
""")
        for i in range(3, 11, 2): A(f"v_max3_u32 v{vT}, v{vT}, v{r+i}, v{r+i+1}")
        A(f"""
    v_max_u32 v{vT}, v{vT}, v{r+11}
    v_cmp_eq_u32 vcc, -1, v{vT}
    s_cbranch_vccnz L_ore{g}
""")
        for f in range(3 * g + 3, NRE[g]): A(ld_o(f))
        A(f"s_branch L_ook{g}")
    fallback(A)
```

```python
import re, sys
def regs(tok):
    tok = tok.strip()
    m = re.fullmatch(r"-?([vas])(\d+)", tok)
    if m: return {(m.group(1), int(m.group(2)))}
    m = re.fullmatch(r"([vas])\[(\d+):(\d+)\]", tok)
    if m: return {(m.group(1), i) for i in range(int(m.group(2)), int(m.group(3)) + 1)}
    if tok == "vcc": return {("s", "vcc")}
    if tok == "m0": return {("s", "m0")}
    return set()
TRANS = ("v_exp_f32", "v_rcp_f32", "v_log_f32", "v_rsq_f32", "v_sqrt_f32")
def parse(line):
    line = line.split(";")[0].strip()
    if not line or line.endswith(":") or line.startswith("."): return None
    parts = line.split(None, 1); op = parts[0]
    args = [a.strip() for a in parts[1].split(",")] if len(parts) > 1 else []
    if args: args[-1] = args[-1].split()[0]
    R = [regs(a) for a in args]
    w, r = set(), set()
    if op.startswith("v_mfma"): w = R[0]; r = R[1] | R[2] | R[3]; return dict(op=op, k="mfma", w=w, r=r, c=R[3], ab=R[1] | R[2], t=line)
    if op.startswith("v_"):
        w = R[0]; r = set().union(*R[1:]) if len(R) > 1 else set()
        if op.startswith(("v_fmac", "v_dot2c", "v_writelane")): r |= w
        if op.startswith("v_permlane"): w = R[0] | R[1]; r = set(w)
        return dict(op=op, k="valu", w=w, r=r, t=line)
    if op.startswith("ds_read") or op.startswith("ds_swizzle"): return dict(op=op, k="mem", w=R[0], r=set().union(*R[1:]), t=line)
    if op.startswith("ds_write"): return dict(op=op, k="mem", w=set(), r=set().union(*R), t=line)
    if op.startswith(("buffer_load", "global_load")):
        if " lds" in line: return dict(op=op, k="mem", w=set(), r=set().union(*R) | {("s", "m0")}, t=line)
        return dict(op=op, k="mem", w=R[0], r=set().union(*R[1:]), t=line)
    if op.startswith(("buffer_store", "global_store", "buffer_atomic")):
        return dict(op=op, k="mem", w=set(), r=set().union(*R), data=R[0], t=line)
    if op == "s_nop": return dict(op=op, k="nop", n=int(args[0]) + 1, w=set(), r=set(), t=line)
    return dict(op=op, k="salu", w=R[0] if R and not op.startswith(("s_cmp", "s_cbranch", "s_waitcnt")) else set(), r=set().union(*R[1:]) if len(R) > 1 else set(), t=line)
def check(text):
    ins = []
    for ln, l in enumerate(text.split("\n"), 1):
        p = parse(l)
        if p: p["ln"] = ln; ins.append(p)
    bad = 0
    for i, a in enumerate(ins):
        d = 0
        sm = 4 if "16x16" in a["op"] else 0
        for b in ins[i + 1:i + 24]:
            need = 0
            if a["k"] == "mfma":
                if b["k"] == "mfma":
                    if a["w"] & b["ab"]: need = 12 - sm
                    elif a["w"] & b["c"] and a["w"] != b["c"]: need = 10 - sm
                elif b["k"] in ("valu", "mem") and a["w"] & (b["r"] | b["w"]): need = 12 - sm
                if b["k"] == "valu" and a["c"] & b["w"]: need = max(need, 7 - sm)
            if a["k"] == "valu":
                vw = {x for x in a["w"] if x[0] != "s"}; sw = {x for x in a["w"] if x[0] == "s"}
                if b["k"] == "mfma" and vw & b["r"]: need = 2
                if a["op"] in TRANS and b["k"] == "valu" and b["op"] not in TRANS and vw & b["r"]: need = 1
                if b["k"] == "valu" and ("dpp" in b["op"] or b["op"].startswith("v_permlane")) and vw & b["r"]: need = 2
                if b["op"].startswith(("v_readlane", "v_readfirstlane")) and vw & b["r"]: need = 1
                if b["k"] == "valu" and sw & b["r"]: need = 2
                if b["k"] == "mem" and sw & b["r"]: need = 5
                if a["op"].startswith("v_dot") and b["op"] != a["op"] and b["k"] in ("valu", "mem") and vw & (b["r"] | b["w"]): need = 3
            if a["k"] == "mem" and "data" in a and ("x4" in a["op"] or "x3" in a["op"]) and b["k"] == "valu" and a["data"] & b["w"]: need = 2
            if a["k"] == "salu" and ("s", "m0") in a["w"] and b["k"] == "mem" and ("s", "m0") in b["r"]: need = 1
            if d < need:
                print(f"HAZARD line {a['ln']} -> {b['ln']} dist {d} need {need}:\n   {a['t']}\n   {b['t']}"); bad += 1
            d += b.get("n", 1)
            if b["op"] in ("s_branch", "s_setpc_b64", "s_endpgm"): break
    return bad
if __name__ == "__main__":
    print("hazards:", check(open(sys.argv[1]).read()))
```

```python
from common import *
import common
import hazard

S_X, S_WQ, S_WK, S_WV, S_WO, S_WG, S_WU, S_WD, S_GW, S_OUT, S_DBG, S_WS = 4, 6, 8, 10, 12, 16, 18, 20, 22, 24, 26, 28
sW, sWn, nOff, sX, sWS, sH, sP, sPD = 32, 36, 88, 40, 44, 48, 52, 56
sTch = 94
sWave, sOff, sStep, nStep, sHoff, sHbase, sTab, sM0, sRowOff = 60, 61, 62, 63, 64, 65, 66, 68, 69
sPs0, sPs1, sPd0, sPd1, sXc, sXend = 70, 71, 72, 73, 74, 85
sT = 76
sLink, sLink2, sSpecial, sTb, sC2, sFb, sPub, sPar = 82, 84, 86, 87, 89, 90, 92, 93
sXq, sQi = 94, 95
sDB = 96
sBase, sEnd, nStart, sSkip, sRot = 100, 101, 31, 30, 3
sPollOff = 74
nD = 75
sHp, sWp, sHo, sWo = 12, 14, 16, 18
sO1, sO2, sQoff, sGoff = 20, 21, 22, 23
sOUT = 24
sPart, sOutOff = 4, 5
SRD3 = 0x00020000
WG_SIZE = 576 * 9216
LEAD = 12
PB = 4
NT_W = ""
NT_X = ""
NT_P = ""
NT_T = ""

ACC = [0, 64]
AF = 128
XT = 152
GT = 184
PK = 200
PF = 208
vDma = 220
vHs = 254
vTR = 224
vTW, vNext, vF, vLane16, vC1, vPsrc, vPtr, vR8, vC16, vFlagOff, vOne, vLane, vQa, vAV = range(230, 244)
vT = 244
vPoll = 244
vLane4 = 250
vDummy = 251
F0, F2, F4, FOOB = WS_FL, WS_FL + 1024, WS_FL + 2048, 0x40000000

def xreg(i):
    return ar(4 * i, 4) if i < 64 else vr(XT + 4 * (i - 64), 4)

def tr_reads(ks, region):
    out = []
    third = min(region // 12, 2)
    blk = ks % 4
    for r in range(4):
        h, rr = r // 2, r % 2
        reg = AF + (ks % 3) * 8 + h * 4 + rr * 2
        off = (region // 4 - third * 3) * 16384 + (blk // 2) * 8192 + h * 2048 + rr * 512
        out.append(f"ds_read_b64_tr_b16 {vr(reg,2)}, v{vTR + third*2 + blk % 2} offset:{off}")
    return out

def gelu_ops(accset, gt=GT, pkb=PK, nops=False):
    blocks = []
    for blk in range(4):
        ops = []
        g = ACC[accset] + 16 * blk; u = g + 8
        t = gt; pk = pkb + 4 * (blk % 2)
        ops += [f"v_mul_f32 v{t+i}, v{g+i}, v{g+i}" for i in range(8)]
        ops += [f"v_fma_f32 v{t+i}, v{t+i}, s{sC2}, v{vC1}" for i in range(8)]
        ops += [f"v_mul_f32 v{t+i}, v{t+i}, v{g+i}" for i in range(8)]
        for i in range(8):
            ops += [f"v_exp_f32 v{t+i}, v{t+i}", f"v_mul_f32 v{g+i}, v{g+i}, v{u+i}"]
        ops += [f"v_add_f32 v{t+i}, 1.0, v{t+i}" for i in range(8)]
        ops += [f"v_rcp_f32 v{t+i}, v{t+i}" for i in range(8)]
        ops += [f"v_mul_f32 v{g+i}, v{g+i}, v{t+i}" for i in range(8)]
        ops += [f"v_cvt_pk_bf16_f32 v{pk+i}, v{g+2*i}, v{g+2*i+1}" for i in (0, 2, 1, 3)]
        if nops: ops += ["s_nop 0"]
        ops += [f"v_permlane16_swap_b32 v{pk}, v{pk+2}", f"v_permlane16_swap_b32 v{pk+1}, v{pk+3}"]
        ops += [f"buffer_store_dwordx4 {vr(pk,4)}, v{vHs}, {sr(sH,4)}, s{sHoff} offen offset:{(blk//2)*1024 + (blk%2)*256} sc1"]
        blocks.append(ops)
    return blocks

def w_dma(region, kpos):
    o = []
    if region % 4 == 0:
        o = [f"s_add_u32 m0, s{sM0}, {(region//4)*16384}", f"s_add_u32 s{sOff}, s{sOff}, s{sStep}"]
        if kpos > 0:
            o += [f"s_cmp_eq_u32 s{sOff}, s{sEnd}", f"s_cselect_b32 s{sOff}, s{sBase}, s{sOff}"]
    j = region % 4
    return o, f"buffer_load_dwordx4 v{vDma+j}, {sr(sW,4)}, s{sOff} offen offset:{j*1024} sc1{NT_W} lds"

def switch_ops():
    return [[f"s_mov_b64 {sr(sW,2)}, {sr(sWn,2)}", f"s_mov_b32 s{sW+2}, s{sWn+2}", f"s_mov_b32 s{sStep}, s{nStep}", f"v_mov_b32 v{vDma}, v{vNext}"],
            [f"s_mov_b32 s{sOff}, s{nStart}", f"s_mov_b32 s{sBase}, s{nOff}", f"s_mul_i32 s{sEnd}, s{nStep}, 9", f"s_add_u32 s{sEnd}, s{sEnd}, s{nOff}"],
            [f"v_add_u32 v{vDma+1}, s{nD}, v{vDma}", f"v_add_u32 v{vDma+2}, s{nD}, v{vDma+1}", f"v_add_u32 v{vDma+3}, s{nD}, v{vDma+2}"]]

def next_ops():
    t = sT
    return [[f"s_bfe_u32 s{t}, s{sTab}, 0x80018", f"s_lshl_b32 s{t+1}, s{t}, 7", f"s_add_u32 s{nOff}, s{t+1}, s{sRowOff}"],
            [f"s_cmp_lt_u32 s{t}, 72", f"s_cselect_b32 s{sSkip}, 1, 0", f"s_mul_i32 s{t+1}, s{sRot}, {64*9216}"],
            [f"s_add_u32 s{nStart}, s{nOff}, s{t+1}", f"s_lshr_b64 {sr(sTab,2)}, {sr(sTab,2)}, 8"],
            [f"s_mov_b64 {sr(sWn,2)}, {sr(sFb,2)}", f"s_mov_b32 s{sWn+2}, {WG_SIZE}"]]

def poll_ld(soff):
    return f"buffer_load_dwordx4 {vr(vPoll,4)}, v{vLane16}, {sr(sWS,4)}, {soff} offen sc1"
def flag_min():
    return [f"v_min3_u32 v{vPoll}, v{vPoll}, v{vPoll+1}, v{vPoll+2}", f"v_min_u32 v{vPoll}, v{vPoll}, v{vPoll+3}"]

def emit_stream(A, accset, pinned, pre, queue, qstart, vm, lg, qend=140, **_):
    Q = [(x, hazard.parse(x)) for x in queue]
    total = sum(cost(x) for x in queue); done = 0
    hist = []
    ismem = lambda x: x.startswith(("ds_", "buffer_", "global_"))
    def put(ins):
        if callable(ins): ins = ins()
        if ins == "FULL": return 100
        tag = None
        if isinstance(ins, tuple): ins, tag = ins
        if ins.startswith("ds_"): lg.issue(tag)
        if ins.startswith(("buffer_", "global_")): vm.issue(tag)
        A(ins)
        if ins.endswith(":"): return 0
        hist.append(hazard.parse(ins))
        return cost(ins)
    def peek(ins):
        if callable(ins): return "s_waitcnt"
        return ins[0] if isinstance(ins, tuple) else ins
    def ready(i):
        p = Q[i][1]
        for _, e in Q[:i]:
            if e["w"] & (p["r"] | p["w"]) or e["r"] & p["w"] or (e["k"] == "mem" and p["k"] == "mem"): return False
        for d, h in enumerate(reversed(hist[-4:])):
            if h["k"] != "valu" or not (h["w"] & (p["r"] | p["w"])):
                if "data" in h and h["data"] & p["w"] and d < 2: return False
                continue
            need = 1
            if "dpp" in p["op"] or p["op"].startswith("v_permlane"): need = 2
            if h["op"].startswith("v_dot") and p["op"] != h["op"]: need = 3
            if d < need: return False
        return True
    pc = lambda x: 8 if peek(x) == "FULL" else 0 if peek(x).endswith(":") else cost(peek(x))
    free = [max(0, 60 - sum(pc(x) for g in pinned[ks] for x in g)) if qstart <= 4 * ks < qend else 0 for ks in range(36)]
    est = 0
    for ks in range(36):
        for p in pre[ks]: put(p)
        fifo = []
        for m in range(8):
            t, h = m // 2, m % 2
            d = vr(ACC[accset] + 16 * t + 4 * (ks % 4), 4)
            put(f"v_mfma_f32_16x16x32_bf16 {d}, {vr(AF + (ks % 3) * 8 + h * 4, 4)}, {xreg(8 * (ks // 4) + m)}, {'0' if ks < 4 and h == 0 else d}")
            if h == 0: fifo += pinned[ks][t]
            used = 4 if m == 7 else 0
            gap = ks * 4 + m / 2
            backlog = sum(cost(peek(x)) for x in fifo if peek(x) != "FULL" and not peek(x).endswith(":"))
            later = sum(cost(peek(x)) for tt in range(t + 1, 4) for x in pinned[ks][tt] if peek(x) != "FULL" and not peek(x).endswith(":"))
            cap = 8 if backlog + later <= 8 * (8 - m) - 4 else 12
            sparse = backlog + later <= 4 * (8 - m)
            npin = 0
            while fifo and (m == 7 or used + (0 if peek(fifo[0]) == "FULL" or peek(fifo[0]).endswith(":") else cost(peek(fifo[0]))) <= cap):
                if sparse and npin and m != 7 and ismem(peek(fifo[0])): break
                used += put(fifo.pop(0)); npin += 1
            target = total * (sum(free[:ks]) + free[ks] * (m + 1) / 8) / sum(free)
            cap = 12 if done < target - 16 else 8
            while Q and gap >= qstart and done <= target + 16:
                cand = [i for i in range(min(len(Q), 28)) if used + cost(Q[i][0]) <= cap and ready(i)
                        and not (Q[i][1]["k"] == "mem" and hist[-1]["k"] == "valu")]
                if not cand: break
                big = [i for i in cand if cost(Q[i][0]) == 8]
                i = big[0] if big else cand[0]
                c_ = put(Q.pop(i)[0]); used += c_; done += c_
            est += 8 + max(8, min(used, 24))
    assert not Q, f"queue not drained {len(Q)}"
    if common.OPT.get("v"): print("free", sum(free), "queue", total, "est cycles", est)
    stamp(A, "next")

def touch_w():
    return [[f"s_add_u32 s{sT+3}, s{nOff}, s{sTch}", f"s_cmp_eq_u32 s{sSkip}, 0", f"s_cselect_b32 s{sT+3}, {FOOB}, s{sT+3}"],
            [(f"buffer_load_dword v{vDummy}, v{vTW}, {sr(sWn,4)}, s{sT+3} offen{NT_T}", "tch")]]

def kv_dma(r):
    o = []
    if r % 4 == 0:
        o = [f"s_add_u32 m0, s{sM0}, {(r//4)*16384}", f"s_add_u32 s{sEnd}, s{sM0}, {WS_KV + (r//4)*16384}"]
    return o, f"buffer_load_dwordx4 v{vLane16}, {sr(sX,4)}, s{sEnd} offen offset:{(r%4)*1024} sc1 lds"
KVL = 32

def body(A, kind):
    odd, last = kind == "o", kind == "l"
    accset = 1 if odd else 0
    vm = Counter(63); lg = Counter(15, ["k0"]*4 + ["k1"]*4)
    pinned = [[[] for _ in range(4)] for _ in range(36)]
    pre = [[] for _ in range(36)]
    assert LEAD == 12
    bars = {10: "d19", 18: "d31", 30: "d47"} if not last else {10: "d19", 18: "d31", 26: "d35", 32: "v7"}
    for ks in range(36):
        pre[ks].append(lambda ks=ks: f"s_waitcnt lgkmcnt({lg.need(f'k{ks}')})")
        bar = ks in bars
        if bar:
            pinned[ks][0] += [lambda ks=ks: f"s_waitcnt vmcnt({vm.need(bars[ks])})", "s_barrier", "FULL"]
        if last and ks >= 34: continue
        k2 = (ks + 2) % 36
        for r, ins in enumerate(tr_reads(k2, k2)):
            pinned[ks][[1,1,2,3][r] if bar else r].append((ins, f"k{ks+2}"))
    slots = sorted([(k, 2) for k in range(36)] + [(k, 0) for k in range(1, 36, 2)])
    SW = 16
    if not last:
        sw = switch_ops()
        pinned[SW-1][3] += sw[0]; pinned[SW][0] += sw[1]; pinned[SW][3] += sw[2]
    def place(k, g, o, ld):
        if g == 0: pinned[k-1][3] += o
        else: pinned[k][g-1] += o
        pinned[k][g] += [ld]
    for i, (k, g) in enumerate(slots[:24 if last else 36]):
        rho = LEAD + i
        o, ld = w_dma(rho % 36, rho % 36)
        place(k, g, o, (ld, f"d{rho}"))
        if rho == 36: assert (k, g) == (SW, 2)
    if last:
        ks_ = [x for x in slots[24:] if x[0] < 32] + [(32,2), (33,0), (33,2), (34,0), (34,1), (34,3), (35,1), (35,3)]
        assert len(ks_) == KVL
        for r, (k, g) in enumerate(ks_):
            assert (r | 3) <= max(x for x in bars if (x, 0) < (k, g))
            o, ld = kv_dma(r)
            place(k, g, o, (ld, f"v{r}"))
    pinned[0][0] += [f"s_and_b32 s{sT+2}, s{sTab}, 0xff", f"s_lshl_b32 s{sT+2}, s{sT+2}, 13", f"s_add_u32 s{sHoff}, s{sHbase}, s{sT+2}"]
    if odd or last:
        pinned[18][1] += [f"buffer_store_dword v{vOne}, v{vFlagOff}, {sr(sWS,4)}, s{sPub} offen sc1"]
    if odd:
        pinned[26][1] += [f"s_lshl_b32 s{sPub}, s2, 2", f"s_add_u32 s{sPub}, s{sPub}, {F2}", f"s_cmp_lg_u32 s{sP+2}, 1", f"s_cselect_b32 s{sPub}, s{sPub}, {FOOB}"]
    if last:
        pinned[14][0] += flag_min() + [f"v_cmp_eq_u32 vcc, 0, v{vPoll}"]
        pinned[14][1] += [f"s_cbranch_vccnz L_kvspin", f"L_kvok:"]
        pinned[12][0] += [f"s_mov_b64 {sr(sX,2)}, {sr(S_WS,2)}", f"s_mov_b32 s{sX+2}, {WS_KV + 16*KV_GS}"]
        pinned[2][0] += [f"s_mov_b32 s{sPollOff}, {F0}", poll_ld(f"s{sPollOff}")]
        pinned[30][0] += [f"s_mov_b32 s{sPollOff}, {F2}", (poll_ld(f"s{sPollOff}"), "poll")]
    else:
        nx = next_ops()
        for grp, (k, g) in zip(nx, [(17,1), (17,3), (19,1), (19,3)]): pinned[k][g] += grp
        units = [0, 1] if odd else [2]
        pos = [(24,2), (24,3), (25,0), (25,1)]
        for n, u in enumerate(units):
            for e in range(2):
                k, g = pos[2*n + e]
                if e == 0: pinned[k][g] += [f"s_add_u32 m0, s{sM0}, {9*16384 + n*2048}"]
                pinned[k][g] += [f"s_add_u32 s{sT+3}, s{sPs0+e}, {u*128}",
                                 (f"buffer_load_dwordx4 v{vPsrc}, {sr(sP,4)}, s{sT+3} offen offset:{e*1024}{NT_P} lds", "pk")]
        tw = touch_w()
        pinned[24][0] += tw[0]; pinned[24][1] += tw[1]
    for n, u in enumerate([0, 1] if kind == "e" else [2]):
        pf = [PF, GT + 8][n]
        for r in range(4):
            e, rr = r // 2, r % 2
            k, g = [[(10,1), (10,2), (11,1), (11,1)], [(14,3), (14,3), (15,1), (15,1)]][n][r]
            pinned[k][g].append(
                (f"ds_read_b64_tr_b16 {vr(pf + e*4 + rr*2,2)}, v{vPtr} offset:{n*2048 + rr*512 + e*64}", f"p{n}"))
        for e in range(2):
            nb = 2 * u + e
            k, g = [[(12,1), (12,3)], [(22,1), (22,3)]][n][e]
            if n == 0 and e == 0: pinned[k][g].append(lambda: f"s_waitcnt lgkmcnt({lg.need('p0')})")
            pinned[k][g].append(
                f"buffer_store_dwordx4 {vr(pf + e*4, 4)}, v{vLane16}, {sr(sPD,4)}, s{sPd0 + nb//3} offen offset:{(nb%3)*1024} sc1")
    if odd:
        pinned[35][1] += [f"s_cmp_gt_u32 s{sP+2}, 1", f"s_cselect_b32 s{sPD+2}, {WS_SIZE}, 0"]
    elif not last:
        pinned[35][1] += [f"s_mov_b32 s{sP+2}, 1"]
    q = sum(gelu_ops(1 - accset), [])
    emit_stream(A, accset, pinned, pre, q, 4, vm, lg)
    return vm

XR = 64
GX = 80
vXd = 76
sXb = 64
def elem_dma(e):
    region = (e + 8) % 40
    if e < 72 and e % 8 < 4:
        n = e % 8
        o = []
        if n == 0:
            o = [f"s_add_u32 m0, s{sM0}, {(region//4)*16384}"]
            o += [f"s_add_u32 s{sXc}, s{sXc}, 128", f"s_cmp_eq_u32 s{sXc}, s{sXend}", f"s_cselect_b32 s{sXc}, s{sXb}, s{sXc}"] if e > 0 else ["s_nop 0"]
        return o + [(f"buffer_load_dwordx4 v{vXd+n}, {sr(sX,4)}, s{sXc} offen offset:{n*1024}{NT_X} lds", f"e{e}")]
    kpos = (e // 8) * 4 + e % 4 if e < 72 else e - 72
    o, ld = w_dma(region, kpos)
    return o + [(ld, f"e{e}")]
def x_reads(j, t):
    base = ((8 * j + 8) % 40) * 4096
    seg = base // 57344
    return [f"ds_read_b128 {xreg(8*j + 2*t + h)}, v{XR + seg*2 + h} offset:{base - seg*57344 + t*2048}" for h in range(2)]
def wregion0(ks):
    if ks >= 36: return ks - 36
    return (8 * (ks // 4) + 4 + ks % 4 + 8) % 40
def put_elems(A, vm, es):
    for e in es:
        for ins in elem_dma(e):
            if isinstance(ins, tuple): vm.issue(ins[1]); ins = ins[0]
            A(ins)

def gate_queue():
    a = GX + 24; b = GX + 25
    q = [f"v_mov_b32 v{a}, 0"]
    for i in range(3):
        for k in range(3): q.append(f"v_dot2c_f32_bf16 v{a}, v{GX+4*i+k}, v{GX+12+4*i+k}")
    pass
    for dpp in ("quad_perm:[1,0,3,2]", "quad_perm:[2,3,0,1]", "row_half_mirror", "row_mirror"):
        q += [f"v_add_f32_dpp v{a}, v{a}, v{a} {dpp} row_mask:0xf bank_mask:0xf"]
    q += [f"v_mov_b32 v{b}, v{a}", f"v_permlane16_swap_b32 v{a}, v{b}",
          f"v_add_f32 v{a}, v{a}, v{b}", f"v_mul_f32 v{a}, {f2u(-math.log2(math.e)):#x}, v{a}",
          f"v_exp_f32 v{a}, v{a}", f"v_add_f32 v{a}, 1.0, v{a}", f"v_rcp_f32 v{a}, v{a}",
          f"buffer_store_dword v{a}, v{GX+26}, {sr(sWS,4)}, 0 offen sc1"]
    s = GX + 28
    for c in range(2):
        q += [f"buffer_store_dwordx4 {vr(s,4)}, v{vLane16}, {sr(sWS,4)}, s{sO1} offen offset:{c*1024} sc1",
              f"buffer_store_dword v{s}, v{GX+27}, {sr(sWS,4)}, s{sO2} offen offset:{c*1024} sc1"]
    q += [f"buffer_store_dword v{GX+32}, v{GX+33}, {sr(sWS,4)}, s{sPart} offen sc1"]
    return q

def body0(A, vm):
    lg = Counter(15)
    stamp(A, 1)
    if common.OPT.get("padmin"):
        A(f"s_lshl_b32 s0, s2, 2"); A(f"s_add_u32 s0, s0, {WS_FL + 4096}")
        A(f"buffer_store_dword v253, v{vFlagOff}, {sr(sWS,4)}, s0 offen sc1"); vm.issue("pad")
    A(f"s_waitcnt vmcnt({vm.need('e7')})")
    A("s_barrier")
    stamp(A, 2)
    for ins in tr_reads(0, wregion0(0)) + sum((x_reads(0, t) for t in range(4)), []):
        A(ins); lg.issue("k0")
    for ins in tr_reads(1, wregion0(1)):
        A(ins); lg.issue("k1")
    put_elems(A, vm, range(12, 16))
    if common.OPT.get("touch0"):
        A(f"buffer_load_dword v{vDummy}, v{GX+37}, {sr(sX,4)}, 0 offen"); vm.issue("t")
        A(f"buffer_load_dword v{vDummy}, v{GX+38}, {sr(sW,4)}, s{sBase} offen"); vm.issue("t")
        tw = touch_w(); A.many(tw[0]); A(tw[1][0][0]); vm.issue("t")
    put_elems(A, vm, range(16, 20))
    pinned = [[[] for _ in range(4)] for _ in range(36)]
    pre = [[] for _ in range(36)]
    e = 20
    elast = 72 + LEAD - 1
    for ks in range(36):
        pre[ks].append(lambda ks=ks: f"s_waitcnt lgkmcnt({lg.need(f'k{ks}')})")
        j = (ks + 2) // 4
        if ks % 4 == 2:
            last = 8 * j + 7 if j < 9 else elast
            if common.OPT.get("fine"):
                pinned[ks][0] += ["s_memtime s[0:1]", "s_waitcnt lgkmcnt(0)", f"v_writelane_b32 v255, s0, {30+2*j}"]
            pinned[ks][0] += [lambda last=last: f"s_waitcnt vmcnt({vm.need(f'e{last}')})", "s_barrier"]
            if common.OPT.get("fine"):
                pinned[ks][0] += ["s_memtime s[0:1]", "s_waitcnt lgkmcnt(0)", f"v_writelane_b32 v255, s0, {31+2*j}"]
        if ks % 4 >= 2 and j < 9:
            s0 = 2 * (ks % 4 - 2)
            xs = x_reads(j, s0) + x_reads(j, s0 + 1)
            for r in range(4): pinned[ks][r // 2].append((xs[r], f"k{4*j}"))
        for r, ins in enumerate(tr_reads((ks + 2) % 36, wregion0(ks + 2))):
            pinned[ks][2 + r // 2 if (ks % 4 >= 2 and j < 9) else r].append((ins, f"k{ks+2}"))
        extra = elast + 1 - e > 2 * (36 - ks) and ks >= 12
        for m in ((0, 1, 2, 3) if ks < 2 else (1, 2, 3) if extra else (1, 3)):
            if e <= elast and (e < 40 or e <= 40 + 8 * (j - 1) + 3):
                if e == 72:
                    sw = switch_ops()
                    pinned[23][3] += sw[0][:2]; pinned[24][0] += sw[0][2:] + sw[1][:2]; pinned[24][2] += sw[2]; pinned[25][1] = sw[1][2:] + pinned[25][1]
                    assert ks == 24
                    for grp, (k, g) in zip(next_ops(), [(25,2), (27,0), (28,0), (28,2)]): pinned[k][g] += grp
                pinned[ks][m] += elem_dma(e); e += 1
    assert e == elast + 1, e
    if not common.OPT.get("notouch"):
        tw = touch_w()
        pinned[29][2] += tw[0]; pinned[30][1] += tw[1]
    if common.OPT.get("pref2"):
        pinned[31][0] += [f"s_getpc_b64 {sr(sX,2)}", "L_pc2:", f"s_mov_b32 s{sX+2}, L_jobtab-L_pc2"]
        pinned[31][1] += [f"buffer_load_dword v{vDummy}, v{GX+39}, {sr(sX,4)}, 0 offen"]
    pinned[22][2] += [(f"buffer_load_dword v{GX+34}, off, {sr(sDB,4)}, 0 sc1", "ini")]
    pinned[34][1] += [lambda: f"s_waitcnt vmcnt({vm.need('ini')})", f"v_cmp_eq_u32 vcc, 0, v{GX+34}"]
    pinned[34][2] += ["s_cbranch_vccnz L_inispin", "L_iniok:"]
    for i in range(3):
        pinned[4 + i][2] += [(f"global_load_dwordx3 {vr(GX+4*i,3)}, v{GX+36}, {sr(sX,2)} offset:{384*i}", "g"),
                             (f"global_load_dwordx3 {vr(GX+12+4*i,3)}, v{GX+35}, {sr(sLink,2)} offset:{384*i}", "g")]
    pinned[12][3] += [lambda: f"s_waitcnt vmcnt({vm.need('g')})"]
    emit_stream(A, 0, pinned, pre, gate_queue(), 13 * 4, vm, lg, maxpin=2, qend=21 * 4)

def setup_sub(A):
    t = sT
    A(f"""
L_setup:
    s_mov_b64 {sr(sWn,2)}, {sr(sFb,2)}
    s_mov_b32 s{sWn+2}, {WG_SIZE}
    s_movk_i32 s{t+1}, 9216
    s_lshl_b32 s{t+2}, s{t}, 7
    s_mov_b32 s{t+4}, 0
    s_cmp_lt_u32 s{t}, 72
    s_cbranch_scc1 L_setup_fin
    s_cmp_lt_u32 s{t}, 77
    s_cbranch_scc0 L_setup_kv
    s_mov_b64 {sr(sWn,2)}, {sr(S_WQ,2)}
    s_movk_i32 s{t+1}, 1152
    s_sub_u32 s{t+2}, s{t}, 72
    s_lshl_b32 s{t+2}, s{t+2}, 1
    s_lshr_b32 s{t+3}, s{sWave}, 1
    s_add_u32 s{t+2}, s{t+2}, s{t+3}
    s_lshl_b32 s{t+2}, s{t+2}, 7
    s_cmp_lt_u32 s{t+2}, 1152
    s_cselect_b32 s{sWn+2}, {576*1152}, 0
    s_branch L_setup_fin
L_setup_kv:
    s_cmp_eq_u32 s{t}, 77
    s_cbranch_scc0 L_setup_ret
    s_cmp_lt_u32 s{sWave}, 2
    s_cselect_b64 {sr(sWn,2)}, {sr(S_WK,2)}, {sr(S_WV,2)}
    s_sub_u32 s{sWn}, s{sWn}, 3072
    s_subb_u32 s{sWn+1}, s{sWn+1}, 0
    s_movk_i32 s{sWn+2}, {576*36 + 3072}
    s_movk_i32 s{t+1}, 36
    s_mov_b32 s{t+2}, 0
    s_movk_i32 s{t+4}, 3072
L_setup_fin:
    s_lshl_b32 s{nStep}, s{t+1}, 6
    s_lshl_b32 s{nD}, s{t+1}, 4
    s_sub_u32 s{nD}, s{nD}, 1024
    s_and_b32 s{t+3}, s{sWave}, 1
    s_mul_i32 s{t+3}, s{t+3}, s{t+1}
    s_lshl_b32 s{t+3}, s{t+3}, 3
    s_add_u32 s{nOff}, s{t+2}, s{t+3}
    s_mul_i32 s{t+3}, s{sRot}, s{nStep}
    s_add_u32 s{nStart}, s{nOff}, s{t+3}
    v_mad_u32_u24 v{vNext}, v{vR8}, s{t+1}, v{vC16}
    v_add_u32 v{vNext}, s{t+4}, v{vNext}
    s_setpc_b64 {sr(sLink2,2)}
L_setup_ret:
    s_mov_b64 {sr(sWn,2)}, {sr(S_WS,2)}
    s_mov_b32 s{sWn+2}, {WS_SIZE}
    v_mov_b32 v{vNext}, v{vLane16}
    s_setpc_b64 {sr(sLink2,2)}
""")

def special_sub(A):
    sc1 = " sc1"
    t = sT
    A(f"""
L_special:
    s_bfe_u32 s{t}, s{sTab}, 0x80010
    s_call_b64 {sr(sLink2,2)}, L_setup
    s_mov_b32 s{sH+2}, {WS_SIZE}
    s_and_b32 s{t}, s{sTab}, 0xff
    s_cmp_lt_u32 s{t}, 72
    s_cbranch_scc1 L_special_ret
    s_mov_b32 s{sH+2}, 0
    s_cmp_eq_u32 s{t}, 77
    s_cbranch_scc1 L_special_kv
    s_lshl_b32 s{t+1}, s{sTb}, 1
    s_lshr_b32 s{t+2}, s{sWave}, 1
    s_add_u32 s{t+1}, s{t+1}, s{t+2}
    s_mul_i32 s{t+1}, s{t+1}, {2*36*1024}
    s_sub_u32 s{t+2}, s{t}, 72
    s_lshl_b32 s{t+2}, s{t+2}, 13
    s_add_u32 s{t+1}, s{t+1}, s{t+2}
    s_and_b32 s{t+2}, s{sWave}, 1
    s_lshl_b32 s{t+2}, s{t+2}, 11
    s_add_u32 s{t+1}, s{t+1}, s{t+2}
    s_add_u32 s{t+1}, s{t+1}, {WS_Q}
    s_add_u32 s{t+2}, s{t+1}, {36*1024}
    s_mov_b32 s{t+3}, {f2u(QSCALE):#x}
    s_cmp_eq_u32 s{sPar}, 0
    s_cbranch_scc1 L_special_q0
""")
    for i in range(64): A(f"v_mul_f32 v{i}, s{t+3}, v{64+i}")
    A("s_branch L_special_q1")
    A("L_special_q0:")
    for i in range(64): A(f"v_mul_f32 v{i}, s{t+3}, v{i}")
    A("L_special_q1:")
    for i in range(32): A(f"v_cvt_pk_bf16_f32 v{64+i}, v{2*i}, v{2*i+1}")
    A(f"v_bfe_u32 v{vT}, v{vLane}, 4, 1")
    A(f"v_lshlrev_b32 v{vT}, 10, v{vT}")
    A(f"v_sub_u32 v{vT}, v{vHs}, v{vT}")
    for i in range(8):
        A(f"v_permlane16_swap_b32 v{64+4*i}, v{64+4*i+2}"); A(f"v_permlane16_swap_b32 v{64+4*i+1}, v{64+4*i+3}")
    for half in range(2):
        if half == 1:
            A(f"s_add_u32 s{t+1}, s{t+1}, 4096")
            A(f"s_add_u32 s{t+2}, s{t+2}, 4096")
            A(f"s_cmp_eq_u32 s{t}, 76")
            A("s_cbranch_scc1 L_special_ret")
        for tb in range(4):
            A(f"buffer_store_dwordx4 {vr(64 + tb*8 + half*4, 4)}, v{vT}, {sr(sWS,4)}, s{t+1+tb//2} offen offset:{(tb%2)*256}{sc1}")
    LB = 9 * 16384
    A(f"""
    s_branch L_special_ret
L_special_kv:
    s_barrier
    v_and_b32 v{vT}, 15, v{vLane}
    v_lshrrev_b32 v{vT+1}, 4, v{vLane}
    s_lshr_b32 s{t+2}, s{sWave}, 1
    s_mul_i32 s{t+5}, s{t+2}, {2*KV_VT}
    s_add_u32 s{t+5}, s{t+5}, {LB + KV_V}
    s_and_b32 s{t+3}, s{sWave}, 1
    s_cmp_eq_u32 s{t+3}, 0
    s_cbranch_scc1 L_special_kv0
    v_and_b32 v{vT}, 3, v{vLane}
    v_mul_u32_u24 v{vT}, {KV_VF}, v{vT}
    v_and_b32 v{vT+1}, 4, v{vLane}
    v_lshl_add_u32 v{vT}, v{vT+1}, 2, v{vT}
    v_cmp_eq_u32 vcc, 0, v{vT+1}
    v_add_u32 v{vT}, s{t+5}, v{vT}
    v_mov_b32 v65, 0x3f803f80
    v_cndmask_b32 v64, 0, v65, vcc
    v_add_u32 v{vT}, 576, v{vT}
    v_mov_b32 v{vT+1}, {LB + KV_K2 + 512}
    v_cmp_eq_u32 vcc, 8, v{vLane}
    v_mov_b32 v65, v64
    v_mov_b32 v66, v64
    v_cndmask_b32 v{vT}, v{vT}, v{vT+1}, vcc
    v_mov_b32 v67, v64
    s_mov_b64 exec, 0x1ff
    ds_write_b128 v{vT}, v[64:67]
    s_mov_b64 exec, -1
    s_branch L_special_kv1
L_special_kv0:
""")
    for i in range(32): A(f"v_cvt_pk_bf16_f32 v{64+i}, v{2*i}, v{2*i+1}")
    A(f"""
    s_lshl_b32 s{t+3}, s{t+2}, 11
    s_add_u32 s{t+3}, s{t+3}, {LB}
    s_lshl_b32 s{t+4}, s{t+2}, 3
    s_add_u32 s{t+4}, s{t+4}, {LB + KV_K2}    ; K2 base
    v_bfe_u32 v{vT+2}, v{vT}, 2, 1
    v_mul_u32_u24 v{vT+2}, 288, v{vT+2}
    v_and_b32 v{vT+3}, 3, v{vT}
    v_lshl_add_u32 v{vT+2}, v{vT+3}, 1, v{vT+2}
    v_and_b32 v{vT+3}, 8, v{vT}
    v_add3_u32 v{vT+2}, v{vT+2}, v{vT+3}, s{t+5}
    v_lshl_add_u32 v{vT+3}, v{vT+1}, 6, v{vT+2}   ; d = 4qd + r
    v_lshlrev_b32 v{vT}, 4, v{vT}
    v_add_u32 v{vT+5}, s{t+4}, v{vT}              ; K2: key*16
    v_lshrrev_b32 v{vT+4}, 1, v{vT+1}
    v_lshl_add_u32 v{vT}, v{vT+4}, 9, v{vT}
    v_and_b32 v{vT+4}, 1, v{vT+1}
    v_lshlrev_b32 v{vT+4}, 3, v{vT+4}
    v_add3_u32 v{vT+4}, v{vT+4}, v{vT}, s{t+3}
""")
    for tb in range(4):
        b0 = 64 + tb * 8
        vo = (tb // 2) * KV_VT + (tb % 2) * KV_VF
        A(f"ds_write_b64 v{vT+4}, {vr(b0,2)} offset:{(tb//2)*1024 + (tb%2)*256}")
        for i in range(4):
            op = "ds_write_b16" if i % 2 == 0 else "ds_write_b16_d16_hi"
            A(f"{op} v{vT+3}, v{b0+4+i//2} offset:{vo + i*16}")
    A("s_mov_b64 exec, 0xffff")
    for tb in range(4):
        b0 = 64 + tb * 8
        vo = (tb // 2) * KV_VT + (tb % 2) * KV_VF
        A(f"ds_write_b32 v{vT+5}, v{b0+2} offset:{(tb//2)*4 + (tb%2)*256}")
        for i in range(2):
            op = "ds_write_b16" if i % 2 == 0 else "ds_write_b16_d16_hi"
            A(f"{op} v{vT+2}, v{b0+6} offset:{vo + (16+i)*16}")
    A(f"""
    s_mov_b64 exec, -1
L_special_kv1:
    s_lshl_b32 s{t+2}, s{sWave}, 10
    v_add_u32 v{vT}, s{t+2}, v{vLane16}
    v_add_u32 v{vT+1}, {LB}, v{vT}
    v_cmp_gt_u32 vcc, {KV_GS - 8192}, v{vT}
    v_mov_b32 v{vT+2}, 0x40000000
    s_mul_i32 s{t+1}, s{sTb}, {KV_GS}
    v_cndmask_b32 v{vT+2}, v{vT+2}, v{vT}, vcc
    s_add_u32 s{t+1}, s{t+1}, {WS_KV}
    s_add_u32 s{t+2}, s{t+1}, 4096
    s_add_u32 s{t+3}, s{t+1}, 8192
    s_waitcnt lgkmcnt(0)
    s_barrier
    ds_read_b128 v[64:67], v{vT+1}
    ds_read_b128 v[68:71], v{vT+1} offset:4096
    ds_read_b128 v[72:75], v{vT+1} offset:8192
    s_waitcnt lgkmcnt(0)
    buffer_store_dwordx4 v[64:67], v{vT}, {sr(sWS,4)}, s{t+1} offen{sc1}
    buffer_store_dwordx4 v[68:71], v{vT}, {sr(sWS,4)}, s{t+2} offen{sc1}
    buffer_store_dwordx4 v[72:75], v{vT+2}, {sr(sWS,4)}, s{t+3} offen{sc1}
L_special_ret:
    s_nop 1
    s_setpc_b64 {sr(sLink,2)}
""")

def spin(A, soff, name, back):
    A(f"""
L_{name}:
    s_mov_b32 s{sT+5}, 0x40000
L_{name}_l:
    {poll_ld(soff)}
    s_sub_u32 s{sT+5}, s{sT+5}, 1
    s_cbranch_scc1 {back}
    s_waitcnt vmcnt(0)
""")
    A.many(flag_min())
    A(f"""
    v_cmp_eq_u32 vcc, 0, v{vPoll}
    s_cbranch_vccz {back}
    s_sleep 8
    s_branch L_{name}_l
""")

def phase1(A):
    t = sT
    stamp(A, 0)
    pref = "" if common.OPT.get("nopref") else f"""
    s_mov_b64 {sr(sH,2)}, {sr(sLink,2)}
    s_mov_b32 s{sH+2}, L_jobtab-L_pc1
    s_mov_b32 s{sH+3}, {SRD3}
    v_lshrrev_b32 v2, 4, v0
    v_and_b32 v3, 15, v0
    v_lshlrev_b32 v2, 7, v2
    v_lshl_add_u32 v2, v3, 28, v2
    s_lshr_b32 s{t+1}, s2, 3
    s_lshl_b32 s{t+1}, s{t+1}, 11
    buffer_load_dword v4, v2, {sr(sH,4)}, s{t+1} offen
"""
    A(f"""
    s_cmp_ge_u32 s2, 256
    s_cbranch_scc1 L_end
    s_load_dwordx16 s[4:19], s[0:1], 0
    s_load_dwordx8 s[20:27], s[0:1], 64
    s_load_dwordx2 s[28:29], s[0:1], 96
    s_getpc_b64 {sr(sLink,2)}
L_pc1:
    s_bfe_u32 s{sXq}, s2, 0x20001
    s_lshr_b32 s{sQi}, s2, 6
    s_lshl_b32 s{t}, s{sXq}, 2
    s_add_u32 s{t}, s{t}, s{sQi}            ; jg
    s_lshl_b32 s{t+1}, s{t}, 3
    s_add_u32 s{t+1}, s{t+1}, L_jobtab-L_pc1
    s_load_dwordx2 {sr(sTab,2)}, {sr(sLink,2)}, s{t+1}
    {pref}
    v_lshrrev_b32 v1, 6, v0
    v_and_b32 v{vLane}, 63, v0
    v_readfirstlane_b32 s{sWave}, v1
    v_lshlrev_b32 v{vLane16}, 4, v{vLane}
    s_and_b32 s{t}, s{t}, 11
    s_cmp_eq_u32 s{t}, 3
    s_cselect_b32 s{sSpecial}, 1, 0
    s_and_b32 s{t}, s2, 1
    s_lshl_b32 s{t}, s{t}, 3
    s_bfe_u32 s{t+1}, s2, 0x30003
    s_add_u32 s{sTb}, s{t}, s{t+1}
    s_lshl_b32 s{t}, s{sQi}, 1
    s_add_u32 s{t}, s{t}, s{t+1}
    s_cmp_ge_u32 s{t}, 9
    s_cselect_b32 s{t+1}, 9, 0
    s_sub_u32 s{t+5}, s{t}, s{t+1}
    {"s_mov_b32 s%d, 0" % (t+5) if common.OPT.get("norot") else ""}
    s_sub_u32 s{sRot}, s{t+5}, 1
    v_lshrrev_b32 v{vR8}, 3, v{vLane}
    v_and_b32 v1, 7, v{vLane}
    s_lshl_b32 s{sM0}, s{sWave}, 12
    s_lshr_b32 s{t+2}, s{sWave}, 1
    s_and_b32 s{t+3}, s{sWave}, 1
    v_and_b32 v2, 2, v{vR8}
    v_xor_b32 v2, v1, v2
    s_lshl_b32 s{t+4}, s{t+3}, 2
    v_xor_b32 v2, s{t+4}, v2
    v_lshlrev_b32 v{vC16}, 4, v2
    v_lshrrev_b32 v2, 1, v{vR8}
    v_xor_b32 v2, v1, v2
    v_lshlrev_b32 v2, 4, v2
    v_mul_u32_u24 v3, 1152, v{vR8}
    v_add_u32 v{vXd}, v2, v3
    v_xor_b32 v2, 64, v{vXd}
    v_add_u32 v{vXd+1}, {8*1152-1024}, v2
    v_add_u32 v{vXd+2}, {2*(8*1152-1024)}, v{vXd}
    v_add_u32 v{vXd+3}, {3*(8*1152-1024)}, v2
    s_lshl_b32 s{t+4}, s{sTb}, 2
    s_add_u32 s{t+4}, s{t+4}, s{sWave}
    s_mul_i32 s{sXb}, s{t+4}, {32*1152}
    s_lshl_b32 s{t+5}, s{t+5}, 7
    s_add_u32 s{sXc}, s{sXb}, s{t+5}
    s_mov_b32 s{sX+2}, {2048*1152}
    s_mov_b32 s{sX+3}, {SRD3}
    s_mov_b32 s{sW+3}, s{sX+3}
    s_mov_b32 s{sW+2}, {WG_SIZE}
    s_movk_i32 s{t+4}, 9216
    v_mad_u32_u24 v{vDma}, v{vR8}, s{t+4}, v{vC16}
    s_mov_b32 s{nD}, {16*9216-1024}
    s_mov_b32 s{sStep}, {64*9216}
    v_add_u32 v{vDma+1}, s{nD}, v{vDma}
    s_mul_i32 s{sRowOff}, s{t+3}, {8*9216}
    v_add_u32 v{vDma+2}, s{nD}, v{vDma+1}
    s_mul_i32 s{nStart}, s{sRot}, s{sStep}
    v_add_u32 v{vDma+3}, s{nD}, v{vDma+2}
    s_add_u32 s{sXend}, s{sXb}, 1152
    s_waitcnt lgkmcnt(0)
    s_mov_b64 {sr(sX,2)}, {sr(S_X,2)}
""")
    vm = Counter(63)
    if common.OPT.get("fine"): stamp(A, 27)
    put_elems(A, vm, range(0, 4))
    A(f"""
    s_cmp_lt_u32 s{sWave}, 2
    s_cselect_b64 {sr(sFb,2)}, {sr(S_WG,2)}, {sr(S_WU,2)}
    s_cselect_b64 {sr(sW,2)}, {sr(S_WG,2)}, {sr(S_WU,2)}
    s_bfe_u32 s{t}, s{sTab}, 0x80008
    s_lshl_b32 s{t+1}, s{t}, 7
    s_add_u32 s{sBase}, s{t+1}, s{sRowOff}
    s_add_u32 s{sOff}, s{sBase}, s{nStart}
    v_mov_b32 v{vF}, v{vDma}
    s_cmp_eq_u32 s{sSpecial}, 0
    s_cbranch_scc0 L_sp_first
L_sp_first_ret:
""")
    put_elems(A, vm, range(4, 12))
    if common.OPT.get("fine"): stamp(A, 28)
    A(f"""
    s_mul_i32 s{sEnd}, s{sStep}, 9
    s_add_u32 s{sEnd}, s{sEnd}, s{sBase}
    s_cmp_eq_u32 s{sSpecial}, 0
    s_cbranch_scc0 L_sp_skip
    s_bfe_u32 s{t}, s{sTab}, 0x80010
    s_lshl_b32 s{t+1}, s{t}, 7
    s_add_u32 s{nOff}, s{t+1}, s{sRowOff}
    s_add_u32 s{nStart}, s{nStart}, s{nOff}
    s_mov_b32 s{nStep}, s{sStep}
    s_mov_b64 {sr(sWn,2)}, {sr(sFb,2)}
    s_mov_b32 s{sWn+2}, s{sW+2}
    v_mov_b32 v{vNext}, v{vF}
L_sp_skip:
""")
    W = sPar
    A(f"""
    s_mov_b64 {sr(sWS,2)}, {sr(S_WS,2)}
    s_mov_b32 s{sWS+2}, {WS_SIZE}
    s_mov_b32 s{sWS+3}, {SRD3}
    s_mov_b64 {sr(sDB,2)}, {sr(S_DBG,2)}
    s_movk_i32 s{sDB+2}, 256
    s_mov_b32 s{sDB+3}, {SRD3}
    s_mov_b32 s{sOUT+2}, {2048*1152}
    s_mov_b32 s{sOUT+3}, {SRD3}
    s_mov_b64 {sr(sH,2)}, {sr(S_WS,2)}
    s_mov_b32 s{sH+2}, {WS_SIZE}
    s_mov_b32 s{sH+3}, {SRD3}
    s_mov_b64 {sr(sPD,2)}, {sr(S_WS,2)}
    s_mov_b32 s{sPD+3}, {SRD3}
    s_mov_b32 s{sP+3}, {SRD3}
    s_mov_b32 s{sC2}, {f2u(GC2):#x}
    v_mov_b32 v{vC1}, {f2u(GC1):#x}
    s_mov_b32 s{sWn+3}, {SRD3}
    s_lshl_b32 s{W}, s2, 2
    s_add_u32 s{W}, s{W}, s{sWave}
    s_lshr_b32 s{t+2}, s{sWave}, 1
    s_and_b32 s{t+3}, s{sWave}, 1
    s_lshl_b32 s{t}, s{sTb}, 1
    s_add_u32 s{t}, s{t}, s{t+2}
    s_mul_i32 s{sHbase}, s{t}, {HO_G}
    s_lshl_b32 s{t}, s{t+3}, 12
    s_add_u32 s{sHbase}, s{sHbase}, s{t}
    v_and_b32 v32, 3, v{vLane}              ; c
    v_lshrrev_b32 v33, 1, v32
    v_and_b32 v32, 1, v32
    v_lshl_add_u32 v32, v32, 1, v33         ; perm(c)
    v_lshlrev_b32 v32, 3, v32
    v_bfe_u32 v33, v{vLane}, 2, 2           ; r4
    v_lshl_add_u32 v32, v33, 7, v32
    v_bfe_u32 v34, v{vLane}, 4, 1
    v_lshrrev_b32 v35, 5, v{vLane}          ; hh
    v_lshl_add_u32 v36, v34, 5, v32
    v_lshl_add_u32 v36, v35, 10, v36
    s_add_u32 s{t}, s{sM0}, {9*16384}
    v_add_u32 v{vPtr}, s{t}, v36
    v_and_b32 v32, 3, v{vLane}
    v_lshlrev_b32 v32, 3, v32
    v_lshl_add_u32 v32, v33, 7, v32         ; r4*128 + c*8
    v_lshrrev_b32 v33, 1, v33
    v_lshl_add_u32 v33, v34, 1, v33
    s_lshl_b32 s{t}, s{t+3}, 1
    v_xor_b32 v33, s{t}, v33
    v_lshl_add_u32 v32, v33, 5, v32
    v_lshl_add_u32 v32, v34, 12, v32
    v_lshl_add_u32 v{vTR}, v35, 10, v32
    v_xor_b32 v{vTR+1}, 32, v{vTR}
    v_add_u32 v{vTR+2}, {12*4096}, v{vTR}
    v_add_u32 v{vTR+3}, {12*4096}, v{vTR+1}
    v_add_u32 v{vTR+4}, {24*4096}, v{vTR}
    v_add_u32 v{vTR+5}, {24*4096}, v{vTR+1}
    v_and_b32 v37, 31, v{vLane}             ; n32
    v_and_b32 v38, 15, v{vLane}             ; n16
    v_bfe_u32 v33, v{vLane}, 1, 3
    v_lshrrev_b32 v39, 4, v{vLane}
    v_xor_b32 v33, v33, v39
    v_lshlrev_b32 v33, 4, v33
    v_lshl_add_u32 v32, v38, 7, v33
    s_lshl_b32 s{t}, s{t+2}, 13
    v_add_u32 v{XR}, s{t}, v32
    v_xor_b32 v{XR+1}, 64, v{XR}
    v_lshlrev_b32 v32, 4, v38
    v_lshl_add_u32 v32, v35, 9, v32
    v_lshl_add_u32 v{vHs}, v34, 11, v32
""")
    for seg in (1, 2):
        for h in range(2): A(f"v_add_u32 v{XR+seg*2+h}, {seg*57344}, v{XR+h}")
    A(f"""
    v_mul_u32_u24 v{vQa}, 1152, v37
    v_lshl_add_u32 v{vQa}, v35, 4, v{vQa}
    v_lshlrev_b32 v{vLane4}, 2, v{vLane}
    v_bfe_u32 v32, v{vLane}, 2, 1
    v_bfe_u32 v33, v{vLane}, 3, 1
    v_lshlrev_b32 v32, 3, v32
    v_lshl_add_u32 v32, v33, 2, v32
    v_and_b32 v33, 0x13, v{vLane}
    v_or_b32 v32, v32, v33
    v_mul_u32_u24 v33, 18, v35
    v_cmp_gt_u32 vcc, 18, v37
    v_add_u32 v32, v32, v33
    v_and_b32 v33, 27, v37
    v_cndmask_b32 v32, 37, v32, vcc
    v_cmp_ne_u32 vcc, 18, v33
    v_mul_u32_u24 v{GX+35}, 12, v37
    s_lshl_b32 s{t+5}, s{sTb}, 2
    s_add_u32 s{t+5}, s{t+5}, s{sXq}
    s_lshl_b32 s{t+5}, s{t+5}, 2
    s_add_u32 s{t+5}, s{t+5}, s{sQi}
    s_lshl_b32 s{t+5}, s{t+5}, 2
    s_add_u32 s{t+5}, s{t+5}, s{sWave}
    s_lshl_b32 s{t+5}, s{t+5}, 1
    v_cndmask_b32 v32, 36, v32, vcc
    v_lshlrev_b32 v{vAV}, 4, v32
    v_add_u32 v5, s{t+5}, v35               ; token
    v_mul_u32_u24 v6, 1152, v5
    v_add_u32 v{GX+36}, v6, v{GX+35}
    v_cmp_eq_u32 vcc, 0, v37
    v_lshlrev_b32 v5, 2, v5
    v_add_u32 v5, {WS_G}, v5
    v_mov_b32 v33, 0x40000000
    v_cndmask_b32 v{GX+26}, v33, v5, vcc
    v_lshl_add_u32 v{GX+27}, v35, 30, v{vLane16}
    v_mov_b32 v{GX+28}, -1
    v_mov_b32 v{GX+29}, -1
    v_mov_b32 v{GX+30}, -1
    v_mov_b32 v{GX+31}, -1
    v_mov_b32 v{GX+32}, 0
    v_cmp_eq_u32 vcc, 0, v0
    v_mov_b32 v{vOne}, 1
    s_mov_b32 s{sSkip}, 1
    v_cndmask_b32 v{vFlagOff}, v33, 0, vcc
    s_lshl_b32 s{t}, s{sTb}, 2
    s_add_u32 s{t}, s{t}, {F0}
    s_bfe_u32 s{t+1}, s{sTab}, 0x80008
    s_cmp_eq_u32 s{t+1}, 77
    s_cselect_b32 s{sPub}, s{t}, {FOOB}
    ; pack params: ks = W/3, a = W%3
    s_mul_i32 s{t}, s{W}, 21846
    s_lshr_b32 s{t}, s{t}, 16
    s_mul_i32 s{t+1}, s{t}, 3
    s_sub_u32 s{t+1}, s{W}, s{t+1}
    s_mul_i32 s{sPd0}, s{t+1}, {2*WP_T}
    s_mul_i32 s{t+2}, s{t}, 3072
    s_add_u32 s{sPd0}, s{sPd0}, s{t+2}
    s_add_u32 s{sPd0}, s{sPd0}, {WS_WP}
    s_add_u32 s{sPd1}, s{sPd0}, {WP_T}
    s_mov_b32 s{sPD+2}, 0
    s_mul_i32 s{t+1}, s{t+1}, 384
    v_and_b32 v32, 7, v{vLane}
    v_lshlrev_b32 v32, 4, v32
    s_movk_i32 s{t+4}, 1152
    v_mad_u32_u24 v{vPsrc}, v{vR8}, s{t+4}, v32
    s_mov_b64 {sr(sP,2)}, {sr(S_WD,2)}
    s_mov_b32 s{sP+2}, {4608*1152}
    s_mul_i32 s{sPs0}, s{t}, {16*1152}
    s_movk_i32 s{t+3}, {8*1152}
    s_cmp_lt_u32 s{t}, 288
    s_cbranch_scc1 L_pk_done
    s_mov_b64 {sr(sP,2)}, {sr(S_WO,2)}
    s_mov_b32 s{sP+2}, {576*1152}
    s_sub_u32 s{t+2}, s{t}, 288
    s_mul_i32 s{sPs0}, s{t+2}, {18*1152}
    s_cmp_lt_u32 s{t}, 320
    s_cbranch_scc1 L_pk_done
    s_sub_u32 s{t+2}, s{t}, 320
    s_mul_i32 s{sPs0}, s{t+2}, {144*1152}
    s_add_u32 s{sPs0}, s{sPs0}, {16*1152}
    s_mov_b32 s{t+3}, {72*1152}
    v_lshrrev_b32 v34, 1, v{vR8}
    v_mul_u32_u24 v34, 18, v34
    v_and_b32 v36, 1, v{vR8}
    v_add_u32 v34, v34, v36
    v_mad_u32_u24 v{vPsrc}, v34, s{t+4}, v32
    s_cmp_lt_u32 s{t}, 324
    s_cselect_b32 s{sP+2}, s{sP+2}, 0
L_pk_done:
    s_add_u32 s{sPs0}, s{sPs0}, s{t+1}
    s_add_u32 s{sPs1}, s{sPs0}, s{t+3}
    s_sub_u32 s{sPs1}, s{sPs1}, 1024
    s_mov_b64 {sr(sLink,2)}, {sr(S_GW,2)}
""")
    g64, head, nt = t, t + 1, t + 2
    A(f"""
    s_and_b32 s{t+3}, s{sXq}, 1
    s_lshl_b32 s{g64}, s{sTb}, 1
    s_add_u32 s{g64}, s{g64}, s{t+3}
    s_lshr_b32 s{t+3}, s{sXq}, 1            ; nhalf
    s_lshl_b32 s{head}, s{t+3}, 2
    s_add_u32 s{head}, s{head}, s{sQi}
    s_lshl_b32 s{head}, s{head}, 2
    s_add_u32 s{head}, s{head}, s{sWave}
    s_mul_i32 s{t+3}, s{t+3}, 3
    s_mul_i32 s{t+4}, s{sWave}, {KM}
    s_add_u32 s{t+4}, s{t+4}, {KH}
    s_cmp_eq_u32 s{sQi}, 3
    s_cselect_b32 s{nt}, s{sWave}, s{sQi}
    s_cselect_b32 s{t+4}, 0, s{t+4}
    s_add_u32 s{nt}, s{nt}, s{t+3}
    ; W side
    s_mul_i32 s{t+3}, s{nt}, {WP_T}
    s_add_u32 s{t+3}, s{t+3}, {WS_WP}
    s_mul_i32 s{t+5}, s{t+4}, 3072
    s_add_u32 s{t+5}, s{t+5}, s{t+3}
    s_add_u32 s{sWp}, s{S_WS}, s{t+5}
    s_addc_u32 s{sWp+1}, s{S_WS+1}, 0
    s_mul_i32 s{t+5}, s{sWave}, {9*3072}
    s_add_u32 s{t+5}, s{t+5}, s{t+3}
    s_add_u32 s{t+5}, s{t+5}, {288*3072}
    s_add_u32 s{sWo}, s{S_WS}, s{t+5}
    s_addc_u32 s{sWo+1}, s{S_WS+1}, 0
    ; h side
    s_mul_i32 s{t+3}, s{g64}, {HO_G}
    s_lshl_b32 s{t+5}, s{t+4}, 11
    s_add_u32 s{t+5}, s{t+5}, s{t+3}
    s_add_u32 s{sHp}, s{S_WS}, s{t+5}
    s_addc_u32 s{sHp+1}, s{S_WS+1}, 0
    s_mul_i32 s{t+5}, s{sWave}, {9*2048}
    s_add_u32 s{t+5}, s{t+5}, s{t+3}
    s_add_u32 s{t+5}, s{t+5}, {288*2048}
    s_add_u32 s{sHo}, s{S_WS}, s{t+5}
    s_addc_u32 s{sHo+1}, s{S_WS+1}, 0
    s_lshl_b32 s{sO1}, s{head}, 11
    s_add_u32 s{sO1}, s{sO1}, s{t+3}
    s_add_u32 s{sO1}, s{sO1}, {288*2048}
    s_lshr_b32 s{sO2}, s{head}, 3
    s_lshl_b32 s{sO2}, s{sO2}, 11
    s_add_u32 s{sO2}, s{sO2}, s{t+3}
    s_bfe_u32 s{t+5}, s{head}, 0x10002
    s_lshl_b32 s{t+5}, s{t+5}, 9
    s_add_u32 s{sO2}, s{sO2}, s{t+5}
    s_lshl_b32 s{t+5}, s{sWave}, 2
    s_add_u32 s{sO2}, s{sO2}, s{t+5}
    s_add_u32 s{sO2}, s{sO2}, {320*2048}
    ; q / g offsets
    s_mul_i32 s{sQoff}, s{g64}, {2*36*1024}
    s_mul_i32 s{t+5}, s{head}, 18
    s_lshr_b32 s{t+5}, s{t+5}, 3
    s_lshl_b32 s{t+5}, s{t+5}, 9
    s_add_u32 s{sQoff}, s{sQoff}, s{t+5}
    s_add_u32 s{sQoff}, s{sQoff}, {WS_Q}
    s_lshl_b32 s{sGoff}, s{g64}, 8
    s_add_u32 s{sGoff}, s{sGoff}, {WS_G}
    s_mul_i32 s{sPart}, s{g64}, 6
    s_add_u32 s{sPart}, s{sPart}, s{nt}
    s_mul_i32 s{sPart}, s{sPart}, {PART_T}
    s_add_u32 s{sPart}, s{sPart}, {WS_PART}
    s_mul_i32 s{sOutOff}, s{g64}, {64*1152}
    s_mul_i32 s{t+5}, s{nt}, 192
    s_add_u32 s{sOutOff}, s{sOutOff}, s{t+5}
    s_lshl_b32 s{t+5}, s{sWave}, 5
    s_add_u32 s{sOutOff}, s{sOutOff}, s{t+5}
    s_lshl_b32 s{t+5}, s{sQi}, 2
    s_add_u32 s{t+5}, s{t+5}, s{sWave}
    s_sub_u32 s{t+5}, s{t+5}, 12
    s_cmp_lt_u32 s{t+5}, 3
    s_cselect_b32 s{t+5}, 0, 64
    v_mov_b32 v32, 24576
    v_cmp_eq_u32 vcc, s{t+5}, v{vLane}
    s_nop 1
    v_cndmask_b32 v{GX+33}, v33, v32, vcc
""")
    A(f"""
    s_bfe_u32 s{t}, s2, 0x30003             ; a
    s_and_b32 s{t+1}, s{sWave}, 1
    s_mul_i32 s{t+2}, s{t}, 72
    s_mul_i32 s{t+3}, s{t+1}, 28
    s_add_u32 s{t+2}, s{t+2}, s{t+3}
    s_mul_i32 s{sTch}, s{t+2}, 9216
    v_mul_u32_u24 v32, 9216, v{vLane}
    v_cmp_gt_u32 vcc, 36, v{vLane}
    s_lshl_b32 s{t+2}, s{sQi}, 1
    s_sub_u32 s{t+2}, s{t+2}, 1
    v_cndmask_b32 v{vTW}, v33, v32, vcc
    s_cselect_b32 s{t+2}, 8, s{t+2}         ; (8+2b) mod 9
    s_lshl_b32 s{t+2}, s{t+2}, 3
    s_add_u32 s{t+2}, s{t+2}, s{t}
    s_lshl_b32 s{t+2}, s{t+2}, 1
    s_sub_u32 s{t+2}, s{t+2}, s{t+1}
    s_mul_i32 s{t+2}, s{t+2}, {4*9216}      ; (64c + 8a - 4(w&1)) rows
    v_cmp_gt_u32 vcc, 4, v{vLane}
    v_add_u32 v32, s{t+2}, v32
    s_sub_u32 s{t+2}, s{t}, 1
    v_cndmask_b32 v{GX+38}, v33, v32, vcc
    s_cselect_b32 s{t+2}, 8, s{t+2}         ; (a+8) mod 9
    s_lshl_b32 s{t+2}, s{t+2}, 7
    s_lshl_b32 s{t+3}, s{sTb}, 2
    s_add_u32 s{t+3}, s{t+3}, s{sQi}
    s_lshl_b32 s{t+3}, s{t+3}, 2
    s_add_u32 s{t+3}, s{t+3}, s{sWave}
    s_mul_i32 s{t+3}, s{t+3}, {8*1152}
    s_add_u32 s{t+2}, s{t+2}, s{t+3}
    v_mul_u32_u24 v32, 1152, v{vLane}
    v_cmp_gt_u32 vcc, 8, v{vLane}
    v_add_u32 v32, s{t+2}, v32
    v_and_b32 v34, 3, v{vLane}
    v_cndmask_b32 v{GX+37}, v33, v32, vcc
    v_lshrrev_b32 v32, 4, v0
    v_and_b32 v34, 15, v0
    v_lshlrev_b32 v32, 7, v32
    v_lshl_add_u32 v32, v34, 28, v32
    s_lshr_b32 s{t+1}, s2, 3
    s_lshl_b32 s{t+1}, s{t+1}, 11
    v_add_u32 v{GX+39}, s{t+1}, v32
    s_cmp_eq_u32 s{W}, 771
    s_cbranch_scc1 L_flaginit
L_flaginit_ret:
""")
    if common.OPT.get("fine"): stamp(A, 29)
    body0(A, vm)
    A(f"""
L_loop:
    s_cmp_eq_u32 s{sSpecial}, 0
    s_cbranch_scc0 L_sp_odd
L_odd:
""")
    body(A, "o")
    A(f"""
    s_cmp_eq_u32 s{sP+2}, 1
    s_cbranch_scc0 L_first_odd
L_last:
""")
    return body(A, "l")

def phase1_tail(A):
    A(f"""
L_first_odd:
    s_cmp_eq_u32 s{sSpecial}, 0
    s_cbranch_scc0 L_sp_even
L_even:
""")
    body(A, "e")
    A(f"""
    s_cmp_eq_u32 s{sSpecial}, 0
    s_cbranch_scc1 L_odd
    s_mov_b32 s{sPar}, 0
    s_call_b64 {sr(sLink,2)}, L_special
    s_branch L_last
L_sp_odd:
    s_mov_b32 s{sPar}, 0
    s_call_b64 {sr(sLink,2)}, L_special
    s_branch L_odd
L_sp_even:
    s_mov_b32 s{sPar}, 1
    s_call_b64 {sr(sLink,2)}, L_special
    s_branch L_even
""")
    A(f"""
L_sp_first:
    s_call_b64 {sr(sLink2,2)}, L_setup
""")
    for g in switch_ops(): A.many(g)
    A(f"""
    s_bfe_u32 s{sT}, s{sTab}, 0x80010
    s_call_b64 {sr(sLink2,2)}, L_setup
    s_add_u32 s{sXend}, s{sXb}, 1152
    s_branch L_sp_first_ret
""")
    setup_sub(A)
    special_sub(A)
    spin(A, f"s{sPollOff}", "kvspin", "L_kvok")
    A(f"""
L_flaginit:
    v_cmp_lt_u32 vcc, 3, v{vLane}
    v_mov_b32 v12, 0
    v_mov_b32 v13, 0
    v_cndmask_b32 v8, 0, 1, vcc
    v_mov_b32 v14, 0
    v_mov_b32 v15, 0
    v_mov_b32 v9, v8
    v_mov_b32 v10, v8
    v_mov_b32 v11, v8
    s_mov_b32 s{sT}, {WS_FL}
    buffer_store_dwordx4 v[8:11], v{vLane16}, {sr(sWS,4)}, s{sT} offen sc1
    buffer_store_dwordx4 v[12:15], v{vLane16}, {sr(sWS,4)}, s{sT} offen offset:1024 sc1
    buffer_store_dwordx4 v[12:15], v{vLane16}, {sr(sWS,4)}, s{sT} offen offset:2048 sc1
    s_waitcnt vmcnt(0)
    buffer_store_dword v{vOne}, off, {sr(sDB,4)}, 0 sc1
    s_branch L_flaginit_ret
L_inispin:
    s_mov_b32 s{sT+5}, 0x40000
L_inispin_l:
    buffer_load_dword v{GX+34}, off, {sr(sDB,4)}, 0 sc1
    s_sub_u32 s{sT+5}, s{sT+5}, 1
    s_cbranch_scc1 L_iniok
    s_waitcnt vmcnt(0)
    v_cmp_eq_u32 vcc, 0, v{GX+34}
    s_cbranch_vccz L_iniok
    s_sleep 8
    s_branch L_inispin_l
""")

def jobtab(A):
    tab, _, _ = job_table()
    A(".p2align 3")
    A(".type L_jobtab,@object")
    A("L_jobtab:")
    for b in tab:
        A(".byte " + ", ".join(str(x) for x in b))
```

```python
from common import *
import common
import phase1 as p1
from phase1 import (sWS, sDB, sWave, sQi, sT, sM0, sPub, sPollOff, sLink, sTab, sHoff, sHbase, sW, sOff, sStep,
                    sHp, sWp, sHo, sWo, sO1, sO2, sQoff, sGoff, sOUT, sPart, sOutOff,
                    vLane, vLane16, vLane4, vFlagOff, vPoll, vOne, vT, vQa, vAV, vDma, LEAD,
                    F0, F2, F4, FOOB, poll_ld, flag_min)
GACC = 0
Q1 = [96, 100]; Q2 = [[104, 106], [108, 110]]
S = [112, 128]; P = [144, 152]; O = [160, 176]
K1 = [192, 196]; V = [200, 208]; K2 = [216, 220]
AK, AK2, AV = 224, 225, vAV
vO = [226, 227, 228, 229]
vG = [231, 232]
vQt = [236, 237]
vZ = 238
ZP = 246
WOA = 140
sIt, sNA = 36, 37
vPf = 251
vW = [235, 234, 238]

def gld(dst, base, byteoff):
    j = byteoff // 8192
    return f"global_load_dwordx4 {dst}, v{vO[j]}, {sr(base,2)} offset:{byteoff - j*8192 - 4096} sc1"
def stage(s): return 20 * s
def gacc(n, c): return vr(GACC + (c * 3 + n) * 16, 16)
def g_mfma(st, n, c):
    return mfma16(gacc(n, c), ar(stage(st) + 8 + 4 * n, 4), ar(stage(st) + 4 * c, 4), gacc(n, c))
def ld_h(st, ks, i): return gld(ar(stage(st) + 4 * i, 4), sHp, ks * 2048 + i * 1024)
def ld_w(st, ks, n): return gld(ar(stage(st) + 8 + 4 * n, 4), sWp, ks * 3072 + n * 1024)
def wo_reg(ks, n): return ar(WOA + 12 * ks + 4 * n, 4)
def ld_wo(ks, n): return gld(wo_reg(ks, n), sWo, ks * 3072 + n * 1024)

def pre_lds(k): return [ld_h(4+k, k, 0), ld_h(4+k, k, 1)] + [ld_w(4+k, k, n) for n in range(3)]
def off_k1(t): return (t >> 2) * KV_GS + (t & 3) * 1024
def off_v(t, f): return (t >> 2) * KV_GS + KV_V + (t & 3) * KV_VT + f * KV_VF
def off_k2(g): return g * KV_GS + KV_K2

def qk8(u):
    c, t = u & 1, u >> 1
    return mfma8(vr(S[c], 16), vr(K2[(t // 4) % 2] + 2 * ((t % 4) // 2), 2), vr(Q2[c][t % 2], 2), "0")
def qk16(u):
    c, t = u & 1, u >> 1
    return mfma16(vr(S[c], 16), vr(K1[t % 2], 4), vr(Q1[c], 4), vr(S[c], 16))
def pv(u, f):
    c, t = u & 1, u >> 1
    return mfma16(vr(O[c], 16), vr(V[t % 2] + 4 * f, 4), vr(P[c] + 4 * f, 4), vr(O[c], 16))
def zero16(r): return mfma8(vr(r, 16), vr(ZP, 2), vr(ZP, 2), "0")

def kv_dma(r):
    o, ld = p1.kv_dma(r)
    return o + [ld]
KVT = 40
WOT = 0
PRT = 1

def att_body(A, kind):
    ops = []
    def E(u, i): return f"v_exp_f32 v{S[u&1]+i}, v{S[u&1]+i}"
    def Cv(u, i): return f"v_cvt_pk_bf16_f32 v{P[u&1]+i}, v{S[u&1]+2*i}, v{S[u&1]+2*i+1}"
    kvr = list(range(KVT, 40))
    wol = [x for k in range(PRT, 3) for x in pre_lds(k)] + [ld_wo(k, n) for k in range(WOT, 9) for n in range(3)]
    nw = len(wol)
    for u in range(16):
        c, t = u & 1, u >> 1
        kd = kind if kind != 'LM' else ('L' if t < 4 else 'M')
        st = t % 4
        valu = [[E(u,0), E(u,1), Cv(u-1,7)], [E(u,2), E(u,3), E(u,4), Cv(u,0)], [E(u,5), E(u,6), Cv(u,1)],
                [E(u,7), E(u,8), Cv(u,2), Cv(u,3)], [E(u,9), E(u,10), E(u,11)], [E(u,12), E(u,13), Cv(u,4)],
                [E(u,14), E(u,15), Cv(u,5), Cv(u,6)]]
        G = [g_mfma(st, n, c) for n in range(3)] if kd == 'M' else [None] * 3
        M = [G[0], qk8(u + 1), pv(u - 1, 1), qk16(u + 1), G[1], pv(u, 0), G[2]]
        mem = [[] for _ in range(7)]
        rv0 = f"ds_read_b128 {vr(V[(t+1)%2],4)}, v{AV} offset:{off_v(t+1,0)}"
        rv1 = f"ds_read_b128 {vr(V[(t+1)%2]+4,4)}, v{AV} offset:{off_v(t+1,1)}"
        rk1 = f"ds_read_b128 {vr(K1[t%2],4)}, v{AK} offset:{off_k1(t+2)}"
        rk2 = [f"ds_read_b128 {vr(K2[(t//4+1)%2],4)}, v{AK2} offset:{off_k2(t//4+1)}"] if t % 4 == 1 else []
        if kd == 'M':
            if c == 0:
                mem[0] += [rv0]; mem[2] += [rv1]; mem[5] += [rk1]; mem[4] += rk2
            else:
                mem[0] += [ld_h(st, t, 0)]; mem[2] += [ld_w(st, t, 0)]; mem[5] += [ld_w(st, t, 1)]
                mem[6] += [ld_w(st, t, 2), ld_h(st, t, 1), "s_waitcnt vmcnt(15) lgkmcnt(0)"]
                if kind == 'LM' and t == 7: mem[6] += [poll_ld(f"s{sPollOff}")]
        else:
            if c == 0:
                mem[1] += [rv0]; mem[2] += [rv1]; mem[3] += [rk1]; mem[5] += rk2
            if kd == 'L':
                if c == 0: mem[5] += [ld_h(st, t, 0)]
                else:
                    mem[1] += [ld_w(st, t, 0)]; mem[2] += [ld_w(st, t, 1)]; mem[3] += [ld_w(st, t, 2)]; mem[5] += [ld_h(st, t, 1)]
            else:
                for g in ((5,) if c == 0 else (2, 1, 3, 5)):
                    if wol: mem[g] += [wol.pop(0)]
            if c == 1:
                mem[5] += ["s_waitcnt vmcnt(15) lgkmcnt(0)" if (kd == 'L' and t == 3) else "s_waitcnt lgkmcnt(0)"]
        if u == 15:
            valu[3] = valu[3] + [f"v_add_u32 v{AK}, {2*KV_GS}, v{AK}", f"v_add_u32 v{AV}, {2*KV_GS}, v{AV}", f"v_add_u32 v{AK2}, {2*KV_GS}, v{AK2}"]
        for g in range(7):
            if M[g]: ops.append(M[g])
            ops += mem[g] + valu[g]
    if kind == 'A': assert not kvr and not wol, (kvr, wol)
    if kind == 'M':
        O_ = common.OPT
        if O_.get("mnold"): ops = [x for x in ops if not x.startswith("global_load")]
        if O_.get("mnog"): ops = [x for x in ops if not (x.startswith("v_mfma") and ", a[" in x)]
        if O_.get("mnoexp"): ops = [("v_nop\n s_nop 0" if x.startswith("v_exp") else x) for x in ops]
        if O_.get("mnoatt"): ops = [x for x in ops if not (x.startswith("v_mfma") and ", a[" not in x)]
        if O_.get("mnosc1"): ops = [x.replace(" sc1", "") for x in ops]
        if O_.get("mnt"): ops = [x.replace(" sc1", " sc1 nt") for x in ops]
        if O_.get("ml1"):
            import re
            ops = [re.sub(r"v22\d, (s\[\d+:\d+\]) offset:-?\d+ sc1", r"v226, \1 offset:0", x) if x.startswith("global_load") else x for x in ops]
        if O_.get("mpad"): ops = [(x + f"\n s_nop {O_['mpad']-1}" if x.startswith("v_mfma_f32_32x32x8") else x) for x in ops]
    A.many(ops)
    if kind != 'A' and not common.OPT.get('mfix'):
        A(f"""
    s_add_u32 s{sHp}, s{sHp}, {8*2048}
    s_addc_u32 s{sHp+1}, s{sHp+1}, 0
    s_add_u32 s{sWp}, s{sWp}, {8*3072}
    s_addc_u32 s{sWp+1}, s{sWp+1}, 0
""")
    stamp(A, "next")

def set_bias(c, m):
    a, b, d = vT, vT+1, vT+4
    return f"""
    v_and_b32 v{a}, 0xffff0000, v{m}
    v_sub_f32 v{b}, v{m}, v{a}
    v_and_b32 v{d}, 0xffff0000, v{b}
    v_sub_f32 v{b}, v{b}, v{d}
    v_lshrrev_b32 v{a}, 16, v{a}
    v_or_b32 v{a}, v{a}, v{d}
    v_xor_b32 v{a}, 0x80008000, v{a}
    v_lshrrev_b32 v{b}, 16, v{b}
    v_xor_b32 v{b}, 0x8000, v{b}
    v_cndmask_b32 v{Q2[c][0]}, v{a}, v{vQt[c]}, vcc
    v_cndmask_b32 v{Q2[c][0]+1}, v{b}, 0, vcc
    v_cndmask_b32 v{Q2[c][1]}, v{a}, 0, vcc
    v_cndmask_b32 v{Q2[c][1]+1}, v{b}, v{vQt[c]}, vcc
"""
def max16(s, dst, first):
    o = []
    if first:
        o.append(f"v_max3_f32 v{dst}, v{s}, v{s+1}, v{s+2}")
        for i in range(3, 15, 2): o.append(f"v_max3_f32 v{dst}, v{dst}, v{s+i}, v{s+i+1}")
        o.append(f"v_max_f32 v{dst}, v{dst}, v{s+15}")
    else:
        for i in range(0, 16, 2): o.append(f"v_max3_f32 v{dst}, v{dst}, v{s+i}, v{s+i+1}")
    return o
def half_max(m, tmp):
    return [f"v_mov_b32 v{tmp}, v{m}", "s_nop 1", f"v_permlane32_swap_b32 v{m}, v{tmp}", "s_nop 1", f"v_max_f32 v{m}, v{m}, v{tmp}"]

def transition(A, vm):
    t = sT
    def put(ins, tag=None):
        if ins.startswith(("buffer_", "global_")): vm.issue(tag)
        A(ins)
    stamp_set(A, 12)
    A(f"""
    s_bfe_u32 s{t+2}, s{sTab}, 0x80008
    s_mov_b32 s{p1.sH+2}, {WS_SIZE}
    s_lshl_b32 s{t+2}, s{t+2}, 13
    s_add_u32 s{sHoff}, s{sHbase}, s{t+2}
    s_add_u32 s{t+1}, s{sQoff}, {36*1024}
    v_and_b32 v{vT+4}, 0x7c, v{vLane4}
    v_lshl_add_u32 v{vT+5}, s{sWave}, 2, v{vLane16}
    s_waitcnt vmcnt({vm.need('poll')})
    s_barrier
    {flag_min()[0]}
    {flag_min()[1]}
    v_cmp_eq_u32 vcc, 0, v{vPoll}
    s_cbranch_vccnz L_qspin
L_qok:
""")
    fs = lambda i: stamp(A, i) if (common.OPT.get("fine") or common.OPT.get("fine2")) else None
    fs(50)
    for c in range(2):
        so = sQoff if c == 0 else t + 1
        put(f"buffer_load_dwordx4 {vr(S[0]+8*c,4)}, v{vLane16}, {sr(sWS,4)}, s{so} offen sc1", "q")
        put(f"buffer_load_dwordx4 {vr(S[0]+8*c+4,4)}, v{vLane16}, {sr(sWS,4)}, s{so} offen offset:512 sc1", "q")
        put(f"buffer_load_dword v{vQt[c]}, v{vT+5}, {sr(sWS,4)}, s{so} offen offset:1024 sc1", "q")
        put(f"buffer_load_dword v{vG[c]}, v{vT+4}, {sr(sWS,4)}, s{sGoff} offen offset:{128*c} sc1", "q")
    A(f"""
    v_min_u32 v{AK2}, 512, v{vLane16}
    v_mov_b32 v{ZP}, 0
    v_mov_b32 v{ZP+1}, 0
    s_mov_b32 s{sIt}, 0
    ds_read_b128 {vr(K1[0],4)}, v{vLane16} offset:{off_k1(0)}
    ds_read_b128 {vr(K2[0],4)}, v{AK2} offset:{off_k2(0)}
    ds_read_b128 {vr(K1[1],4)}, v{vLane16} offset:{off_k1(1)}
    ds_read_b128 {vr(V[0],4)}, v{AV} offset:{off_v(0,0)}
    ds_read_b128 {vr(V[0]+4,4)}, v{AV} offset:{off_v(0,1)}
""")
    A(zero16(O[0]))
    A(f"v_mov_b32 v{AK}, v{vLane16}")
    for j in range(4): A(f"v_add_u32 v{vO[j]}, {4096 + j*8192}, v{vLane16}")
    for r in [P[1] + 4 + i for i in range(4)] + [V[1] + 4 + i for i in range(4)]: A(f"v_mov_b32 v{r}, 0")
    A(zero16(O[1]))
    A(f"v_mov_b32 v88, v{p1.vHs}") if False else None
    blocks = p1.gelu_ops(0, 64, 80, True)
    groups = [sum((kv_dma(r) for r in range(r0, r0 + 4)), []) for r0 in range(p1.KVL, KVT, 4)]
    for k in range(PRT): groups.append(pre_lds(k))
    for k in range(WOT): groups.append([ld_wo(k, n) for n in range(3)])
    def run_block(ops, ndma):
        for i, ins in enumerate(ops):
            if i == 40 and groups:
                for x in groups.pop(0): put(x)
            put(ins)
    nper = 0
    fs(51)
    run_block(blocks[0], nper)
    fs(52)
    run_block(blocks[1], nper)
    fs(53)
    A(f"v_cmp_gt_u32 vcc, 32, v{vLane}")
    A(f"s_waitcnt vmcnt({vm.need('q')}) lgkmcnt(0)")
    fs(54)
    A(zero16(GACC))
    A(f"s_set_gpr_idx_on s{sWave}, gpr_idx(SRC0)")
    A("s_nop 0")
    for c in range(2):
        for i in range(4): A(f"v_mov_b32 v{Q1[c]+i}, v{S[0]+8*c+i}")
    A("s_set_gpr_idx_off")
    for c in range(2):
        A(f"v_cndmask_b32 v{Q2[c][0]}, 0, v{vQt[c]}, vcc")
        A(f"v_mov_b32 v{Q2[c][0]+1}, 0")
    for c in range(2):
        w = vW[2 * c]
        A.many([f"v_sub_f32 v{w}, 1.0, v{vG[c]}", f"v_max_f32 v{w}, {f2u(2.0**-40):#x}, v{w}", f"v_rcp_f32 v{vT+c}, v{w}"])
    A("s_nop 0")
    for c in range(2): A(f"v_mul_f32 v{vG[c]}, v{vG[c]}, v{vT+c}")
    b2 = blocks[2]
    ins_at = {4: qk8(0), 12: qk16(0), 20: qk8(1), 27: qk16(1), 33: zero16(GACC + 16)}
    nb2 = []
    for i, ins in enumerate(b2):
        if i in ins_at: nb2.append(ins_at[i])
        nb2.append(ins)
    run_block(nb2, nper)
    fs(55)
    for c in range(2):
        A.many(max16(S[c], S[c], True)); A.many(half_max(S[c], S[c] + 1)); A(set_bias(c, S[c]))
    b3 = blocks[3]
    ins_at = {2: qk8(0), 10: qk16(0), 18: zero16(GACC + 32)}
    nb3 = []
    for i, ins in enumerate(b3):
        if i in ins_at: nb3.append(ins_at[i])
        nb3.append(ins)
    fs(56)
    run_block(nb3, nper)
    fs(57)
    assert not groups
    A(f"""
    s_lshl_b32 s{t}, s{sQi}, 2
    s_add_u32 s{t}, s{t}, s{sWave}
    s_cmp_eq_u32 s{t}, 15
    s_cselect_b32 s{sNA}, 8, 1
""")
    A.many([zero16(GACC + 48), zero16(GACC + 64), zero16(GACC + 80)])
    stamp(A, "next")

def main_loop(A):
    t = sT
    A("L_itA:")
    att_body(A, 'A')
    A(f"""
    s_add_u32 s{sIt}, s{sIt}, 1
    s_cmp_eq_u32 s{sIt}, 1
    s_cbranch_scc0 L_idle_next
    s_mov_b32 s{sPollOff}, {F4}
    s_lshl_b32 s{sPub}, s2, 2
    s_add_u32 s{sPub}, s{sPub}, {F4}
    s_waitcnt vmcnt({3*(9-WOT) + 5*(3-PRT)})
    s_barrier
    buffer_store_dword v{vOne}, v{vFlagOff}, {sr(sWS,4)}, s{sPub} offen sc1
    s_cmp_eq_u32 s{sNA}, 1
    s_cbranch_scc0 L_itA
    s_mov_b32 s{sIt}, 0
    s_cmp_eq_u32 s{sQi}, 3
    s_cselect_b32 s{t}, 0, {3*1024}
    s_lshl_b32 s{t+1}, s{t}, 1
    s_mul_i32 s{t}, s{t}, 3
    s_add_u32 s{sHp}, s{sHp}, s{t+1}
    s_addc_u32 s{sHp+1}, s{sHp+1}, 0
    s_add_u32 s{sWp}, s{sWp}, s{t}
    s_addc_u32 s{sWp+1}, s{sWp+1}, 0
""")
    att_body(A, 'LM')
    A("L_itM:")
    att_body(A, 'M')
    A(f"""
    s_sub_u32 s{sIt}, s{sIt}, 1
    s_cbranch_scc0 L_itM
    s_cmp_eq_u32 s{sNA}, 1
    s_cbranch_scc1 L_hchk
L_done:
""")

NRE = [9, 12, 15, 18, 18, 18]
OL = 96
PL = 168
def ld_o(f):
    c, st = f // 9, f % 9
    return gld(vr(OL + 4 * f, 4), sHo, st * 2048 + c * 1024)

ST = [192, 200]
vR = 230
def o_valu(c):
    o = O[c]
    ops = [f"v_rcp_f32 v{vR}, v{o+10}", "s_nop 0", f"v_mul_f32 v{vR}, v{vR}, v{vG[c]}"]
    ops += [f"v_mul_f32 v{o+i}, v{o+i}, v{vR}" for i in range(10)]
    ops += [f"v_cvt_pk_bf16_f32 v{ST[c]+i}, v{o+2*i}, v{o+2*i+1}" for i in range(5)]
    return ops
def o_stores(c):
    return [f"buffer_store_dwordx4 {vr(ST[c],4)}, v{vLane16}, {sr(sWS,4)}, s{sO1} offen offset:{c*1024} sc1",
            f"buffer_store_dword v{ST[c]+4}, v{vT+1}, {sr(sWS,4)}, s{sO2} offen offset:{c*1024} sc1"]

def tail(A):
    t = sT
    vm = Counter(63, [f"x{k}" for k in range(4) for _ in range(5)]); lg = Counter(15)
    def put(ins, tag=None):
        if ins.startswith(("buffer_", "global_")): vm.issue(tag)
        if ins.startswith("ds_"): lg.issue(tag)
        if ins.startswith("L_ook"): NRE[int(ins[5])] = sum(1 for x in vm.ops if x and x[0] == "o")
        A(ins)
    fs = lambda i: stamp(A, i) if common.OPT.get("fine3") else None
    order = [4, 5, 6, 0, 1, 2, 3]
    OST = common.OPT.get("ost", 24)
    fill = {m: [] for m in range(42)}
    def spread(ops, m0, per):
        for i, x in enumerate(ops): fill[m0 + i // per].append((x, None))
    chk = [f"s_mov_b32 s{t+3}, {f2u(2.0**60):#x}", f"v_add_f32 v{vT+3}, v{O[0]+10}, v{O[1]+10}", f"v_cmp_nlt_f32 vcc, v{vT+3}, s{t+3}"]
    v0, v1 = o_valu(0), o_valu(1)
    spread(v0[5:], 0, 6)
    fill[2] += [(x, None) for x in chk]
    fill[3] += [("s_cbranch_vccnz L_fallback", None), ("L_fb_ret:", None)] + [(x, "st") for x in o_stores(0)]
    spread(v1, 4, 6)
    fill[7] += [(x, "st") for x in o_stores(1)]
    misc = [f"s_lshl_b32 s{t}, s{sWave}, 11", f"v_add_u32 v{vT+1}, s{t}, v{vLane16}", f"v_add_u32 v{vT+2}, {6*8192}, v{vT+1}",
            f"s_add_u32 s{t+4}, s{sPart}, s{t}", f"s_lshl_b32 s{t}, s{sWave}, 13", f"v_add_u32 v{vT+3}, s{t}, v{vLane16}",
            f"v_add_u32 v{vT+4}, 0x10000, v{vT+3}", f"v_mov_b32 v{vT+5}, 24576", f"s_mov_b32 s{t+5}, 0x10000",
            f"s_add_u32 s{t+2}, s{sOutOff}, {36864+64}", f"s_movk_i32 s{t+1}, 128"]
    spread(misc, 8, 3)
    fill[12] += [(x, None) for x in [f"s_cmp_lt_u32 s{sWave}, 2", f"s_cselect_b32 s{t+1}, s{t+1}, {36864-64}", "s_cselect_b64 vcc, -1, 0"]]
    fill[13] += [(x, None) for x in [f"v_cndmask_b32 v{vW[1]}, v{vW[2]}, v{vW[0]}, vcc", f"s_add_u32 s{t+1}, s{t+1}, s{sOutOff}"]]
    fill[14] += [("s_barrier", None)]
    A(f"v_cvt_pk_bf16_f32 v{P[1]+7}, v{S[1]+14}, v{S[1]+15}")
    A(f"v_lshrrev_b32 v{vT+1}, 5, v{vLane}")
    A(f"v_lshl_add_u32 v{vT+1}, v{vT+1}, 30, v{vLane16}")
    A(pv(15, 1))
    A.many(v0[:5])
    A(f"s_cmp_eq_u32 s{sQi}, 3"); A("s_cbranch_scc1 L_helper_tail")
    olist = list(range(18))
    m = 0
    for k, st in enumerate(order):
        if st < 4 and st > 0: A(f"s_waitcnt vmcnt({vm.need(f'x{st}')})")
        fs(30 + k)
        for j in range(6):
            A(g_mfma(st, j % 3, j // 3))
            for ins, tag in fill[m]: put(ins, tag)
            if m >= OST and (m - OST) % 2 == 0 and olist:
                f = olist.pop(0); put(ld_o(f), f"o{f}")
            m += 1
        if k == 1: stamp(A, 21)
    stamp(A, 22)
    def check(g):
        r = OL + 12 * g
        pre = [lambda: f"s_waitcnt vmcnt({vm.need(f'o{3*g+2}')})", f"v_max3_u32 v{vT}, v{r}, v{r+1}, v{r+2}"]
        pre += [f"v_max3_u32 v{vT}, v{vT}, v{r+i}, v{r+i+1}" for i in range(3, 11, 2)]
        pre += [f"v_max_u32 v{vT}, v{vT}, v{r+11}", f"v_cmp_eq_u32 vcc, -1, v{vT}"]
        return pre, [f"s_cbranch_vccnz L_ore{g}", f"L_ook{g}:"]
    def wr(q, k): return f"ds_write_b128 v{vT+1+q//6}, {vr(GACC+8*q+4*k,4)} offset:{(q%6)*8192 + k*1024}"
    def rd(i, w, k): return f"ds_read_b128 {vr(32*i + 8*w + 4*k, 4)}, v{vT+3+i//2} offset:{(i%2)*32768 + w*2048 + k*1024}"
    def adds(i):
        b = 32 * i
        return [f"v_add_f32 v{b+r}, v{b+r}, v{b+8+r}" for r in range(8)] + [f"v_add_f32 v{b+16+r}, v{b+16+r}, v{b+24+r}" for r in range(8)] + \
               [f"v_add_f32 v{b+r}, v{b+r}, v{b+16+r}" for r in range(8)]
    def fin(i):
        b = 32 * i
        so = [sOutOff, t + 1, t + 2][i]
        return [f"v_add_f32 v{b+r}, v{b+r}, v{PL+8*i+r}" for r in range(8)] + [f"v_mul_f32 v{b+r}, v{b+r}, v{vW[i]}" for r in range(8)] + \
               [f"v_cvt_pk_bf16_f32 v{b+16+r}, v{b+2*r}, v{b+2*r+1}" for r in range(4)] + \
               [f"buffer_store_dwordx4 {vr(b+16,4)}, v{vQa}, {sr(sOUT,4)}, s{so} offen"]
    seq = [(0, n, st) for st in range(9) for n in range(2)] + [(0, 2, st) for st in range(9)] + \
          [(1, n, st) for n in range(3) for st in range(9)]
    g = {m: [] for m in range(54)}
    def at(m, ops, per=99):
        for i, x in enumerate(ops): g[m + i // per].append(x)
    for i, f in enumerate(olist): at(2 * i, [(ld_o(f), f"o{f}")])
    for grp, m0 in ((1, 3), (2, 9), (3, 17), (4, 20), (5, 23)):
        pre, post = check(grp)
        at(m0, pre, 4); at(m0 + 2, post)
    wpos = [21, 22, 24, 25, 26, 27, 28, 29,  33, 35, 37, 38,  40, 41, 43, 44,  49, 50, 52, 53]
    for i, m0 in enumerate(wpos): at(m0, [(wr(i // 2, i % 2), f"w{i//8}")])
    at(26, [(f"buffer_load_dword v{vPf}, v{vT+5}, {sr(sWS,4)}, s{sPart} offen sc1", "pf")])
    at(32, [lambda: f"s_waitcnt lgkmcnt({lg.need('w0')})", "s_barrier"])
    at(33, [(rd(0, j // 2, j % 2), "r0") for j in range(8)], 4)
    at(36, [lambda: f"s_waitcnt lgkmcnt({lg.need('r0')})"] + adds(0), 5)
    at(41, ["s_waitcnt vmcnt(0)", f"v_cmp_eq_u32 vcc, 0, v{vPf}"]); at(42, ["s_cbranch_vccnz L_pspin", "L_pok:"])
    for i in range(3):
        at([42, 45, 46][i], [(f"buffer_load_dwordx4 {vr(PL+8*i+4*k,4)}, v{vLane16}, {sr(sWS,4)}, s{t+4} offen offset:{k*1024} sc1", f"pl{i}") for k in range(2)]
           + [f"s_add_u32 s{t+4}, s{t+4}, 8192"])
    at(47, [lambda: f"s_waitcnt lgkmcnt({lg.need('w1')})", "s_barrier"])
    at(48, [(rd(1, j // 2, j % 2), "r1") for j in range(8)], 4)
    a1 = adds(1)
    at(51, [lambda: f"s_waitcnt lgkmcnt({lg.need('r1')})"] + a1[:12], 5)
    def emit(x):
        if callable(x): x = x()
        if isinstance(x, tuple): put(*x)
        else: put(x)
    pre, post = check(0)
    for x in pre + post: emit(x)
    for m, (c, n, st) in enumerate(seq):
        A(mfma16(gacc(n, c), wo_reg(st, n), vr(OL + 4 * (c * 9 + st), 4), gacc(n, c)))
        for x in g[m]: emit(x)
        if m % 9 == 8: fs(40 + m // 9)
    stamp(A, 23)
    for x in a1[12:]: put(x)
    for j in range(4): put(wr(10 + j // 2, j % 2), "w")
    A(f"s_waitcnt vmcnt({vm.need('pl1')})")
    for x in fin(0): put(x)
    A("s_waitcnt lgkmcnt(0)")
    A("s_barrier")
    stamp(A, 24)
    for j in range(8): put(rd(2, j // 2, j % 2), "r")
    for x in fin(1): put(x)
    A(f"s_waitcnt vmcnt({vm.need('pl2')}) lgkmcnt(0)")
    for x in adds(2) + fin(2): put(x)
    A("L_fin:")
    stamp(A, 25)
    if common.STAMPS: A("s_waitcnt vmcnt(0)")
    stamp(A, 26)

def fallback(A):
    t = sT
    M = [vT + 2, vT + 3]
    def rebase():
        A(f"v_add_u32 v{AK}, {-16*KV_GS & 0xffffffff:#x}, v{AK}")
        A(f"v_add_u32 v{AV}, {-16*KV_GS & 0xffffffff:#x}, v{AV}")
        A(f"v_add_u32 v{AK2}, {-16*KV_GS & 0xffffffff:#x}, v{AK2}")
        A(f"s_mov_b32 s{t}, 16")
    def loop(name, work, needv):
        A(f"L_{name}:")
        A(f"ds_read_b128 {vr(K2[0],4)}, v{AK2} offset:{off_k2(0)}")
        for tt in range(4):
            A(f"ds_read_b128 {vr(K1[tt%2],4)}, v{AK} offset:{off_k1(tt)}")
            if needv:
                for f in range(2): A(f"ds_read_b128 {vr(V[tt%2]+4*f,4)}, v{AV} offset:{off_v(tt,f)}")
            A("s_waitcnt lgkmcnt(0)")
            A.many([qk8(2*tt), qk8(2*tt+1), "s_nop 15", qk16(2*tt), qk16(2*tt+1), "s_nop 15"])
            for c in range(2): work(2*tt + c)
        A(f"v_add_u32 v{AK}, {KV_GS}, v{AK}"); A(f"v_add_u32 v{AV}, {KV_GS}, v{AV}"); A(f"v_add_u32 v{AK2}, {KV_GS}, v{AK2}")
        A(f"s_sub_u32 s{t}, s{t}, 1"); A(f"s_cmp_lg_u32 s{t}, 0"); A(f"s_cbranch_scc1 L_{name}")
    A("L_fallback:")
    A(f"v_cmp_gt_u32 vcc, 32, v{vLane}")
    rebase()
    for c in range(2):
        A(f"v_cndmask_b32 v{Q2[c][0]}, 0, v{vQt[c]}, vcc"); A(f"v_mov_b32 v{Q2[c][0]+1}, 0")
        A(f"v_mov_b32 v{Q2[c][1]}, 0"); A(f"v_cndmask_b32 v{Q2[c][1]+1}, 0, v{vQt[c]}, vcc")
        A(f"v_mov_b32 v{M[c]}, 0xff800000")
    loop("fbmax", lambda u: A.many(max16(S[u & 1], M[u & 1], False)), False)
    for c in range(2):
        A.many(half_max(M[c], vT)); A(set_bias(c, M[c]))
    for i in range(32): A(f"v_mov_b32 v{O[0]+i}, 0")
    rebase()
    def work(u):
        s, p = S[u & 1], P[u & 1]
        for i in range(16): A(f"v_exp_f32 v{s+i}, v{s+i}")
        A("s_nop 0")
        for i in range(8): A(f"v_cvt_pk_bf16_f32 v{p+i}, v{s+2*i}, v{s+2*i+1}")
        A.many(["s_nop 1", pv(u, 0), pv(u, 1)])
    loop("fbexp", work, True)
    A(f"""
    v_lshrrev_b32 v{vT+1}, 5, v{vLane}
    v_lshl_add_u32 v{vT+1}, v{vT+1}, 30, v{vLane16}
    s_nop 15
""")
    A.many(o_valu(0))
    A(f"s_cmp_eq_u32 s{sQi}, 3")
    A("s_cbranch_scc1 L_fb_ret_h")
    A("s_branch L_fb_ret")

def out_of_line(A):
    t = sT
    A(f"""
L_idle_next:
    s_cmp_lt_u32 s{sIt}, 8
    s_cbranch_scc1 L_itA
    s_branch L_done
L_hchk:
    s_mov_b32 s{sNA}, 0
    s_mov_b32 s{sIt}, 4
    {flag_min()[0]}
    {flag_min()[1]}
    v_cmp_eq_u32 vcc, 0, v{vPoll}
    s_cbranch_vccz L_itM
""")
    p1.spin(A, f"s{sPollOff}", "hspin", "L_itM")
    p1.spin(A, f"s{sPollOff}", "qspin", "L_qok")
    A(f"""
L_helper_tail:
""")
    A.many(o_valu(0)[5:])
    A(f"""
    s_mov_b32 s{t+3}, {f2u(2.0**60):#x}
    v_add_f32 v{vT+3}, v{O[0]+10}, v{O[1]+10}
    v_cmp_nlt_f32 vcc, v{vT+3}, s{t+3}
    s_cbranch_vccnz L_fallback
L_fb_ret_h:
""")
    A.many(o_stores(0) + o_valu(1) + o_stores(1))
    A(f"""
    s_cmp_eq_u32 s{sWave}, 3
    s_cbranch_scc1 L_fin
    v_mov_b32 v{vT+5}, 24576
    s_nop 0
    s_mov_b32 s{t+4}, s{sPart}
    s_nop 3
""")
    for i in range(24):
        if i and i % 4 == 0: A(f"s_add_u32 s{t+4}, s{t+4}, 4096")
        A(f"buffer_store_dwordx4 {vr(GACC+4*i,4)}, v{vLane16}, {sr(sWS,4)}, s{t+4} offen offset:{(i%4)*1024} sc1")
    A(f"""
    s_waitcnt vmcnt(0)
    buffer_store_dword v{vOne}, v{vT+5}, {sr(sWS,4)}, s{sPart} offen sc1
    s_branch L_fin
L_pspin:
    s_sleep 2
    buffer_load_dword v{vPf}, v{vT+5}, {sr(sWS,4)}, s{sPart} offen sc1
    s_sub_u32 s{t+5}, s{t+5}, 1
    s_cbranch_scc1 L_pok
    s_waitcnt vmcnt(0)
    v_cmp_eq_u32 vcc, 0, v{vPf}
    s_cbranch_vccnz L_pspin
    s_branch L_pok
""")
    for g in range(6):
        r = OL + 12 * g
        A(f"L_ore{g}:")
        A(f"s_sleep {common.OPT.get('osleep', 4)}")
        for f in range(3 * g, 3 * g + 3): A(ld_o(f))
        A(f"""
    s_sub_u32 s{t+5}, s{t+5}, 1
    s_cbranch_scc1 L_fin
    s_waitcnt vmcnt(0)
    v_max3_u32 v{vT}, v{r}, v{r+1}, v{r+2}
""")
        for i in range(3, 11, 2): A(f"v_max3_u32 v{vT}, v{vT}, v{r+i}, v{r+i+1}")
        A(f"""
    v_max_u32 v{vT}, v{vT}, v{r+11}
    v_cmp_eq_u32 vcc, -1, v{vT}
    s_cbranch_vccnz L_ore{g}
""")
        for f in range(3 * g + 3, NRE[g]): A(ld_o(f))
        A(f"s_branch L_ook{g}")
    fallback(A)
```

```python
import sys
from common import *
import common
import phase1 as p1
import phase2 as p2

NAME = "gated_mix__grouped_kv_mqa__glu_gated_geglu__prompt"
def kd(name):
    return f"""
.section .rodata,"a"
.p2align 6
.amdhsa_kernel {name}
  .amdhsa_next_free_vgpr 512
  .amdhsa_next_free_sgpr 102
  .amdhsa_accum_offset 256
  .amdhsa_group_segment_fixed_size 0
  .amdhsa_kernarg_size 104
  .amdhsa_user_sgpr_count 2
  .amdhsa_user_sgpr_kernarg_segment_ptr 1
  .amdhsa_system_sgpr_workgroup_id_x 1
.end_amdhsa_kernel
"""
def head(name):
    return f""".globl {name}
.p2align 12
.p2align 8
.type {name},@function
{name}:
"""
def hdr_comment():
    ref = open(f"cdna_kernels/{NAME}.s.ref").read().split("\n")
    return "\n".join(l for l in ref[:14]) + "\n"
def gen_fused():
    A = Asm()
    vm = p1.phase1(A)
    p2.transition(A, vm)
    p2.main_loop(A)
    p2.tail(A)
    stamp_flush(A, p1.sWS, p1.vLane4, p1.sWave)
    if common.OPT.get("dbgst") is not None:
        A(f"""
    v_readlane_b32 s0, v253, 0
    v_readlane_b32 s1, v253, 20
    s_nop 3
    v_writelane_b32 v253, s1, 8
    v_readlane_b32 s1, v253, 22
    s_nop 3
    v_writelane_b32 v253, s1, 9
    v_readlane_b32 s1, v253, 23
    s_nop 3
    v_writelane_b32 v253, s1, 10
    v_readlane_b32 s1, v253, 26
    s_nop 3
    v_writelane_b32 v253, s1, 11
    v_subrev_u32 v253, s0, v253
    s_lshl_b32 s1, s2, 2
    s_add_u32 s1, s1, s{p1.sWave}
    s_cmp_eq_u32 s1, {common.OPT["dbgst"]}
    s_cbranch_scc0 L_end
    buffer_store_dword v253, v{p1.vLane4}, s[96:99], 0 offen offset:4
""")
    if common.OPT.get("padto"):
        A(f"""
    v_readlane_b32 s10, v253, {common.OPT.get("probe", 0)}
    s_cmp_eq_u32 s{p1.sSpecial}, {common.OPT.get("pskip", 5)}
    s_cbranch_scc1 L_end
L_pad:
    s_memrealtime s[0:1]
    s_waitcnt lgkmcnt(0)
    s_sub_u32 s0, s0, s10
    s_cmp_lt_u32 s0, {common.OPT["padto"]}
    s_cbranch_scc1 L_pad
""")
    if common.OPT.get("padmin"):
        A(f"""
    s_mov_b32 s10, {WS_FL + 4096}
    buffer_load_dwordx4 v[0:3], v{p1.vLane16}, s[44:47], s10 offen sc1
    s_waitcnt vmcnt(0)
    s_mov_b32 s11, {common.OPT["padmin"]}
L_pad2:
    s_memrealtime s[0:1]
    s_waitcnt lgkmcnt(0)
    v_sub_u32 v4, s0, v0
    v_sub_u32 v5, s0, v1
    v_sub_u32 v6, s0, v2
    v_sub_u32 v7, s0, v3
    v_max3_u32 v4, v4, v5, v6
    v_max_u32 v4, v4, v7
    v_cmp_le_u32 vcc, s11, v4
    s_cbranch_vccz L_pad2
""")
    A("L_end:")
    A("s_endpgm")
    p1.phase1_tail(A)
    p2.out_of_line(A)
    p1.jobtab(A)
    k = NAME + "_kernel"
    s = hdr_comment()
    s += "; @launch grid=(256,1,1) block=(256,1,1) lds=163840\n"
    s += '.amdgcn_target "amdgcn-amd-amdhsa--gfx950"\n.text\n' + head(k) + A.text() + kd(k)
    return s
if __name__ == "__main__":
    out = sys.argv[1]
    for a in sys.argv[2:]:
        if a == "stamps": common.STAMPS = True
        elif "=" in a:
            k, v = a.split("="); common.OPT[k] = int(v) if v.lstrip("-").isdigit() else v
        else: common.OPT[a] = 1
    if common.OPT.get("lead"): p1.LEAD = p2.LEAD = common.OPT["lead"]
    if common.OPT.get("pb"): p1.PB = common.OPT["pb"]
    if common.OPT.get("ntt"): p1.NT_T = " nt"
    if common.OPT.get("ntw"): p1.NT_W = " nt"
    if common.OPT.get("ntx"): p1.NT_X = " nt"
    if common.OPT.get("ntp"): p1.NT_P = " nt"
    txt = gen_fused()
    import re
    if common.OPT.get("noatom"):
        txt = re.sub(r"    buffer_atomic_or.*\n", "    s_nop 0\n", txt)
        txt = re.sub(r"    s_cbranch_vccnz L_(kvspin_.|qspin)\n", "    s_nop 0\n", txt)
        txt = txt.replace("s_cbranch_vccz L_itM", "s_branch L_itM")
    if common.OPT.get("nopoll"):
        txt = re.sub(r"    buffer_load_dword v240, v250, .*\n(?!    s_sub)", "    s_nop 0\n", txt)
    if common.OPT.get("nosc1h"):
        txt = re.sub(r"(buffer_store_dwordx4 .* s\[(48:51|56:59)\].*) sc1", r"\1", txt)
    def in_odd(f):
        a = txt.index("L_odd:\n"); b = txt.index("L_last:\n")
        return txt[:a] + f(txt[a:b]) + txt[b:]
    if common.OPT.get("xdma"): txt = in_odd(lambda t: re.sub(r"    buffer_load_dwordx4 v22\d.* lds\n", "    s_nop 1\n", t))
    if common.OPT.get("xbar"): txt = in_odd(lambda t: t.replace("    s_barrier\n", "    s_nop 0\n"))
    if common.OPT.get("xvm"): txt = in_odd(lambda t: re.sub(r"    s_waitcnt vmcnt.*\n", "    s_nop 0\n", t))
    if common.OPT.get("xlg"): txt = in_odd(lambda t: re.sub(r"    s_waitcnt lgkmcnt\([1-9].*\n", "    s_nop 0\n", t))
    if common.OPT.get("xst"): txt = in_odd(lambda t: re.sub(r"    buffer_(store|load_dword v251|load_dwordx4 v235).*\n", "    s_nop 1\n", t))
    open(out, "w").write(txt)
```

```python
import sys
from common import *
import common
import phase1 as p1
import phase2 as p2

NAME = "gated_mix__grouped_kv_mqa__glu_gated_geglu__prompt"
def kd(name):
    return f"""
.section .rodata,"a"
.p2align 6
.amdhsa_kernel {name}
  .amdhsa_next_free_vgpr 512
  .amdhsa_next_free_sgpr 102
  .amdhsa_accum_offset 256
  .amdhsa_group_segment_fixed_size 0
  .amdhsa_kernarg_size 104
  .amdhsa_user_sgpr_count 2
  .amdhsa_user_sgpr_kernarg_segment_ptr 1
  .amdhsa_system_sgpr_workgroup_id_x 1
.end_amdhsa_kernel
"""
def head(name):
    return f""".globl {name}
.p2align 12
.p2align 8
.type {name},@function
{name}:
"""
def hdr_comment():
    ref = open(f"cdna_kernels/{NAME}.s.ref").read().split("\n")
    return "\n".join(l for l in ref[:14]) + "\n"
def gen_fused():
    A = Asm()
    vm = p1.phase1(A)
    p2.transition(A, vm)
    p2.main_loop(A)
    p2.tail(A)
    stamp_flush(A, p1.sWS, p1.vLane4, p1.sWave)
    if common.OPT.get("dbgst") is not None:
        A(f"""
    v_readlane_b32 s0, v253, 0
    v_readlane_b32 s1, v253, 20
    s_nop 3
    v_writelane_b32 v253, s1, 8
    v_readlane_b32 s1, v253, 22
    s_nop 3
    v_writelane_b32 v253, s1, 9
    v_readlane_b32 s1, v253, 23
    s_nop 3
    v_writelane_b32 v253, s1, 10
    v_readlane_b32 s1, v253, 26
    s_nop 3
    v_writelane_b32 v253, s1, 11
    v_subrev_u32 v253, s0, v253
    s_lshl_b32 s1, s2, 2
    s_add_u32 s1, s1, s{p1.sWave}
    s_cmp_eq_u32 s1, {common.OPT["dbgst"]}
    s_cbranch_scc0 L_end
    buffer_store_dword v253, v{p1.vLane4}, s[96:99], 0 offen offset:4
""")
    if common.OPT.get("padto"):
        pc = ""
        if "pca" in common.OPT:
            pc = f"""
    v_readlane_b32 s11, v255, {common.OPT["pca"]}
    v_readlane_b32 s12, v255, {common.OPT["pcb"]}
    s_nop 3
    s_sub_u32 s11, s12, s11
    s_lshr_b32 s11, s11, 2
    s_add_u32 s10, s10, s11
"""
        if "pwg" in common.OPT:
            pc += f"""
    s_and_b32 s11, s2, {common.OPT.get("pmask", 255)}
    s_cmp_lg_u32 s11, {common.OPT["pwg"]}
    s_cbranch_scc1 L_end
"""
        A(f"""
    v_readlane_b32 s10, v253, {common.OPT.get("probe", 0)}
    {pc}
    s_cmp_eq_u32 s{p1.sSpecial}, {common.OPT.get("pskip", 5)}
    s_cbranch_scc1 L_end
L_pad:
    s_memrealtime s[0:1]
    s_waitcnt lgkmcnt(0)
    s_sub_u32 s0, s0, s10
    s_cmp_lt_i32 s0, {common.OPT["padto"]}
    s_cbranch_scc1 L_pad
""")
    if common.OPT.get("padmin"):
        A(f"""
    s_mov_b32 s10, {WS_FL + 4096}
    buffer_load_dwordx4 v[0:3], v{p1.vLane16}, s[44:47], s10 offen sc1
    s_waitcnt vmcnt(0)
    s_mov_b32 s11, {common.OPT["padmin"]}
L_pad2:
    s_memrealtime s[0:1]
    s_waitcnt lgkmcnt(0)
    v_sub_u32 v4, s0, v0
    v_sub_u32 v5, s0, v1
    v_sub_u32 v6, s0, v2
    v_sub_u32 v7, s0, v3
    v_max3_u32 v4, v4, v5, v6
    v_max_u32 v4, v4, v7
    v_cmp_le_u32 vcc, s11, v4
    s_cbranch_vccz L_pad2
""")
    A("L_end:")
    A("s_endpgm")
    p1.phase1_tail(A)
    p2.out_of_line(A)
    p1.jobtab(A)
    k = NAME + "_kernel"
    s = hdr_comment()
    s += "; @launch grid=(256,1,1) block=(256,1,1) lds=163840\n"
    s += '.amdgcn_target "amdgcn-amd-amdhsa--gfx950"\n.text\n' + head(k) + A.text() + kd(k)
    return s
if __name__ == "__main__":
    out = sys.argv[1]
    for a in sys.argv[2:]:
        if a == "stamps": common.STAMPS = True
        elif "=" in a:
            k, v = a.split("="); common.OPT[k] = int(v) if v.lstrip("-").isdigit() else v
        else: common.OPT[a] = 1
    if common.OPT.get("lead"): p1.LEAD = p2.LEAD = common.OPT["lead"]
    if common.OPT.get("pb"): p1.PB = common.OPT["pb"]
    if common.OPT.get("ntt"): p1.NT_T = " nt"
    if common.OPT.get("ntw"): p1.NT_W = " nt"
    if common.OPT.get("ntx"): p1.NT_X = " nt"
    if common.OPT.get("ntp"): p1.NT_P = " nt"
    txt = gen_fused()
    import re
    if common.OPT.get("noatom"):
        txt = re.sub(r"    buffer_atomic_or.*\n", "    s_nop 0\n", txt)
        txt = re.sub(r"    s_cbranch_vccnz L_(kvspin_.|qspin)\n", "    s_nop 0\n", txt)
        txt = txt.replace("s_cbranch_vccz L_itM", "s_branch L_itM")
    if common.OPT.get("nopoll"):
        txt = re.sub(r"    buffer_load_dword v240, v250, .*\n(?!    s_sub)", "    s_nop 0\n", txt)
    if common.OPT.get("nosc1h"):
        txt = re.sub(r"(buffer_store_dwordx4 .* s\[(48:51|56:59)\].*) sc1", r"\1", txt)
    def in_odd(f):
        a = txt.index("L_odd:\n"); b = txt.index("L_last:\n")
        return txt[:a] + f(txt[a:b]) + txt[b:]
    if common.OPT.get("xdma"): txt = in_odd(lambda t: re.sub(r"    buffer_load_dwordx4 v22\d.* lds\n", "    s_nop 1\n", t))
    if common.OPT.get("xbar"): txt = in_odd(lambda t: t.replace("    s_barrier\n", "    s_nop 0\n"))
    if common.OPT.get("xvm"): txt = in_odd(lambda t: re.sub(r"    s_waitcnt vmcnt.*\n", "    s_nop 0\n", t))
    if common.OPT.get("xlg"): txt = in_odd(lambda t: re.sub(r"    s_waitcnt lgkmcnt\([1-9].*\n", "    s_nop 0\n", t))
    if common.OPT.get("xst"): txt = in_odd(lambda t: re.sub(r"    buffer_(store|load_dword v251|load_dwordx4 v235).*\n", "    s_nop 1\n", t))
    open(out, "w").write(txt)
```

```python
from common import *
import common
import hazard

S_X, S_WQ, S_WK, S_WV, S_WO, S_WG, S_WU, S_WD, S_GW, S_OUT, S_DBG, S_WS = 4, 6, 8, 10, 12, 16, 18, 20, 22, 24, 26, 28
sW, sWn, nOff, sX, sWS, sH, sP, sPD = 32, 36, 88, 40, 44, 48, 52, 56
sTch = 94
sWave, sOff, sStep, nStep, sHoff, sHbase, sTab, sM0, sRowOff = 60, 61, 62, 63, 64, 65, 66, 68, 69
sPs0, sPs1, sPd0, sPd1, sXc, sXend = 70, 71, 72, 73, 74, 85
sT = 76
sLink, sLink2, sSpecial, sTb, sC2, sFb, sPub, sPar = 82, 84, 86, 87, 89, 90, 92, 93
sXq, sQi = 94, 95
sDB = 96
sBase, sEnd, nStart, sSkip, sRot = 100, 101, 31, 30, 3
sPollOff = 74
nD = 75
sHp, sWp, sHo, sWo = 12, 14, 16, 18
sO1, sO2, sQoff, sGoff = 20, 21, 22, 23
sOUT = 24
sPart, sOutOff = 4, 5
SRD3 = 0x00020000
WG_SIZE = 576 * 9216
LEAD = 12
PB = 4
NT_W = ""
NT_X = ""
NT_P = ""
NT_T = ""

ACC = [0, 64]
AF = 128
XT = 152
GT = 184
PK = 200
PF = 208
vDma = 220
vHs = 254
vTR = 224
vTW, vNext, vF, vLane16, vC1, vPsrc, vPtr, vR8, vC16, vFlagOff, vOne, vLane, vQa, vAV = range(230, 244)
vT = 244
vPoll = 244
vLane4 = 250
vDummy = 251
F0, F2, F4, FOOB = WS_FL, WS_FL + 1024, WS_FL + 2048, 0x40000000

def xreg(i):
    return ar(4 * i, 4) if i < 64 else vr(XT + 4 * (i - 64), 4)

def tr_reads(ks, region):
    out = []
    third = min(region // 12, 2)
    blk = ks % 4
    for r in range(4):
        h, rr = r // 2, r % 2
        reg = AF + (ks % 3) * 8 + h * 4 + rr * 2
        off = (region // 4 - third * 3) * 16384 + (blk // 2) * 8192 + h * 2048 + rr * 512
        out.append(f"ds_read_b64_tr_b16 {vr(reg,2)}, v{vTR + third*2 + blk % 2} offset:{off}")
    return out

def gelu_ops(accset, gt=GT, pkb=PK, nops=False):
    blocks = []
    for blk in range(4):
        ops = []
        g = ACC[accset] + 16 * blk; u = g + 8
        t = gt; pk = pkb + 4 * (blk % 2)
        ops += [f"v_mul_f32 v{t+i}, v{g+i}, v{g+i}" for i in range(8)]
        ops += [f"v_fma_f32 v{t+i}, v{t+i}, s{sC2}, v{vC1}" for i in range(8)]
        ops += [f"v_mul_f32 v{t+i}, v{t+i}, v{g+i}" for i in range(8)]
        for i in range(8):
            ops += [f"v_exp_f32 v{t+i}, v{t+i}", f"v_mul_f32 v{g+i}, v{g+i}, v{u+i}"]
        ops += [f"v_add_f32 v{t+i}, 1.0, v{t+i}" for i in range(8)]
        ops += [f"v_rcp_f32 v{t+i}, v{t+i}" for i in range(8)]
        ops += [f"v_mul_f32 v{g+i}, v{g+i}, v{t+i}" for i in range(8)]
        ops += [f"v_cvt_pk_bf16_f32 v{pk+i}, v{g+2*i}, v{g+2*i+1}" for i in (0, 2, 1, 3)]
        if nops: ops += ["s_nop 0"]
        ops += [f"v_permlane16_swap_b32 v{pk}, v{pk+2}", f"v_permlane16_swap_b32 v{pk+1}, v{pk+3}"]
        ops += [f"buffer_store_dwordx4 {vr(pk,4)}, v{vHs}, {sr(sH,4)}, s{sHoff} offen offset:{(blk//2)*1024 + (blk%2)*256} sc1"]
        blocks.append(ops)
    return blocks

def w_dma(region, kpos):
    o = []
    if region % 4 == 0:
        o = [f"s_add_u32 m0, s{sM0}, {(region//4)*16384}", f"s_add_u32 s{sOff}, s{sOff}, s{sStep}"]
        if kpos > 0:
            o += [f"s_cmp_eq_u32 s{sOff}, s{sEnd}", f"s_cselect_b32 s{sOff}, s{sBase}, s{sOff}"]
    j = region % 4
    return o, f"buffer_load_dwordx4 v{vDma+j}, {sr(sW,4)}, s{sOff} offen offset:{j*1024} sc1{NT_W} lds"

def switch_ops():
    return [[f"s_mov_b64 {sr(sW,2)}, {sr(sWn,2)}", f"s_mov_b32 s{sW+2}, s{sWn+2}", f"s_mov_b32 s{sStep}, s{nStep}", f"v_mov_b32 v{vDma}, v{vNext}"],
            [f"s_mov_b32 s{sOff}, s{nStart}", f"s_mov_b32 s{sBase}, s{nOff}", f"s_mul_i32 s{sEnd}, s{nStep}, 9", f"s_add_u32 s{sEnd}, s{sEnd}, s{nOff}"],
            [f"v_add_u32 v{vDma+1}, s{nD}, v{vDma}", f"v_add_u32 v{vDma+2}, s{nD}, v{vDma+1}", f"v_add_u32 v{vDma+3}, s{nD}, v{vDma+2}"]]

def next_ops():
    t = sT
    return [[f"s_bfe_u32 s{t}, s{sTab}, 0x80018", f"s_lshl_b32 s{t+1}, s{t}, 7", f"s_add_u32 s{nOff}, s{t+1}, s{sRowOff}"],
            [f"s_cmp_lt_u32 s{t}, 72", f"s_cselect_b32 s{sSkip}, 1, 0", f"s_mul_i32 s{t+1}, s{sRot}, {64*9216}"],
            [f"s_add_u32 s{nStart}, s{nOff}, s{t+1}", f"s_lshr_b64 {sr(sTab,2)}, {sr(sTab,2)}, 8"],
            [f"s_mov_b64 {sr(sWn,2)}, {sr(sFb,2)}", f"s_mov_b32 s{sWn+2}, {WG_SIZE}"]]

def poll_ld(soff):
    return f"buffer_load_dwordx4 {vr(vPoll,4)}, v{vLane16}, {sr(sWS,4)}, {soff} offen sc1"
def flag_min():
    return [f"v_min3_u32 v{vPoll}, v{vPoll}, v{vPoll+1}, v{vPoll+2}", f"v_min_u32 v{vPoll}, v{vPoll}, v{vPoll+3}"]

def emit_stream(A, accset, pinned, pre, queue, qstart, vm, lg, qend=140, **_):
    Q = [(x, hazard.parse(x)) for x in queue]
    total = sum(cost(x) for x in queue); done = 0
    hist = []
    ismem = lambda x: x.startswith(("ds_", "buffer_", "global_"))
    def put(ins):
        if callable(ins): ins = ins()
        if ins == "FULL": return 100
        tag = None
        if isinstance(ins, tuple): ins, tag = ins
        if ins.startswith("ds_"): lg.issue(tag)
        if ins.startswith(("buffer_", "global_")): vm.issue(tag)
        A(ins)
        if ins.endswith(":"): return 0
        hist.append(hazard.parse(ins))
        return cost(ins)
    def peek(ins):
        if callable(ins): return "s_waitcnt"
        return ins[0] if isinstance(ins, tuple) else ins
    def ready(i):
        p = Q[i][1]
        for _, e in Q[:i]:
            if e["w"] & (p["r"] | p["w"]) or e["r"] & p["w"] or (e["k"] == "mem" and p["k"] == "mem"): return False
        for d, h in enumerate(reversed(hist[-4:])):
            if h["k"] != "valu" or not (h["w"] & (p["r"] | p["w"])):
                if "data" in h and h["data"] & p["w"] and d < 2: return False
                continue
            need = 1
            if "dpp" in p["op"] or p["op"].startswith("v_permlane"): need = 2
            if h["op"].startswith("v_dot") and p["op"] != h["op"]: need = 3
            if d < need: return False
        return True
    pc = lambda x: 8 if peek(x) == "FULL" else 0 if peek(x).endswith(":") else cost(peek(x))
    free = [max(0, 60 - sum(pc(x) for g in pinned[ks] for x in g)) if qstart <= 4 * ks < qend else 0 for ks in range(36)]
    est = 0
    for ks in range(36):
        for p in pre[ks]: put(p)
        fifo = []
        for m in range(8):
            t, h = m // 2, m % 2
            d = vr(ACC[accset] + 16 * t + 4 * (ks % 4), 4)
            put(f"v_mfma_f32_16x16x32_bf16 {d}, {vr(AF + (ks % 3) * 8 + h * 4, 4)}, {xreg(8 * (ks // 4) + m)}, {'0' if ks < 4 and h == 0 else d}")
            if h == 0: fifo += pinned[ks][t]
            used = 4 if m == 7 else 0
            gap = ks * 4 + m / 2
            backlog = sum(cost(peek(x)) for x in fifo if peek(x) != "FULL" and not peek(x).endswith(":"))
            later = sum(cost(peek(x)) for tt in range(t + 1, 4) for x in pinned[ks][tt] if peek(x) != "FULL" and not peek(x).endswith(":"))
            cap = 8 if backlog + later <= 8 * (8 - m) - 4 else 12
            sparse = backlog + later <= 4 * (8 - m)
            npin = 0
            while fifo and (m == 7 or used + (0 if peek(fifo[0]) == "FULL" or peek(fifo[0]).endswith(":") else cost(peek(fifo[0]))) <= cap):
                if sparse and npin and m != 7 and ismem(peek(fifo[0])): break
                used += put(fifo.pop(0)); npin += 1
            target = total * (sum(free[:ks]) + free[ks] * (m + 1) / 8) / sum(free)
            cap = 12 if done < target - 16 else 8
            while Q and gap >= qstart and done <= target + 16:
                cand = [i for i in range(min(len(Q), 28)) if used + cost(Q[i][0]) <= cap and ready(i)
                        and not (Q[i][1]["k"] == "mem" and hist[-1]["k"] == "valu")]
                if not cand: break
                big = [i for i in cand if cost(Q[i][0]) == 8]
                i = big[0] if big else cand[0]
                c_ = put(Q.pop(i)[0]); used += c_; done += c_
            est += 8 + max(8, min(used, 24))
    assert not Q, f"queue not drained {len(Q)}"
    if common.OPT.get("v"): print("free", sum(free), "queue", total, "est cycles", est)
    stamp(A, "next")

def touch_w():
    return [[f"s_add_u32 s{sT+3}, s{nOff}, s{sTch}", f"s_cmp_eq_u32 s{sSkip}, 0", f"s_cselect_b32 s{sT+3}, {FOOB}, s{sT+3}"],
            [(f"buffer_load_dword v{vDummy}, v{vTW}, {sr(sWn,4)}, s{sT+3} offen{NT_T}", "tch")]]

def kv_dma(r):
    o = []
    if r % 4 == 0:
        o = [f"s_add_u32 m0, s{sM0}, {(r//4)*16384}", f"s_add_u32 s{sEnd}, s{sM0}, {WS_KV + (r//4)*16384}"]
    return o, f"buffer_load_dwordx4 v{vLane16}, {sr(sX,4)}, s{sEnd} offen offset:{(r%4)*1024} sc1 lds"
KVL = 32

def body(A, kind):
    odd, last = kind == "o", kind == "l"
    accset = 1 if odd else 0
    vm = Counter(63); lg = Counter(15, ["k0"]*4 + ["k1"]*4)
    pinned = [[[] for _ in range(4)] for _ in range(36)]
    pre = [[] for _ in range(36)]
    assert LEAD == 12
    bars = {10: "d19", 18: "d31", 30: "d47"} if not last else {10: "d19", 18: "d31", 26: "d35", 32: "v7"}
    for ks in range(36):
        pre[ks].append(lambda ks=ks: f"s_waitcnt lgkmcnt({lg.need(f'k{ks}')})")
        bar = ks in bars
        if bar:
            pinned[ks][0] += [lambda ks=ks: f"s_waitcnt vmcnt({vm.need(bars[ks])})", "s_barrier", "FULL"]
        if last and ks >= 34: continue
        k2 = (ks + 2) % 36
        for r, ins in enumerate(tr_reads(k2, k2)):
            pinned[ks][[1,1,2,3][r] if bar else r].append((ins, f"k{ks+2}"))
    slots = sorted([(k, 2) for k in range(36)] + [(k, 0) for k in range(1, 36, 2)])
    SW = 16
    if not last:
        sw = switch_ops()
        pinned[SW-1][3] += sw[0]; pinned[SW][0] += sw[1]; pinned[SW][3] += sw[2]
    def place(k, g, o, ld):
        if g == 0: pinned[k-1][3] += o
        else: pinned[k][g-1] += o
        pinned[k][g] += [ld]
    for i, (k, g) in enumerate(slots[:24 if last else 36]):
        rho = LEAD + i
        o, ld = w_dma(rho % 36, rho % 36)
        place(k, g, o, (ld, f"d{rho}"))
        if rho == 36: assert (k, g) == (SW, 2)
    if last:
        ks_ = [x for x in slots[24:] if x[0] < 32] + [(32,2), (33,0), (33,2), (34,0), (34,1), (34,3), (35,1), (35,3)]
        assert len(ks_) == KVL
        for r, (k, g) in enumerate(ks_):
            assert (r | 3) <= max(x for x in bars if (x, 0) < (k, g))
            o, ld = kv_dma(r)
            place(k, g, o, (ld, f"v{r}"))
    pinned[0][0] += [f"s_and_b32 s{sT+2}, s{sTab}, 0xff", f"s_lshl_b32 s{sT+2}, s{sT+2}, 13", f"s_add_u32 s{sHoff}, s{sHbase}, s{sT+2}"]
    if odd or last:
        pinned[18][1] += [f"buffer_store_dword v{vOne}, v{vFlagOff}, {sr(sWS,4)}, s{sPub} offen sc1"]
    if odd:
        pinned[26][1] += [f"s_lshl_b32 s{sPub}, s2, 2", f"s_add_u32 s{sPub}, s{sPub}, {F2}", f"s_cmp_lg_u32 s{sP+2}, 1", f"s_cselect_b32 s{sPub}, s{sPub}, {FOOB}"]
    if last:
        pinned[14][0] += flag_min() + [f"v_cmp_eq_u32 vcc, 0, v{vPoll}"]
        pinned[14][1] += [f"s_cbranch_vccnz L_kvspin", f"L_kvok:"]
        pinned[12][0] += [f"s_mov_b64 {sr(sX,2)}, {sr(S_WS,2)}", f"s_mov_b32 s{sX+2}, {WS_KV + 16*KV_GS}"]
        pinned[2][0] += [f"s_mov_b32 s{sPollOff}, {F0}", poll_ld(f"s{sPollOff}")]
        pinned[30][0] += [f"s_mov_b32 s{sPollOff}, {F2}", (poll_ld(f"s{sPollOff}"), "poll")]
    else:
        nx = next_ops()
        for grp, (k, g) in zip(nx, [(17,1), (17,3), (19,1), (19,3)]): pinned[k][g] += grp
        units = [0, 1] if odd else [2]
        pos = [(24,2), (24,3), (25,0), (25,1)]
        for n, u in enumerate(units):
            for e in range(2):
                k, g = pos[2*n + e]
                if e == 0: pinned[k][g] += [f"s_add_u32 m0, s{sM0}, {9*16384 + n*2048}"]
                pinned[k][g] += [f"s_add_u32 s{sT+3}, s{sPs0+e}, {u*128}",
                                 (f"buffer_load_dwordx4 v{vPsrc}, {sr(sP,4)}, s{sT+3} offen offset:{e*1024}{NT_P} lds", "pk")]
        tw = touch_w()
        pinned[24][0] += tw[0]; pinned[24][1] += tw[1]
    for n, u in enumerate([0, 1] if kind == "e" else [2]):
        pf = [PF, GT + 8][n]
        for r in range(4):
            e, rr = r // 2, r % 2
            k, g = [[(10,1), (10,2), (11,1), (11,1)], [(14,3), (14,3), (15,1), (15,1)]][n][r]
            pinned[k][g].append(
                (f"ds_read_b64_tr_b16 {vr(pf + e*4 + rr*2,2)}, v{vPtr} offset:{n*2048 + rr*512 + e*64}", f"p{n}"))
        for e in range(2):
            nb = 2 * u + e
            k, g = [[(12,1), (12,3)], [(22,1), (22,3)]][n][e]
            if n == 0 and e == 0: pinned[k][g].append(lambda: f"s_waitcnt lgkmcnt({lg.need('p0')})")
            pinned[k][g].append(
                f"buffer_store_dwordx4 {vr(pf + e*4, 4)}, v{vLane16}, {sr(sPD,4)}, s{sPd0 + nb//3} offen offset:{(nb%3)*1024} sc1")
    if odd:
        pinned[35][1] += [f"s_cmp_gt_u32 s{sP+2}, 1", f"s_cselect_b32 s{sPD+2}, {WS_SIZE}, 0"]
    elif not last:
        pinned[35][1] += [f"s_mov_b32 s{sP+2}, 1"]
    q = sum(gelu_ops(1 - accset), [])
    emit_stream(A, accset, pinned, pre, q, 4, vm, lg)
    return vm

XR = 64
GX = 80
vXd = 76
sXb = 64
def elem_dma(e):
    region = (e + 8) % 40
    if e < 72 and e % 8 < 4:
        n = e % 8
        o = []
        if n == 0:
            o = [f"s_add_u32 m0, s{sM0}, {(region//4)*16384}"]
            o += [f"s_add_u32 s{sXc}, s{sXc}, 128", f"s_cmp_eq_u32 s{sXc}, s{sXend}", f"s_cselect_b32 s{sXc}, s{sXb}, s{sXc}"] if e > 0 else ["s_nop 0"]
        return o + [(f"buffer_load_dwordx4 v{vXd+n}, {sr(sX,4)}, s{sXc} offen offset:{n*1024}{NT_X} lds", f"e{e}")]
    kpos = (e // 8) * 4 + e % 4 if e < 72 else e - 72
    o, ld = w_dma(region, kpos)
    return o + [(ld, f"e{e}")]
def x_reads(j, t):
    base = ((8 * j + 8) % 40) * 4096
    seg = base // 57344
    return [f"ds_read_b128 {xreg(8*j + 2*t + h)}, v{XR + seg*2 + h} offset:{base - seg*57344 + t*2048}" for h in range(2)]
def wregion0(ks):
    if ks >= 36: return ks - 36
    return (8 * (ks // 4) + 4 + ks % 4 + 8) % 40
def put_elems(A, vm, es):
    for e in es:
        for ins in elem_dma(e):
            if isinstance(ins, tuple): vm.issue(ins[1]); ins = ins[0]
            A(ins)

def gate_queue():
    a = GX + 24; b = GX + 25
    q = [f"v_mov_b32 v{a}, 0"]
    for i in range(3):
        for k in range(3): q.append(f"v_dot2c_f32_bf16 v{a}, v{GX+4*i+k}, v{GX+12+4*i+k}")
    pass
    for dpp in ("quad_perm:[1,0,3,2]", "quad_perm:[2,3,0,1]", "row_half_mirror", "row_mirror"):
        q += [f"v_add_f32_dpp v{a}, v{a}, v{a} {dpp} row_mask:0xf bank_mask:0xf"]
    q += [f"v_mov_b32 v{b}, v{a}", f"v_permlane16_swap_b32 v{a}, v{b}",
          f"v_add_f32 v{a}, v{a}, v{b}", f"v_mul_f32 v{a}, {f2u(-math.log2(math.e)):#x}, v{a}",
          f"v_exp_f32 v{a}, v{a}", f"v_add_f32 v{a}, 1.0, v{a}", f"v_rcp_f32 v{a}, v{a}",
          f"buffer_store_dword v{a}, v{GX+26}, {sr(sWS,4)}, 0 offen sc1"]
    return q
def body0(A, vm):
    lg = Counter(15)
    stamp(A, 1)
    if common.OPT.get("padmin"):
        A(f"s_lshl_b32 s0, s2, 2"); A(f"s_add_u32 s0, s0, {WS_FL + 4096}")
        A(f"buffer_store_dword v253, v{vFlagOff}, {sr(sWS,4)}, s0 offen sc1"); vm.issue("pad")
    E0 = common.OPT.get("e0", 24)
    put_elems(A, vm, range(12, E0))
    A(f"s_waitcnt vmcnt({vm.need('e7')})")
    A("s_barrier")
    stamp(A, 2)
    for ins in tr_reads(0, wregion0(0)) + sum((x_reads(0, t) for t in range(4)), []):
        A(ins); lg.issue("k0")
    for ins in tr_reads(1, wregion0(1)):
        A(ins); lg.issue("k1")
    pinned = [[[] for _ in range(4)] for _ in range(36)]
    pre = [[] for _ in range(36)]
    e = E0
    elast = 72 + LEAD - 1
    for ks in range(36):
        pre[ks].append(lambda ks=ks: f"s_waitcnt lgkmcnt({lg.need(f'k{ks}')})")
        j = (ks + 2) // 4
        if ks % 4 == 2:
            last = 8 * j + 7 if j < 9 else elast
            if common.OPT.get("fine"):
                pinned[ks][0] += ["s_memtime s[0:1]", "s_waitcnt lgkmcnt(0)", f"v_writelane_b32 v255, s0, {30+2*j}"]
            pinned[ks][0] += [lambda last=last: f"s_waitcnt vmcnt({vm.need(f'e{last}')})", "s_barrier"]
            if common.OPT.get("fine"):
                pinned[ks][0] += ["s_memtime s[0:1]", "s_waitcnt lgkmcnt(0)", f"v_writelane_b32 v255, s0, {31+2*j}"]
        if ks % 4 >= 2 and j < 9:
            s0 = 2 * (ks % 4 - 2)
            xs = x_reads(j, s0) + x_reads(j, s0 + 1)
            for r in range(4): pinned[ks][r // 2].append((xs[r], f"k{4*j}"))
        for r, ins in enumerate(tr_reads((ks + 2) % 36, wregion0(ks + 2))):
            pinned[ks][2 + r // 2 if (ks % 4 >= 2 and j < 9) else r].append((ins, f"k{ks+2}"))
        for m in (1, 3):
            if e <= elast:
                assert e < 40 or e <= 40 + 8 * (j - 1) + 3
                if e == 72:
                    assert m == 1
                    sw = switch_ops()
                    pinned[ks-1][3] += sw[0][:2]; pinned[ks][0] += sw[0][2:] + sw[1][:2]; pinned[ks][2] += sw[2]; pinned[ks+1][0] += sw[1][2:]
                    for i, grp in enumerate(next_ops()): pinned[ks+1+i][2] += grp
                pinned[ks][m] += elem_dma(e); e += 1
                kl = ks
    assert e == elast + 1 and kl <= 33, (e, kl)
    tw = touch_w()
    pinned[kl+1][0] += tw[0]; pinned[kl+1][1] += tw[1]
    if common.OPT.get("pref2"):
        pinned[kl+1][2] += [f"s_getpc_b64 {sr(sX,2)}", "L_pc2:", f"s_mov_b32 s{sX+2}, L_jobtab-L_pc2"]
        pinned[kl+1][3] += [f"buffer_load_dword v{vDummy}, v{GX+39}, {sr(sX,4)}, 0 offen"]
    pinned[21][2] += [(f"buffer_load_dword v{GX+34}, off, {sr(sDB,4)}, 0 sc1", "ini")]
    pinned[35][1] += [f"v_cmp_eq_u32 vcc, 0, v{GX+34}"]
    pinned[35][2] += ["s_cbranch_vccnz L_inispin", "L_iniok:"]
    for i in range(3):
        pinned[8 + 4 * i][2] += [(f"global_load_dwordx3 {vr(GX+4*i,3)}, v{GX+36}, {sr(sX,2)} offset:{384*i}", "g")]
        pinned[9 + 4 * i][2] += [(f"global_load_dwordx3 {vr(GX+12+4*i,3)}, v{GX+35}, {sr(sLink,2)} offset:{384*i}", "g")]
    pinned[22][3] += [lambda: f"s_waitcnt vmcnt({vm.need('g')})"]
    emit_stream(A, 0, pinned, pre, gate_queue(), 23 * 4, vm, lg, qend=34 * 4)

def setup_sub(A):
    t = sT
    A(f"""
L_setup:
    s_mov_b64 {sr(sWn,2)}, {sr(sFb,2)}
    s_mov_b32 s{sWn+2}, {WG_SIZE}
    s_movk_i32 s{t+1}, 9216
    s_lshl_b32 s{t+2}, s{t}, 7
    s_mov_b32 s{t+4}, 0
    s_cmp_lt_u32 s{t}, 72
    s_cbranch_scc1 L_setup_fin
    s_cmp_lt_u32 s{t}, 77
    s_cbranch_scc0 L_setup_kv
    s_mov_b64 {sr(sWn,2)}, {sr(S_WQ,2)}
    s_movk_i32 s{t+1}, 1152
    s_sub_u32 s{t+2}, s{t}, 72
    s_lshl_b32 s{t+2}, s{t+2}, 1
    s_lshr_b32 s{t+3}, s{sWave}, 1
    s_add_u32 s{t+2}, s{t+2}, s{t+3}
    s_lshl_b32 s{t+2}, s{t+2}, 7
    s_cmp_lt_u32 s{t+2}, 1152
    s_cselect_b32 s{sWn+2}, {576*1152}, 0
    s_branch L_setup_fin
L_setup_kv:
    s_cmp_eq_u32 s{t}, 77
    s_cbranch_scc0 L_setup_ret
    s_cmp_lt_u32 s{sWave}, 2
    s_cselect_b64 {sr(sWn,2)}, {sr(S_WK,2)}, {sr(S_WV,2)}
    s_sub_u32 s{sWn}, s{sWn}, 3072
    s_subb_u32 s{sWn+1}, s{sWn+1}, 0
    s_movk_i32 s{sWn+2}, {576*36 + 3072}
    s_movk_i32 s{t+1}, 36
    s_mov_b32 s{t+2}, 0
    s_movk_i32 s{t+4}, 3072
L_setup_fin:
    s_lshl_b32 s{nStep}, s{t+1}, 6
    s_lshl_b32 s{nD}, s{t+1}, 4
    s_sub_u32 s{nD}, s{nD}, 1024
    s_and_b32 s{t+3}, s{sWave}, 1
    s_mul_i32 s{t+3}, s{t+3}, s{t+1}
    s_lshl_b32 s{t+3}, s{t+3}, 3
    s_add_u32 s{nOff}, s{t+2}, s{t+3}
    s_mul_i32 s{t+3}, s{sRot}, s{nStep}
    s_add_u32 s{nStart}, s{nOff}, s{t+3}
    v_mad_u32_u24 v{vNext}, v{vR8}, s{t+1}, v{vC16}
    v_add_u32 v{vNext}, s{t+4}, v{vNext}
    s_setpc_b64 {sr(sLink2,2)}
L_setup_ret:
    s_mov_b64 {sr(sWn,2)}, {sr(S_WS,2)}
    s_mov_b32 s{sWn+2}, {WS_SIZE}
    v_mov_b32 v{vNext}, v{vLane16}
    s_setpc_b64 {sr(sLink2,2)}
""")

def special_sub(A):
    sc1 = " sc1"
    t = sT
    A(f"""
L_special:
    s_bfe_u32 s{t}, s{sTab}, 0x80010
    s_call_b64 {sr(sLink2,2)}, L_setup
    s_mov_b32 s{sH+2}, {WS_SIZE}
    s_and_b32 s{t}, s{sTab}, 0xff
    s_cmp_lt_u32 s{t}, 72
    s_cbranch_scc1 L_special_ret
    s_mov_b32 s{sH+2}, 0
    s_cmp_eq_u32 s{t}, 77
    s_cbranch_scc1 L_special_kv
    s_lshl_b32 s{t+1}, s{sTb}, 1
    s_lshr_b32 s{t+2}, s{sWave}, 1
    s_add_u32 s{t+1}, s{t+1}, s{t+2}
    s_mul_i32 s{t+1}, s{t+1}, {2*36*1024}
    s_sub_u32 s{t+2}, s{t}, 72
    s_lshl_b32 s{t+2}, s{t+2}, 13
    s_add_u32 s{t+1}, s{t+1}, s{t+2}
    s_and_b32 s{t+2}, s{sWave}, 1
    s_lshl_b32 s{t+2}, s{t+2}, 11
    s_add_u32 s{t+1}, s{t+1}, s{t+2}
    s_add_u32 s{t+1}, s{t+1}, {WS_Q}
    s_add_u32 s{t+2}, s{t+1}, {36*1024}
    s_mov_b32 s{t+3}, {f2u(QSCALE):#x}
    s_cmp_eq_u32 s{sPar}, 0
    s_cbranch_scc1 L_special_q0
""")
    for i in range(64): A(f"v_mul_f32 v{i}, s{t+3}, v{64+i}")
    A("s_branch L_special_q1")
    A("L_special_q0:")
    for i in range(64): A(f"v_mul_f32 v{i}, s{t+3}, v{i}")
    A("L_special_q1:")
    for i in range(32): A(f"v_cvt_pk_bf16_f32 v{64+i}, v{2*i}, v{2*i+1}")
    A(f"v_bfe_u32 v{vT}, v{vLane}, 4, 1")
    A(f"v_lshlrev_b32 v{vT}, 10, v{vT}")
    A(f"v_sub_u32 v{vT}, v{vHs}, v{vT}")
    for i in range(8):
        A(f"v_permlane16_swap_b32 v{64+4*i}, v{64+4*i+2}"); A(f"v_permlane16_swap_b32 v{64+4*i+1}, v{64+4*i+3}")
    for half in range(2):
        if half == 1:
            A(f"s_add_u32 s{t+1}, s{t+1}, 4096")
            A(f"s_add_u32 s{t+2}, s{t+2}, 4096")
            A(f"s_cmp_eq_u32 s{t}, 76")
            A("s_cbranch_scc1 L_special_ret")
        for tb in range(4):
            A(f"buffer_store_dwordx4 {vr(64 + tb*8 + half*4, 4)}, v{vT}, {sr(sWS,4)}, s{t+1+tb//2} offen offset:{(tb%2)*256}{sc1}")
    LB = 9 * 16384
    A(f"""
    s_branch L_special_ret
L_special_kv:
    s_barrier
    v_and_b32 v{vT}, 15, v{vLane}
    v_lshrrev_b32 v{vT+1}, 4, v{vLane}
    s_lshr_b32 s{t+2}, s{sWave}, 1
    s_mul_i32 s{t+5}, s{t+2}, {2*KV_VT}
    s_add_u32 s{t+5}, s{t+5}, {LB + KV_V}
    s_and_b32 s{t+3}, s{sWave}, 1
    s_cmp_eq_u32 s{t+3}, 0
    s_cbranch_scc1 L_special_kv0
    v_and_b32 v{vT}, 3, v{vLane}
    v_mul_u32_u24 v{vT}, {KV_VF}, v{vT}
    v_and_b32 v{vT+1}, 4, v{vLane}
    v_lshl_add_u32 v{vT}, v{vT+1}, 2, v{vT}
    v_cmp_eq_u32 vcc, 0, v{vT+1}
    v_add_u32 v{vT}, s{t+5}, v{vT}
    v_mov_b32 v65, 0x3f803f80
    v_cndmask_b32 v64, 0, v65, vcc
    v_add_u32 v{vT}, 576, v{vT}
    v_mov_b32 v{vT+1}, {LB + KV_K2 + 512}
    v_cmp_eq_u32 vcc, 8, v{vLane}
    v_mov_b32 v65, v64
    v_mov_b32 v66, v64
    v_cndmask_b32 v{vT}, v{vT}, v{vT+1}, vcc
    v_mov_b32 v67, v64
    s_mov_b64 exec, 0x1ff
    ds_write_b128 v{vT}, v[64:67]
    s_mov_b64 exec, -1
    s_branch L_special_kv1
L_special_kv0:
""")
    for i in range(32): A(f"v_cvt_pk_bf16_f32 v{64+i}, v{2*i}, v{2*i+1}")
    A(f"""
    s_lshl_b32 s{t+3}, s{t+2}, 11
    s_add_u32 s{t+3}, s{t+3}, {LB}
    s_lshl_b32 s{t+4}, s{t+2}, 3
    s_add_u32 s{t+4}, s{t+4}, {LB + KV_K2}    ; K2 base
    v_bfe_u32 v{vT+2}, v{vT}, 2, 1
    v_mul_u32_u24 v{vT+2}, 288, v{vT+2}
    v_and_b32 v{vT+3}, 3, v{vT}
    v_lshl_add_u32 v{vT+2}, v{vT+3}, 1, v{vT+2}
    v_and_b32 v{vT+3}, 8, v{vT}
    v_add3_u32 v{vT+2}, v{vT+2}, v{vT+3}, s{t+5}
    v_lshl_add_u32 v{vT+3}, v{vT+1}, 6, v{vT+2}   ; d = 4qd + r
    v_lshlrev_b32 v{vT}, 4, v{vT}
    v_add_u32 v{vT+5}, s{t+4}, v{vT}              ; K2: key*16
    v_lshrrev_b32 v{vT+4}, 1, v{vT+1}
    v_lshl_add_u32 v{vT}, v{vT+4}, 9, v{vT}
    v_and_b32 v{vT+4}, 1, v{vT+1}
    v_lshlrev_b32 v{vT+4}, 3, v{vT+4}
    v_add3_u32 v{vT+4}, v{vT+4}, v{vT}, s{t+3}
""")
    for tb in range(4):
        b0 = 64 + tb * 8
        vo = (tb // 2) * KV_VT + (tb % 2) * KV_VF
        A(f"ds_write_b64 v{vT+4}, {vr(b0,2)} offset:{(tb//2)*1024 + (tb%2)*256}")
        for i in range(4):
            op = "ds_write_b16" if i % 2 == 0 else "ds_write_b16_d16_hi"
            A(f"{op} v{vT+3}, v{b0+4+i//2} offset:{vo + i*16}")
    A("s_mov_b64 exec, 0xffff")
    for tb in range(4):
        b0 = 64 + tb * 8
        vo = (tb // 2) * KV_VT + (tb % 2) * KV_VF
        A(f"ds_write_b32 v{vT+5}, v{b0+2} offset:{(tb//2)*4 + (tb%2)*256}")
        for i in range(2):
            op = "ds_write_b16" if i % 2 == 0 else "ds_write_b16_d16_hi"
            A(f"{op} v{vT+2}, v{b0+6} offset:{vo + (16+i)*16}")
    A(f"""
    s_mov_b64 exec, -1
L_special_kv1:
    s_lshl_b32 s{t+2}, s{sWave}, 10
    v_add_u32 v{vT}, s{t+2}, v{vLane16}
    v_add_u32 v{vT+1}, {LB}, v{vT}
    v_cmp_gt_u32 vcc, {KV_GS - 8192}, v{vT}
    v_mov_b32 v{vT+2}, 0x40000000
    s_mul_i32 s{t+1}, s{sTb}, {KV_GS}
    v_cndmask_b32 v{vT+2}, v{vT+2}, v{vT}, vcc
    s_add_u32 s{t+1}, s{t+1}, {WS_KV}
    s_add_u32 s{t+2}, s{t+1}, 4096
    s_add_u32 s{t+3}, s{t+1}, 8192
    s_waitcnt lgkmcnt(0)
    s_barrier
    ds_read_b128 v[64:67], v{vT+1}
    ds_read_b128 v[68:71], v{vT+1} offset:4096
    ds_read_b128 v[72:75], v{vT+1} offset:8192
    s_waitcnt lgkmcnt(0)
    buffer_store_dwordx4 v[64:67], v{vT}, {sr(sWS,4)}, s{t+1} offen{sc1}
    buffer_store_dwordx4 v[68:71], v{vT}, {sr(sWS,4)}, s{t+2} offen{sc1}
    buffer_store_dwordx4 v[72:75], v{vT+2}, {sr(sWS,4)}, s{t+3} offen{sc1}
L_special_ret:
    s_nop 1
    s_setpc_b64 {sr(sLink,2)}
""")

def spin(A, soff, name, back):
    A(f"""
L_{name}:
    s_mov_b32 s{sT+5}, 0x40000
L_{name}_l:
    {poll_ld(soff)}
    s_sub_u32 s{sT+5}, s{sT+5}, 1
    s_cbranch_scc1 {back}
    s_waitcnt vmcnt(0)
""")
    A.many(flag_min())
    A(f"""
    v_cmp_eq_u32 vcc, 0, v{vPoll}
    s_cbranch_vccz {back}
    s_sleep 8
    s_branch L_{name}_l
""")

def phase1(A):
    t = sT
    stamp(A, 0)
    pref = "" if common.OPT.get("nopref") else f"""
    s_mov_b64 {sr(sH,2)}, {sr(sLink,2)}
    s_mov_b32 s{sH+2}, L_jobtab-L_pc1
    s_mov_b32 s{sH+3}, {SRD3}
    v_lshrrev_b32 v2, 4, v0
    v_and_b32 v3, 15, v0
    v_lshlrev_b32 v2, 7, v2
    v_lshl_add_u32 v2, v3, 28, v2
    s_lshr_b32 s{t+1}, s2, 3
    s_lshl_b32 s{t+1}, s{t+1}, 11
    buffer_load_dword v4, v2, {sr(sH,4)}, s{t+1} offen
"""
    A(f"""
    s_cmp_ge_u32 s2, 256
    s_cbranch_scc1 L_end
    s_load_dwordx16 s[4:19], s[0:1], 0
    s_load_dwordx8 s[20:27], s[0:1], 64
    s_load_dwordx2 s[28:29], s[0:1], 96
    s_getpc_b64 {sr(sLink,2)}
L_pc1:
    s_bfe_u32 s{sXq}, s2, 0x20001
    s_lshr_b32 s{sQi}, s2, 6
    s_lshl_b32 s{t}, s{sXq}, 2
    s_add_u32 s{t}, s{t}, s{sQi}            ; jg
    s_lshl_b32 s{t+1}, s{t}, 3
    s_add_u32 s{t+1}, s{t+1}, L_jobtab-L_pc1
    s_load_dwordx2 {sr(sTab,2)}, {sr(sLink,2)}, s{t+1}
    {pref}
    v_lshrrev_b32 v1, 6, v0
    v_and_b32 v{vLane}, 63, v0
    v_readfirstlane_b32 s{sWave}, v1
    v_lshlrev_b32 v{vLane16}, 4, v{vLane}
    s_and_b32 s{t}, s{t}, 11
    s_cmp_eq_u32 s{t}, 3
    s_cselect_b32 s{sSpecial}, 1, 0
    s_and_b32 s{t}, s2, 1
    s_lshl_b32 s{t}, s{t}, 3
    s_bfe_u32 s{t+1}, s2, 0x30003
    s_add_u32 s{sTb}, s{t}, s{t+1}
    s_lshl_b32 s{t}, s{sQi}, 1
    s_add_u32 s{t}, s{t}, s{t+1}
    s_cmp_ge_u32 s{t}, 9
    s_cselect_b32 s{t+1}, 9, 0
    s_sub_u32 s{t+5}, s{t}, s{t+1}
    {"s_mov_b32 s%d, 0" % (t+5) if common.OPT.get("norot") else ""}
    s_sub_u32 s{sRot}, s{t+5}, 1
    v_lshrrev_b32 v{vR8}, 3, v{vLane}
    v_and_b32 v1, 7, v{vLane}
    s_lshl_b32 s{sM0}, s{sWave}, 12
    s_lshr_b32 s{t+2}, s{sWave}, 1
    s_and_b32 s{t+3}, s{sWave}, 1
    v_and_b32 v2, 2, v{vR8}
    v_xor_b32 v2, v1, v2
    s_lshl_b32 s{t+4}, s{t+3}, 2
    v_xor_b32 v2, s{t+4}, v2
    v_lshlrev_b32 v{vC16}, 4, v2
    v_lshrrev_b32 v2, 1, v{vR8}
    v_xor_b32 v2, v1, v2
    v_lshlrev_b32 v2, 4, v2
    v_mul_u32_u24 v3, 1152, v{vR8}
    v_add_u32 v{vXd}, v2, v3
    v_xor_b32 v2, 64, v{vXd}
    v_add_u32 v{vXd+1}, {8*1152-1024}, v2
    v_add_u32 v{vXd+2}, {2*(8*1152-1024)}, v{vXd}
    v_add_u32 v{vXd+3}, {3*(8*1152-1024)}, v2
    s_lshl_b32 s{t+4}, s{sTb}, 2
    s_add_u32 s{t+4}, s{t+4}, s{sWave}
    s_mul_i32 s{sXb}, s{t+4}, {32*1152}
    s_lshl_b32 s{t+5}, s{t+5}, 7
    s_add_u32 s{sXc}, s{sXb}, s{t+5}
    s_mov_b32 s{sX+2}, {2048*1152}
    s_mov_b32 s{sX+3}, {SRD3}
    s_mov_b32 s{sW+3}, s{sX+3}
    s_mov_b32 s{sW+2}, {WG_SIZE}
    s_movk_i32 s{t+4}, 9216
    v_mad_u32_u24 v{vDma}, v{vR8}, s{t+4}, v{vC16}
    s_mov_b32 s{nD}, {16*9216-1024}
    s_mov_b32 s{sStep}, {64*9216}
    v_add_u32 v{vDma+1}, s{nD}, v{vDma}
    s_mul_i32 s{sRowOff}, s{t+3}, {8*9216}
    v_add_u32 v{vDma+2}, s{nD}, v{vDma+1}
    s_mul_i32 s{nStart}, s{sRot}, s{sStep}
    v_add_u32 v{vDma+3}, s{nD}, v{vDma+2}
    s_add_u32 s{sXend}, s{sXb}, 1152
    s_waitcnt lgkmcnt(0)
    s_mov_b64 {sr(sX,2)}, {sr(S_X,2)}
""")
    vm = Counter(63)
    if common.OPT.get("fine"): stamp(A, 27)
    put_elems(A, vm, range(0, 4))
    A(f"""
    s_cmp_lt_u32 s{sWave}, 2
    s_cselect_b64 {sr(sFb,2)}, {sr(S_WG,2)}, {sr(S_WU,2)}
    s_cselect_b64 {sr(sW,2)}, {sr(S_WG,2)}, {sr(S_WU,2)}
    s_bfe_u32 s{t}, s{sTab}, 0x80008
    s_lshl_b32 s{t+1}, s{t}, 7
    s_add_u32 s{sBase}, s{t+1}, s{sRowOff}
    s_add_u32 s{sOff}, s{sBase}, s{nStart}
    v_mov_b32 v{vF}, v{vDma}
    s_cmp_eq_u32 s{sSpecial}, 0
    s_cbranch_scc0 L_sp_first
L_sp_first_ret:
""")
    put_elems(A, vm, range(4, 12))
    if common.OPT.get("fine"): stamp(A, 28)
    A(f"""
    s_mul_i32 s{sEnd}, s{sStep}, 9
    s_add_u32 s{sEnd}, s{sEnd}, s{sBase}
    s_cmp_eq_u32 s{sSpecial}, 0
    s_cbranch_scc0 L_sp_skip
    s_bfe_u32 s{t}, s{sTab}, 0x80010
    s_lshl_b32 s{t+1}, s{t}, 7
    s_add_u32 s{nOff}, s{t+1}, s{sRowOff}
    s_add_u32 s{nStart}, s{nStart}, s{nOff}
    s_mov_b32 s{nStep}, s{sStep}
    s_mov_b64 {sr(sWn,2)}, {sr(sFb,2)}
    s_mov_b32 s{sWn+2}, s{sW+2}
    v_mov_b32 v{vNext}, v{vF}
L_sp_skip:
""")
    W = sPar
    A(f"""
    s_mov_b64 {sr(sWS,2)}, {sr(S_WS,2)}
    s_mov_b32 s{sWS+2}, {WS_SIZE}
    s_mov_b32 s{sWS+3}, {SRD3}
    s_mov_b64 {sr(sDB,2)}, {sr(S_DBG,2)}
    s_movk_i32 s{sDB+2}, 256
    s_mov_b32 s{sDB+3}, {SRD3}
    s_mov_b32 s{sOUT+2}, {2048*1152}
    s_mov_b32 s{sOUT+3}, {SRD3}
    s_mov_b64 {sr(sH,2)}, {sr(S_WS,2)}
    s_mov_b32 s{sH+2}, {WS_SIZE}
    s_mov_b32 s{sH+3}, {SRD3}
    s_mov_b64 {sr(sPD,2)}, {sr(S_WS,2)}
    s_mov_b32 s{sPD+3}, {SRD3}
    s_mov_b32 s{sP+3}, {SRD3}
    s_mov_b32 s{sC2}, {f2u(GC2):#x}
    v_mov_b32 v{vC1}, {f2u(GC1):#x}
    s_mov_b32 s{sWn+3}, {SRD3}
    s_lshl_b32 s{W}, s2, 2
    s_add_u32 s{W}, s{W}, s{sWave}
    s_lshr_b32 s{t+2}, s{sWave}, 1
    s_and_b32 s{t+3}, s{sWave}, 1
    s_lshl_b32 s{t}, s{sTb}, 1
    s_add_u32 s{t}, s{t}, s{t+2}
    s_mul_i32 s{sHbase}, s{t}, {HO_G}
    s_lshl_b32 s{t}, s{t+3}, 12
    s_add_u32 s{sHbase}, s{sHbase}, s{t}
    v_and_b32 v32, 3, v{vLane}              ; c
    v_lshrrev_b32 v33, 1, v32
    v_and_b32 v32, 1, v32
    v_lshl_add_u32 v32, v32, 1, v33         ; perm(c)
    v_lshlrev_b32 v32, 3, v32
    v_bfe_u32 v33, v{vLane}, 2, 2           ; r4
    v_lshl_add_u32 v32, v33, 7, v32
    v_bfe_u32 v34, v{vLane}, 4, 1
    v_lshrrev_b32 v35, 5, v{vLane}          ; hh
    v_lshl_add_u32 v36, v34, 5, v32
    v_lshl_add_u32 v36, v35, 10, v36
    s_add_u32 s{t}, s{sM0}, {9*16384}
    v_add_u32 v{vPtr}, s{t}, v36
    v_and_b32 v32, 3, v{vLane}
    v_lshlrev_b32 v32, 3, v32
    v_lshl_add_u32 v32, v33, 7, v32         ; r4*128 + c*8
    v_lshrrev_b32 v33, 1, v33
    v_lshl_add_u32 v33, v34, 1, v33
    s_lshl_b32 s{t}, s{t+3}, 1
    v_xor_b32 v33, s{t}, v33
    v_lshl_add_u32 v32, v33, 5, v32
    v_lshl_add_u32 v32, v34, 12, v32
    v_lshl_add_u32 v{vTR}, v35, 10, v32
    v_xor_b32 v{vTR+1}, 32, v{vTR}
    v_add_u32 v{vTR+2}, {12*4096}, v{vTR}
    v_add_u32 v{vTR+3}, {12*4096}, v{vTR+1}
    v_add_u32 v{vTR+4}, {24*4096}, v{vTR}
    v_add_u32 v{vTR+5}, {24*4096}, v{vTR+1}
    v_and_b32 v37, 31, v{vLane}             ; n32
    v_and_b32 v38, 15, v{vLane}             ; n16
    v_bfe_u32 v33, v{vLane}, 1, 3
    v_lshrrev_b32 v39, 4, v{vLane}
    v_xor_b32 v33, v33, v39
    v_lshlrev_b32 v33, 4, v33
    v_lshl_add_u32 v32, v38, 7, v33
    s_lshl_b32 s{t}, s{t+2}, 13
    v_add_u32 v{XR}, s{t}, v32
    v_xor_b32 v{XR+1}, 64, v{XR}
    v_lshlrev_b32 v32, 4, v38
    v_lshl_add_u32 v32, v35, 9, v32
    v_lshl_add_u32 v{vHs}, v34, 11, v32
""")
    for seg in (1, 2):
        for h in range(2): A(f"v_add_u32 v{XR+seg*2+h}, {seg*57344}, v{XR+h}")
    A(f"""
    v_mul_u32_u24 v{vQa}, 1152, v37
    v_lshl_add_u32 v{vQa}, v35, 4, v{vQa}
    v_lshlrev_b32 v{vLane4}, 2, v{vLane}
    v_bfe_u32 v32, v{vLane}, 2, 1
    v_bfe_u32 v33, v{vLane}, 3, 1
    v_lshlrev_b32 v32, 3, v32
    v_lshl_add_u32 v32, v33, 2, v32
    v_and_b32 v33, 0x13, v{vLane}
    v_or_b32 v32, v32, v33
    v_mul_u32_u24 v33, 18, v35
    v_cmp_gt_u32 vcc, 18, v37
    v_add_u32 v32, v32, v33
    v_and_b32 v33, 27, v37
    v_cndmask_b32 v32, 37, v32, vcc
    v_cmp_ne_u32 vcc, 18, v33
    v_mul_u32_u24 v{GX+35}, 12, v37
    s_lshl_b32 s{t+5}, s{sTb}, 2
    s_add_u32 s{t+5}, s{t+5}, s{sXq}
    s_lshl_b32 s{t+5}, s{t+5}, 2
    s_add_u32 s{t+5}, s{t+5}, s{sQi}
    s_lshl_b32 s{t+5}, s{t+5}, 2
    s_add_u32 s{t+5}, s{t+5}, s{sWave}
    s_lshl_b32 s{t+5}, s{t+5}, 1
    v_cndmask_b32 v32, 36, v32, vcc
    v_lshlrev_b32 v{vAV}, 4, v32
    v_add_u32 v5, s{t+5}, v35               ; token
    v_mul_u32_u24 v6, 1152, v5
    v_add_u32 v{GX+36}, v6, v{GX+35}
    v_cmp_eq_u32 vcc, 0, v37
    v_lshlrev_b32 v5, 2, v5
    v_add_u32 v5, {WS_G}, v5
    v_mov_b32 v33, 0x40000000
    v_cndmask_b32 v{GX+26}, v33, v5, vcc
    v_cmp_eq_u32 vcc, 0, v0
    v_mov_b32 v{vOne}, 1
    s_mov_b32 s{sSkip}, 1
    v_cndmask_b32 v{vFlagOff}, v33, 0, vcc
    s_lshl_b32 s{t}, s{sTb}, 2
    s_add_u32 s{t}, s{t}, {F0}
    s_bfe_u32 s{t+1}, s{sTab}, 0x80008
    s_cmp_eq_u32 s{t+1}, 77
    s_cselect_b32 s{sPub}, s{t}, {FOOB}
    ; pack params: ks = W/3, a = W%3
    s_mul_i32 s{t}, s{W}, 21846
    s_lshr_b32 s{t}, s{t}, 16
    s_mul_i32 s{t+1}, s{t}, 3
    s_sub_u32 s{t+1}, s{W}, s{t+1}
    s_mul_i32 s{sPd0}, s{t+1}, {2*WP_T}
    s_mul_i32 s{t+2}, s{t}, 3072
    s_add_u32 s{sPd0}, s{sPd0}, s{t+2}
    s_add_u32 s{sPd0}, s{sPd0}, {WS_WP}
    s_add_u32 s{sPd1}, s{sPd0}, {WP_T}
    s_mov_b32 s{sPD+2}, 0
    s_mul_i32 s{t+1}, s{t+1}, 384
    v_and_b32 v32, 7, v{vLane}
    v_lshlrev_b32 v32, 4, v32
    s_movk_i32 s{t+4}, 1152
    v_mad_u32_u24 v{vPsrc}, v{vR8}, s{t+4}, v32
    s_mov_b64 {sr(sP,2)}, {sr(S_WD,2)}
    s_mov_b32 s{sP+2}, {4608*1152}
    s_mul_i32 s{sPs0}, s{t}, {16*1152}
    s_movk_i32 s{t+3}, {8*1152}
    s_cmp_lt_u32 s{t}, 288
    s_cbranch_scc1 L_pk_done
    s_mov_b64 {sr(sP,2)}, {sr(S_WO,2)}
    s_mov_b32 s{sP+2}, {576*1152}
    s_cmp_lt_u32 s{t}, 324
    s_cselect_b32 s{sP+2}, s{sP+2}, 0
    s_sub_u32 s{t+2}, s{t}, 288
    s_mul_i32 s{t+5}, s{t+2}, 57
    s_lshr_b32 s{t+5}, s{t+5}, 9            ; x = ks'/9
    s_sub_u32 s{t+2}, s{t+2}, s{t+5}        ; 8x + st
    s_mul_i32 s{sPs0}, s{t+2}, {18*1152}
    s_lshr_b32 s{t+2}, s{t+2}, 3
    s_cmp_eq_u32 s{t+2}, s{t+5}
    s_cbranch_scc1 L_pk_done
    s_mul_i32 s{sPs0}, s{t+5}, {144*1152}
    s_add_u32 s{sPs0}, s{sPs0}, {16*1152}
    s_mov_b32 s{t+3}, {72*1152}
    v_lshrrev_b32 v34, 1, v{vR8}
    v_mul_u32_u24 v34, 18, v34
    v_and_b32 v36, 1, v{vR8}
    v_add_u32 v34, v34, v36
    v_mad_u32_u24 v{vPsrc}, v34, s{t+4}, v32
L_pk_done:
    s_add_u32 s{sPs0}, s{sPs0}, s{t+1}
    s_add_u32 s{sPs1}, s{sPs0}, s{t+3}
    s_sub_u32 s{sPs1}, s{sPs1}, 1024
    s_mov_b64 {sr(sLink,2)}, {sr(S_GW,2)}
""")
    g64, head, nt = t, t + 1, t + 2
    A(f"""
    s_and_b32 s{t+3}, s{sXq}, 1
    s_lshl_b32 s{g64}, s{sTb}, 1
    s_add_u32 s{g64}, s{g64}, s{t+3}
    s_lshr_b32 s{t+3}, s{sXq}, 1            ; nhalf
    s_lshl_b32 s{head}, s{t+3}, 2
    s_add_u32 s{head}, s{head}, s{sQi}
    s_lshl_b32 s{head}, s{head}, 2
    s_add_u32 s{head}, s{head}, s{sWave}
    s_mul_i32 s{t+3}, s{t+3}, 3
    s_mul_i32 s{t+4}, s{sWave}, {KM}
    s_add_u32 s{t+4}, s{t+4}, {KH}
    s_cmp_eq_u32 s{sQi}, 3
    s_cselect_b32 s{nt}, s{sWave}, s{sQi}
    s_cselect_b32 s{t+4}, 0, s{t+4}
    s_add_u32 s{nt}, s{nt}, s{t+3}
    ; W side
    s_mul_i32 s{t+3}, s{nt}, {WP_T}
    s_add_u32 s{t+3}, s{t+3}, {WS_WP}
    s_mul_i32 s{t+5}, s{t+4}, 3072
    s_add_u32 s{t+5}, s{t+5}, s{t+3}
    s_add_u32 s{sWp}, s{S_WS}, s{t+5}
    s_addc_u32 s{sWp+1}, s{S_WS+1}, 0
    s_mul_i32 s{t+5}, s{sWave}, {9*3072}
    s_add_u32 s{t+5}, s{t+5}, s{t+3}
    s_add_u32 s{t+5}, s{t+5}, {288*3072}
    s_add_u32 s{sWo}, s{S_WS}, s{t+5}
    s_addc_u32 s{sWo+1}, s{S_WS+1}, 0
    ; h side
    s_mul_i32 s{t+3}, s{g64}, {HO_G}
    s_lshl_b32 s{t+5}, s{t+4}, 11
    s_add_u32 s{t+5}, s{t+5}, s{t+3}
    s_add_u32 s{sHp}, s{S_WS}, s{t+5}
    s_addc_u32 s{sHp+1}, s{S_WS+1}, 0
    s_mul_i32 s{t+5}, s{sWave}, {9*2048}
    s_add_u32 s{t+5}, s{t+5}, s{t+3}
    s_add_u32 s{t+5}, s{t+5}, {288*2048}
    s_add_u32 s{sHo}, s{S_WS}, s{t+5}
    s_addc_u32 s{sHo+1}, s{S_WS+1}, 0
    s_lshr_b32 s{t+5}, s{head}, 3
    s_mul_i32 s{t+5}, s{t+5}, {9*2048}
    s_add_u32 s{t+3}, s{t+3}, s{t+5}
    s_add_u32 s{t+3}, s{t+3}, {288*2048}
    s_and_b32 s{t+5}, s{head}, 7
    s_lshl_b32 s{sO1}, s{t+5}, 11
    s_add_u32 s{sO1}, s{sO1}, s{t+3}
    s_lshl_b32 s{sO2}, s{t+5}, 8
    s_add_u32 s{sO2}, s{sO2}, s{t+3}
    s_add_u32 s{sO2}, s{sO2}, {8*2048}
    ; q / g offsets
    s_mul_i32 s{sQoff}, s{g64}, {2*36*1024}
    s_mul_i32 s{t+5}, s{head}, 18
    s_lshr_b32 s{t+5}, s{t+5}, 3
    s_lshl_b32 s{t+5}, s{t+5}, 9
    s_add_u32 s{sQoff}, s{sQoff}, s{t+5}
    s_add_u32 s{sQoff}, s{sQoff}, {WS_Q}
    s_lshl_b32 s{sGoff}, s{g64}, 8
    s_add_u32 s{sGoff}, s{sGoff}, {WS_G}
    s_mul_i32 s{sPart}, s{g64}, 6
    s_add_u32 s{sPart}, s{sPart}, s{nt}
    s_mul_i32 s{sPart}, s{sPart}, {PART_T}
    s_add_u32 s{sPart}, s{sPart}, {WS_PART}
    s_mul_i32 s{sOutOff}, s{g64}, {64*1152}
    s_mul_i32 s{t+5}, s{nt}, 192
    s_add_u32 s{sOutOff}, s{sOutOff}, s{t+5}
    s_lshl_b32 s{t+5}, s{sWave}, 5
    s_add_u32 s{sOutOff}, s{sOutOff}, s{t+5}
""")
    A(f"""
    s_bfe_u32 s{t}, s2, 0x30003             ; a
    s_and_b32 s{t+1}, s{sWave}, 1
    s_mul_i32 s{t+2}, s{t}, 72
    s_mul_i32 s{t+3}, s{t+1}, 28
    s_add_u32 s{t+2}, s{t+2}, s{t+3}
    s_mul_i32 s{sTch}, s{t+2}, 9216
    v_mul_u32_u24 v32, 9216, v{vLane}
    v_cmp_gt_u32 vcc, 36, v{vLane}
    s_lshl_b32 s{t+2}, s{sQi}, 1
    s_sub_u32 s{t+2}, s{t+2}, 1
    v_cndmask_b32 v{vTW}, v33, v32, vcc
    s_cselect_b32 s{t+2}, 8, s{t+2}         ; (8+2b) mod 9
    s_lshl_b32 s{t+2}, s{t+2}, 3
    s_add_u32 s{t+2}, s{t+2}, s{t}
    s_lshl_b32 s{t+2}, s{t+2}, 1
    s_sub_u32 s{t+2}, s{t+2}, s{t+1}
    s_mul_i32 s{t+2}, s{t+2}, {4*9216}      ; (64c + 8a - 4(w&1)) rows
    v_cmp_gt_u32 vcc, 4, v{vLane}
    v_add_u32 v32, s{t+2}, v32
    s_sub_u32 s{t+2}, s{t}, 1
    v_cndmask_b32 v{GX+38}, v33, v32, vcc
    s_cselect_b32 s{t+2}, 8, s{t+2}         ; (a+8) mod 9
    s_lshl_b32 s{t+2}, s{t+2}, 7
    s_lshl_b32 s{t+3}, s{sTb}, 2
    s_add_u32 s{t+3}, s{t+3}, s{sQi}
    s_lshl_b32 s{t+3}, s{t+3}, 2
    s_add_u32 s{t+3}, s{t+3}, s{sWave}
    s_mul_i32 s{t+3}, s{t+3}, {8*1152}
    s_add_u32 s{t+2}, s{t+2}, s{t+3}
    v_mul_u32_u24 v32, 1152, v{vLane}
    v_cmp_gt_u32 vcc, 8, v{vLane}
    v_add_u32 v32, s{t+2}, v32
    v_and_b32 v34, 3, v{vLane}
    v_cndmask_b32 v{GX+37}, v33, v32, vcc
    v_lshrrev_b32 v32, 4, v0
    v_and_b32 v34, 15, v0
    v_lshlrev_b32 v32, 7, v32
    v_lshl_add_u32 v32, v34, 28, v32
    s_lshr_b32 s{t+1}, s2, 3
    s_lshl_b32 s{t+1}, s{t+1}, 11
    v_add_u32 v{GX+39}, s{t+1}, v32
    s_cmp_eq_u32 s{W}, 771
    s_cbranch_scc1 L_flaginit
L_flaginit_ret:
""")
    if common.OPT.get("fine"): stamp(A, 29)
    body0(A, vm)
    A(f"""
L_loop:
    s_cmp_eq_u32 s{sSpecial}, 0
    s_cbranch_scc0 L_sp_odd
L_odd:
""")
    body(A, "o")
    A(f"""
    s_cmp_eq_u32 s{sP+2}, 1
    s_cbranch_scc0 L_first_odd
L_last:
""")
    return body(A, "l")

def phase1_tail(A):
    A(f"""
L_first_odd:
    s_cmp_eq_u32 s{sSpecial}, 0
    s_cbranch_scc0 L_sp_even
L_even:
""")
    body(A, "e")
    A(f"""
    s_cmp_eq_u32 s{sSpecial}, 0
    s_cbranch_scc1 L_odd
    s_mov_b32 s{sPar}, 0
    s_call_b64 {sr(sLink,2)}, L_special
    s_branch L_last
L_sp_odd:
    s_mov_b32 s{sPar}, 0
    s_call_b64 {sr(sLink,2)}, L_special
    s_branch L_odd
L_sp_even:
    s_mov_b32 s{sPar}, 1
    s_call_b64 {sr(sLink,2)}, L_special
    s_branch L_even
""")
    A(f"""
L_sp_first:
    s_call_b64 {sr(sLink2,2)}, L_setup
""")
    for g in switch_ops(): A.many(g)
    A(f"""
    s_bfe_u32 s{sT}, s{sTab}, 0x80010
    s_call_b64 {sr(sLink2,2)}, L_setup
    s_add_u32 s{sXend}, s{sXb}, 1152
    s_branch L_sp_first_ret
""")
    setup_sub(A)
    special_sub(A)
    spin(A, f"s{sPollOff}", "kvspin", "L_kvok")
    A(f"""
L_flaginit:
    v_cmp_lt_u32 vcc, 3, v{vLane}
    v_mov_b32 v12, 0
    v_mov_b32 v13, 0
    v_cndmask_b32 v8, 0, 1, vcc
    v_mov_b32 v14, 0
    v_mov_b32 v15, 0
    v_mov_b32 v9, v8
    v_mov_b32 v10, v8
    v_mov_b32 v11, v8
    s_mov_b32 s{sT}, {WS_FL}
    buffer_store_dwordx4 v[8:11], v{vLane16}, {sr(sWS,4)}, s{sT} offen sc1
    buffer_store_dwordx4 v[12:15], v{vLane16}, {sr(sWS,4)}, s{sT} offen offset:1024 sc1
    buffer_store_dwordx4 v[12:15], v{vLane16}, {sr(sWS,4)}, s{sT} offen offset:2048 sc1
    v_mul_u32_u24 v16, {PART_T}, v{vLane}
    s_mov_b32 s{sT}, {WS_PART + 24576}
    buffer_store_dword v12, v16, {sr(sWS,4)}, s{sT} offen sc1
    s_add_u32 s{sT}, s{sT}, {64*PART_T}
    buffer_store_dword v12, v16, {sr(sWS,4)}, s{sT} offen sc1
    s_add_u32 s{sT}, s{sT}, {64*PART_T}
    buffer_store_dword v12, v16, {sr(sWS,4)}, s{sT} offen sc1
    s_waitcnt vmcnt(0)
    buffer_store_dword v{vOne}, off, {sr(sDB,4)}, 0 sc1
    s_branch L_flaginit_ret
L_inispin:
    s_mov_b32 s{sT+5}, 0x40000
L_inispin_l:
    buffer_load_dword v{GX+34}, off, {sr(sDB,4)}, 0 sc1
    s_sub_u32 s{sT+5}, s{sT+5}, 1
    s_cbranch_scc1 L_iniok
    s_waitcnt vmcnt(0)
    v_cmp_eq_u32 vcc, 0, v{GX+34}
    s_cbranch_vccz L_iniok
    s_sleep 8
    s_branch L_inispin_l
""")

def jobtab(A):
    tab, _, _ = job_table()
    A(".p2align 3")
    A(".type L_jobtab,@object")
    A("L_jobtab:")
    for b in tab:
        A(".byte " + ", ".join(str(x) for x in b))
```

```python
from common import *
import common
import phase1 as p1
from phase1 import (sWS, sDB, sWave, sQi, sT, sM0, sPub, sPollOff, sLink, sTab, sHoff, sHbase, sW, sOff, sStep,
                    sHp, sWp, sHo, sWo, sO1, sO2, sQoff, sGoff, sOUT, sPart, sOutOff,
                    vLane, vLane16, vLane4, vFlagOff, vPoll, vOne, vT, vQa, vAV, vDma, LEAD,
                    F0, F2, F4, FOOB, poll_ld, flag_min)
GACC = 0
Q1 = [96, 100]; Q2 = [[104, 106], [108, 110]]
S = [112, 128]; P = [144, 152]; O = [160, 176]
K1 = [192, 196]; V = [200, 208]; K2 = [216, 220]
AK, AK2, AV = 224, 225, vAV
vO = [226, 227, 228, 229]
vG = [231, 232]
vQt = [236, 237]
vZ = 238
ZP = 246
WOA = 140
sIt, sNA = 36, 37
vPf = 251
vW = [235, 234, 238]

def gld(dst, base, byteoff):
    j = byteoff // 8192
    return f"global_load_dwordx4 {dst}, v{vO[j]}, {sr(base,2)} offset:{byteoff - j*8192 - 4096} sc1"
def stage(s): return 20 * s
def gacc(n, c): return vr(GACC + (c * 3 + n) * 16, 16)
def g_mfma(st, n, c):
    return mfma16(gacc(n, c), ar(stage(st) + 8 + 4 * n, 4), ar(stage(st) + 4 * c, 4), gacc(n, c))
def ld_h(st, ks, i): return gld(ar(stage(st) + 4 * i, 4), sHp, ks * 2048 + i * 1024)
def ld_w(st, ks, n): return gld(ar(stage(st) + 8 + 4 * n, 4), sWp, ks * 3072 + n * 1024)
def wo_reg(ks, n): return ar(WOA + 12 * ks + 4 * n, 4)
def ld_wo(ks, n): return gld(wo_reg(ks, n), sWo, ks * 3072 + n * 1024)

def pre_lds(k): return [ld_h(4+k, k, 0), ld_h(4+k, k, 1)] + [ld_w(4+k, k, n) for n in range(3)]
def off_k1(t): return (t >> 2) * KV_GS + (t & 3) * 1024
def off_v(t, f): return (t >> 2) * KV_GS + KV_V + (t & 3) * KV_VT + f * KV_VF
def off_k2(g): return g * KV_GS + KV_K2

def qk8(u):
    c, t = u & 1, u >> 1
    return mfma8(vr(S[c], 16), vr(K2[(t // 4) % 2] + 2 * ((t % 4) // 2), 2), vr(Q2[c][t % 2], 2), "0")
def qk16(u):
    c, t = u & 1, u >> 1
    return mfma16(vr(S[c], 16), vr(K1[t % 2], 4), vr(Q1[c], 4), vr(S[c], 16))
def pv(u, f):
    c, t = u & 1, u >> 1
    return mfma16(vr(O[c], 16), vr(V[t % 2] + 4 * f, 4), vr(P[c] + 4 * f, 4), vr(O[c], 16))
def zero16(r): return mfma8(vr(r, 16), vr(ZP, 2), vr(ZP, 2), "0")

def kv_dma(r):
    o, ld = p1.kv_dma(r)
    return o + [ld]
KVT = 40
WOT = 0
PRT = 1

def att_body(A, kind):
    ops = []
    def E(u, i): return f"v_exp_f32 v{S[u&1]+i}, v{S[u&1]+i}"
    def Cv(u, i): return f"v_cvt_pk_bf16_f32 v{P[u&1]+i}, v{S[u&1]+2*i}, v{S[u&1]+2*i+1}"
    kvr = list(range(KVT, 40))
    wol = [x for k in range(PRT, 3) for x in pre_lds(k)] + [ld_wo(k, n) for k in range(WOT, 9) for n in range(3)]
    nw = len(wol)
    for u in range(16):
        c, t = u & 1, u >> 1
        kd = kind if kind != 'LM' else ('L' if t < 4 else 'M')
        st = t % 4
        valu = [[E(u,0), E(u,1), Cv(u-1,7)], [E(u,2), E(u,3), E(u,4), Cv(u,0)], [E(u,5), E(u,6), Cv(u,1)],
                [E(u,7), E(u,8), Cv(u,2), Cv(u,3)], [E(u,9), E(u,10), E(u,11)], [E(u,12), E(u,13), Cv(u,4)],
                [E(u,14), E(u,15), Cv(u,5), Cv(u,6)]]
        G = [g_mfma(st, n, c) for n in range(3)] if kd == 'M' else [None] * 3
        M = [G[0], qk8(u + 1), pv(u - 1, 1), qk16(u + 1), G[1], pv(u, 0), G[2]]
        mem = [[] for _ in range(7)]
        rv0 = f"ds_read_b128 {vr(V[(t+1)%2],4)}, v{AV} offset:{off_v(t+1,0)}"
        rv1 = f"ds_read_b128 {vr(V[(t+1)%2]+4,4)}, v{AV} offset:{off_v(t+1,1)}"
        rk1 = f"ds_read_b128 {vr(K1[t%2],4)}, v{AK} offset:{off_k1(t+2)}"
        rk2 = [f"ds_read_b128 {vr(K2[(t//4+1)%2],4)}, v{AK2} offset:{off_k2(t//4+1)}"] if t % 4 == 1 else []
        if kd == 'M':
            if c == 0:
                mem[0] += [rv0]; mem[2] += [rv1]; mem[5] += [rk1]; mem[4] += rk2
            else:
                mem[0] += [ld_h(st, t, 0)]; mem[2] += [ld_w(st, t, 0)]; mem[5] += [ld_w(st, t, 1)]
                mem[6] += [ld_w(st, t, 2), ld_h(st, t, 1), "s_waitcnt vmcnt(15) lgkmcnt(0)"]
                if kind == 'LM' and t == 7: mem[6] += [poll_ld(f"s{sPollOff}")]
        else:
            if c == 0:
                mem[1] += [rv0]; mem[2] += [rv1]; mem[3] += [rk1]; mem[5] += rk2
            if kd == 'L':
                if c == 0: mem[5] += [ld_h(st, t, 0)]
                else:
                    mem[1] += [ld_w(st, t, 0)]; mem[2] += [ld_w(st, t, 1)]; mem[3] += [ld_w(st, t, 2)]; mem[5] += [ld_h(st, t, 1)]
            else:
                for g in ((5,) if c == 0 else (2, 1, 3, 5)):
                    if wol: mem[g] += [wol.pop(0)]
            if c == 1:
                mem[5] += ["s_waitcnt vmcnt(15) lgkmcnt(0)" if (kd == 'L' and t == 3) else "s_waitcnt lgkmcnt(0)"]
        if u == 15:
            valu[3] = valu[3] + [f"v_add_u32 v{AK}, {2*KV_GS}, v{AK}", f"v_add_u32 v{AV}, {2*KV_GS}, v{AV}", f"v_add_u32 v{AK2}, {2*KV_GS}, v{AK2}"]
        for g in range(7):
            if M[g]: ops.append(M[g])
            ops += mem[g] + valu[g]
    if kind == 'A': assert not kvr and not wol, (kvr, wol)
    if kind == 'M':
        O_ = common.OPT
        if O_.get("mnold"): ops = [x for x in ops if not x.startswith("global_load")]
        if O_.get("mnog"): ops = [x for x in ops if not (x.startswith("v_mfma") and ", a[" in x)]
        if O_.get("mnoexp"): ops = [("v_nop\n s_nop 0" if x.startswith("v_exp") else x) for x in ops]
        if O_.get("mnoatt"): ops = [x for x in ops if not (x.startswith("v_mfma") and ", a[" not in x)]
        if O_.get("mnosc1"): ops = [x.replace(" sc1", "") for x in ops]
        if O_.get("mnt"): ops = [x.replace(" sc1", " sc1 nt") for x in ops]
        if O_.get("ml1"):
            import re
            ops = [re.sub(r"v22\d, (s\[\d+:\d+\]) offset:-?\d+ sc1", r"v226, \1 offset:0", x) if x.startswith("global_load") else x for x in ops]
        if O_.get("mpad"): ops = [(x + f"\n s_nop {O_['mpad']-1}" if x.startswith("v_mfma_f32_32x32x8") else x) for x in ops]
    A.many(ops)
    if kind != 'A' and not common.OPT.get('mfix'):
        A(f"""
    s_add_u32 s{sHp}, s{sHp}, {8*2048}
    s_addc_u32 s{sHp+1}, s{sHp+1}, 0
    s_add_u32 s{sWp}, s{sWp}, {8*3072}
    s_addc_u32 s{sWp+1}, s{sWp+1}, 0
""")
    stamp(A, "next")

def set_bias(c, m):
    a, b, d = vT, vT+1, vT+4
    return f"""
    v_and_b32 v{a}, 0xffff0000, v{m}
    v_sub_f32 v{b}, v{m}, v{a}
    v_and_b32 v{d}, 0xffff0000, v{b}
    v_sub_f32 v{b}, v{b}, v{d}
    v_lshrrev_b32 v{a}, 16, v{a}
    v_or_b32 v{a}, v{a}, v{d}
    v_xor_b32 v{a}, 0x80008000, v{a}
    v_lshrrev_b32 v{b}, 16, v{b}
    v_xor_b32 v{b}, 0x8000, v{b}
    v_cndmask_b32 v{Q2[c][0]}, v{a}, v{vQt[c]}, vcc
    v_cndmask_b32 v{Q2[c][0]+1}, v{b}, 0, vcc
    v_cndmask_b32 v{Q2[c][1]}, v{a}, 0, vcc
    v_cndmask_b32 v{Q2[c][1]+1}, v{b}, v{vQt[c]}, vcc
"""
def max16(s, dst, first):
    o = []
    if first:
        o.append(f"v_max3_f32 v{dst}, v{s}, v{s+1}, v{s+2}")
        for i in range(3, 15, 2): o.append(f"v_max3_f32 v{dst}, v{dst}, v{s+i}, v{s+i+1}")
        o.append(f"v_max_f32 v{dst}, v{dst}, v{s+15}")
    else:
        for i in range(0, 16, 2): o.append(f"v_max3_f32 v{dst}, v{dst}, v{s+i}, v{s+i+1}")
    return o
def half_max(m, tmp):
    return [f"v_mov_b32 v{tmp}, v{m}", "s_nop 1", f"v_permlane32_swap_b32 v{m}, v{tmp}", "s_nop 1", f"v_max_f32 v{m}, v{m}, v{tmp}"]

def transition(A, vm):
    t = sT
    def put(ins, tag=None):
        if ins.startswith(("buffer_", "global_")): vm.issue(tag)
        A(ins)
    stamp_set(A, 12)
    A(f"""
    s_bfe_u32 s{t+2}, s{sTab}, 0x80008
    s_mov_b32 s{p1.sH+2}, {WS_SIZE}
    s_lshl_b32 s{t+2}, s{t+2}, 13
    s_add_u32 s{sHoff}, s{sHbase}, s{t+2}
    s_add_u32 s{t+1}, s{sQoff}, {36*1024}
    v_and_b32 v{vT+4}, 0x7c, v{vLane4}
    v_lshl_add_u32 v{vT+5}, s{sWave}, 2, v{vLane16}
    s_waitcnt vmcnt({vm.need('poll')})
    s_barrier
    {flag_min()[0]}
    {flag_min()[1]}
    v_cmp_eq_u32 vcc, 0, v{vPoll}
    s_cbranch_vccnz L_qspin
L_qok:
""")
    fs = lambda i: stamp(A, i) if (common.OPT.get("fine") or common.OPT.get("fine2")) else None
    fs(50)
    for c in range(2):
        so = sQoff if c == 0 else t + 1
        put(f"buffer_load_dwordx4 {vr(S[0]+8*c,4)}, v{vLane16}, {sr(sWS,4)}, s{so} offen sc1", "q")
        put(f"buffer_load_dwordx4 {vr(S[0]+8*c+4,4)}, v{vLane16}, {sr(sWS,4)}, s{so} offen offset:512 sc1", "q")
        put(f"buffer_load_dword v{vQt[c]}, v{vT+5}, {sr(sWS,4)}, s{so} offen offset:1024 sc1", "q")
        put(f"buffer_load_dword v{vG[c]}, v{vT+4}, {sr(sWS,4)}, s{sGoff} offen offset:{128*c} sc1", "q")
    A(f"""
    v_min_u32 v{AK2}, 512, v{vLane16}
    v_mov_b32 v{ZP}, 0
    v_mov_b32 v{ZP+1}, 0
    s_mov_b32 s{sIt}, 0
    ds_read_b128 {vr(K1[0],4)}, v{vLane16} offset:{off_k1(0)}
    ds_read_b128 {vr(K2[0],4)}, v{AK2} offset:{off_k2(0)}
    ds_read_b128 {vr(K1[1],4)}, v{vLane16} offset:{off_k1(1)}
    ds_read_b128 {vr(V[0],4)}, v{AV} offset:{off_v(0,0)}
    ds_read_b128 {vr(V[0]+4,4)}, v{AV} offset:{off_v(0,1)}
""")
    A(zero16(O[0]))
    A(f"v_mov_b32 v{AK}, v{vLane16}")
    for j in range(4): A(f"v_add_u32 v{vO[j]}, {4096 + j*8192}, v{vLane16}")
    for r in [P[1] + 4 + i for i in range(4)] + [V[1] + 4 + i for i in range(4)]: A(f"v_mov_b32 v{r}, 0")
    A(zero16(O[1]))
    A(f"v_mov_b32 v88, v{p1.vHs}") if False else None
    blocks = p1.gelu_ops(0, 64, 80, True)
    groups = [sum((kv_dma(r) for r in range(r0, r0 + 4)), []) for r0 in range(p1.KVL, KVT, 4)]
    for k in range(PRT): groups.append(pre_lds(k))
    sent = [f"v_mov_b32 v{88+i}, -1" for i in range(4)] + [
        f"buffer_store_dwordx4 v[88:91], v{vLane16}, {sr(sWS,4)}, s{sO1} offen sc1",
        f"buffer_store_dwordx4 v[88:91], v{vLane16}, {sr(sWS,4)}, s{sO1} offen offset:1024 sc1",
        f"buffer_store_dword v88, v{vLane4}, {sr(sWS,4)}, s{sO2} offen sc1"]
    groups.insert(common.OPT.get("sentpos", 3), sent)
    for k in range(WOT): groups.append([ld_wo(k, n) for n in range(3)])
    def run_block(ops, ndma):
        for i, ins in enumerate(ops):
            if i == 40 and groups:
                for x in groups.pop(0): put(x)
            put(ins)
    nper = 0
    fs(51)
    run_block(blocks[0], nper)
    fs(52)
    run_block(blocks[1], nper)
    fs(53)
    A(f"v_cmp_gt_u32 vcc, 32, v{vLane}")
    A(f"s_waitcnt vmcnt({vm.need('q')}) lgkmcnt(0)")
    fs(54)
    A(zero16(GACC))
    A(f"s_set_gpr_idx_on s{sWave}, gpr_idx(SRC0)")
    A("s_nop 0")
    for c in range(2):
        for i in range(4): A(f"v_mov_b32 v{Q1[c]+i}, v{S[0]+8*c+i}")
    A("s_set_gpr_idx_off")
    for c in range(2):
        A(f"v_cndmask_b32 v{Q2[c][0]}, 0, v{vQt[c]}, vcc")
        A(f"v_mov_b32 v{Q2[c][0]+1}, 0")
    for c in range(2):
        w = vW[2 * c]
        A.many([f"v_sub_f32 v{w}, 1.0, v{vG[c]}", f"v_max_f32 v{w}, {f2u(2.0**-40):#x}, v{w}", f"v_rcp_f32 v{vT+c}, v{w}"])
    A("s_nop 0")
    for c in range(2): A(f"v_mul_f32 v{vG[c]}, v{vG[c]}, v{vT+c}")
    b2 = blocks[2]
    ins_at = {4: qk8(0), 12: qk16(0), 20: qk8(1), 27: qk16(1), 33: zero16(GACC + 16)}
    nb2 = []
    for i, ins in enumerate(b2):
        if i in ins_at: nb2.append(ins_at[i])
        nb2.append(ins)
    run_block(nb2, nper)
    fs(55)
    for c in range(2):
        A.many(max16(S[c], S[c], True)); A.many(half_max(S[c], S[c] + 1)); A(set_bias(c, S[c]))
    b3 = blocks[3]
    ins_at = {2: qk8(0), 10: qk16(0), 18: zero16(GACC + 32)}
    nb3 = []
    for i, ins in enumerate(b3):
        if i in ins_at: nb3.append(ins_at[i])
        nb3.append(ins)
    fs(56)
    run_block(nb3, nper)
    fs(57)
    assert not groups
    A(f"""
    s_lshl_b32 s{t}, s{sQi}, 2
    s_add_u32 s{t}, s{t}, s{sWave}
    s_cmp_eq_u32 s{t}, 15
    s_cselect_b32 s{sNA}, 8, 1
""")
    A.many([zero16(GACC + 48), zero16(GACC + 64), zero16(GACC + 80)])
    stamp(A, "next")

def main_loop(A):
    t = sT
    A("L_itA:")
    att_body(A, 'A')
    A(f"""
    s_add_u32 s{sIt}, s{sIt}, 1
    s_cmp_eq_u32 s{sIt}, 1
    s_cbranch_scc0 L_idle_next
    s_mov_b32 s{sPollOff}, {F4}
    s_lshl_b32 s{sPub}, s2, 2
    s_add_u32 s{sPub}, s{sPub}, {F4}
    s_waitcnt vmcnt({3*(9-WOT) + 5*(3-PRT)})
    s_barrier
    buffer_store_dword v{vOne}, v{vFlagOff}, {sr(sWS,4)}, s{sPub} offen sc1
    s_cmp_eq_u32 s{sNA}, 1
    s_cbranch_scc0 L_itA
    s_mov_b32 s{sIt}, 0
    s_cmp_eq_u32 s{sQi}, 3
    s_cselect_b32 s{t}, 0, {3*1024}
    s_lshl_b32 s{t+1}, s{t}, 1
    s_mul_i32 s{t}, s{t}, 3
    s_add_u32 s{sHp}, s{sHp}, s{t+1}
    s_addc_u32 s{sHp+1}, s{sHp+1}, 0
    s_add_u32 s{sWp}, s{sWp}, s{t}
    s_addc_u32 s{sWp+1}, s{sWp+1}, 0
""")
    att_body(A, 'LM')
    A("L_itM:")
    att_body(A, 'M')
    A(f"""
    s_sub_u32 s{sIt}, s{sIt}, 1
    s_cbranch_scc0 L_itM
    s_cmp_eq_u32 s{sNA}, 1
    s_cbranch_scc1 L_hchk
L_done:
""")

NRE = [9, 12, 15, 18, 18, 18]
OL = 96
PL = 168
vL = 236
def ld_o(f):
    c, st = f // 9, f % 9
    if st < 8: return [gld(vr(OL + 4 * f, 4), sHo, st * 2048 + c * 1024)]
    return [f"global_load_dword v{OL + 4*f + j}, v{vL}, {sr(sHo,2)} offset:{j*256 + c*128} sc1" for j in range(4)]

ST = [192, 200]
vR = 230
def o_valu(c):
    o = O[c]
    ops = [f"v_rcp_f32 v{vR}, v{o+10}", "s_nop 0", f"v_mul_f32 v{vR}, v{vR}, v{vG[c]}"]
    ops += [f"v_mul_f32 v{o+i}, v{o+i}, v{vR}" for i in range(10)]
    ops += [f"v_cvt_pk_bf16_f32 v{ST[c]+i}, v{o+2*i}, v{o+2*i+1}" for i in range(5)]
    return ops
def o_stores(c):
    o = [f"buffer_store_dwordx4 {vr(ST[c],4)}, v{vLane16}, {sr(sWS,4)}, s{sO1} offen offset:{c*1024} sc1"]
    if c == 1:
        o += ["s_nop 0", f"v_permlane32_swap_b32 v{ST[0]+4}, v{ST[1]+4}", f"buffer_store_dword v{ST[0]+4}, v{vLane4}, {sr(sWS,4)}, s{sO2} offen sc1"]
    return o

def tail(A):
    t = sT
    vm = Counter(63, [f"x{k}" for k in range(4) for _ in range(5)]); lg = Counter(15)
    def put(ins, tag=None):
        if ins.startswith(("buffer_", "global_")): vm.issue(tag)
        if ins.startswith("ds_"): lg.issue(tag)
        if ins.startswith("L_ook"): NRE[int(ins[5])] = len({x for x in vm.ops if x and x[0] == "o"})
        A(ins)
    fs = lambda i: stamp(A, i) if common.OPT.get("fine3") else None
    order = [4, 5, 6, 0, 1, 2, 3]
    OST = common.OPT.get("ost", 24)
    fill = {m: [] for m in range(42)}
    def spread(ops, m0, per):
        for i, x in enumerate(ops): fill[m0 + i // per].append((x, None))
    chk = [f"s_mov_b32 s{t+3}, {f2u(2.0**60):#x}", f"v_add_f32 v{vT+3}, v{O[0]+10}, v{O[1]+10}", f"v_cmp_nlt_f32 vcc, v{vT+3}, s{t+3}"]
    v0, v1 = o_valu(0), o_valu(1)
    spread(v0[5:], 0, 6)
    fill[2] += [(x, None) for x in chk]
    fill[3] += [("s_cbranch_vccnz L_fallback", None), ("L_fb_ret:", None)] + [(x, "st") for x in o_stores(0)]
    spread(v1, 4, 6)
    fill[7] += [(x, "st") for x in o_stores(1)]
    misc = [f"s_lshl_b32 s{t}, s{sWave}, 11", f"v_add_u32 v{vT+1}, s{t}, v{vLane16}", f"v_add_u32 v{vT+2}, {6*8192}, v{vT+1}",
            f"s_add_u32 s{t+4}, s{sPart}, s{t}", f"s_lshl_b32 s{t}, s{sWave}, 13", f"v_add_u32 v{vT+3}, s{t}, v{vLane16}",
            f"v_add_u32 v{vT+4}, 0x10000, v{vT+3}", f"v_mov_b32 v{vT+5}, 24576", f"s_mov_b32 s{t+5}, 0x10000",
            f"s_add_u32 s{t+2}, s{sOutOff}, {36864+64}", f"s_movk_i32 s{t+1}, 128"]
    spread(misc, 8, 3)
    spread([f"v_lshrrev_b32 v{vL}, 5, v{vLane}", f"v_mul_u32_u24 v{vL}, {1024-128}, v{vL}", f"v_add_u32 v{vL}, v{vL}, v{vLane4}",
            f"v_add_u32 v{vL}, 0x4000, v{vL}"], 15, 4)
    fill[12] += [(x, None) for x in [f"s_cmp_lt_u32 s{sWave}, 2", f"s_cselect_b32 s{t+1}, s{t+1}, {36864-64}", "s_cselect_b64 vcc, -1, 0"]]
    fill[13] += [(x, None) for x in [f"v_cndmask_b32 v{vW[1]}, v{vW[2]}, v{vW[0]}, vcc", f"s_add_u32 s{t+1}, s{t+1}, s{sOutOff}"]]
    fill[14] += [("s_barrier", None)]
    A(f"v_cvt_pk_bf16_f32 v{P[1]+7}, v{S[1]+14}, v{S[1]+15}")
    A.many(v0[:2])
    A(pv(15, 1))
    A.many(v0[2:5])
    A(f"s_cmp_eq_u32 s{sQi}, 3"); A("s_cbranch_scc1 L_helper_tail")
    olist = list(range(18))
    m = 0
    for k, st in enumerate(order):
        if st < 4 and st > 0: A(f"s_waitcnt vmcnt({vm.need(f'x{st}')})")
        fs(30 + k)
        for j in range(6):
            A(g_mfma(st, j % 3, j // 3))
            for ins, tag in fill[m]: put(ins, tag)
            if m >= OST and (m - OST) % 2 == 0 and olist:
                f = olist.pop(0)
                for x in ld_o(f): put(x, f"o{f}")
            m += 1
        if k == 1: stamp(A, 21)
    stamp(A, 22)
    def check(g):
        r = OL + 12 * g
        pre = [lambda: f"s_waitcnt vmcnt({vm.need(f'o{3*g+2}')})", f"v_max3_u32 v{vT}, v{r}, v{r+1}, v{r+2}"]
        pre += [f"v_max3_u32 v{vT}, v{vT}, v{r+i}, v{r+i+1}" for i in range(3, 11, 2)]
        pre += [f"v_max_u32 v{vT}, v{vT}, v{r+11}", f"v_cmp_eq_u32 vcc, -1, v{vT}"]
        return pre, [f"s_cbranch_vccnz L_ore{g}", f"L_ook{g}:"]
    def wr(q, k): return f"ds_write_b128 v{vT+1+q//6}, {vr(GACC+8*q+4*k,4)} offset:{(q%6)*8192 + k*1024}"
    def rd(i, w, k): return f"ds_read_b128 {vr(32*i + 8*w + 4*k, 4)}, v{vT+3+i//2} offset:{(i%2)*32768 + w*2048 + k*1024}"
    def adds(i):
        b = 32 * i
        return [f"v_add_f32 v{b+r}, v{b+r}, v{b+8+r}" for r in range(8)] + [f"v_add_f32 v{b+16+r}, v{b+16+r}, v{b+24+r}" for r in range(8)] + \
               [f"v_add_f32 v{b+r}, v{b+r}, v{b+16+r}" for r in range(8)]
    def fin(i):
        b = 32 * i
        so = [sOutOff, t + 1, t + 2][i]
        return [f"v_add_f32 v{b+r}, v{b+r}, v{PL+8*i+r}" for r in range(8)] + [f"v_mul_f32 v{b+r}, v{b+r}, v{vW[i]}" for r in range(8)] + \
               [f"v_cvt_pk_bf16_f32 v{b+16+r}, v{b+2*r}, v{b+2*r+1}" for r in range(4)] + \
               [f"buffer_store_dwordx4 {vr(b+16,4)}, v{vQa}, {sr(sOUT,4)}, s{so} offen"]
    seq = [(0, n, st) for st in range(9) for n in range(2)] + [(0, 2, st) for st in range(9)] + \
          [(1, n, st) for n in range(3) for st in range(9)]
    g = {m: [] for m in range(54)}
    def at(m, ops, per=99):
        for i, x in enumerate(ops): g[m + i // per].append(x)
    for i, f in enumerate(olist): at(2 * i, [(x, f"o{f}") for x in ld_o(f)])
    for grp, m0 in ((1, 3), (2, 9), (3, 17), (4, 20), (5, 23)):
        pre, post = check(grp)
        at(m0, pre, 4); at(m0 + 2, post)
    wpos = [21, 22, 24, 25, 26, 27, 28, 29,  33, 35, 37, 38,  40, 41, 43, 44,  49, 50, 52, 53]
    for i, m0 in enumerate(wpos): at(m0, [(wr(i // 2, i % 2), f"w{i//8}")])
    at(26, [(f"buffer_load_dword v{vPf}, v{vT+5}, {sr(sWS,4)}, s{sPart} offen sc1", "pf")])
    at(32, [lambda: f"s_waitcnt lgkmcnt({lg.need('w0')})", "s_barrier"])
    at(33, [(rd(0, j // 2, j % 2), "r0") for j in range(8)], 4)
    at(36, [lambda: f"s_waitcnt lgkmcnt({lg.need('r0')})"] + adds(0), 5)
    at(41, ["s_waitcnt vmcnt(0)", f"v_cmp_eq_u32 vcc, 0, v{vPf}"]); at(42, ["s_cbranch_vccnz L_pspin", "L_pok:"])
    for i in range(3):
        at([42, 45, 46][i], [(f"buffer_load_dwordx4 {vr(PL+8*i+4*k,4)}, v{vLane16}, {sr(sWS,4)}, s{t+4} offen offset:{k*1024} sc1", f"pl{i}") for k in range(2)]
           + [f"s_add_u32 s{t+4}, s{t+4}, 8192"])
    at(47, [lambda: f"s_waitcnt lgkmcnt({lg.need('w1')})", "s_barrier"])
    at(48, [(rd(1, j // 2, j % 2), "r1") for j in range(8)], 4)
    a1 = adds(1)
    at(51, [lambda: f"s_waitcnt lgkmcnt({lg.need('r1')})"] + a1[:12], 5)
    def emit(x):
        if callable(x): x = x()
        if isinstance(x, tuple): put(*x)
        else: put(x)
    pre, post = check(0)
    for x in pre + post: emit(x)
    for m, (c, n, st) in enumerate(seq):
        A(mfma16(gacc(n, c), wo_reg(st, n), vr(OL + 4 * (c * 9 + st), 4), gacc(n, c)))
        for x in g[m]: emit(x)
        if m % 9 == 8: fs(40 + m // 9)
    stamp(A, 23)
    for x in a1[12:]: put(x)
    for j in range(4): put(wr(10 + j // 2, j % 2), "w")
    A(f"s_waitcnt vmcnt({vm.need('pl1')})")
    for x in fin(0): put(x)
    A("s_waitcnt lgkmcnt(0)")
    A("s_barrier")
    stamp(A, 24)
    for j in range(8): put(rd(2, j // 2, j % 2), "r")
    for x in fin(1): put(x)
    A(f"s_waitcnt vmcnt({vm.need('pl2')}) lgkmcnt(0)")
    for x in adds(2) + fin(2): put(x)
    A("L_fin:")
    stamp(A, 25)
    if common.STAMPS: A("s_waitcnt vmcnt(0)")
    stamp(A, 26)

def fallback(A):
    t = sT
    M = [vT + 2, vT + 3]
    def rebase():
        A(f"v_add_u32 v{AK}, {-16*KV_GS & 0xffffffff:#x}, v{AK}")
        A(f"v_add_u32 v{AV}, {-16*KV_GS & 0xffffffff:#x}, v{AV}")
        A(f"v_add_u32 v{AK2}, {-16*KV_GS & 0xffffffff:#x}, v{AK2}")
        A(f"s_mov_b32 s{t}, 16")
    def loop(name, work, needv):
        A(f"L_{name}:")
        A(f"ds_read_b128 {vr(K2[0],4)}, v{AK2} offset:{off_k2(0)}")
        for tt in range(4):
            A(f"ds_read_b128 {vr(K1[tt%2],4)}, v{AK} offset:{off_k1(tt)}")
            if needv:
                for f in range(2): A(f"ds_read_b128 {vr(V[tt%2]+4*f,4)}, v{AV} offset:{off_v(tt,f)}")
            A("s_waitcnt lgkmcnt(0)")
            A.many([qk8(2*tt), qk8(2*tt+1), "s_nop 15", qk16(2*tt), qk16(2*tt+1), "s_nop 15"])
            for c in range(2): work(2*tt + c)
        A(f"v_add_u32 v{AK}, {KV_GS}, v{AK}"); A(f"v_add_u32 v{AV}, {KV_GS}, v{AV}"); A(f"v_add_u32 v{AK2}, {KV_GS}, v{AK2}")
        A(f"s_sub_u32 s{t}, s{t}, 1"); A(f"s_cmp_lg_u32 s{t}, 0"); A(f"s_cbranch_scc1 L_{name}")
    A("L_fallback:")
    A(f"v_cmp_gt_u32 vcc, 32, v{vLane}")
    rebase()
    for c in range(2):
        A(f"v_cndmask_b32 v{Q2[c][0]}, 0, v{vQt[c]}, vcc"); A(f"v_mov_b32 v{Q2[c][0]+1}, 0")
        A(f"v_mov_b32 v{Q2[c][1]}, 0"); A(f"v_cndmask_b32 v{Q2[c][1]+1}, 0, v{vQt[c]}, vcc")
        A(f"v_mov_b32 v{M[c]}, 0xff800000")
    loop("fbmax", lambda u: A.many(max16(S[u & 1], M[u & 1], False)), False)
    for c in range(2):
        A.many(half_max(M[c], vT)); A(set_bias(c, M[c]))
    for i in range(32): A(f"v_mov_b32 v{O[0]+i}, 0")
    rebase()
    def work(u):
        s, p = S[u & 1], P[u & 1]
        for i in range(16): A(f"v_exp_f32 v{s+i}, v{s+i}")
        A("s_nop 0")
        for i in range(8): A(f"v_cvt_pk_bf16_f32 v{p+i}, v{s+2*i}, v{s+2*i+1}")
        A.many(["s_nop 1", pv(u, 0), pv(u, 1)])
    loop("fbexp", work, True)
    A(f"""
    s_nop 15
""")
    A.many(o_valu(0))
    A(f"s_cmp_eq_u32 s{sQi}, 3")
    A("s_cbranch_scc1 L_fb_ret_h")
    A("s_branch L_fb_ret")

def out_of_line(A):
    t = sT
    A(f"""
L_idle_next:
    s_cmp_lt_u32 s{sIt}, 8
    s_cbranch_scc1 L_itA
    s_branch L_done
L_hchk:
    s_mov_b32 s{sNA}, 0
    s_mov_b32 s{sIt}, 4
    {flag_min()[0]}
    {flag_min()[1]}
    v_cmp_eq_u32 vcc, 0, v{vPoll}
    s_cbranch_vccz L_itM
""")
    p1.spin(A, f"s{sPollOff}", "hspin", "L_itM")
    p1.spin(A, f"s{sPollOff}", "qspin", "L_qok")
    A(f"""
L_helper_tail:
""")
    A.many(o_valu(0)[5:])
    A(f"""
    s_mov_b32 s{t+3}, {f2u(2.0**60):#x}
    v_add_f32 v{vT+3}, v{O[0]+10}, v{O[1]+10}
    v_cmp_nlt_f32 vcc, v{vT+3}, s{t+3}
    s_cbranch_vccnz L_fallback
L_fb_ret_h:
""")
    A.many(o_stores(0) + o_valu(1) + o_stores(1))
    A(f"""
    s_cmp_eq_u32 s{sWave}, 3
    s_cbranch_scc1 L_fin
    v_mov_b32 v{vT+5}, 24576
    s_nop 0
    s_mov_b32 s{t+4}, s{sPart}
    s_nop 3
""")
    for i in range(24):
        if i and i % 4 == 0: A(f"s_add_u32 s{t+4}, s{t+4}, 4096")
        A(f"buffer_store_dwordx4 {vr(GACC+4*i,4)}, v{vLane16}, {sr(sWS,4)}, s{t+4} offen offset:{(i%4)*1024} sc1")
    A(f"""
    s_waitcnt vmcnt(0)
    buffer_store_dword v{vOne}, v{vT+5}, {sr(sWS,4)}, s{sPart} offen sc1
    s_branch L_fin
L_pspin:
    s_sleep 2
    buffer_load_dword v{vPf}, v{vT+5}, {sr(sWS,4)}, s{sPart} offen sc1
    s_sub_u32 s{t+5}, s{t+5}, 1
    s_cbranch_scc1 L_pok
    s_waitcnt vmcnt(0)
    v_cmp_eq_u32 vcc, 0, v{vPf}
    s_cbranch_vccnz L_pspin
    s_branch L_pok
""")
    for g in range(6):
        r = OL + 12 * g
        A(f"L_ore{g}:")
        A(f"s_sleep {common.OPT.get('osleep', 4)}")
        for f in range(3 * g, 3 * g + 3): A.many(ld_o(f))
        A(f"""
    s_sub_u32 s{t+5}, s{t+5}, 1
    s_cbranch_scc1 L_fin
    s_waitcnt vmcnt(0)
    v_max3_u32 v{vT}, v{r}, v{r+1}, v{r+2}
""")
        for i in range(3, 11, 2): A(f"v_max3_u32 v{vT}, v{vT}, v{r+i}, v{r+i+1}")
        A(f"""
    v_max_u32 v{vT}, v{vT}, v{r+11}
    v_cmp_eq_u32 vcc, -1, v{vT}
    s_cbranch_vccnz L_ore{g}
""")
        for f in range(3 * g + 3, NRE[g]): A.many(ld_o(f))
        A(f"s_branch L_ook{g}")
    fallback(A)
```

```python
from common import *
import common
import hazard

S_X, S_WQ, S_WK, S_WV, S_WO, S_WG, S_WU, S_WD, S_GW, S_OUT, S_DBG, S_WS = 4, 6, 8, 10, 12, 16, 18, 20, 22, 24, 26, 28
sW, sWn, nOff, sX, sWS, sH, sP, sPD = 32, 36, 88, 40, 44, 48, 52, 56
sTch = 94
sWave, sOff, sStep, nStep, sHoff, sHbase, sTab, sM0, sRowOff = 60, 61, 62, 63, 64, 65, 66, 68, 69
sPs0, sPs1, sPd0, sPd1, sXc, sXend = 70, 71, 72, 73, 74, 85
sT = 76
sLink, sLink2, sSpecial, sTb, sC2, sFb, sPub, sPar = 82, 84, 86, 87, 89, 90, 92, 93
sXq, sQi = 94, 95
sDB = 96
sBase, sEnd, nStart, sSkip, sRot = 100, 101, 31, 30, 3
sPollOff = 74
nD = 75
sHp, sWp, sHo, sWo = 12, 14, 16, 18
sO1, sO2, sQoff, sGoff = 20, 21, 22, 23
sOUT = 24
sPart, sOutOff = 4, 5
SRD3 = 0x00020000
WG_SIZE = 576 * 9216
LEAD = 12
PB = 4
NT_W = ""
NT_X = ""
NT_P = ""
NT_T = ""

ACC = [0, 64]
AF = 128
XT = 152
GT = 184
PK = 200
PF = 208
vDma = 220
vHs = 254
vTR = 224
vTW, vNext, vF, vLane16, vC1, vPsrc, vPtr, vR8, vC16, vFlagOff, vOne, vLane, vQa, vAV = range(230, 244)
vT = 244
vPoll = 244
vLane4 = 250
vDummy = 251
F0, F2, F4, FOOB = WS_FL, WS_FL + 1024, WS_FL + 2048, 0x40000000

def xreg(i):
    return ar(4 * i, 4) if i < 64 else vr(XT + 4 * (i - 64), 4)

def tr_reads(ks, region):
    out = []
    third = min(region // 12, 2)
    blk = ks % 4
    for r in range(4):
        h, rr = r // 2, r % 2
        reg = AF + (ks % 3) * 8 + h * 4 + rr * 2
        off = (region // 4 - third * 3) * 16384 + (blk // 2) * 8192 + h * 2048 + rr * 512
        out.append(f"ds_read_b64_tr_b16 {vr(reg,2)}, v{vTR + third*2 + blk % 2} offset:{off}")
    return out

def gelu_ops(accset, gt=GT, pkb=PK, nops=False):
    blocks = []
    for blk in range(4):
        ops = []
        g = ACC[accset] + 16 * blk; u = g + 8
        t = gt; pk = pkb + 4 * (blk % 2)
        ops += [f"v_mul_f32 v{t+i}, v{g+i}, v{g+i}" for i in range(8)]
        ops += [f"v_fma_f32 v{t+i}, v{t+i}, s{sC2}, v{vC1}" for i in range(8)]
        ops += [f"v_mul_f32 v{t+i}, v{t+i}, v{g+i}" for i in range(8)]
        for i in range(8):
            ops += [f"v_exp_f32 v{t+i}, v{t+i}", f"v_mul_f32 v{g+i}, v{g+i}, v{u+i}"]
        ops += [f"v_add_f32 v{t+i}, 1.0, v{t+i}" for i in range(8)]
        ops += [f"v_rcp_f32 v{t+i}, v{t+i}" for i in range(8)]
        ops += [f"v_mul_f32 v{g+i}, v{g+i}, v{t+i}" for i in range(8)]
        ops += [f"v_cvt_pk_bf16_f32 v{pk+i}, v{g+2*i}, v{g+2*i+1}" for i in (0, 2, 1, 3)]
        if nops: ops += ["s_nop 0"]
        ops += [f"v_permlane16_swap_b32 v{pk}, v{pk+2}", f"v_permlane16_swap_b32 v{pk+1}, v{pk+3}"]
        ops += [f"buffer_store_dwordx4 {vr(pk,4)}, v{vHs}, {sr(sH,4)}, s{sHoff} offen offset:{(blk//2)*1024 + (blk%2)*256} sc1"]
        blocks.append(ops)
    return blocks

def gelu_pk(t, pkb):
    blocks = []
    P = lambda r: vr(r, 2)
    for blk in range(4):
        g = 16 * blk; u = g + 8; pk = pkb + 4 * (blk % 2); R = range(0, 8, 2)
        ops = [f"v_pk_mul_f32 {P(t+i)}, {P(g+i)}, {P(g+i)}" for i in R]
        ops += [f"v_pk_fma_f32 {P(t+i)}, {P(t+i)}, {sr(sC2-1,2)}, {P(vC1)} op_sel_hi:[1,1,0]" for i in R]
        ops += [f"v_pk_mul_f32 {P(t+i)}, {P(t+i)}, {P(g+i)}" for i in R]
        ops += [f"v_pk_mul_f32 {P(g+i)}, {P(g+i)}, {P(u+i)}" for i in R]
        ops += [f"v_exp_f32 v{t+i}, v{t+i}" for i in range(8)]
        ops += [f"v_pk_add_f32 {P(t+i)}, {P(t+i)}, 1.0 op_sel_hi:[1,0]" for i in R]
        ops += [f"v_rcp_f32 v{t+i}, v{t+i}" for i in range(8)]
        ops += [f"v_pk_mul_f32 {P(g+i)}, {P(g+i)}, {P(t+i)}" for i in R]
        ops += [f"v_cvt_pk_bf16_f32 v{pk+i}, v{g+2*i}, v{g+2*i+1}" for i in (0, 2, 1, 3)] + ["s_nop 0"]
        ops += [f"v_permlane16_swap_b32 v{pk}, v{pk+2}", f"v_permlane16_swap_b32 v{pk+1}, v{pk+3}"]
        ops += [f"buffer_store_dwordx4 {vr(pk,4)}, v{vHs}, {sr(sH,4)}, s{sHoff} offen offset:{(blk//2)*1024 + (blk%2)*256} sc1"]
        blocks.append(ops)
    return blocks

def w_dma(region, kpos, first=False):
    o = []
    if region % 4 == 0:
        o = [f"s_add_u32 m0, s{sM0}, {(region//4)*16384}"]
        if kpos == 0: o += [f"s_mov_b32 s{sOff}, s{sEnd}"]
        elif kpos == 4: o += ["s_nop 0" if first else f"s_mov_b32 s{sOff}, s{nStart}"]
        else: o += [f"s_add_u32 s{sOff}, s{sOff}, s{sStep}", f"s_cmp_eq_u32 s{sOff}, s{sEnd}", f"s_cselect_b32 s{sOff}, s{sBase}, s{sOff}"]
    j = region % 4
    return o, f"buffer_load_dwordx4 v{vDma+j}, {sr(sW,4)}, s{sOff} offen offset:{j*1024} sc1{NT_W} lds"

def switch_ops():
    return [[f"s_mov_b64 {sr(sW,2)}, {sr(sWn,2)}", f"s_mov_b32 s{sW+2}, s{sWn+2}", f"s_mov_b32 s{sStep}, s{nStep}", f"v_mov_b32 v{vDma}, v{vNext}"],
            [f"s_mov_b32 s{sBase}, s{nOff}", f"s_lshl3_add_u32 s{sEnd}, s{nStep}, s{nOff}"],
            [f"v_add_u32 v{vDma+1}, s{nD}, v{vDma}", f"v_add_u32 v{vDma+2}, s{nD}, v{vDma+1}", f"v_add_u32 v{vDma+3}, s{nD}, v{vDma+2}"]]

def next_ops():
    t = sT
    return [[f"s_bfe_u32 s{t}, s{sTab}, 0x80018", f"s_lshl_b32 s{t+1}, s{t}, 7", f"s_add_u32 s{nOff}, s{t+1}, s{sRowOff}"],
            [f"s_cmp_lt_u32 s{t}, 72", f"s_cselect_b32 s{sSkip}, 1, 0", f"s_mul_i32 s{t+1}, s{sRot}, {64*9216}"],
            [f"s_add_u32 s{nStart}, s{nOff}, s{t+1}", f"s_lshr_b64 {sr(sTab,2)}, {sr(sTab,2)}, 8"],
            [f"s_mov_b64 {sr(sWn,2)}, {sr(sFb,2)}", f"s_mov_b32 s{sWn+2}, {WG_SIZE}"]]

def poll_ld(soff):
    return f"buffer_load_dwordx4 {vr(vPoll,4)}, v{vLane16}, {sr(sWS,4)}, {soff} offen sc1"
def flag_min():
    return [f"v_min3_u32 v{vPoll}, v{vPoll}, v{vPoll+1}, v{vPoll+2}", f"v_min_u32 v{vPoll}, v{vPoll}, v{vPoll+3}"]

def emit_stream(A, accset, pinned, pre, queue, qstart, vm, lg, qend=140, **_):
    Q = [(x, hazard.parse(x)) for x in queue]
    total = sum(cost(x) for x in queue); done = 0
    hist = []
    ismem = lambda x: x.startswith(("ds_", "buffer_", "global_"))
    def put(ins):
        if callable(ins): ins = ins()
        if ins == "FULL": return 100
        tag = None
        if isinstance(ins, tuple): ins, tag = ins
        if ins.startswith("ds_"): lg.issue(tag)
        if ins.startswith(("buffer_", "global_")): vm.issue(tag)
        A(ins)
        if ins.endswith(":"): return 0
        hist.append(hazard.parse(ins))
        return cost(ins)
    def peek(ins):
        if callable(ins): return "s_waitcnt"
        return ins[0] if isinstance(ins, tuple) else ins
    def ready(i):
        p = Q[i][1]
        for _, e in Q[:i]:
            if e["w"] & (p["r"] | p["w"]) or e["r"] & p["w"] or (e["k"] == "mem" and p["k"] == "mem"): return False
        for d, h in enumerate(reversed(hist[-4:])):
            if h["k"] != "valu" or not (h["w"] & (p["r"] | p["w"])):
                if "data" in h and h["data"] & p["w"] and d < 2: return False
                continue
            need = 1
            if "dpp" in p["op"] or p["op"].startswith("v_permlane"): need = 2
            if h["op"].startswith("v_dot") and p["op"] != h["op"]: need = 3
            if d < need: return False
        return True
    pc = lambda x: 8 if peek(x) == "FULL" else 0 if peek(x).endswith(":") else cost(peek(x))
    free = [max(0, 60 - sum(pc(x) for g in pinned[ks] for x in g)) if qstart <= 4 * ks < qend else 0 for ks in range(36)]
    est = 0
    for ks in range(36):
        for p in pre[ks]: put(p)
        fifo = []
        for m in range(8):
            t, h = m // 2, m % 2
            d = vr(ACC[accset] + 16 * t + 4 * (ks % 4), 4)
            put(f"v_mfma_f32_16x16x32_bf16 {d}, {vr(AF + (ks % 3) * 8 + h * 4, 4)}, {xreg(8 * (ks // 4) + m)}, {'0' if ks < 4 and h == 0 else d}")
            if h == 0: fifo += pinned[ks][t]
            used = 4 if m == 7 else 0
            gap = ks * 4 + m / 2
            backlog = sum(cost(peek(x)) for x in fifo if peek(x) != "FULL" and not peek(x).endswith(":"))
            later = sum(cost(peek(x)) for tt in range(t + 1, 4) for x in pinned[ks][tt] if peek(x) != "FULL" and not peek(x).endswith(":"))
            cap = 8 if backlog + later <= 8 * (8 - m) - 4 else 12
            sparse = backlog + later <= 4 * (8 - m)
            npin = 0
            while fifo and (m == 7 or used + (0 if peek(fifo[0]) == "FULL" or peek(fifo[0]).endswith(":") else cost(peek(fifo[0]))) <= cap):
                if sparse and npin and m != 7 and ismem(peek(fifo[0])): break
                used += put(fifo.pop(0)); npin += 1
            target = total * (sum(free[:ks]) + free[ks] * (m + 1) / 8) / sum(free)
            cap = 12 if done < target - 16 else 8
            while Q and gap >= qstart and done <= target + 16:
                cand = [i for i in range(min(len(Q), 28)) if used + cost(Q[i][0]) <= cap and ready(i)
                        and not (Q[i][1]["k"] == "mem" and hist[-1]["k"] == "valu")]
                if not cand: break
                big = [i for i in cand if cost(Q[i][0]) == 8]
                i = big[0] if big else cand[0]
                c_ = put(Q.pop(i)[0]); used += c_; done += c_
            est += 8 + max(8, min(used, 24))
    assert not Q, f"queue not drained {len(Q)}"
    if common.OPT.get("v"): print("free", sum(free), "queue", total, "est cycles", est)
    stamp(A, "next")

def touch_w():
    return [[f"s_add_u32 s{sT+3}, s{nOff}, s{sTch}", f"s_cmp_eq_u32 s{sSkip}, 0", f"s_cselect_b32 s{sT+3}, {FOOB}, s{sT+3}"],
            [(f"buffer_load_dword v{vDummy}, v{vTW}, {sr(sWn,4)}, s{sT+3} offen{NT_T}", "tch")]]

def kv_dma(r):
    o = []
    if r % 4 == 0:
        o = [f"s_add_u32 m0, s{sM0}, {(r//4)*16384}", f"s_add_u32 s{sEnd}, s{sM0}, {WS_KV + (r//4)*16384}"]
    return o, f"buffer_load_dwordx4 v{vLane16}, {sr(sX,4)}, s{sEnd} offen offset:{(r%4)*1024} sc1 lds"
KVL = 32

def body(A, kind):
    odd, last = kind == "o", kind == "l"
    accset = 1 if odd else 0
    vm = Counter(63); lg = Counter(15, ["k0"]*4 + ["k1"]*4)
    pinned = [[[] for _ in range(4)] for _ in range(36)]
    pre = [[] for _ in range(36)]
    assert LEAD == 12
    bars = {10: "d19", 18: "d31", 30: "d47"} if not last else {10: "d19", 18: "d31", 26: "d35", 32: "v7"}
    for ks in range(36):
        pre[ks].append(lambda ks=ks: f"s_waitcnt lgkmcnt({lg.need(f'k{ks}')})")
        bar = ks in bars
        if bar:
            pinned[ks][0] += [lambda ks=ks: f"s_waitcnt vmcnt({vm.need(bars[ks])})", "s_barrier", "FULL"]
        if last and ks >= 34: continue
        k2 = (ks + 2) % 36
        for r, ins in enumerate(tr_reads(k2, k2)):
            pinned[ks][[1,1,2,3][r] if bar else r].append((ins, f"k{ks+2}"))
    slots = sorted([(k, 2) for k in range(36)] + [(k, 0) for k in range(1, 36, 2)])
    SW = 16
    if not last:
        sw = switch_ops()
        pinned[SW-1][3] += sw[0]; pinned[SW][0] += sw[1]; pinned[SW][3] += sw[2]
    def place(k, g, o, ld):
        if g == 0: pinned[k-1][3] += o
        else: pinned[k][g-1] += o
        pinned[k][g] += [ld]
    for i, (k, g) in enumerate(slots[:24 if last else 36]):
        rho = LEAD + i
        o, ld = w_dma(rho % 36, rho % 36)
        place(k, g, o, (ld, f"d{rho}"))
        if rho == 36: assert (k, g) == (SW, 2)
    if last:
        ks_ = [x for x in slots[24:] if x[0] < 32] + [(32,2), (33,0), (33,2), (34,0), (34,1), (34,3), (35,1), (35,3)]
        assert len(ks_) == KVL
        for r, (k, g) in enumerate(ks_):
            assert (r | 3) <= max(x for x in bars if (x, 0) < (k, g))
            o, ld = kv_dma(r)
            place(k, g, o, (ld, f"v{r}"))
    pinned[0][0] += [f"s_and_b32 s{sT+2}, s{sTab}, 0xff", f"s_lshl_b32 s{sT+2}, s{sT+2}, 13", f"s_add_u32 s{sHoff}, s{sHbase}, s{sT+2}"]
    if odd or last:
        pinned[18][1] += [f"buffer_store_dword v{vOne}, v{vFlagOff}, {sr(sWS,4)}, s{sPub} offen sc1"]
    if odd:
        pinned[26][1] += [f"s_lshl_b32 s{sPub}, s2, 2", f"s_add_u32 s{sPub}, s{sPub}, {F2}", f"s_cmp_lg_u32 s{sP+2}, 1", f"s_cselect_b32 s{sPub}, s{sPub}, {FOOB}"]
    if last:
        pinned[14][0] += flag_min() + [f"v_cmp_eq_u32 vcc, 0, v{vPoll}"]
        pinned[14][1] += [f"s_cbranch_vccnz L_kvspin", f"L_kvok:"]
        pinned[12][0] += [f"s_mov_b64 {sr(sX,2)}, {sr(S_WS,2)}", f"s_mov_b32 s{sX+2}, {WS_KV + 16*KV_GS}"]
        pinned[2][0] += [f"s_mov_b32 s{sPollOff}, {F0}", poll_ld(f"s{sPollOff}")]
        pinned[30][0] += [f"s_mov_b32 s{sPollOff}, {F2}", (poll_ld(f"s{sPollOff}"), "poll")]
    else:
        nx = next_ops()
        for grp, (k, g) in zip(nx, [(17,1), (17,3), (19,1), (19,3)]): pinned[k][g] += grp
        units = [0, 1] if odd else [2]
        pos = [(24,2), (24,3), (25,0), (25,1)]
        for n, u in enumerate(units):
            for e in range(2):
                k, g = pos[2*n + e]
                if e == 0: pinned[k][g] += [f"s_add_u32 m0, s{sM0}, {9*16384 + n*2048}"]
                pinned[k][g] += [f"s_add_u32 s{sT+3}, s{sPs0+e}, {u*128}",
                                 (f"buffer_load_dwordx4 v{vPsrc}, {sr(sP,4)}, s{sT+3} offen offset:{e*1024}{NT_P} lds", "pk")]
        tw = touch_w()
        pinned[24][0] += tw[0]; pinned[24][1] += tw[1]
    for n, u in enumerate([0, 1] if kind == "e" else [2]):
        pf = [PF, GT + 8][n]
        for r in range(4):
            e, rr = r // 2, r % 2
            k, g = [[(10,1), (10,2), (11,1), (11,1)], [(14,3), (14,3), (15,1), (15,1)]][n][r]
            pinned[k][g].append(
                (f"ds_read_b64_tr_b16 {vr(pf + e*4 + rr*2,2)}, v{vPtr} offset:{n*2048 + rr*512 + e*64}", f"p{n}"))
        for e in range(2):
            nb = 2 * u + e
            k, g = [[(12,1), (12,3)], [(22,1), (22,3)]][n][e]
            if n == 0 and e == 0: pinned[k][g].append(lambda: f"s_waitcnt lgkmcnt({lg.need('p0')})")
            pinned[k][g].append(
                f"buffer_store_dwordx4 {vr(pf + e*4, 4)}, v{vLane16}, {sr(sPD,4)}, s{sPd0 + nb//3} offen offset:{(nb%3)*1024} sc1")
    if odd:
        pinned[35][1] += [f"s_cmp_gt_u32 s{sP+2}, 1", f"s_cselect_b32 s{sPD+2}, {WS_SIZE}, 0"]
    elif not last:
        pinned[35][1] += [f"s_mov_b32 s{sP+2}, 1"]
    q = sum(gelu_ops(1 - accset), [])
    emit_stream(A, accset, pinned, pre, q, 4, vm, lg)
    return vm

XR = 64
GX = 80
vXd = 76
sXb = 64
def elem_dma(e):
    region = (e + 8) % 40
    if e < 72 and e % 8 < 4:
        n = e % 8
        o = []
        if n == 0:
            o = [f"s_add_u32 m0, s{sM0}, {(region//4)*16384}"]
            o += [f"s_add_u32 s{sXc}, s{sXc}, 128", f"s_cmp_eq_u32 s{sXc}, s{sXend}", f"s_cselect_b32 s{sXc}, s{sXb}, s{sXc}"] if e > 8 else ["s_nop 0"]
        return o + [(f"buffer_load_dwordx4 v{vXd+n}, {sr(sX,4)}, s{sXc if e >= 8 else sXend} offen offset:{n*1024}{NT_X} lds", f"e{e}")]
    kpos = (e // 8) * 4 + e % 4 if e < 72 else e - 72
    o, ld = w_dma(region, kpos, e < 72)
    return o + [(ld, f"e{e}")]
def x_reads(j, t):
    base = ((8 * j + 8) % 40) * 4096
    seg = base // 57344
    return [f"ds_read_b128 {xreg(8*j + 2*t + h)}, v{XR + seg*2 + h} offset:{base - seg*57344 + t*2048}" for h in range(2)]
def wregion0(ks):
    if ks >= 36: return ks - 36
    return (8 * (ks // 4) + 4 + ks % 4 + 8) % 40
def put_elems(A, vm, es):
    for e in es:
        for ins in elem_dma(e):
            if isinstance(ins, tuple): vm.issue(ins[1]); ins = ins[0]
            A(ins)

def gate_queue():
    a = GX + 24; b = GX + 25
    q = [f"v_mov_b32 v{a}, 0"]
    for i in range(3):
        for k in range(3): q.append(f"v_dot2c_f32_bf16 v{a}, v{GX+4*i+k}, v{GX+12+4*i+k}")
    pass
    for dpp in ("quad_perm:[1,0,3,2]", "quad_perm:[2,3,0,1]", "row_half_mirror", "row_mirror"):
        q += [f"v_add_f32_dpp v{a}, v{a}, v{a} {dpp} row_mask:0xf bank_mask:0xf"]
    q += [f"v_mov_b32 v{b}, v{a}", f"v_permlane16_swap_b32 v{a}, v{b}",
          f"v_add_f32 v{a}, v{a}, v{b}", f"v_mul_f32 v{a}, {f2u(-math.log2(math.e)):#x}, v{a}",
          f"v_exp_f32 v{a}, v{a}", f"v_add_f32 v{a}, 1.0, v{a}", f"v_rcp_f32 v{a}, v{a}",
          f"buffer_store_dword v{a}, v{GX+26}, {sr(sWS,4)}, 0 offen sc1"]
    return q
def body0(A, vm, deferred):
    lg = Counter(15)
    stamp(A, 1)
    if common.OPT.get("padmin"):
        A(f"s_lshl_b32 s0, s2, 2"); A(f"s_add_u32 s0, s0, {WS_FL + 4096}")
        A(f"buffer_store_dword v253, v{vFlagOff}, {sr(sWS,4)}, s0 offen sc1"); vm.issue("pad")
    E0 = common.OPT.get("e0", 20)
    put_elems(A, vm, range(12, E0))
    A(f"s_waitcnt vmcnt({vm.need('e7')})")
    A("s_barrier")
    stamp(A, 2)
    for ins in tr_reads(0, wregion0(0)) + sum((x_reads(0, t) for t in range(4)), []):
        A(ins); lg.issue("k0")
    for ins in tr_reads(1, wregion0(1)):
        A(ins); lg.issue("k1")
    pinned = [[[] for _ in range(4)] for _ in range(36)]
    pre = [[] for _ in range(36)]
    e = E0
    elast = 72 + LEAD - 1
    for ks in range(36):
        pre[ks].append(lambda ks=ks: f"s_waitcnt lgkmcnt({lg.need(f'k{ks}')})")
        j = (ks + 2) // 4
        if ks == 2: pre[ks] = deferred + pre[ks]
        if ks % 4 == 2:
            last = 8 * j + 7 if j < 9 else elast
            if common.OPT.get("fine"):
                pinned[ks][0] += ["s_memtime s[0:1]", "s_waitcnt lgkmcnt(0)", f"v_writelane_b32 v255, s0, {30+2*j}"]
            pinned[ks][0] += [lambda last=last: f"s_waitcnt vmcnt({vm.need(f'e{last}')})", "s_barrier"]
            if common.OPT.get("fine"):
                pinned[ks][0] += ["s_memtime s[0:1]", "s_waitcnt lgkmcnt(0)", f"v_writelane_b32 v255, s0, {31+2*j}"]
        if ks % 4 >= 2 and j < 9:
            s0 = 2 * (ks % 4 - 2)
            xs = x_reads(j, s0) + x_reads(j, s0 + 1)
            for r in range(4): pinned[ks][r // 2].append((xs[r], f"k{4*j}"))
        for r, ins in enumerate(tr_reads((ks + 2) % 36, wregion0(ks + 2))):
            pinned[ks][2 + r // 2 if (ks % 4 >= 2 and j < 9) else r].append((ins, f"k{ks+2}"))
        for m in ((0, 1, 2, 3) if ks < common.OPT.get("fast", 4) else (1, 3)):
            if e <= elast:
                assert e < 40 or e <= 40 + 8 * (j - 1) + 3
                if e == 72:
                    assert m == 1
                    sw = switch_ops()
                    pinned[ks-1][3] += sw[0][:2]; pinned[ks][0] += sw[0][2:] + sw[1]; pinned[ks][2] += sw[2]
                    for i, grp in enumerate(next_ops()): pinned[ks+1+i][2] += grp
                pinned[ks][m] += elem_dma(e); e += 1
                kl = ks
    assert e == elast + 1 and kl <= 33, (e, kl)
    tw = touch_w()
    pinned[kl+1][0] += tw[0]; pinned[kl+1][1] += tw[1]
    if common.OPT.get("pref2"):
        pinned[kl+1][2] += [f"s_getpc_b64 {sr(sX,2)}", "L_pc2:", f"s_mov_b32 s{sX+2}, L_jobtab-L_pc2"]
        pinned[kl+1][3] += [f"buffer_load_dword v{vDummy}, v{GX+39}, {sr(sX,4)}, 0 offen"]
    pinned[21][2] += [(f"buffer_load_dword v{GX+34}, off, {sr(sDB,4)}, 0 sc1", "ini")]
    pinned[35][1] += [f"v_cmp_eq_u32 vcc, 0, v{GX+34}"]
    pinned[35][2] += ["s_cbranch_vccnz L_inispin", "L_iniok:"]
    for i in range(3):
        pinned[8 + 4 * i][2] += [(f"global_load_dwordx3 {vr(GX+4*i,3)}, v{GX+36}, {sr(sX,2)} offset:{384*i}", "g")]
        pinned[9 + 4 * i][2] += [(f"global_load_dwordx3 {vr(GX+12+4*i,3)}, v{GX+35}, {sr(sLink,2)} offset:{384*i}", "g")]
    pinned[22][3] += [lambda: f"s_waitcnt vmcnt({vm.need('g')})"]
    emit_stream(A, 0, pinned, pre, gate_queue(), 23 * 4, vm, lg, qend=34 * 4)

def setup_sub(A):
    t = sT
    A(f"""
L_setup:
    s_mov_b64 {sr(sWn,2)}, {sr(sFb,2)}
    s_mov_b32 s{sWn+2}, {WG_SIZE}
    s_movk_i32 s{t+1}, 9216
    s_lshl_b32 s{t+2}, s{t}, 7
    s_mov_b32 s{t+4}, 0
    s_cmp_lt_u32 s{t}, 72
    s_cbranch_scc1 L_setup_fin
    s_cmp_lt_u32 s{t}, 77
    s_cbranch_scc0 L_setup_kv
    s_mov_b64 {sr(sWn,2)}, {sr(S_WQ,2)}
    s_movk_i32 s{t+1}, 1152
    s_sub_u32 s{t+2}, s{t}, 72
    s_lshl_b32 s{t+2}, s{t+2}, 1
    s_lshr_b32 s{t+3}, s{sWave}, 1
    s_add_u32 s{t+2}, s{t+2}, s{t+3}
    s_lshl_b32 s{t+2}, s{t+2}, 7
    s_cmp_lt_u32 s{t+2}, 1152
    s_cselect_b32 s{sWn+2}, {576*1152}, 0
    s_branch L_setup_fin
L_setup_kv:
    s_cmp_eq_u32 s{t}, 77
    s_cbranch_scc0 L_setup_ret
    s_cmp_lt_u32 s{sWave}, 2
    s_cselect_b64 {sr(sWn,2)}, {sr(S_WK,2)}, {sr(S_WV,2)}
    s_sub_u32 s{sWn}, s{sWn}, 3072
    s_subb_u32 s{sWn+1}, s{sWn+1}, 0
    s_movk_i32 s{sWn+2}, {576*36 + 3072}
    s_movk_i32 s{t+1}, 36
    s_mov_b32 s{t+2}, 0
    s_movk_i32 s{t+4}, 3072
L_setup_fin:
    s_lshl_b32 s{nStep}, s{t+1}, 6
    s_lshl_b32 s{nD}, s{t+1}, 4
    s_sub_u32 s{nD}, s{nD}, 1024
    s_and_b32 s{t+3}, s{sWave}, 1
    s_mul_i32 s{t+3}, s{t+3}, s{t+1}
    s_lshl_b32 s{t+3}, s{t+3}, 3
    s_add_u32 s{nOff}, s{t+2}, s{t+3}
    s_mul_i32 s{t+3}, s{sRot}, s{nStep}
    s_add_u32 s{nStart}, s{nOff}, s{t+3}
    v_mad_u32_u24 v{vNext}, v{vR8}, s{t+1}, v{vC16}
    v_add_u32 v{vNext}, s{t+4}, v{vNext}
    s_setpc_b64 {sr(sLink2,2)}
L_setup_ret:
    s_mov_b64 {sr(sWn,2)}, {sr(S_WS,2)}
    s_mov_b32 s{sWn+2}, {WS_SIZE}
    v_mov_b32 v{vNext}, v{vLane16}
    s_setpc_b64 {sr(sLink2,2)}
""")

def special_sub(A):
    sc1 = " sc1"
    t = sT
    A(f"""
L_special:
    s_bfe_u32 s{t}, s{sTab}, 0x80010
    s_call_b64 {sr(sLink2,2)}, L_setup
    s_mov_b32 s{sH+2}, {WS_SIZE}
    s_and_b32 s{t}, s{sTab}, 0xff
    s_cmp_lt_u32 s{t}, 72
    s_cbranch_scc1 L_special_ret
    s_mov_b32 s{sH+2}, 0
    s_cmp_eq_u32 s{t}, 77
    s_cbranch_scc1 L_special_kv
    s_lshl_b32 s{t+1}, s{sTb}, 1
    s_lshr_b32 s{t+2}, s{sWave}, 1
    s_add_u32 s{t+1}, s{t+1}, s{t+2}
    s_mul_i32 s{t+1}, s{t+1}, {2*36*1024}
    s_sub_u32 s{t+2}, s{t}, 72
    s_lshl_b32 s{t+2}, s{t+2}, 13
    s_add_u32 s{t+1}, s{t+1}, s{t+2}
    s_and_b32 s{t+2}, s{sWave}, 1
    s_lshl_b32 s{t+2}, s{t+2}, 11
    s_add_u32 s{t+1}, s{t+1}, s{t+2}
    s_add_u32 s{t+1}, s{t+1}, {WS_Q}
    s_add_u32 s{t+2}, s{t+1}, {36*1024}
    s_mov_b32 s{t+3}, {f2u(QSCALE):#x}
    s_cmp_eq_u32 s{sPar}, 0
    s_cbranch_scc1 L_special_q0
""")
    for i in range(64): A(f"v_mul_f32 v{i}, s{t+3}, v{64+i}")
    A("s_branch L_special_q1")
    A("L_special_q0:")
    for i in range(64): A(f"v_mul_f32 v{i}, s{t+3}, v{i}")
    A("L_special_q1:")
    for i in range(32): A(f"v_cvt_pk_bf16_f32 v{64+i}, v{2*i}, v{2*i+1}")
    A(f"v_bfe_u32 v{vT}, v{vLane}, 4, 1")
    A(f"v_lshlrev_b32 v{vT}, 10, v{vT}")
    A(f"v_sub_u32 v{vT}, v{vHs}, v{vT}")
    for i in range(8):
        A(f"v_permlane16_swap_b32 v{64+4*i}, v{64+4*i+2}"); A(f"v_permlane16_swap_b32 v{64+4*i+1}, v{64+4*i+3}")
    for half in range(2):
        if half == 1:
            A(f"s_add_u32 s{t+1}, s{t+1}, 4096")
            A(f"s_add_u32 s{t+2}, s{t+2}, 4096")
            A(f"s_cmp_eq_u32 s{t}, 76")
            A("s_cbranch_scc1 L_special_ret")
        for tb in range(4):
            A(f"buffer_store_dwordx4 {vr(64 + tb*8 + half*4, 4)}, v{vT}, {sr(sWS,4)}, s{t+1+tb//2} offen offset:{(tb%2)*256}{sc1}")
    LB = 9 * 16384
    A(f"""
    s_branch L_special_ret
L_special_kv:
    s_barrier
    v_and_b32 v{vT}, 15, v{vLane}
    v_lshrrev_b32 v{vT+1}, 4, v{vLane}
    s_lshr_b32 s{t+2}, s{sWave}, 1
    s_mul_i32 s{t+5}, s{t+2}, {2*KV_VT}
    s_add_u32 s{t+5}, s{t+5}, {LB + KV_V}
    s_and_b32 s{t+3}, s{sWave}, 1
    s_cmp_eq_u32 s{t+3}, 0
    s_cbranch_scc1 L_special_kv0
    v_and_b32 v{vT}, 3, v{vLane}
    v_mul_u32_u24 v{vT}, {KV_VF}, v{vT}
    v_and_b32 v{vT+1}, 4, v{vLane}
    v_lshl_add_u32 v{vT}, v{vT+1}, 2, v{vT}
    v_cmp_eq_u32 vcc, 0, v{vT+1}
    v_add_u32 v{vT}, s{t+5}, v{vT}
    v_mov_b32 v65, 0x3f803f80
    v_cndmask_b32 v64, 0, v65, vcc
    v_add_u32 v{vT}, 576, v{vT}
    v_mov_b32 v{vT+1}, {LB + KV_K2 + 512}
    v_cmp_eq_u32 vcc, 8, v{vLane}
    v_mov_b32 v65, v64
    v_mov_b32 v66, v64
    v_cndmask_b32 v{vT}, v{vT}, v{vT+1}, vcc
    v_mov_b32 v67, v64
    s_mov_b64 exec, 0x1ff
    ds_write_b128 v{vT}, v[64:67]
    s_mov_b64 exec, -1
    s_branch L_special_kv1
L_special_kv0:
""")
    for i in range(32): A(f"v_cvt_pk_bf16_f32 v{64+i}, v{2*i}, v{2*i+1}")
    A(f"""
    s_lshl_b32 s{t+3}, s{t+2}, 11
    s_add_u32 s{t+3}, s{t+3}, {LB}
    s_lshl_b32 s{t+4}, s{t+2}, 3
    s_add_u32 s{t+4}, s{t+4}, {LB + KV_K2}    ; K2 base
    v_bfe_u32 v{vT+2}, v{vT}, 2, 1
    v_mul_u32_u24 v{vT+2}, 288, v{vT+2}
    v_and_b32 v{vT+3}, 3, v{vT}
    v_lshl_add_u32 v{vT+2}, v{vT+3}, 1, v{vT+2}
    v_and_b32 v{vT+3}, 8, v{vT}
    v_add3_u32 v{vT+2}, v{vT+2}, v{vT+3}, s{t+5}
    v_lshl_add_u32 v{vT+3}, v{vT+1}, 6, v{vT+2}   ; d = 4qd + r
    v_lshlrev_b32 v{vT}, 4, v{vT}
    v_add_u32 v{vT+5}, s{t+4}, v{vT}              ; K2: key*16
    v_lshrrev_b32 v{vT+4}, 1, v{vT+1}
    v_lshl_add_u32 v{vT}, v{vT+4}, 9, v{vT}
    v_and_b32 v{vT+4}, 1, v{vT+1}
    v_lshlrev_b32 v{vT+4}, 3, v{vT+4}
    v_add3_u32 v{vT+4}, v{vT+4}, v{vT}, s{t+3}
""")
    for tb in range(4):
        b0 = 64 + tb * 8
        vo = (tb // 2) * KV_VT + (tb % 2) * KV_VF
        A(f"ds_write_b64 v{vT+4}, {vr(b0,2)} offset:{(tb//2)*1024 + (tb%2)*256}")
        for i in range(4):
            op = "ds_write_b16" if i % 2 == 0 else "ds_write_b16_d16_hi"
            A(f"{op} v{vT+3}, v{b0+4+i//2} offset:{vo + i*16}")
    A("s_mov_b64 exec, 0xffff")
    for tb in range(4):
        b0 = 64 + tb * 8
        vo = (tb // 2) * KV_VT + (tb % 2) * KV_VF
        A(f"ds_write_b32 v{vT+5}, v{b0+2} offset:{(tb//2)*4 + (tb%2)*256}")
        for i in range(2):
            op = "ds_write_b16" if i % 2 == 0 else "ds_write_b16_d16_hi"
            A(f"{op} v{vT+2}, v{b0+6} offset:{vo + (16+i)*16}")
    A(f"""
    s_mov_b64 exec, -1
L_special_kv1:
    s_lshl_b32 s{t+2}, s{sWave}, 10
    v_add_u32 v{vT}, s{t+2}, v{vLane16}
    v_add_u32 v{vT+1}, {LB}, v{vT}
    v_cmp_gt_u32 vcc, {KV_GS - 8192}, v{vT}
    v_mov_b32 v{vT+2}, 0x40000000
    s_mul_i32 s{t+1}, s{sTb}, {KV_GS}
    v_cndmask_b32 v{vT+2}, v{vT+2}, v{vT}, vcc
    s_add_u32 s{t+1}, s{t+1}, {WS_KV}
    s_add_u32 s{t+2}, s{t+1}, 4096
    s_add_u32 s{t+3}, s{t+1}, 8192
    s_waitcnt lgkmcnt(0)
    s_barrier
    ds_read_b128 v[64:67], v{vT+1}
    ds_read_b128 v[68:71], v{vT+1} offset:4096
    ds_read_b128 v[72:75], v{vT+1} offset:8192
    s_waitcnt lgkmcnt(0)
    buffer_store_dwordx4 v[64:67], v{vT}, {sr(sWS,4)}, s{t+1} offen{sc1}
    buffer_store_dwordx4 v[68:71], v{vT}, {sr(sWS,4)}, s{t+2} offen{sc1}
    buffer_store_dwordx4 v[72:75], v{vT+2}, {sr(sWS,4)}, s{t+3} offen{sc1}
L_special_ret:
    s_nop 1
    s_setpc_b64 {sr(sLink,2)}
""")

def spin(A, soff, name, back):
    A(f"""
L_{name}:
    s_mov_b32 s{sT+5}, 0x40000
L_{name}_l:
    {poll_ld(soff)}
    s_sub_u32 s{sT+5}, s{sT+5}, 1
    s_cbranch_scc1 {back}
    s_waitcnt vmcnt(0)
""")
    A.many(flag_min())
    A(f"""
    v_cmp_eq_u32 vcc, 0, v{vPoll}
    s_cbranch_vccz {back}
    s_sleep 8
    s_branch L_{name}_l
""")

def phase1(A):
    t = sT
    stamp(A, 0)
    pref = "" if common.OPT.get("nopref") else f"""
    s_mov_b64 {sr(sH,2)}, {sr(sLink,2)}
    s_mov_b32 s{sH+2}, L_jobtab-L_pc1
    s_mov_b32 s{sH+3}, {SRD3}
    v_lshrrev_b32 v2, 4, v0
    v_and_b32 v3, 15, v0
    v_lshlrev_b32 v2, 7, v2
    v_lshl_add_u32 v2, v3, 28, v2
    s_lshr_b32 s{t+1}, s2, 3
    s_lshl_b32 s{t+1}, s{t+1}, 11
    buffer_load_dword v4, v2, {sr(sH,4)}, s{t+1} offen
"""
    A(f"""
    s_cmp_ge_u32 s2, 256
    s_cbranch_scc1 L_end
    s_load_dwordx16 s[4:19], s[0:1], 0
    s_load_dwordx8 s[20:27], s[0:1], 64
    s_load_dwordx2 s[28:29], s[0:1], 96
    s_getpc_b64 {sr(sLink,2)}
L_pc1:
    s_bfe_u32 s{sXq}, s2, 0x20001
    s_lshr_b32 s{sQi}, s2, 6
    s_lshl_b32 s{t}, s{sXq}, 2
    s_add_u32 s{t}, s{t}, s{sQi}            ; jg
    s_lshl_b32 s{t+1}, s{t}, 3
    s_add_u32 s{t+1}, s{t+1}, L_jobtab-L_pc1
    s_load_dwordx2 {sr(sTab,2)}, {sr(sLink,2)}, s{t+1}
    {pref}
    v_lshrrev_b32 v1, 6, v0
    v_and_b32 v{vLane}, 63, v0
    v_readfirstlane_b32 s{sWave}, v1
    v_lshlrev_b32 v{vLane16}, 4, v{vLane}
    s_and_b32 s{t}, s{t}, 11
    s_cmp_eq_u32 s{t}, 3
    s_cselect_b32 s{sSpecial}, 1, 0
    s_and_b32 s{t}, s2, 1
    s_lshl_b32 s{t}, s{t}, 3
    s_bfe_u32 s{t+1}, s2, 0x30003
    s_add_u32 s{sTb}, s{t}, s{t+1}
    s_lshl1_add_u32 s{t}, s{sQi}, s{t+1}
    s_and_b32 s{sRot}, s{t}, 7
    v_lshrrev_b32 v{vR8}, 3, v{vLane}
    v_and_b32 v1, 7, v{vLane}
    s_lshl_b32 s{sM0}, s{sWave}, 12
    s_lshr_b32 s{t+2}, s{sWave}, 1
    s_and_b32 s{t+3}, s{sWave}, 1
    v_and_b32 v2, 2, v{vR8}
    v_xor_b32 v2, v1, v2
    s_lshl_b32 s{t+4}, s{t+3}, 2
    v_xor_b32 v2, s{t+4}, v2
    v_lshlrev_b32 v{vC16}, 4, v2
    v_lshrrev_b32 v2, 1, v{vR8}
    v_xor_b32 v2, v1, v2
    v_lshlrev_b32 v2, 4, v2
    v_mul_u32_u24 v3, 1152, v{vR8}
    v_add_u32 v{vXd}, v2, v3
    v_xor_b32 v2, 64, v{vXd}
    v_add_u32 v{vXd+1}, {8*1152-1024}, v2
    v_add_u32 v{vXd+2}, {2*(8*1152-1024)}, v{vXd}
    v_add_u32 v{vXd+3}, {3*(8*1152-1024)}, v2
    s_lshl_b32 s{t+4}, s{sTb}, 2
    s_add_u32 s{t+4}, s{t+4}, s{sWave}
    s_mul_i32 s{sXb}, s{t+4}, {32*1152}
    s_lshl_b32 s{t+5}, s{sRot}, 7
    s_add_u32 s{sXc}, s{sXb}, s{t+5}
    s_mov_b32 s{sX+2}, {2048*1152}
    s_mov_b32 s{sX+3}, {SRD3}
    s_mov_b32 s{sW+3}, s{sX+3}
    s_mov_b32 s{sW+2}, {WG_SIZE}
    s_movk_i32 s{t+4}, 9216
    v_mad_u32_u24 v{vDma}, v{vR8}, s{t+4}, v{vC16}
    s_mov_b32 s{nD}, {16*9216-1024}
    s_mov_b32 s{sStep}, {64*9216}
    v_add_u32 v{vDma+1}, s{nD}, v{vDma}
    s_mul_i32 s{sRowOff}, s{t+3}, {8*9216}
    v_add_u32 v{vDma+2}, s{nD}, v{vDma+1}
    s_mul_i32 s{nStart}, s{sRot}, s{sStep}
    v_add_u32 v{vDma+3}, s{nD}, v{vDma+2}
    s_add_u32 s{sXend}, s{sXb}, 1024
    s_waitcnt lgkmcnt(0)
    s_mov_b64 {sr(sX,2)}, {sr(S_X,2)}
""")
    vm = Counter(63)
    if common.OPT.get("fine"): stamp(A, 27)
    put_elems(A, vm, range(0, 4))
    A(f"""
    s_cmp_lt_u32 s{sWave}, 2
    s_cselect_b64 {sr(sFb,2)}, {sr(S_WG,2)}, {sr(S_WU,2)}
    s_cselect_b64 {sr(sW,2)}, {sr(S_WG,2)}, {sr(S_WU,2)}
    s_bfe_u32 s{t}, s{sTab}, 0x80008
    s_lshl_b32 s{t+1}, s{t}, 7
    s_add_u32 s{sBase}, s{t+1}, s{sRowOff}
    s_add_u32 s{t+5}, s{sBase}, s{nStart}
    s_lshl3_add_u32 s{sEnd}, s{sStep}, s{sBase}
    v_mov_b32 v{vF}, v{vDma}
    s_cmp_eq_u32 s{sSpecial}, 0
    s_cbranch_scc0 L_sp_first
L_sp_first_ret:
""")
    put_elems(A, vm, range(4, 12))
    if common.OPT.get("fine"): stamp(A, 28)
    A(f"""
    s_mov_b32 s{sOff}, s{t+5}
    s_cmp_eq_u32 s{sSpecial}, 0
    s_cbranch_scc0 L_sp_skip
    s_bfe_u32 s{t}, s{sTab}, 0x80010
    s_lshl_b32 s{t+1}, s{t}, 7
    s_add_u32 s{nOff}, s{t+1}, s{sRowOff}
    s_add_u32 s{nStart}, s{nStart}, s{nOff}
    s_mov_b32 s{nStep}, s{sStep}
    s_mov_b64 {sr(sWn,2)}, {sr(sFb,2)}
    s_mov_b32 s{sWn+2}, s{sW+2}
    v_mov_b32 v{vNext}, v{vF}
L_sp_skip:
""")
    W = sPar
    A(f"""
    s_mov_b64 {sr(sWS,2)}, {sr(S_WS,2)}
    s_mov_b32 s{sWS+2}, {WS_SIZE}
    s_mov_b32 s{sWS+3}, {SRD3}
    s_mov_b64 {sr(sDB,2)}, {sr(S_DBG,2)}
    s_movk_i32 s{sDB+2}, 256
    s_mov_b32 s{sDB+3}, {SRD3}
    s_mov_b32 s{sOUT+2}, {2048*1152}
    s_mov_b32 s{sOUT+3}, {SRD3}
    s_mov_b64 {sr(sH,2)}, {sr(S_WS,2)}
    s_mov_b32 s{sH+2}, {WS_SIZE}
    s_mov_b32 s{sH+3}, {SRD3}
    s_mov_b64 {sr(sPD,2)}, {sr(S_WS,2)}
    s_mov_b32 s{sPD+3}, {SRD3}
    s_mov_b32 s{sP+3}, {SRD3}
    s_mov_b32 s{sC2}, {f2u(GC2):#x}
    v_mov_b32 v{vC1}, {f2u(GC1):#x}
    s_mov_b32 s{sWn+3}, {SRD3}
    s_lshl_b32 s{W}, s2, 2
    s_add_u32 s{W}, s{W}, s{sWave}
    s_lshr_b32 s{t+2}, s{sWave}, 1
    s_and_b32 s{t+3}, s{sWave}, 1
    s_lshl_b32 s{t}, s{sTb}, 1
    s_add_u32 s{t}, s{t}, s{t+2}
    s_mul_i32 s{sHbase}, s{t}, {HO_G}
    s_lshl_b32 s{t}, s{t+3}, 12
    s_add_u32 s{sHbase}, s{sHbase}, s{t}
    v_and_b32 v32, 3, v{vLane}              ; c
    v_lshrrev_b32 v33, 1, v32
    v_and_b32 v32, 1, v32
    v_lshl_add_u32 v32, v32, 1, v33         ; perm(c)
    v_lshlrev_b32 v32, 3, v32
    v_bfe_u32 v33, v{vLane}, 2, 2           ; r4
    v_lshl_add_u32 v32, v33, 7, v32
    v_bfe_u32 v34, v{vLane}, 4, 1
    v_lshrrev_b32 v35, 5, v{vLane}          ; hh
    v_lshl_add_u32 v36, v34, 5, v32
    v_lshl_add_u32 v36, v35, 10, v36
    s_add_u32 s{t}, s{sM0}, {9*16384}
    v_add_u32 v{vPtr}, s{t}, v36
    v_and_b32 v32, 3, v{vLane}
    v_lshlrev_b32 v32, 3, v32
    v_lshl_add_u32 v32, v33, 7, v32         ; r4*128 + c*8
    v_lshrrev_b32 v33, 1, v33
    v_lshl_add_u32 v33, v34, 1, v33
    s_lshl_b32 s{t}, s{t+3}, 1
    v_xor_b32 v33, s{t}, v33
    v_lshl_add_u32 v32, v33, 5, v32
    v_lshl_add_u32 v32, v34, 12, v32
    v_lshl_add_u32 v{vTR}, v35, 10, v32
    v_xor_b32 v{vTR+1}, 32, v{vTR}
    v_add_u32 v{vTR+2}, {12*4096}, v{vTR}
    v_add_u32 v{vTR+3}, {12*4096}, v{vTR+1}
    v_add_u32 v{vTR+4}, {24*4096}, v{vTR}
    v_add_u32 v{vTR+5}, {24*4096}, v{vTR+1}
    v_and_b32 v37, 31, v{vLane}             ; n32
    v_and_b32 v38, 15, v{vLane}             ; n16
    v_bfe_u32 v33, v{vLane}, 1, 3
    v_lshrrev_b32 v39, 4, v{vLane}
    v_xor_b32 v33, v33, v39
    v_lshlrev_b32 v33, 4, v33
    v_lshl_add_u32 v32, v38, 7, v33
    s_lshl_b32 s{t}, s{t+2}, 13
    v_add_u32 v{XR}, s{t}, v32
    v_xor_b32 v{XR+1}, 64, v{XR}
    v_lshlrev_b32 v32, 4, v38
    v_lshl_add_u32 v32, v35, 9, v32
    v_lshl_add_u32 v{vHs}, v34, 11, v32
""")
    for seg in (1, 2):
        for h in range(2): A(f"v_add_u32 v{XR+seg*2+h}, {seg*57344}, v{XR+h}")
    A(f"""
    v_mul_u32_u24 v{vQa}, 1152, v37
    v_lshl_add_u32 v{vQa}, v35, 4, v{vQa}
    v_lshlrev_b32 v{vLane4}, 2, v{vLane}
    v_bfe_u32 v32, v{vLane}, 2, 1
    v_bfe_u32 v33, v{vLane}, 3, 1
    v_lshlrev_b32 v32, 3, v32
    v_lshl_add_u32 v32, v33, 2, v32
    v_and_b32 v33, 0x13, v{vLane}
    v_or_b32 v32, v32, v33
    v_mul_u32_u24 v33, 18, v35
    v_cmp_gt_u32 vcc, 18, v37
    v_add_u32 v32, v32, v33
    v_and_b32 v33, 27, v37
    v_cndmask_b32 v32, 37, v32, vcc
    v_cmp_ne_u32 vcc, 18, v33
    v_mul_u32_u24 v{GX+35}, 12, v37
    s_lshl_b32 s{t+5}, s{sTb}, 2
    s_add_u32 s{t+5}, s{t+5}, s{sXq}
    s_lshl_b32 s{t+5}, s{t+5}, 2
    s_add_u32 s{t+5}, s{t+5}, s{sQi}
    s_lshl_b32 s{t+5}, s{t+5}, 2
    s_add_u32 s{t+5}, s{t+5}, s{sWave}
    s_lshl_b32 s{t+5}, s{t+5}, 1
    v_cndmask_b32 v32, 36, v32, vcc
    v_lshlrev_b32 v{vAV}, 4, v32
    v_add_u32 v5, s{t+5}, v35               ; token
    v_mul_u32_u24 v6, 1152, v5
    v_add_u32 v{GX+36}, v6, v{GX+35}
    v_cmp_eq_u32 vcc, 0, v37
    v_lshlrev_b32 v5, 2, v5
    v_add_u32 v5, {WS_G}, v5
    v_mov_b32 v33, 0x40000000
    v_cndmask_b32 v{GX+26}, v33, v5, vcc
    v_cmp_eq_u32 vcc, 0, v0
    v_mov_b32 v{vOne}, 1
    s_mov_b32 s{sSkip}, 1
    v_cndmask_b32 v{vFlagOff}, v33, 0, vcc
    s_lshl_b32 s{t}, s{sTb}, 2
    s_add_u32 s{t}, s{t}, {F0}
    s_bfe_u32 s{t+1}, s{sTab}, 0x80008
    s_cmp_eq_u32 s{t+1}, 77
    s_cselect_b32 s{sPub}, s{t}, {FOOB}
    ; pack params: ks = W/3, a = W%3
    s_mul_i32 s{t}, s{W}, 21846
    s_lshr_b32 s{t}, s{t}, 16
    s_mul_i32 s{t+1}, s{t}, 3
    s_sub_u32 s{t+1}, s{W}, s{t+1}
    s_mul_i32 s{sPd0}, s{t+1}, {2*WP_T}
    s_mul_i32 s{t+2}, s{t}, 3072
    s_add_u32 s{sPd0}, s{sPd0}, s{t+2}
    s_add_u32 s{sPd0}, s{sPd0}, {WS_WP}
    s_add_u32 s{sPd1}, s{sPd0}, {WP_T}
    s_mov_b32 s{sPD+2}, 0
    s_mul_i32 s{t+1}, s{t+1}, 384
    v_and_b32 v32, 7, v{vLane}
    v_lshlrev_b32 v32, 4, v32
    s_movk_i32 s{t+4}, 1152
    v_mad_u32_u24 v{vPsrc}, v{vR8}, s{t+4}, v32
    s_mov_b64 {sr(sP,2)}, {sr(S_WD,2)}
    s_mov_b32 s{sP+2}, {4608*1152}
    s_mul_i32 s{sPs0}, s{t}, {16*1152}
    s_movk_i32 s{t+3}, {8*1152}
    s_cmp_lt_u32 s{t}, 288
    s_cbranch_scc1 L_pk_done
    s_mov_b64 {sr(sP,2)}, {sr(S_WO,2)}
    s_mov_b32 s{sP+2}, {576*1152}
    s_cmp_lt_u32 s{t}, 324
    s_cselect_b32 s{sP+2}, s{sP+2}, 0
    s_sub_u32 s{t+2}, s{t}, 288
    s_mul_i32 s{t+5}, s{t+2}, 57
    s_lshr_b32 s{t+5}, s{t+5}, 9            ; x = ks'/9
    s_sub_u32 s{t+2}, s{t+2}, s{t+5}        ; 8x + st
    s_mul_i32 s{sPs0}, s{t+2}, {18*1152}
    s_lshr_b32 s{t+2}, s{t+2}, 3
    s_cmp_eq_u32 s{t+2}, s{t+5}
    s_cbranch_scc1 L_pk_done
    s_mul_i32 s{sPs0}, s{t+5}, {144*1152}
    s_add_u32 s{sPs0}, s{sPs0}, {16*1152}
    s_mov_b32 s{t+3}, {72*1152}
    v_lshrrev_b32 v34, 1, v{vR8}
    v_mul_u32_u24 v34, 18, v34
    v_and_b32 v36, 1, v{vR8}
    v_add_u32 v34, v34, v36
    v_mad_u32_u24 v{vPsrc}, v34, s{t+4}, v32
L_pk_done:
    s_add_u32 s{sPs0}, s{sPs0}, s{t+1}
    s_add_u32 s{sPs1}, s{sPs0}, s{t+3}
    s_sub_u32 s{sPs1}, s{sPs1}, 1024
    s_mov_b64 {sr(sLink,2)}, {sr(S_GW,2)}
""")
    g64, head, nt = t, t + 1, t + 2
    D = Asm()
    D(f"""
    s_and_b32 s{t+3}, s{sXq}, 1
    s_lshl_b32 s{g64}, s{sTb}, 1
    s_add_u32 s{g64}, s{g64}, s{t+3}
    s_lshr_b32 s{t+3}, s{sXq}, 1            ; nhalf
    s_lshl_b32 s{head}, s{t+3}, 2
    s_add_u32 s{head}, s{head}, s{sQi}
    s_lshl_b32 s{head}, s{head}, 2
    s_add_u32 s{head}, s{head}, s{sWave}
    s_mul_i32 s{t+3}, s{t+3}, 3
    s_mul_i32 s{t+4}, s{sWave}, {KM}
    s_add_u32 s{t+4}, s{t+4}, {KH}
    s_cmp_eq_u32 s{sQi}, 3
    s_cselect_b32 s{nt}, s{sWave}, s{sQi}
    s_cselect_b32 s{t+4}, 0, s{t+4}
    s_add_u32 s{nt}, s{nt}, s{t+3}
    ; W side
    s_mul_i32 s{t+3}, s{nt}, {WP_T}
    s_add_u32 s{t+3}, s{t+3}, {WS_WP}
    s_mul_i32 s{t+5}, s{t+4}, 3072
    s_add_u32 s{t+5}, s{t+5}, s{t+3}
    s_add_u32 s{sWp}, s{S_WS}, s{t+5}
    s_addc_u32 s{sWp+1}, s{S_WS+1}, 0
    s_mul_i32 s{t+5}, s{sWave}, {9*3072}
    s_add_u32 s{t+5}, s{t+5}, s{t+3}
    s_add_u32 s{t+5}, s{t+5}, {288*3072}
    s_add_u32 s{sWo}, s{S_WS}, s{t+5}
    s_addc_u32 s{sWo+1}, s{S_WS+1}, 0
    ; h side
    s_mul_i32 s{t+3}, s{g64}, {HO_G}
    s_lshl_b32 s{t+5}, s{t+4}, 11
    s_add_u32 s{t+5}, s{t+5}, s{t+3}
    s_add_u32 s{sHp}, s{S_WS}, s{t+5}
    s_addc_u32 s{sHp+1}, s{S_WS+1}, 0
    s_mul_i32 s{t+5}, s{sWave}, {9*2048}
    s_add_u32 s{t+5}, s{t+5}, s{t+3}
    s_add_u32 s{t+5}, s{t+5}, {288*2048}
    s_add_u32 s{sHo}, s{S_WS}, s{t+5}
    s_addc_u32 s{sHo+1}, s{S_WS+1}, 0
    s_lshr_b32 s{t+5}, s{head}, 3
    s_mul_i32 s{t+5}, s{t+5}, {9*2048}
    s_add_u32 s{t+3}, s{t+3}, s{t+5}
    s_add_u32 s{t+3}, s{t+3}, {288*2048}
    s_and_b32 s{t+5}, s{head}, 7
    s_lshl_b32 s{sO1}, s{t+5}, 11
    s_add_u32 s{sO1}, s{sO1}, s{t+3}
    s_lshl_b32 s{sO2}, s{t+5}, 8
    s_add_u32 s{sO2}, s{sO2}, s{t+3}
    s_add_u32 s{sO2}, s{sO2}, {8*2048}
    ; q / g offsets
    s_mul_i32 s{sQoff}, s{g64}, {2*36*1024}
    s_mul_i32 s{t+5}, s{head}, 18
    s_lshr_b32 s{t+5}, s{t+5}, 3
    s_lshl_b32 s{t+5}, s{t+5}, 9
    s_add_u32 s{sQoff}, s{sQoff}, s{t+5}
    s_add_u32 s{sQoff}, s{sQoff}, {WS_Q}
    s_lshl_b32 s{sGoff}, s{g64}, 8
    s_add_u32 s{sGoff}, s{sGoff}, {WS_G}
    s_mul_i32 s{sPart}, s{g64}, 6
    s_add_u32 s{sPart}, s{sPart}, s{nt}
    s_mul_i32 s{sPart}, s{sPart}, {PART_T}
    s_add_u32 s{sPart}, s{sPart}, {WS_PART}
    s_mul_i32 s{sOutOff}, s{g64}, {64*1152}
    s_mul_i32 s{t+5}, s{nt}, 192
    s_add_u32 s{sOutOff}, s{sOutOff}, s{t+5}
    s_lshl_b32 s{t+5}, s{sWave}, 5
    s_add_u32 s{sOutOff}, s{sOutOff}, s{t+5}
    s_bfe_u32 s{t}, s2, 0x30003             ; a
    s_and_b32 s{t+1}, s{sWave}, 1
    s_mul_i32 s{t+2}, s{t}, 72
    s_mul_i32 s{t+3}, s{t+1}, 28
    s_add_u32 s{t+2}, s{t+2}, s{t+3}
    s_mul_i32 s{sTch}, s{t+2}, 9216
""")
    deferred = [l.strip() for l in D.lines if not l.strip().startswith(";")]
    if common.OPT.get("nodefer"): A.many(deferred); deferred = []
    A(f"""
    v_mul_u32_u24 v32, 9216, v{vLane}
    v_cmp_gt_u32 vcc, 36, v{vLane}
    s_nop 1
    v_cndmask_b32 v{vTW}, v33, v32, vcc
    v_lshrrev_b32 v32, 4, v0
    v_and_b32 v34, 15, v0
    v_lshlrev_b32 v32, 7, v32
    v_lshl_add_u32 v32, v34, 28, v32
    s_lshr_b32 s{t+1}, s2, 3
    s_lshl_b32 s{t+1}, s{t+1}, 11
    v_add_u32 v{GX+39}, s{t+1}, v32
    s_cmp_eq_u32 s{W}, 771
    s_cbranch_scc1 L_flaginit
L_flaginit_ret:
""")
    if common.OPT.get("fine"): stamp(A, 29)
    body0(A, vm, deferred)
    A(f"""
L_loop:
    s_cmp_eq_u32 s{sSpecial}, 0
    s_cbranch_scc0 L_sp_odd
L_odd:
""")
    body(A, "o")
    A(f"""
    s_cmp_eq_u32 s{sP+2}, 1
    s_cbranch_scc0 L_first_odd
L_last:
""")
    return body(A, "l")

def phase1_tail(A):
    A(f"""
L_first_odd:
    s_cmp_eq_u32 s{sSpecial}, 0
    s_cbranch_scc0 L_sp_even
L_even:
""")
    body(A, "e")
    A(f"""
    s_cmp_eq_u32 s{sSpecial}, 0
    s_cbranch_scc1 L_odd
    s_mov_b32 s{sPar}, 0
    s_call_b64 {sr(sLink,2)}, L_special
    s_branch L_last
L_sp_odd:
    s_mov_b32 s{sPar}, 0
    s_call_b64 {sr(sLink,2)}, L_special
    s_branch L_odd
L_sp_even:
    s_mov_b32 s{sPar}, 1
    s_call_b64 {sr(sLink,2)}, L_special
    s_branch L_even
""")
    A(f"""
L_sp_first:
    s_call_b64 {sr(sLink2,2)}, L_setup
""")
    for g in switch_ops(): A.many(g)
    A(f"""
    s_mov_b32 s{sT+5}, s{nStart}
    s_bfe_u32 s{sT}, s{sTab}, 0x80010
    s_call_b64 {sr(sLink2,2)}, L_setup
    s_add_u32 s{sXend}, s{sXb}, 1024
    s_branch L_sp_first_ret
""")
    setup_sub(A)
    special_sub(A)
    spin(A, f"s{sPollOff}", "kvspin", "L_kvok")
    A(f"""
L_flaginit:
    v_cmp_lt_u32 vcc, 3, v{vLane}
    v_mov_b32 v12, 0
    v_mov_b32 v13, 0
    v_cndmask_b32 v8, 0, 1, vcc
    v_mov_b32 v14, 0
    v_mov_b32 v15, 0
    v_mov_b32 v9, v8
    v_mov_b32 v10, v8
    v_mov_b32 v11, v8
    s_mov_b32 s{sT}, {WS_FL}
    buffer_store_dwordx4 v[8:11], v{vLane16}, {sr(sWS,4)}, s{sT} offen sc1
    buffer_store_dwordx4 v[12:15], v{vLane16}, {sr(sWS,4)}, s{sT} offen offset:1024 sc1
    buffer_store_dwordx4 v[12:15], v{vLane16}, {sr(sWS,4)}, s{sT} offen offset:2048 sc1
    v_mul_u32_u24 v16, {PART_T}, v{vLane}
    s_mov_b32 s{sT}, {WS_PART + 24576}
    buffer_store_dword v12, v16, {sr(sWS,4)}, s{sT} offen sc1
    s_add_u32 s{sT}, s{sT}, {64*PART_T}
    buffer_store_dword v12, v16, {sr(sWS,4)}, s{sT} offen sc1
    s_add_u32 s{sT}, s{sT}, {64*PART_T}
    buffer_store_dword v12, v16, {sr(sWS,4)}, s{sT} offen sc1
    s_waitcnt vmcnt(0)
    buffer_store_dword v{vOne}, off, {sr(sDB,4)}, 0 sc1
    s_branch L_flaginit_ret
L_inispin:
    s_mov_b32 s{sT+5}, 0x40000
L_inispin_l:
    buffer_load_dword v{GX+34}, off, {sr(sDB,4)}, 0 sc1
    s_sub_u32 s{sT+5}, s{sT+5}, 1
    s_cbranch_scc1 L_iniok
    s_waitcnt vmcnt(0)
    v_cmp_eq_u32 vcc, 0, v{GX+34}
    s_cbranch_vccz L_iniok
    s_sleep 8
    s_branch L_inispin_l
""")

def jobtab(A):
    tab, _, _ = job_table()
    A(".p2align 3")
    A(".type L_jobtab,@object")
    A("L_jobtab:")
    for b in tab:
        A(".byte " + ", ".join(str(x) for x in b))
```

```python
from common import *
import common
import phase1 as p1
from phase1 import (sWS, sDB, sWave, sQi, sT, sM0, sPub, sPollOff, sLink, sTab, sHoff, sHbase, sW, sOff, sStep,
                    sHp, sWp, sHo, sWo, sO1, sO2, sQoff, sGoff, sOUT, sPart, sOutOff,
                    vLane, vLane16, vLane4, vFlagOff, vPoll, vOne, vT, vQa, vAV, vDma, LEAD,
                    F0, F2, F4, FOOB, poll_ld, flag_min)
GACC = 0
Q1 = [96, 100]; Q2 = [[104, 106], [108, 110]]
S = [112, 128]; P = [144, 152]; O = [160, 176]
K1 = [192, 196]; V = [200, 208]; K2 = [216, 220]
AK, AK2, AV = 224, 225, vAV
vO = [226, 227, 228, 229]
vG = [231, 232]
vQt = [236, 237]
vZ = 238
ZP = 246
WOA = 140
sIt, sNA = 36, 37
vPf = 251
vW = [235, 234, 238]

def gld(dst, base, byteoff):
    j = byteoff // 8192
    return f"global_load_dwordx4 {dst}, v{vO[j]}, {sr(base,2)} offset:{byteoff - j*8192 - 4096} sc1"
def stage(s): return 20 * s
def gacc(n, c): return vr(GACC + (c * 3 + n) * 16, 16)
def g_mfma(st, n, c):
    return mfma16(gacc(n, c), ar(stage(st) + 8 + 4 * n, 4), ar(stage(st) + 4 * c, 4), gacc(n, c))
def ld_h(st, ks, i): return gld(ar(stage(st) + 4 * i, 4), sHp, ks * 2048 + i * 1024)
def ld_w(st, ks, n): return gld(ar(stage(st) + 8 + 4 * n, 4), sWp, ks * 3072 + n * 1024)
def wo_reg(ks, n): return ar(WOA + 12 * ks + 4 * n, 4)
def ld_wo(ks, n): return gld(wo_reg(ks, n), sWo, ks * 3072 + n * 1024)

def pre_lds(k): return [ld_h(4+k, k, 0), ld_h(4+k, k, 1)] + [ld_w(4+k, k, n) for n in range(3)]
def off_k1(t): return (t >> 2) * KV_GS + (t & 3) * 1024
def off_v(t, f): return (t >> 2) * KV_GS + KV_V + (t & 3) * KV_VT + f * KV_VF
def off_k2(g): return g * KV_GS + KV_K2

def qk8(u):
    c, t = u & 1, u >> 1
    return mfma8(vr(S[c], 16), vr(K2[(t // 4) % 2] + 2 * ((t % 4) // 2), 2), vr(Q2[c][t % 2], 2), "0")
def qk16(u):
    c, t = u & 1, u >> 1
    return mfma16(vr(S[c], 16), vr(K1[t % 2], 4), vr(Q1[c], 4), vr(S[c], 16))
def pv(u, f):
    c, t = u & 1, u >> 1
    return mfma16(vr(O[c], 16), vr(V[t % 2] + 4 * f, 4), vr(P[c] + 4 * f, 4), vr(O[c], 16))
def zero16(r): return mfma8(vr(r, 16), vr(ZP, 2), vr(ZP, 2), "0")

def kv_dma(r):
    o, ld = p1.kv_dma(r)
    return o + [ld]
KVT = 40
WOT = 0
XT = 4
PRT = 1

def att_body(A, kind):
    ops = []
    def E(u, i): return f"v_exp_f32 v{S[u&1]+i}, v{S[u&1]+i}"
    def Cv(u, i): return f"v_cvt_pk_bf16_f32 v{P[u&1]+i}, v{S[u&1]+2*i}, v{S[u&1]+2*i+1}"
    kvr = list(range(KVT, 40))
    wol = [x for k in range(PRT, 3) for x in pre_lds(k)] + [ld_wo(k, n) for k in range(WOT, 9) for n in range(3)]
    nA = len(wol) - 4 * XT
    wol = wol[:nA] if kind == 'A' else wol[nA:]
    for u in range(16):
        c, t = u & 1, u >> 1
        kd = kind if kind != 'LM' else ('A' if t < XT else 'L' if t < XT + 4 else 'M')
        st = t % 4
        valu = [[E(u,0), E(u,1), Cv(u-1,7)], [E(u,2), E(u,3), E(u,4), Cv(u,0)], [E(u,5), E(u,6), Cv(u,1)],
                [E(u,7), E(u,8), Cv(u,2), Cv(u,3)], [E(u,9), E(u,10), E(u,11)], [E(u,12), E(u,13), Cv(u,4)],
                [E(u,14), E(u,15), Cv(u,5), Cv(u,6)]]
        G = [g_mfma(st, n, c) for n in range(3)] if kd == 'M' else [None] * 3
        M = [G[0], qk8(u + 1), pv(u - 1, 1), qk16(u + 1), G[1], pv(u, 0), G[2]]
        mem = [[] for _ in range(7)]
        rv0 = f"ds_read_b128 {vr(V[(t+1)%2],4)}, v{AV} offset:{off_v(t+1,0)}"
        rv1 = f"ds_read_b128 {vr(V[(t+1)%2]+4,4)}, v{AV} offset:{off_v(t+1,1)}"
        rk1 = f"ds_read_b128 {vr(K1[t%2],4)}, v{AK} offset:{off_k1(t+2)}"
        rk2 = [f"ds_read_b128 {vr(K2[(t//4+1)%2],4)}, v{AK2} offset:{off_k2(t//4+1)}"] if t % 4 == 1 else []
        if kd == 'M':
            if c == 0:
                mem[0] += [rv0]; mem[2] += [rv1]; mem[5] += [rk1]; mem[4] += rk2
            else:
                mem[0] += [ld_h(st, t, 0)]; mem[2] += [ld_w(st, t, 0)]; mem[5] += [ld_w(st, t, 1)]
                mem[6] += [ld_w(st, t, 2), ld_h(st, t, 1), "s_waitcnt vmcnt(15) lgkmcnt(0)"]
        else:
            if c == 0:
                mem[1] += [rv0]; mem[2] += [rv1]; mem[3] += [rk1]; mem[5] += rk2
            if kd == 'L':
                if c == 0: mem[5] += [ld_h(st, t, 0)]
                else:
                    mem[1] += [ld_w(st, t, 0)]; mem[2] += [ld_w(st, t, 1)]; mem[3] += [ld_w(st, t, 2)]; mem[5] += [ld_h(st, t, 1)]
            else:
                for g in ((5,) if c == 0 else (2, 3, 5)):
                    if wol: mem[g] += [wol.pop(0)]
            if c == 1:
                mem[5] += ["s_waitcnt vmcnt(15) lgkmcnt(0)" if (kd == 'L' and t == XT + 3) else "s_waitcnt lgkmcnt(0)"]
        if kind == 'LM' and u == 15: mem[6 if kd == 'M' else 5] += [poll_ld(f"s{sPollOff}")]
        if u == 15:
            valu[3] = valu[3] + [f"v_add_u32 v{AK}, {2*KV_GS}, v{AK}", f"v_add_u32 v{AV}, {2*KV_GS}, v{AV}", f"v_add_u32 v{AK2}, {2*KV_GS}, v{AK2}"]
        for g in range(7):
            if M[g]: ops.append(M[g])
            ops += mem[g] + valu[g]
    if kind != 'M': assert not kvr and not wol, (kvr, wol)
    if kind == 'M':
        O_ = common.OPT
        if O_.get("mnold"): ops = [x for x in ops if not x.startswith("global_load")]
        if O_.get("mnog"): ops = [x for x in ops if not (x.startswith("v_mfma") and ", a[" in x)]
        if O_.get("mnoexp"): ops = [("v_nop\n s_nop 0" if x.startswith("v_exp") else x) for x in ops]
        if O_.get("mnoatt"): ops = [x for x in ops if not (x.startswith("v_mfma") and ", a[" not in x)]
        if O_.get("mnosc1"): ops = [x.replace(" sc1", "") for x in ops]
        if O_.get("mnt"): ops = [x.replace(" sc1", " sc1 nt") for x in ops]
        if O_.get("ml1"):
            import re
            ops = [re.sub(r"v22\d, (s\[\d+:\d+\]) offset:-?\d+ sc1", r"v226, \1 offset:0", x) if x.startswith("global_load") else x for x in ops]
        if O_.get("mpad"): ops = [(x + f"\n s_nop {O_['mpad']-1}" if x.startswith("v_mfma_f32_32x32x8") else x) for x in ops]
    A.many(ops)
    if kind != 'A' and not common.OPT.get('mfix'):
        A(f"""
    s_add_u32 s{sHp}, s{sHp}, {8*2048}
    s_addc_u32 s{sHp+1}, s{sHp+1}, 0
    s_add_u32 s{sWp}, s{sWp}, {8*3072}
    s_addc_u32 s{sWp+1}, s{sWp+1}, 0
""")
    stamp(A, "next")

def set_bias(c, m):
    a, b, d = vT, vT+1, vT+4
    return f"""
    v_and_b32 v{a}, 0xffff0000, v{m}
    v_sub_f32 v{b}, v{m}, v{a}
    v_and_b32 v{d}, 0xffff0000, v{b}
    v_sub_f32 v{b}, v{b}, v{d}
    v_lshrrev_b32 v{a}, 16, v{a}
    v_or_b32 v{a}, v{a}, v{d}
    v_xor_b32 v{a}, 0x80008000, v{a}
    v_lshrrev_b32 v{b}, 16, v{b}
    v_xor_b32 v{b}, 0x8000, v{b}
    v_cndmask_b32 v{Q2[c][0]}, v{a}, v{vQt[c]}, vcc
    v_cndmask_b32 v{Q2[c][0]+1}, v{b}, 0, vcc
    v_cndmask_b32 v{Q2[c][1]}, v{a}, 0, vcc
    v_cndmask_b32 v{Q2[c][1]+1}, v{b}, v{vQt[c]}, vcc
"""
def max16(s, dst, first):
    o = []
    if first:
        o.append(f"v_max3_f32 v{dst}, v{s}, v{s+1}, v{s+2}")
        for i in range(3, 15, 2): o.append(f"v_max3_f32 v{dst}, v{dst}, v{s+i}, v{s+i+1}")
        o.append(f"v_max_f32 v{dst}, v{dst}, v{s+15}")
    else:
        for i in range(0, 16, 2): o.append(f"v_max3_f32 v{dst}, v{dst}, v{s+i}, v{s+i+1}")
    return o
def half_max(m, tmp):
    return [f"v_mov_b32 v{tmp}, v{m}", "s_nop 1", f"v_permlane32_swap_b32 v{m}, v{tmp}", "s_nop 1", f"v_max_f32 v{m}, v{m}, v{tmp}"]

def transition(A, vm):
    t = sT
    def put(ins, tag=None):
        if ins.startswith(("buffer_", "global_")): vm.issue(tag)
        A(ins)
    stamp_set(A, 12)
    A(f"""
    s_bfe_u32 s{t+2}, s{sTab}, 0x80008
    s_mov_b32 s{p1.sH+2}, {WS_SIZE}
    s_lshl_b32 s{t+2}, s{t+2}, 13
    s_add_u32 s{sHoff}, s{sHbase}, s{t+2}
    s_add_u32 s{t+1}, s{sQoff}, {36*1024}
    v_and_b32 v{vT+4}, 0x7c, v{vLane4}
    v_lshl_add_u32 v{vT+5}, s{sWave}, 2, v{vLane16}
    s_waitcnt vmcnt({vm.need('poll')})
    s_barrier
    {flag_min()[0]}
    {flag_min()[1]}
    v_cmp_eq_u32 vcc, 0, v{vPoll}
    s_cbranch_vccnz L_qspin
L_qok:
""")
    fs = lambda i: stamp(A, i) if (common.OPT.get("fine") or common.OPT.get("fine2")) else None
    fs(50)
    for c in range(2):
        so = sQoff if c == 0 else t + 1
        put(f"buffer_load_dwordx4 {vr(S[0]+8*c,4)}, v{vLane16}, {sr(sWS,4)}, s{so} offen sc1", "q")
        put(f"buffer_load_dwordx4 {vr(S[0]+8*c+4,4)}, v{vLane16}, {sr(sWS,4)}, s{so} offen offset:512 sc1", "q")
        put(f"buffer_load_dword v{vQt[c]}, v{vT+5}, {sr(sWS,4)}, s{so} offen offset:1024 sc1", "q")
        put(f"buffer_load_dword v{vG[c]}, v{vT+4}, {sr(sWS,4)}, s{sGoff} offen offset:{128*c} sc1", "q")
    A(f"""
    v_min_u32 v{AK2}, 512, v{vLane16}
    v_mov_b32 v{ZP}, 0
    v_mov_b32 v{ZP+1}, 0
    s_mov_b32 s{sIt}, 0
    ds_read_b128 {vr(K1[0],4)}, v{vLane16} offset:{off_k1(0)}
    ds_read_b128 {vr(K2[0],4)}, v{AK2} offset:{off_k2(0)}
    ds_read_b128 {vr(K1[1],4)}, v{vLane16} offset:{off_k1(1)}
    ds_read_b128 {vr(V[0],4)}, v{AV} offset:{off_v(0,0)}
    ds_read_b128 {vr(V[0]+4,4)}, v{AV} offset:{off_v(0,1)}
""")
    A(zero16(O[0]))
    A(f"v_mov_b32 v{AK}, v{vLane16}")
    for j in range(4): A(f"v_add_u32 v{vO[j]}, {4096 + j*8192}, v{vLane16}")
    for r in [P[1] + 4 + i for i in range(4)] + [V[1] + 4 + i for i in range(4)]: A(f"v_mov_b32 v{r}, 0")
    A(zero16(O[1]))
    A(f"v_mov_b32 v88, v{p1.vHs}") if False else None
    A(f"s_mov_b32 s{p1.sC2-1}, s{p1.sC2}")
    blocks = p1.gelu_pk(64, 80) if not common.OPT.get('nopk') else p1.gelu_ops(0, 64, 80, True)
    groups = [sum((kv_dma(r) for r in range(r0, r0 + 4)), []) for r0 in range(p1.KVL, KVT, 4)]
    for k in range(PRT): groups.append(pre_lds(k))
    sent = [f"v_mov_b32 v{88+i}, -1" for i in range(4)] + [
        f"buffer_store_dwordx4 v[88:91], v{vLane16}, {sr(sWS,4)}, s{sO1} offen sc1",
        f"buffer_store_dwordx4 v[88:91], v{vLane16}, {sr(sWS,4)}, s{sO1} offen offset:1024 sc1",
        f"buffer_store_dword v88, v{vLane4}, {sr(sWS,4)}, s{sO2} offen sc1"]
    groups.insert(common.OPT.get("sentpos", 3), sent)
    for k in range(WOT): groups.append([ld_wo(k, n) for n in range(3)])
    def run_block(ops, ndma):
        for i, ins in enumerate(ops):
            if i == 22 and groups:
                for x in groups.pop(0): put(x)
            put(ins)
    nper = 0
    fs(51)
    run_block(blocks[0], nper)
    fs(52)
    run_block(blocks[1], nper)
    fs(53)
    A(f"v_cmp_gt_u32 vcc, 32, v{vLane}")
    A(f"s_waitcnt vmcnt({vm.need('q')}) lgkmcnt(0)")
    fs(54)
    A(zero16(GACC))
    A(f"s_set_gpr_idx_on s{sWave}, gpr_idx(SRC0)")
    A("s_nop 0")
    for c in range(2):
        for i in range(4): A(f"v_mov_b32 v{Q1[c]+i}, v{S[0]+8*c+i}")
    A("s_set_gpr_idx_off")
    for c in range(2):
        A(f"v_cndmask_b32 v{Q2[c][0]}, 0, v{vQt[c]}, vcc")
        A(f"v_mov_b32 v{Q2[c][0]+1}, 0")
    for c in range(2):
        w = vW[2 * c]
        A.many([f"v_sub_f32 v{w}, 1.0, v{vG[c]}", f"v_max_f32 v{w}, {f2u(2.0**-40):#x}, v{w}", f"v_rcp_f32 v{vT+c}, v{w}"])
    A("s_nop 0")
    for c in range(2): A(f"v_mul_f32 v{vG[c]}, v{vG[c]}, v{vT+c}")
    b2 = blocks[2]
    ins_at = {16: qk8(0), 19: qk8(1), 28: qk16(0), 31: qk16(1), 40: zero16(GACC + 16)}
    nb2 = []
    for i, ins in enumerate(b2):
        if i in ins_at: nb2.append(ins_at[i])
        nb2.append(ins)
    run_block(nb2, nper)
    fs(55)
    for c in range(2):
        A.many(max16(S[c], S[c], True)); A.many(half_max(S[c], S[c] + 1)); A(set_bias(c, S[c]))
    b3 = blocks[3]
    ins_at = {16: qk8(0), 19: zero16(GACC + 32), 28: qk16(0)}
    nb3 = []
    for i, ins in enumerate(b3):
        if i in ins_at: nb3.append(ins_at[i])
        nb3.append(ins)
    fs(56)
    run_block(nb3, nper)
    fs(57)
    assert not groups
    A(f"""
    s_lshl_b32 s{t}, s{sQi}, 2
    s_add_u32 s{t}, s{t}, s{sWave}
    s_cmp_eq_u32 s{t}, 15
    s_cselect_b32 s{sNA}, 8, 1
""")
    A.many([zero16(GACC + 48), zero16(GACC + 64), zero16(GACC + 80)])
    stamp(A, "next")

def main_loop(A):
    t = sT
    A("L_itA:")
    att_body(A, 'A')
    A(f"""
    s_add_u32 s{sIt}, s{sIt}, 1
    s_cmp_eq_u32 s{sIt}, 1
    s_cbranch_scc0 L_idle_next
    s_mov_b32 s{sPollOff}, {F4}
    s_lshl_b32 s{sPub}, s2, 2
    s_add_u32 s{sPub}, s{sPub}, {F4}
    s_waitcnt vmcnt({3*(9-WOT) + 5*(3-PRT) - 4*XT})
    s_barrier
    buffer_store_dword v{vOne}, v{vFlagOff}, {sr(sWS,4)}, s{sPub} offen sc1
    s_cmp_eq_u32 s{sNA}, 1
    s_cbranch_scc0 L_itA
    s_mov_b32 s{sIt}, 0
    s_cmp_eq_u32 s{sQi}, 3
    s_cselect_b32 s{t}, {XT}, {XT-3}
    s_lshl_b32 s{t+1}, s{t}, 11
    s_mul_i32 s{t}, s{t}, 3072
    s_ashr_i32 s{t+2}, s{t}, 31
    s_sub_u32 s{sHp}, s{sHp}, s{t+1}
    s_subb_u32 s{sHp+1}, s{sHp+1}, s{t+2}
    s_sub_u32 s{sWp}, s{sWp}, s{t}
    s_subb_u32 s{sWp+1}, s{sWp+1}, s{t+2}
""")
    att_body(A, 'LM')
    A("L_itM:")
    att_body(A, 'M')
    A(f"""
    s_sub_u32 s{sIt}, s{sIt}, 1
    s_cbranch_scc0 L_itM
    s_cmp_eq_u32 s{sNA}, 1
    s_cbranch_scc1 L_hchk
L_done:
""")

NRE = [9, 12, 15, 18, 18, 18]
OL = 96
PL = 168
vL = 236
def ld_o(f):
    c, st = f // 9, f % 9
    if st < 8: return [gld(vr(OL + 4 * f, 4), sHo, st * 2048 + c * 1024)]
    return [f"global_load_dword v{OL + 4*f + j}, v{vL}, {sr(sHo,2)} offset:{j*256 + c*128} sc1" for j in range(4)]

ST = [192, 200]
vR = 230
def o_valu(c):
    o = O[c]
    ops = [f"v_rcp_f32 v{vR}, v{o+10}", "s_nop 0", f"v_mul_f32 v{vR}, v{vR}, v{vG[c]}"]
    ops += [f"v_mul_f32 v{o+i}, v{o+i}, v{vR}" for i in range(10)]
    ops += [f"v_cvt_pk_bf16_f32 v{ST[c]+i}, v{o+2*i}, v{o+2*i+1}" for i in range(5)]
    return ops
def o_stores(c):
    o = [f"buffer_store_dwordx4 {vr(ST[c],4)}, v{vLane16}, {sr(sWS,4)}, s{sO1} offen offset:{c*1024} sc1"]
    if c == 1:
        o += ["s_nop 0", f"v_permlane32_swap_b32 v{ST[0]+4}, v{ST[1]+4}", f"buffer_store_dword v{ST[0]+4}, v{vLane4}, {sr(sWS,4)}, s{sO2} offen sc1"]
    return o

def tail(A):
    t = sT
    vm = Counter(63, [f"x{k}" for k in range(4) for _ in range(5)]); lg = Counter(15)
    def put(ins, tag=None):
        if ins.startswith(("buffer_", "global_")): vm.issue(tag)
        if ins.startswith("ds_"): lg.issue(tag)
        if ins.startswith("L_ook"): NRE[int(ins[5])] = len({x for x in vm.ops if x and x[0] == "o"})
        A(ins)
    fs = lambda i: stamp(A, i) if common.OPT.get("fine3") else None
    order = [4, 5, 6, 0, 1, 2, 3] + [4, 5, 6, 0][:XT]
    OST = common.OPT.get("ost", 8 + 10 * XT)
    fill = {m: [] for m in range(6 * len(order))}
    for j in range(XT):
        st = order[j]
        for i, x in enumerate([ld_h(st, j, 0), ld_h(st, j, 1)] + [ld_w(st, j, n) for n in range(3)]):
            fill[8 + 10 * j + 2 * i].append((x, f"y{j}"))
    def spread(ops, m0, per):
        for i, x in enumerate(ops): fill[m0 + i // per].append((x, None))
    chk = [f"s_mov_b32 s{t+3}, {f2u(2.0**60):#x}", f"v_add_f32 v{vT+3}, v{O[0]+10}, v{O[1]+10}", f"v_cmp_nlt_f32 vcc, v{vT+3}, s{t+3}"]
    v0, v1 = o_valu(0), o_valu(1)
    spread(v0[5:], 0, 6)
    fill[2] += [(x, None) for x in chk]
    fill[3] += [("s_cbranch_vccnz L_fallback", None), ("L_fb_ret:", None)] + [(x, "st") for x in o_stores(0)]
    spread(v1, 4, 6)
    fill[7] += [(x, "st") for x in o_stores(1)]
    misc = [f"s_lshl_b32 s{t}, s{sWave}, 11", f"v_add_u32 v{vT+1}, s{t}, v{vLane16}", f"v_add_u32 v{vT+2}, {6*8192}, v{vT+1}",
            f"s_add_u32 s{t+4}, s{sPart}, s{t}", f"s_lshl_b32 s{t}, s{sWave}, 13", f"v_add_u32 v{vT+3}, s{t}, v{vLane16}",
            f"v_add_u32 v{vT+4}, 0x10000, v{vT+3}", f"v_mov_b32 v{vT+5}, 24576", f"s_mov_b32 s{t+5}, 0x10000",
            f"s_add_u32 s{t+2}, s{sOutOff}, {36864+64}", f"s_movk_i32 s{t+1}, 128"]
    spread(misc, 8, 3)
    spread([f"v_lshrrev_b32 v{vL}, 5, v{vLane}", f"v_mul_u32_u24 v{vL}, {1024-128}, v{vL}", f"v_add_u32 v{vL}, v{vL}, v{vLane4}",
            f"v_add_u32 v{vL}, 0x4000, v{vL}"], 15, 4)
    fill[12] += [(x, None) for x in [f"s_cmp_lt_u32 s{sWave}, 2", f"s_cselect_b32 s{t+1}, s{t+1}, {36864-64}", "s_cselect_b64 vcc, -1, 0"]]
    fill[13] += [(x, None) for x in [f"v_cndmask_b32 v{vW[1]}, v{vW[2]}, v{vW[0]}, vcc", f"s_add_u32 s{t+1}, s{t+1}, s{sOutOff}"]]
    fill[14] += [("s_barrier", None)]
    A(f"v_cvt_pk_bf16_f32 v{P[1]+7}, v{S[1]+14}, v{S[1]+15}")
    A.many(v0[:2])
    A(pv(15, 1))
    A.many(v0[2:5])
    A(f"s_cmp_eq_u32 s{sQi}, 3"); A("s_cbranch_scc1 L_helper_tail")
    olist = list(range(18))
    m = 0
    for k, st in enumerate(order):
        if k >= 7: A(f"s_waitcnt vmcnt({vm.need(f'y{k-7}')})")
        elif st < 4 and st > 0: A(f"s_waitcnt vmcnt({vm.need(f'x{st}')})")
        fs(30 + k)
        for j in range(6):
            A(g_mfma(st, j % 3, j // 3))
            for ins, tag in fill[m]: put(ins, tag)
            if m == OST:
                A(f"s_waitcnt vmcnt({vm.need('st')})"); stamp(A, 21)
            if m >= OST and (m - OST) % common.OPT.get("ostep", 2) == 0 and olist:
                f = olist.pop(0)
                for x in ld_o(f): put(x, f"o{f}")
            m += 1
        pass
    while len(olist) > 9:
        f = olist.pop(0)
        for x in ld_o(f): put(x, f"o{f}")
    stamp(A, 22)
    def check(g):
        r = OL + 12 * g
        pre = [lambda: f"s_waitcnt vmcnt({vm.need(f'o{3*g+2}')})", f"v_max3_u32 v{vT}, v{r}, v{r+1}, v{r+2}"]
        pre += [f"v_max3_u32 v{vT}, v{vT}, v{r+i}, v{r+i+1}" for i in range(3, 11, 2)]
        pre += [f"v_max_u32 v{vT}, v{vT}, v{r+11}", f"v_cmp_eq_u32 vcc, -1, v{vT}"]
        return pre, [f"s_cbranch_vccnz L_ore{g}", f"L_ook{g}:"]
    def wr(q, k): return f"ds_write_b128 v{vT+1+q//6}, {vr(GACC+8*q+4*k,4)} offset:{(q%6)*8192 + k*1024}"
    def rd(i, w, k): return f"ds_read_b128 {vr(32*i + 8*w + 4*k, 4)}, v{vT+3+i//2} offset:{(i%2)*32768 + w*2048 + k*1024}"
    def adds(i):
        b = 32 * i
        return [f"v_add_f32 v{b+r}, v{b+r}, v{b+8+r}" for r in range(8)] + [f"v_add_f32 v{b+16+r}, v{b+16+r}, v{b+24+r}" for r in range(8)] + \
               [f"v_add_f32 v{b+r}, v{b+r}, v{b+16+r}" for r in range(8)]
    pk = lambda op, d, a, b_: f"v_pk_{op}_f32 {vr(d,2)}, {vr(a,2)}, {vr(b_,2)}"
    def padds(i):
        b = 32 * i
        return [pk("add", b+r, b+r, b+8+r) for r in range(0, 8, 2)] + [pk("add", b+16+r, b+16+r, b+24+r) for r in range(0, 8, 2)] + \
               [pk("add", b+r, b+r, b+16+r) for r in range(0, 8, 2)]
    def fin(i):
        b = 32 * i
        so = [sOutOff, t + 1, t + 2][i]
        w = vW[i]
        sel = " op_sel:[0,1] op_sel_hi:[1,1]" if w % 2 else " op_sel_hi:[1,0]"
        return [pk("add", b+r, b+r, PL+8*i+r) for r in range(0, 8, 2)] + [pk("mul", b+r, b+r, w & ~1) + sel for r in range(0, 8, 2)] + \
               [f"v_cvt_pk_bf16_f32 v{b+16+r}, v{b+2*r}, v{b+2*r+1}" for r in range(4)] + \
               [f"buffer_store_dwordx4 {vr(b+16,4)}, v{vQa}, {sr(sOUT,4)}, s{so} offen"]
    seq = [(0, n, st) for st in range(9) for n in range(2)] + [(0, 2, st) for st in range(9)] + \
          [(1, n, st) for n in range(3) for st in range(9)]
    g = {m: [] for m in range(54)}
    def at(m, ops, per=99):
        for i, x in enumerate(ops): g[m + i // per].append(x)
    for i, f in enumerate(olist): at(2 * i, [(x, f"o{f}") for x in ld_o(f)])
    for grp, m0 in ((1, 3), (2, 9), (3, 24), (4, 27), (5, 30)):
        pre, post = check(grp)
        at(m0, pre, 4); at(m0 + 2, post)
    at(17, ["s_nop 7"])
    wpos = [20, 21, 23, 24, 26, 27, 29, 30,  32, 34, 36, 38,  40, 41, 43, 44,  49, 50, 52, 53]
    for i, m0 in enumerate(wpos): at(m0, [(wr(i // 2, i % 2), f"w{i//8}")])
    at(26, [(f"buffer_load_dword v{vPf}, v{vT+5}, {sr(sWS,4)}, s{sPart} offen sc1", "pf")])
    at(33, [lambda: f"s_waitcnt lgkmcnt({lg.need('w0')})", "s_barrier"])
    at(34, [(rd(0, j // 2, j % 2), "r0") for j in range(8)], 4)
    at(37, [lambda: f"s_waitcnt lgkmcnt({lg.need('r0')})"] + adds(0), 5)
    at(42, ["s_waitcnt vmcnt(0)", f"v_cmp_eq_u32 vcc, 0, v{vPf}"]); at(43, ["s_cbranch_vccnz L_pspin", "L_pok:"])
    for i in range(3):
        at([43, 45, 46][i], [(f"buffer_load_dwordx4 {vr(PL+8*i+4*k,4)}, v{vLane16}, {sr(sWS,4)}, s{t+4} offen offset:{k*1024} sc1", f"pl{i}") for k in range(2)]
           + [f"s_add_u32 s{t+4}, s{t+4}, 8192"])
    at(47, [lambda: f"s_waitcnt lgkmcnt({lg.need('w1')})", "s_barrier"])
    at(48, [(rd(1, j // 2, j % 2), "r1") for j in range(8)], 4)
    a1 = adds(1)
    at(51, [lambda: f"s_waitcnt lgkmcnt({lg.need('r1')})"] + a1[:12], 5)
    def emit(x):
        if callable(x): x = x()
        if isinstance(x, tuple): put(*x)
        else: put(x)
    pre, post = check(0)
    for x in pre + post: emit(x)
    for m, (c, n, st) in enumerate(seq):
        A(mfma16(gacc(n, c), wo_reg(st, n), vr(OL + 4 * (c * 9 + st), 4), gacc(n, c)))
        isw = lambda x: isinstance(x, tuple) and x[0].startswith("ds_write")
        for x in [y for y in g[m] if isw(y)] + [y for y in g[m] if not isw(y)]: emit(x)
        if m % 9 == 8: fs(40 + m // 9)
    stamp(A, 23)
    for x in a1[12:]: put(x)
    for j in range(4): put(wr(10 + j // 2, j % 2), "w")
    A(f"s_waitcnt vmcnt({vm.need('pl1')})")
    for x in fin(0): put(x)
    A("s_waitcnt lgkmcnt(0)")
    A("s_barrier")
    stamp(A, 24)
    for j in range(8): put(rd(2, j // 2, j % 2), "r")
    for x in fin(1): put(x)
    A(f"s_waitcnt vmcnt({vm.need('pl2')}) lgkmcnt(0)")
    for x in padds(2) + fin(2): put(x)
    A("L_fin:")
    stamp(A, 25)
    if common.STAMPS: A("s_waitcnt vmcnt(0)")
    stamp(A, 26)

def fallback(A):
    t = sT
    M = [vT + 2, vT + 3]
    def rebase():
        A(f"v_add_u32 v{AK}, {-16*KV_GS & 0xffffffff:#x}, v{AK}")
        A(f"v_add_u32 v{AV}, {-16*KV_GS & 0xffffffff:#x}, v{AV}")
        A(f"v_add_u32 v{AK2}, {-16*KV_GS & 0xffffffff:#x}, v{AK2}")
        A(f"s_mov_b32 s{t}, 16")
    def loop(name, work, needv):
        A(f"L_{name}:")
        A(f"ds_read_b128 {vr(K2[0],4)}, v{AK2} offset:{off_k2(0)}")
        for tt in range(4):
            A(f"ds_read_b128 {vr(K1[tt%2],4)}, v{AK} offset:{off_k1(tt)}")
            if needv:
                for f in range(2): A(f"ds_read_b128 {vr(V[tt%2]+4*f,4)}, v{AV} offset:{off_v(tt,f)}")
            A("s_waitcnt lgkmcnt(0)")
            A.many([qk8(2*tt), qk8(2*tt+1), "s_nop 15", qk16(2*tt), qk16(2*tt+1), "s_nop 15"])
            for c in range(2): work(2*tt + c)
        A(f"v_add_u32 v{AK}, {KV_GS}, v{AK}"); A(f"v_add_u32 v{AV}, {KV_GS}, v{AV}"); A(f"v_add_u32 v{AK2}, {KV_GS}, v{AK2}")
        A(f"s_sub_u32 s{t}, s{t}, 1"); A(f"s_cmp_lg_u32 s{t}, 0"); A(f"s_cbranch_scc1 L_{name}")
    A("L_fallback:")
    A(f"v_cmp_gt_u32 vcc, 32, v{vLane}")
    rebase()
    for c in range(2):
        A(f"v_cndmask_b32 v{Q2[c][0]}, 0, v{vQt[c]}, vcc"); A(f"v_mov_b32 v{Q2[c][0]+1}, 0")
        A(f"v_mov_b32 v{Q2[c][1]}, 0"); A(f"v_cndmask_b32 v{Q2[c][1]+1}, 0, v{vQt[c]}, vcc")
        A(f"v_mov_b32 v{M[c]}, 0xff800000")
    loop("fbmax", lambda u: A.many(max16(S[u & 1], M[u & 1], False)), False)
    for c in range(2):
        A.many(half_max(M[c], vT)); A(set_bias(c, M[c]))
    for i in range(32): A(f"v_mov_b32 v{O[0]+i}, 0")
    rebase()
    def work(u):
        s, p = S[u & 1], P[u & 1]
        for i in range(16): A(f"v_exp_f32 v{s+i}, v{s+i}")
        A("s_nop 0")
        for i in range(8): A(f"v_cvt_pk_bf16_f32 v{p+i}, v{s+2*i}, v{s+2*i+1}")
        A.many(["s_nop 1", pv(u, 0), pv(u, 1)])
    loop("fbexp", work, True)
    A(f"""
    s_nop 15
""")
    A.many(o_valu(0))
    A(f"s_cmp_eq_u32 s{sQi}, 3")
    A("s_cbranch_scc1 L_fb_ret_h")
    A("s_branch L_fb_ret")

def out_of_line(A):
    t = sT
    A(f"""
L_idle_next:
    s_cmp_lt_u32 s{sIt}, 8
    s_cbranch_scc1 L_itA
    s_getpc_b64 {sr(p1.sX,2)}
L_pc3:
    s_sub_u32 s{p1.sX}, s{p1.sX}, L_pc3-L_done
    s_subb_u32 s{p1.sX+1}, s{p1.sX+1}, 0
    s_mov_b32 s{p1.sX+2}, L_fallback-L_done
    v_lshlrev_b32 v{vT}, 7, v{vLane}
    buffer_load_dword v{vPf}, v{vT}, {sr(p1.sX,4)}, 0 offen
    s_branch L_done
L_hchk:
    s_mov_b32 s{sNA}, 0
    s_mov_b32 s{sIt}, 4
    {flag_min()[0]}
    {flag_min()[1]}
    v_cmp_eq_u32 vcc, 0, v{vPoll}
    s_cbranch_vccz L_itM
""")
    p1.spin(A, f"s{sPollOff}", "hspin", "L_itM")
    p1.spin(A, f"s{sPollOff}", "qspin", "L_qok")
    A(f"""
L_helper_tail:
""")
    A.many(o_valu(0)[5:])
    A(f"""
    s_mov_b32 s{t+3}, {f2u(2.0**60):#x}
    v_add_f32 v{vT+3}, v{O[0]+10}, v{O[1]+10}
    v_cmp_nlt_f32 vcc, v{vT+3}, s{t+3}
    s_cbranch_vccnz L_fallback
L_fb_ret_h:
""")
    rest = o_stores(0) + o_valu(1) + o_stores(1)
    for m in range(6 * XT):
        if m and m % 6 == 0:
            assert not rest
            A(f"s_waitcnt vmcnt({5 * (3 - m // 6) + 3})")
        A(g_mfma(m // 6, m % 3, (m % 6) // 3))
        A.many(rest[:5]); rest = rest[5:]
    A.many(rest)
    A(f"""
    s_cmp_eq_u32 s{sWave}, 3
    s_cbranch_scc1 L_fin
    s_nop 4
    v_mov_b32 v{vT+5}, 24576
    s_nop 0
    s_mov_b32 s{t+4}, s{sPart}
    s_nop 3
""")
    for i in range(24):
        if i and i % 4 == 0: A(f"s_add_u32 s{t+4}, s{t+4}, 4096")
        A(f"buffer_store_dwordx4 {vr(GACC+4*i,4)}, v{vLane16}, {sr(sWS,4)}, s{t+4} offen offset:{(i%4)*1024} sc1")
    A(f"""
    s_waitcnt vmcnt(0)
    buffer_store_dword v{vOne}, v{vT+5}, {sr(sWS,4)}, s{sPart} offen sc1
    s_branch L_fin
L_pspin:
    s_sleep 2
    buffer_load_dword v{vPf}, v{vT+5}, {sr(sWS,4)}, s{sPart} offen sc1
    s_sub_u32 s{t+5}, s{t+5}, 1
    s_cbranch_scc1 L_pok
    s_waitcnt vmcnt(0)
    v_cmp_eq_u32 vcc, 0, v{vPf}
    s_cbranch_vccnz L_pspin
    s_branch L_pok
""")
    for g in range(6):
        r = OL + 12 * g
        A(f"L_ore{g}:")
        A(f"s_sleep {common.OPT.get('osleep', 4)}")
        for f in range(3 * g, 3 * g + 3): A.many(ld_o(f))
        A(f"""
    s_sub_u32 s{t+5}, s{t+5}, 1
    s_cbranch_scc1 L_fin
    s_waitcnt vmcnt(0)
    v_max3_u32 v{vT}, v{r}, v{r+1}, v{r+2}
""")
        for i in range(3, 11, 2): A(f"v_max3_u32 v{vT}, v{vT}, v{r+i}, v{r+i+1}")
        A(f"""
    v_max_u32 v{vT}, v{vT}, v{r+11}
    v_cmp_eq_u32 vcc, -1, v{vT}
    s_cbranch_vccnz L_ore{g}
""")
        for f in range(3 * g + 3, NRE[g]): A.many(ld_o(f))
        A(f"s_branch L_ook{g}")
    fallback(A)
```

```python
import sys
from common import *
import common
import phase1 as p1
import phase2 as p2

NAME = "gated_mix__grouped_kv_mqa__glu_gated_geglu__prompt"
def kd(name):
    return f"""
.section .rodata,"a"
.p2align 6
.amdhsa_kernel {name}
  .amdhsa_next_free_vgpr 512
  .amdhsa_next_free_sgpr 102
  .amdhsa_accum_offset 256
  .amdhsa_group_segment_fixed_size 0
  .amdhsa_kernarg_size 104
  .amdhsa_user_sgpr_count 2
  .amdhsa_user_sgpr_kernarg_segment_ptr 1
  .amdhsa_system_sgpr_workgroup_id_x 1
.end_amdhsa_kernel
"""
def head(name):
    return f""".globl {name}
.p2align 12
.p2align 8
.type {name},@function
{name}:
"""
def hdr_comment():
    ref = open(f"cdna_kernels/{NAME}.s.ref").read().split("\n")
    return "\n".join(l for l in ref[:14]) + "\n"
def gen_fused():
    A = Asm()
    vm = p1.phase1(A)
    p2.transition(A, vm)
    p2.main_loop(A)
    p2.tail(A)
    stamp_flush(A, p1.sWS, p1.vLane4, p1.sWave)
    if common.OPT.get("dbgst") is not None:
        A(f"""
    v_readlane_b32 s0, v253, 0
    v_readlane_b32 s1, v253, 20
    s_nop 3
    v_writelane_b32 v253, s1, 8
    v_readlane_b32 s1, v253, 22
    s_nop 3
    v_writelane_b32 v253, s1, 9
    v_readlane_b32 s1, v253, 23
    s_nop 3
    v_writelane_b32 v253, s1, 10
    v_readlane_b32 s1, v253, 26
    s_nop 3
    v_writelane_b32 v253, s1, 11
    v_subrev_u32 v253, s0, v253
    s_lshl_b32 s1, s2, 2
    s_add_u32 s1, s1, s{p1.sWave}
    s_cmp_eq_u32 s1, {common.OPT["dbgst"]}
    s_cbranch_scc0 L_end
    buffer_store_dword v253, v{p1.vLane4}, s[96:99], 0 offen offset:4
""")
    if common.OPT.get("padto"):
        pc = ""
        if "pca" in common.OPT:
            pc = f"""
    v_readlane_b32 s11, v255, {common.OPT["pca"]}
    v_readlane_b32 s12, v255, {common.OPT["pcb"]}
    s_nop 3
    s_sub_u32 s11, s12, s11
    s_lshr_b32 s11, s11, 2
    s_add_u32 s10, s10, s11
"""
        if "pwg" in common.OPT:
            pc += f"""
    s_and_b32 s11, s2, {common.OPT.get("pmask", 255)}
    s_cmp_lg_u32 s11, {common.OPT["pwg"]}
    s_cbranch_scc1 L_end
"""
        A(f"""
    v_readlane_b32 s10, v253, {common.OPT.get("probe", 0)}
    {pc}
    s_cmp_eq_u32 s{p1.sSpecial}, {common.OPT.get("pskip", 5)}
    s_cbranch_scc1 L_end
L_pad:
    s_memrealtime s[0:1]
    s_waitcnt lgkmcnt(0)
    s_sub_u32 s0, s0, s10
    s_cmp_lt_i32 s0, {common.OPT["padto"]}
    s_cbranch_scc1 L_pad
""")
    if common.OPT.get("padmin"):
        A(f"""
    s_mov_b32 s10, {WS_FL + 4096}
    buffer_load_dwordx4 v[0:3], v{p1.vLane16}, s[44:47], s10 offen sc1
    s_waitcnt vmcnt(0)
    s_mov_b32 s11, {common.OPT["padmin"]}
L_pad2:
    s_memrealtime s[0:1]
    s_waitcnt lgkmcnt(0)
    v_sub_u32 v4, s0, v0
    v_sub_u32 v5, s0, v1
    v_sub_u32 v6, s0, v2
    v_sub_u32 v7, s0, v3
    v_max3_u32 v4, v4, v5, v6
    v_max_u32 v4, v4, v7
    v_cmp_le_u32 vcc, s11, v4
    s_cbranch_vccz L_pad2
""")
    A("L_end:")
    A("s_endpgm")
    p2.out_of_line(A)
    p1.phase1_tail(A)
    p1.jobtab(A)
    k = NAME + "_kernel"
    s = hdr_comment()
    s += "; @launch grid=(256,1,1) block=(256,1,1) lds=163840\n"
    s += '.amdgcn_target "amdgcn-amd-amdhsa--gfx950"\n.text\n' + head(k) + A.text() + kd(k)
    return s
if __name__ == "__main__":
    out = sys.argv[1]
    for a in sys.argv[2:]:
        if a == "stamps": common.STAMPS = True
        elif "=" in a:
            k, v = a.split("="); common.OPT[k] = int(v) if v.lstrip("-").isdigit() else v
        else: common.OPT[a] = 1
    if common.OPT.get("lead"): p1.LEAD = p2.LEAD = common.OPT["lead"]
    if common.OPT.get("pb"): p1.PB = common.OPT["pb"]
    if common.OPT.get("ntt"): p1.NT_T = " nt"
    if "xt" in common.OPT: p2.XT = common.OPT["xt"]
    if common.OPT.get("ntw"): p1.NT_W = " nt"
    if common.OPT.get("ntx"): p1.NT_X = " nt"
    if common.OPT.get("ntp"): p1.NT_P = " nt"
    txt = gen_fused()
    import re
    if common.OPT.get("noatom"):
        txt = re.sub(r"    buffer_atomic_or.*\n", "    s_nop 0\n", txt)
        txt = re.sub(r"    s_cbranch_vccnz L_(kvspin_.|qspin)\n", "    s_nop 0\n", txt)
        txt = txt.replace("s_cbranch_vccz L_itM", "s_branch L_itM")
    if common.OPT.get("nopoll"):
        txt = re.sub(r"    buffer_load_dword v240, v250, .*\n(?!    s_sub)", "    s_nop 0\n", txt)
    if common.OPT.get("nosc1h"):
        txt = re.sub(r"(buffer_store_dwordx4 .* s\[(48:51|56:59)\].*) sc1", r"\1", txt)
    def in_odd(f):
        a = txt.index("L_odd:\n"); b = txt.index("L_last:\n")
        return txt[:a] + f(txt[a:b]) + txt[b:]
    if common.OPT.get("xdma"): txt = in_odd(lambda t: re.sub(r"    buffer_load_dwordx4 v22\d.* lds\n", "    s_nop 1\n", t))
    if common.OPT.get("xbar"): txt = in_odd(lambda t: t.replace("    s_barrier\n", "    s_nop 0\n"))
    if common.OPT.get("xvm"): txt = in_odd(lambda t: re.sub(r"    s_waitcnt vmcnt.*\n", "    s_nop 0\n", t))
    if common.OPT.get("xlg"): txt = in_odd(lambda t: re.sub(r"    s_waitcnt lgkmcnt\([1-9].*\n", "    s_nop 0\n", t))
    if common.OPT.get("xst"): txt = in_odd(lambda t: re.sub(r"    buffer_(store|load_dword v251|load_dwordx4 v235).*\n", "    s_nop 1\n", t))
    def in_tail(f):
        a = txt.index("L_ook0:\n"); b = txt.index("L_fin:\n")
        return txt[:a] + f(txt[a:b]) + txt[b:]
    if common.OPT.get("tnow"): txt = in_tail(lambda t: re.sub(r"    ds_write.*\n", "    s_nop 0\n", t))
    if common.OPT.get("tnob"): txt = in_tail(lambda t: t.replace("    s_barrier\n", "    s_nop 0\n"))
    if common.OPT.get("tnov"): txt = in_tail(lambda t: re.sub(r"    s_waitcnt vmcnt.*\n|    s_cbranch.*\n", "    s_nop 0\n", t))
    open(out, "w").write(txt)
```

```python
from common import *
import common
import hazard

S_X, S_WQ, S_WK, S_WV, S_WO, S_WG, S_WU, S_WD, S_GW, S_OUT, S_DBG, S_WS = 4, 6, 8, 10, 12, 16, 18, 20, 22, 24, 26, 28
sW, sWn, nOff, sX, sWS, sH, sP, sPD = 32, 36, 88, 40, 44, 48, 52, 56
sTch = 94
sWave, sOff, sStep, nStep, sHoff, sHbase, sTab, sM0, sRowOff = 60, 61, 62, 63, 64, 65, 66, 68, 69
sPs0, sPs1, sPd0, sPd1, sXc, sXend = 70, 71, 72, 73, 74, 85
sT = 76
sLink, sLink2, sSpecial, sTb, sC2, sFb, sPub, sPar = 82, 84, 86, 87, 89, 90, 92, 93
sXq, sQi = 94, 95
sDB = 96
sBase, sEnd, nStart, sSkip, sRot = 100, 101, 31, 30, 3
sPollOff = 74
nD = 75
sHp, sWp, sHo, sWo = 12, 14, 16, 18
sO1, sO2, sQoff, sGoff = 20, 21, 22, 23
sOUT = 24
sPart, sOutOff = 4, 5
SRD3 = 0x00020000
WG_SIZE = 576 * 9216
LEAD = 12
PB = 4
NT_W = ""
NT_X = ""
NT_P = " nt"
NT_T = ""

ACC = [0, 64]
AF = 128
XT = 152
GT = 184
PK = 200
PF = 208
vDma = 220
vHs = 254
vTR = 224
vTW, vNext, vF, vLane16, vC1, vPsrc, vPtr, vR8, vC16, vFlagOff, vOne, vLane, vQa, vAV = range(230, 244)
vT = 244
vPoll = 244
vLane4 = 250
vDummy = 251
F0, F2, F4, FOOB = WS_FL, WS_FL + 1024, WS_FL + 2048, 0x40000000

def xreg(i):
    return ar(4 * i, 4) if i < 64 else vr(XT + 4 * (i - 64), 4)

def tr_reads(ks, region):
    out = []
    third = min(region // 12, 2)
    blk = ks % 4
    for r in range(4):
        h, rr = r // 2, r % 2
        reg = AF + (ks % 3) * 8 + h * 4 + rr * 2
        off = (region // 4 - third * 3) * 16384 + (blk // 2) * 8192 + h * 2048 + rr * 512
        out.append(f"ds_read_b64_tr_b16 {vr(reg,2)}, v{vTR + third*2 + blk % 2} offset:{off}")
    return out

def gelu_ops(accset, gt=GT, pkb=PK, nops=False):
    blocks = []
    for blk in range(4):
        ops = []
        g = ACC[accset] + 16 * blk; u = g + 8
        t = gt; pk = pkb + 4 * (blk % 2)
        ops += [f"v_mul_f32 v{t+i}, v{g+i}, v{g+i}" for i in range(8)]
        ops += [f"v_fma_f32 v{t+i}, v{t+i}, s{sC2}, v{vC1}" for i in range(8)]
        ops += [f"v_mul_f32 v{t+i}, v{t+i}, v{g+i}" for i in range(8)]
        for i in range(8):
            ops += [f"v_exp_f32 v{t+i}, v{t+i}", f"v_mul_f32 v{g+i}, v{g+i}, v{u+i}"]
        ops += [f"v_add_f32 v{t+i}, 1.0, v{t+i}" for i in range(8)]
        ops += [f"v_rcp_f32 v{t+i}, v{t+i}" for i in range(8)]
        ops += [f"v_mul_f32 v{g+i}, v{g+i}, v{t+i}" for i in range(8)]
        ops += [f"v_cvt_pk_bf16_f32 v{pk+i}, v{g+2*i}, v{g+2*i+1}" for i in (0, 2, 1, 3)]
        if nops: ops += ["s_nop 0"]
        ops += [f"v_permlane16_swap_b32 v{pk}, v{pk+2}", f"v_permlane16_swap_b32 v{pk+1}, v{pk+3}"]
        ops += [f"buffer_store_dwordx4 {vr(pk,4)}, v{vHs}, {sr(sH,4)}, s{sHoff} offen offset:{(blk//2)*1024 + (blk%2)*256} sc1"]
        blocks.append(ops)
    return blocks

def gelu_pk(t, pkb):
    blocks = []
    P = lambda r: vr(r, 2)
    for blk in range(4):
        g = 16 * blk; u = g + 8; pk = pkb + 4 * (blk % 2); R = range(0, 8, 2)
        ops = [f"v_pk_mul_f32 {P(t+i)}, {P(g+i)}, {P(g+i)}" for i in R]
        ops += [f"v_pk_fma_f32 {P(t+i)}, {P(t+i)}, {sr(sC2-1,2)}, {P(vC1)} op_sel_hi:[1,1,0]" for i in R]
        ops += [f"v_pk_mul_f32 {P(t+i)}, {P(t+i)}, {P(g+i)}" for i in R]
        ops += [f"v_pk_mul_f32 {P(g+i)}, {P(g+i)}, {P(u+i)}" for i in R]
        ops += [f"v_exp_f32 v{t+i}, v{t+i}" for i in range(8)]
        ops += [f"v_pk_add_f32 {P(t+i)}, {P(t+i)}, 1.0 op_sel_hi:[1,0]" for i in R]
        ops += [f"v_rcp_f32 v{t+i}, v{t+i}" for i in range(8)]
        ops += [f"v_pk_mul_f32 {P(g+i)}, {P(g+i)}, {P(t+i)}" for i in R]
        ops += [f"v_cvt_pk_bf16_f32 v{pk+i}, v{g+2*i}, v{g+2*i+1}" for i in (0, 2, 1, 3)] + ["s_nop 0"]
        ops += [f"v_permlane16_swap_b32 v{pk}, v{pk+2}", f"v_permlane16_swap_b32 v{pk+1}, v{pk+3}"]
        ops += [f"buffer_store_dwordx4 {vr(pk,4)}, v{vHs}, {sr(sH,4)}, s{sHoff} offen offset:{(blk//2)*1024 + (blk%2)*256} sc1"]
        blocks.append(ops)
    return blocks

def w_dma(region, kpos, first=False):
    o = []
    if region % 4 == 0:
        o = [f"s_add_u32 m0, s{sM0}, {(region//4)*16384}"]
        if kpos == 0: o += [f"s_mov_b32 s{sOff}, s{sEnd}"]
        elif kpos == 4: o += ["s_nop 0" if first else f"s_mov_b32 s{sOff}, s{nStart}"]
        else: o += [f"s_add_u32 s{sOff}, s{sOff}, s{sStep}", f"s_cmp_eq_u32 s{sOff}, s{sEnd}", f"s_cselect_b32 s{sOff}, s{sBase}, s{sOff}"]
    j = region % 4
    return o, f"buffer_load_dwordx4 v{vDma+j}, {sr(sW,4)}, s{sOff} offen offset:{j*1024} sc1{NT_W} lds"

def switch_ops():
    return [[f"s_mov_b64 {sr(sW,2)}, {sr(sWn,2)}", f"s_mov_b32 s{sW+2}, s{sWn+2}", f"s_mov_b32 s{sStep}, s{nStep}", f"v_mov_b32 v{vDma}, v{vNext}"],
            [f"s_mov_b32 s{sBase}, s{nOff}", f"s_lshl3_add_u32 s{sEnd}, s{nStep}, s{nOff}"],
            [f"v_add_u32 v{vDma+1}, s{nD}, v{vDma}", f"v_add_u32 v{vDma+2}, s{nD}, v{vDma+1}", f"v_add_u32 v{vDma+3}, s{nD}, v{vDma+2}"]]

def next_ops():
    t = sT
    return [[f"s_bfe_u32 s{t}, s{sTab}, 0x80018", f"s_lshl_b32 s{t+1}, s{t}, 7", f"s_add_u32 s{nOff}, s{t+1}, s{sRowOff}"],
            [f"s_cmp_lt_u32 s{t}, 72", f"s_cselect_b32 s{sSkip}, 1, 0", f"s_mul_i32 s{t+1}, s{sRot}, {64*9216}"],
            [f"s_add_u32 s{nStart}, s{nOff}, s{t+1}", f"s_lshr_b64 {sr(sTab,2)}, {sr(sTab,2)}, 8"],
            [f"s_mov_b64 {sr(sWn,2)}, {sr(sFb,2)}", f"s_mov_b32 s{sWn+2}, {WG_SIZE}"]]

def poll_ld(soff):
    return f"buffer_load_dwordx4 {vr(vPoll,4)}, v{vLane16}, {sr(sWS,4)}, {soff} offen sc1"
def flag_min():
    return [f"v_min3_u32 v{vPoll}, v{vPoll}, v{vPoll+1}, v{vPoll+2}", f"v_min_u32 v{vPoll}, v{vPoll}, v{vPoll+3}"]

def emit_stream(A, accset, pinned, pre, queue, qstart, vm, lg, qend=140, **_):
    Q = [(x, hazard.parse(x)) for x in queue]
    total = sum(cost(x) for x in queue); done = 0
    hist = []
    ismem = lambda x: x.startswith(("ds_", "buffer_", "global_"))
    def put(ins):
        if callable(ins): ins = ins()
        if ins == "FULL": return 100
        tag = None
        if isinstance(ins, tuple): ins, tag = ins
        if ins.startswith("ds_"): lg.issue(tag)
        if ins.startswith(("buffer_", "global_")): vm.issue(tag)
        A(ins)
        if ins.endswith(":"): return 0
        hist.append(hazard.parse(ins))
        return cost(ins)
    def peek(ins):
        if callable(ins): return "s_waitcnt"
        return ins[0] if isinstance(ins, tuple) else ins
    def ready(i):
        p = Q[i][1]
        for _, e in Q[:i]:
            if e["w"] & (p["r"] | p["w"]) or e["r"] & p["w"] or (e["k"] == "mem" and p["k"] == "mem"): return False
        for d, h in enumerate(reversed(hist[-4:])):
            if h["k"] != "valu" or not (h["w"] & (p["r"] | p["w"])):
                if "data" in h and h["data"] & p["w"] and d < 2: return False
                continue
            need = 1
            if "dpp" in p["op"] or p["op"].startswith("v_permlane"): need = 2
            if h["op"].startswith("v_dot") and p["op"] != h["op"]: need = 3
            if d < need: return False
        return True
    pc = lambda x: 8 if peek(x) == "FULL" else 0 if peek(x).endswith(":") else cost(peek(x))
    free = [max(0, 60 - sum(pc(x) for g in pinned[ks] for x in g)) if qstart <= 4 * ks < qend else 0 for ks in range(36)]
    est = 0
    for ks in range(36):
        for p in pre[ks]: put(p)
        fifo = []
        for m in range(8):
            t, h = m // 2, m % 2
            d = vr(ACC[accset] + 16 * t + 4 * (ks % 4), 4)
            put(f"v_mfma_f32_16x16x32_bf16 {d}, {vr(AF + (ks % 3) * 8 + h * 4, 4)}, {xreg(8 * (ks // 4) + m)}, {'0' if ks < 4 and h == 0 else d}")
            if h == 0: fifo += pinned[ks][t]
            used = 4 if m == 7 else 0
            gap = ks * 4 + m / 2
            backlog = sum(cost(peek(x)) for x in fifo if peek(x) != "FULL" and not peek(x).endswith(":"))
            later = sum(cost(peek(x)) for tt in range(t + 1, 4) for x in pinned[ks][tt] if peek(x) != "FULL" and not peek(x).endswith(":"))
            cap = 8 if backlog + later <= 8 * (8 - m) - 4 else 12
            sparse = backlog + later <= 4 * (8 - m)
            npin = 0
            while fifo and (m == 7 or used + (0 if peek(fifo[0]) == "FULL" or peek(fifo[0]).endswith(":") else cost(peek(fifo[0]))) <= cap):
                if sparse and npin and m != 7 and ismem(peek(fifo[0])): break
                used += put(fifo.pop(0)); npin += 1
            target = total * (sum(free[:ks]) + free[ks] * (m + 1) / 8) / sum(free)
            cap = 12 if done < target - 16 else 8
            while Q and gap >= qstart and done <= target + 16:
                cand = [i for i in range(min(len(Q), 28)) if used + cost(Q[i][0]) <= cap and ready(i)
                        and not (Q[i][1]["k"] == "mem" and hist[-1]["k"] == "valu")]
                if not cand: break
                big = [i for i in cand if cost(Q[i][0]) == 8]
                i = big[0] if big else cand[0]
                c_ = put(Q.pop(i)[0]); used += c_; done += c_
            est += 8 + max(8, min(used, 24))
    assert not Q, f"queue not drained {len(Q)}"
    if common.OPT.get("v"): print("free", sum(free), "queue", total, "est cycles", est)
    stamp(A, "next")

def touch_w():
    return [[f"s_add_u32 s{sT+3}, s{nOff}, s{sTch}", f"s_cmp_eq_u32 s{sSkip}, 0", f"s_cselect_b32 s{sT+3}, {FOOB}, s{sT+3}"],
            [(f"buffer_load_dword v{vDummy}, v{vTW}, {sr(sWn,4)}, s{sT+3} offen{NT_T}", "tch")]]

def kv_dma(r):
    o = []
    if r % 4 == 0:
        o = [f"s_add_u32 m0, s{sM0}, {(r//4)*16384}", f"s_add_u32 s{sEnd}, s{sM0}, {WS_KV + (r//4)*16384}"]
    return o, f"buffer_load_dwordx4 v{vLane16}, {sr(sX,4)}, s{sEnd} offen offset:{(r%4)*1024} sc1 lds"
KVL = 32

def body(A, kind):
    odd, last = kind == "o", kind == "l"
    accset = 1 if odd else 0
    vm = Counter(63); lg = Counter(15, ["k0"]*4 + ["k1"]*4)
    pinned = [[[] for _ in range(4)] for _ in range(36)]
    pre = [[] for _ in range(36)]
    assert LEAD == 12
    bars = {10: "d19", 18: "d31", 30: "d47"} if not last else {10: "d19", 18: "d31", 26: "d35", 32: "v7"}
    for ks in range(36):
        pre[ks].append(lambda ks=ks: f"s_waitcnt lgkmcnt({lg.need(f'k{ks}')})")
        bar = ks in bars
        if bar:
            pinned[ks][0] += [lambda ks=ks: f"s_waitcnt vmcnt({vm.need(bars[ks])})", "s_barrier", "FULL"]
        if last and ks >= 34: continue
        k2 = (ks + 2) % 36
        for r, ins in enumerate(tr_reads(k2, k2)):
            pinned[ks][[1,1,2,3][r] if bar else r].append((ins, f"k{ks+2}"))
    slots = sorted([(k, 2) for k in range(36)] + [(k, 0) for k in range(1, 36, 2)])
    SW = 16
    if not last:
        sw = switch_ops()
        pinned[SW-1][3] += sw[0]; pinned[SW][0] += sw[1]; pinned[SW][3] += sw[2]
    def place(k, g, o, ld):
        if g == 0: pinned[k-1][3] += o
        else: pinned[k][g-1] += o
        pinned[k][g] += [ld]
    for i, (k, g) in enumerate(slots[:24 if last else 36]):
        rho = LEAD + i
        o, ld = w_dma(rho % 36, rho % 36)
        place(k, g, o, (ld, f"d{rho}"))
        if rho == 36: assert (k, g) == (SW, 2)
    if last:
        ks_ = [x for x in slots[24:] if x[0] < 32] + [(32,2), (33,0), (33,2), (34,0), (34,1), (34,3), (35,1), (35,3)]
        assert len(ks_) == KVL
        for r, (k, g) in enumerate(ks_):
            assert (r | 3) <= max(x for x in bars if (x, 0) < (k, g))
            o, ld = kv_dma(r)
            place(k, g, o, (ld, f"v{r}"))
    pinned[0][0] += [f"s_and_b32 s{sT+2}, s{sTab}, 0xff", f"s_lshl_b32 s{sT+2}, s{sT+2}, 13", f"s_add_u32 s{sHoff}, s{sHbase}, s{sT+2}"]
    if odd or last:
        pinned[18][1] += [f"buffer_store_dword v{vOne}, v{vFlagOff}, {sr(sWS,4)}, s{sPub} offen sc1"]
    if odd:
        pinned[26][1] += [f"s_lshl_b32 s{sPub}, s2, 2", f"s_add_u32 s{sPub}, s{sPub}, {F2}", f"s_cmp_lg_u32 s{sP+2}, 1", f"s_cselect_b32 s{sPub}, s{sPub}, {FOOB}"]
    if last:
        pinned[14][0] += flag_min() + [f"v_cmp_eq_u32 vcc, 0, v{vPoll}"]
        pinned[14][1] += [f"s_cbranch_vccnz L_kvspin", f"L_kvok:"]
        pinned[12][0] += [f"s_mov_b64 {sr(sX,2)}, {sr(S_WS,2)}", f"s_mov_b32 s{sX+2}, {WS_KV + 16*KV_GS}"]
        pinned[2][0] += [f"s_mov_b32 s{sPollOff}, {F0}", poll_ld(f"s{sPollOff}")]
        pinned[30][0] += [f"s_mov_b32 s{sPollOff}, {F2}", (poll_ld(f"s{sPollOff}"), "poll")]
    else:
        nx = next_ops()
        for grp, (k, g) in zip(nx, [(17,1), (17,3), (19,1), (19,3)]): pinned[k][g] += grp
        units = [0, 1] if odd else [2]
        pos = [(24,2), (24,3), (25,0), (25,1)]
        for n, u in enumerate(units):
            for e in range(2):
                k, g = pos[2*n + e]
                if e == 0: pinned[k][g] += [f"s_add_u32 m0, s{sM0}, {9*16384 + n*2048}"]
                pinned[k][g] += [f"s_add_u32 s{sT+3}, s{sPs0+e}, {u*128}",
                                 (f"buffer_load_dwordx4 v{vPsrc}, {sr(sP,4)}, s{sT+3} offen offset:{e*1024}{NT_P} lds", "pk")]
        tw = touch_w()
        pinned[24][0] += tw[0]; pinned[24][1] += tw[1]
    for n, u in enumerate([0, 1] if kind == "e" else [2]):
        pf = [PF, GT + 8][n]
        for r in range(4):
            e, rr = r // 2, r % 2
            k, g = [[(10,1), (10,2), (11,1), (11,1)], [(14,3), (14,3), (15,1), (15,1)]][n][r]
            pinned[k][g].append(
                (f"ds_read_b64_tr_b16 {vr(pf + e*4 + rr*2,2)}, v{vPtr} offset:{n*2048 + rr*512 + e*64}", f"p{n}"))
        for e in range(2):
            nb = 2 * u + e
            k, g = [[(12,1), (12,3)], [(22,1), (22,3)]][n][e]
            if n == 0 and e == 0: pinned[k][g].append(lambda: f"s_waitcnt lgkmcnt({lg.need('p0')})")
            pinned[k][g].append(
                f"buffer_store_dwordx4 {vr(pf + e*4, 4)}, v{vLane16}, {sr(sPD,4)}, s{sPd0 + nb//3} offen offset:{(nb%3)*1024} sc1")
    if odd:
        pinned[35][1] += [f"s_cmp_gt_u32 s{sP+2}, 1", f"s_cselect_b32 s{sPD+2}, {WS_SIZE}, 0"]
    elif not last:
        pinned[35][1] += [f"s_mov_b32 s{sP+2}, 1"]
    q = sum(gelu_ops(1 - accset), [])
    emit_stream(A, accset, pinned, pre, q, 4, vm, lg)
    return vm

XR = 64
GX = 80
vXd = 76
sXb = 64
def elem_dma(e):
    region = (e + 8) % 40
    if e < 72 and e % 8 < 4:
        n = e % 8
        o = []
        if n == 0:
            o = [f"s_add_u32 m0, s{sM0}, {(region//4)*16384}"]
            o += [f"s_add_u32 s{sXc}, s{sXc}, 128", f"s_cmp_eq_u32 s{sXc}, s{sXend}", f"s_cselect_b32 s{sXc}, s{sXb}, s{sXc}"] if e > 8 else ["s_nop 0"]
        return o + [(f"buffer_load_dwordx4 v{vXd+n}, {sr(sX,4)}, s{sXc if e >= 8 else sXend} offen offset:{n*1024}{NT_X} lds", f"e{e}")]
    kpos = (e // 8) * 4 + e % 4 if e < 72 else e - 72
    o, ld = w_dma(region, kpos, e < 72)
    return o + [(ld, f"e{e}")]
def x_reads(j, t):
    base = ((8 * j + 8) % 40) * 4096
    seg = base // 57344
    return [f"ds_read_b128 {xreg(8*j + 2*t + h)}, v{XR + seg*2 + h} offset:{base - seg*57344 + t*2048}" for h in range(2)]
def wregion0(ks):
    if ks >= 36: return ks - 36
    return (8 * (ks // 4) + 4 + ks % 4 + 8) % 40
def put_elems(A, vm, es):
    for e in es:
        for ins in elem_dma(e):
            if isinstance(ins, tuple): vm.issue(ins[1]); ins = ins[0]
            A(ins)

def gate_queue():
    a = GX + 24; b = GX + 25
    q = [f"v_mov_b32 v{a}, 0"]
    for i in range(3):
        for k in range(3): q.append(f"v_dot2c_f32_bf16 v{a}, v{GX+4*i+k}, v{GX+12+4*i+k}")
    pass
    for dpp in ("quad_perm:[1,0,3,2]", "quad_perm:[2,3,0,1]", "row_half_mirror", "row_mirror"):
        q += [f"v_add_f32_dpp v{a}, v{a}, v{a} {dpp} row_mask:0xf bank_mask:0xf"]
    q += [f"v_mov_b32 v{b}, v{a}", f"v_permlane16_swap_b32 v{a}, v{b}",
          f"v_add_f32 v{a}, v{a}, v{b}", f"v_mul_f32 v{a}, {f2u(-math.log2(math.e)):#x}, v{a}",
          f"v_exp_f32 v{a}, v{a}", f"v_add_f32 v{a}, 1.0, v{a}", f"v_rcp_f32 v{a}, v{a}",
          f"buffer_store_dword v{a}, v{GX+26}, {sr(sWS,4)}, 0 offen sc1"]
    return q
def body0(A, vm, deferred):
    lg = Counter(15)
    stamp(A, 1)
    if common.OPT.get("padmin"):
        A(f"s_lshl_b32 s0, s2, 2"); A(f"s_add_u32 s0, s0, {WS_FL + 4096}")
        A(f"buffer_store_dword v253, v{vFlagOff}, {sr(sWS,4)}, s0 offen sc1"); vm.issue("pad")
    E0 = common.OPT.get("e0", 24)
    put_elems(A, vm, range(12, E0))
    A(f"s_waitcnt vmcnt({vm.need('e7')})")
    A("s_barrier")
    stamp(A, 2)
    for ins in tr_reads(0, wregion0(0)) + sum((x_reads(0, t) for t in range(4)), []):
        A(ins); lg.issue("k0")
    for ins in tr_reads(1, wregion0(1)):
        A(ins); lg.issue("k1")
    pinned = [[[] for _ in range(4)] for _ in range(36)]
    pre = [[] for _ in range(36)]
    e = E0
    elast = 72 + LEAD - 1
    for ks in range(36):
        pre[ks].append(lambda ks=ks: f"s_waitcnt lgkmcnt({lg.need(f'k{ks}')})")
        j = (ks + 2) // 4
        if ks == 2: pre[ks] = deferred + pre[ks]
        if ks % 4 == 2:
            last = 8 * j + 7 if j < 9 else elast
            if common.OPT.get("fine"):
                pinned[ks][0] += ["s_memtime s[0:1]", "s_waitcnt lgkmcnt(0)", f"v_writelane_b32 v255, s0, {30+2*j}"]
            pinned[ks][0] += [lambda last=last: f"s_waitcnt vmcnt({vm.need(f'e{last}')})", "s_barrier"]
            if common.OPT.get("fine"):
                pinned[ks][0] += ["s_memtime s[0:1]", "s_waitcnt lgkmcnt(0)", f"v_writelane_b32 v255, s0, {31+2*j}"]
        if ks % 4 >= 2 and j < 9:
            s0 = 2 * (ks % 4 - 2)
            xs = x_reads(j, s0) + x_reads(j, s0 + 1)
            for r in range(4): pinned[ks][r // 2].append((xs[r], f"k{4*j}"))
        for r, ins in enumerate(tr_reads((ks + 2) % 36, wregion0(ks + 2))):
            pinned[ks][2 + r // 2 if (ks % 4 >= 2 and j < 9) else r].append((ins, f"k{ks+2}"))
        for m in ((0, 1, 2, 3) if ks < common.OPT.get("fast", 0) else (1, 3)):
            if e <= elast:
                assert e < 40 or e <= 40 + 8 * (j - 1) + 3
                if e == 72:
                    assert m == 1
                    sw = switch_ops()
                    pinned[ks-1][3] += sw[0][:2]; pinned[ks][0] += sw[0][2:] + sw[1]; pinned[ks][2] += sw[2]
                    for i, grp in enumerate(next_ops()): pinned[ks+1+i][2] += grp
                pinned[ks][m] += elem_dma(e); e += 1
                kl = ks
    assert e == elast + 1 and kl <= 33, (e, kl)
    tw = touch_w()
    pinned[kl+1][0] += tw[0]; pinned[kl+1][1] += tw[1]
    if not common.OPT.get("nopref2"):
        pinned[kl+1][2] += [f"s_getpc_b64 {sr(sX,2)}", "L_pc2:", f"s_mov_b32 s{sX+2}, L_jobtab-L_pc2"]
        pinned[kl+1][3] += [f"buffer_load_dword v{vDummy}, v{GX+39}, {sr(sX,4)}, 0 offen"]
    pinned[21][2] += [(f"buffer_load_dword v{GX+34}, off, {sr(sDB,4)}, 0 sc1", "ini")]
    pinned[35][1] += [f"v_cmp_eq_u32 vcc, 0, v{GX+34}"]
    pinned[35][2] += ["s_cbranch_vccnz L_inispin", "L_iniok:"]
    for i in range(3):
        pinned[8 + 4 * i][2] += [(f"global_load_dwordx3 {vr(GX+4*i,3)}, v{GX+36}, {sr(sX,2)} offset:{384*i}", "g")]
        pinned[9 + 4 * i][2] += [(f"global_load_dwordx3 {vr(GX+12+4*i,3)}, v{GX+35}, {sr(sLink,2)} offset:{384*i}", "g")]
    pinned[22][3] += [lambda: f"s_waitcnt vmcnt({vm.need('g')})"]
    emit_stream(A, 0, pinned, pre, gate_queue(), 23 * 4, vm, lg, qend=34 * 4)

def setup_sub(A):
    t = sT
    A(f"""
L_setup:
    s_mov_b64 {sr(sWn,2)}, {sr(sFb,2)}
    s_mov_b32 s{sWn+2}, {WG_SIZE}
    s_movk_i32 s{t+1}, 9216
    s_lshl_b32 s{t+2}, s{t}, 7
    s_mov_b32 s{t+4}, 0
    s_cmp_lt_u32 s{t}, 72
    s_cbranch_scc1 L_setup_fin
    s_cmp_lt_u32 s{t}, 77
    s_cbranch_scc0 L_setup_kv
    s_mov_b64 {sr(sWn,2)}, {sr(S_WQ,2)}
    s_movk_i32 s{t+1}, 1152
    s_sub_u32 s{t+2}, s{t}, 72
    s_lshl_b32 s{t+2}, s{t+2}, 1
    s_lshr_b32 s{t+3}, s{sWave}, 1
    s_add_u32 s{t+2}, s{t+2}, s{t+3}
    s_lshl_b32 s{t+2}, s{t+2}, 7
    s_cmp_lt_u32 s{t+2}, 1152
    s_cselect_b32 s{sWn+2}, {576*1152}, 0
    s_branch L_setup_fin
L_setup_kv:
    s_cmp_eq_u32 s{t}, 77
    s_cbranch_scc0 L_setup_ret
    s_cmp_lt_u32 s{sWave}, 2
    s_cselect_b64 {sr(sWn,2)}, {sr(S_WK,2)}, {sr(S_WV,2)}
    s_sub_u32 s{sWn}, s{sWn}, 3072
    s_subb_u32 s{sWn+1}, s{sWn+1}, 0
    s_movk_i32 s{sWn+2}, {576*36 + 3072}
    s_movk_i32 s{t+1}, 36
    s_mov_b32 s{t+2}, 0
    s_movk_i32 s{t+4}, 3072
L_setup_fin:
    s_lshl_b32 s{nStep}, s{t+1}, 6
    s_lshl_b32 s{nD}, s{t+1}, 4
    s_sub_u32 s{nD}, s{nD}, 1024
    s_and_b32 s{t+3}, s{sWave}, 1
    s_mul_i32 s{t+3}, s{t+3}, s{t+1}
    s_lshl_b32 s{t+3}, s{t+3}, 3
    s_add_u32 s{nOff}, s{t+2}, s{t+3}
    s_mul_i32 s{t+3}, s{sRot}, s{nStep}
    s_add_u32 s{nStart}, s{nOff}, s{t+3}
    v_mad_u32_u24 v{vNext}, v{vR8}, s{t+1}, v{vC16}
    v_add_u32 v{vNext}, s{t+4}, v{vNext}
    s_setpc_b64 {sr(sLink2,2)}
L_setup_ret:
    s_mov_b64 {sr(sWn,2)}, {sr(S_WS,2)}
    s_mov_b32 s{sWn+2}, {WS_SIZE}
    v_mov_b32 v{vNext}, v{vLane16}
    s_setpc_b64 {sr(sLink2,2)}
""")

def special_sub(A):
    sc1 = " sc1"
    t = sT
    A(f"""
L_special:
    s_bfe_u32 s{t}, s{sTab}, 0x80010
    s_call_b64 {sr(sLink2,2)}, L_setup
    s_mov_b32 s{sH+2}, {WS_SIZE}
    s_and_b32 s{t}, s{sTab}, 0xff
    s_cmp_lt_u32 s{t}, 72
    s_cbranch_scc1 L_special_ret
    s_mov_b32 s{sH+2}, 0
    s_cmp_eq_u32 s{t}, 77
    s_cbranch_scc1 L_special_kv
    s_lshl_b32 s{t+1}, s{sTb}, 1
    s_lshr_b32 s{t+2}, s{sWave}, 1
    s_add_u32 s{t+1}, s{t+1}, s{t+2}
    s_mul_i32 s{t+1}, s{t+1}, {2*36*1024}
    s_sub_u32 s{t+2}, s{t}, 72
    s_lshl_b32 s{t+2}, s{t+2}, 13
    s_add_u32 s{t+1}, s{t+1}, s{t+2}
    s_and_b32 s{t+2}, s{sWave}, 1
    s_lshl_b32 s{t+2}, s{t+2}, 11
    s_add_u32 s{t+1}, s{t+1}, s{t+2}
    s_add_u32 s{t+1}, s{t+1}, {WS_Q}
    s_add_u32 s{t+2}, s{t+1}, {36*1024}
    s_mov_b32 s{t+3}, {f2u(QSCALE):#x}
    s_cmp_eq_u32 s{sPar}, 0
    s_cbranch_scc1 L_special_q0
""")
    for i in range(64): A(f"v_mul_f32 v{i}, s{t+3}, v{64+i}")
    A("s_branch L_special_q1")
    A("L_special_q0:")
    for i in range(64): A(f"v_mul_f32 v{i}, s{t+3}, v{i}")
    A("L_special_q1:")
    for i in range(32): A(f"v_cvt_pk_bf16_f32 v{64+i}, v{2*i}, v{2*i+1}")
    A(f"v_bfe_u32 v{vT}, v{vLane}, 4, 1")
    A(f"v_lshlrev_b32 v{vT}, 10, v{vT}")
    A(f"v_sub_u32 v{vT}, v{vHs}, v{vT}")
    for i in range(8):
        A(f"v_permlane16_swap_b32 v{64+4*i}, v{64+4*i+2}"); A(f"v_permlane16_swap_b32 v{64+4*i+1}, v{64+4*i+3}")
    for half in range(2):
        if half == 1:
            A(f"s_add_u32 s{t+1}, s{t+1}, 4096")
            A(f"s_add_u32 s{t+2}, s{t+2}, 4096")
            A(f"s_cmp_eq_u32 s{t}, 76")
            A("s_cbranch_scc1 L_special_ret")
        for tb in range(4):
            A(f"buffer_store_dwordx4 {vr(64 + tb*8 + half*4, 4)}, v{vT}, {sr(sWS,4)}, s{t+1+tb//2} offen offset:{(tb%2)*256}{sc1}")
    LB = 9 * 16384
    A(f"""
    s_branch L_special_ret
L_special_kv:
    s_barrier
    v_and_b32 v{vT}, 15, v{vLane}
    v_lshrrev_b32 v{vT+1}, 4, v{vLane}
    s_lshr_b32 s{t+2}, s{sWave}, 1
    s_mul_i32 s{t+5}, s{t+2}, {2*KV_VT}
    s_add_u32 s{t+5}, s{t+5}, {LB + KV_V}
    s_and_b32 s{t+3}, s{sWave}, 1
    s_cmp_eq_u32 s{t+3}, 0
    s_cbranch_scc1 L_special_kv0
    v_and_b32 v{vT}, 3, v{vLane}
    v_mul_u32_u24 v{vT}, {KV_VF}, v{vT}
    v_and_b32 v{vT+1}, 4, v{vLane}
    v_lshl_add_u32 v{vT}, v{vT+1}, 2, v{vT}
    v_cmp_eq_u32 vcc, 0, v{vT+1}
    v_add_u32 v{vT}, s{t+5}, v{vT}
    v_mov_b32 v65, 0x3f803f80
    v_cndmask_b32 v64, 0, v65, vcc
    v_add_u32 v{vT}, 576, v{vT}
    v_mov_b32 v{vT+1}, {LB + KV_K2 + 512}
    v_cmp_eq_u32 vcc, 8, v{vLane}
    v_mov_b32 v65, v64
    v_mov_b32 v66, v64
    v_cndmask_b32 v{vT}, v{vT}, v{vT+1}, vcc
    v_mov_b32 v67, v64
    s_mov_b64 exec, 0x1ff
    ds_write_b128 v{vT}, v[64:67]
    s_mov_b64 exec, -1
    s_branch L_special_kv1
L_special_kv0:
""")
    for i in range(32): A(f"v_cvt_pk_bf16_f32 v{64+i}, v{2*i}, v{2*i+1}")
    A(f"""
    s_lshl_b32 s{t+3}, s{t+2}, 11
    s_add_u32 s{t+3}, s{t+3}, {LB}
    s_lshl_b32 s{t+4}, s{t+2}, 3
    s_add_u32 s{t+4}, s{t+4}, {LB + KV_K2}    ; K2 base
    v_bfe_u32 v{vT+2}, v{vT}, 2, 1
    v_mul_u32_u24 v{vT+2}, 288, v{vT+2}
    v_and_b32 v{vT+3}, 3, v{vT}
    v_lshl_add_u32 v{vT+2}, v{vT+3}, 1, v{vT+2}
    v_and_b32 v{vT+3}, 8, v{vT}
    v_add3_u32 v{vT+2}, v{vT+2}, v{vT+3}, s{t+5}
    v_lshl_add_u32 v{vT+3}, v{vT+1}, 6, v{vT+2}   ; d = 4qd + r
    v_lshlrev_b32 v{vT}, 4, v{vT}
    v_add_u32 v{vT+5}, s{t+4}, v{vT}              ; K2: key*16
    v_lshrrev_b32 v{vT+4}, 1, v{vT+1}
    v_lshl_add_u32 v{vT}, v{vT+4}, 9, v{vT}
    v_and_b32 v{vT+4}, 1, v{vT+1}
    v_lshlrev_b32 v{vT+4}, 3, v{vT+4}
    v_add3_u32 v{vT+4}, v{vT+4}, v{vT}, s{t+3}
""")
    for tb in range(4):
        b0 = 64 + tb * 8
        vo = (tb // 2) * KV_VT + (tb % 2) * KV_VF
        A(f"ds_write_b64 v{vT+4}, {vr(b0,2)} offset:{(tb//2)*1024 + (tb%2)*256}")
        for i in range(4):
            op = "ds_write_b16" if i % 2 == 0 else "ds_write_b16_d16_hi"
            A(f"{op} v{vT+3}, v{b0+4+i//2} offset:{vo + i*16}")
    A("s_mov_b64 exec, 0xffff")
    for tb in range(4):
        b0 = 64 + tb * 8
        vo = (tb // 2) * KV_VT + (tb % 2) * KV_VF
        A(f"ds_write_b32 v{vT+5}, v{b0+2} offset:{(tb//2)*4 + (tb%2)*256}")
        for i in range(2):
            op = "ds_write_b16" if i % 2 == 0 else "ds_write_b16_d16_hi"
            A(f"{op} v{vT+2}, v{b0+6} offset:{vo + (16+i)*16}")
    A(f"""
    s_mov_b64 exec, -1
L_special_kv1:
    s_lshl_b32 s{t+2}, s{sWave}, 10
    v_add_u32 v{vT}, s{t+2}, v{vLane16}
    v_add_u32 v{vT+1}, {LB}, v{vT}
    v_cmp_gt_u32 vcc, {KV_GS - 8192}, v{vT}
    v_mov_b32 v{vT+2}, 0x40000000
    s_mul_i32 s{t+1}, s{sTb}, {KV_GS}
    v_cndmask_b32 v{vT+2}, v{vT+2}, v{vT}, vcc
    s_add_u32 s{t+1}, s{t+1}, {WS_KV}
    s_add_u32 s{t+2}, s{t+1}, 4096
    s_add_u32 s{t+3}, s{t+1}, 8192
    s_waitcnt lgkmcnt(0)
    s_barrier
    ds_read_b128 v[64:67], v{vT+1}
    ds_read_b128 v[68:71], v{vT+1} offset:4096
    ds_read_b128 v[72:75], v{vT+1} offset:8192
    s_waitcnt lgkmcnt(0)
    buffer_store_dwordx4 v[64:67], v{vT}, {sr(sWS,4)}, s{t+1} offen{sc1}
    buffer_store_dwordx4 v[68:71], v{vT}, {sr(sWS,4)}, s{t+2} offen{sc1}
    buffer_store_dwordx4 v[72:75], v{vT+2}, {sr(sWS,4)}, s{t+3} offen{sc1}
L_special_ret:
    s_nop 1
    s_setpc_b64 {sr(sLink,2)}
""")

def spin(A, soff, name, back):
    A(f"""
L_{name}:
    s_mov_b32 s{sT+5}, 0x40000
L_{name}_l:
    {poll_ld(soff)}
    s_sub_u32 s{sT+5}, s{sT+5}, 1
    s_cbranch_scc1 {back}
    s_waitcnt vmcnt(0)
""")
    A.many(flag_min())
    A(f"""
    v_cmp_eq_u32 vcc, 0, v{vPoll}
    s_cbranch_vccz {back}
    s_sleep 8
    s_branch L_{name}_l
""")

def phase1(A):
    t = sT
    stamp(A, 0)
    pref = "" if not common.OPT.get("pref1") else f"""
    s_mov_b64 {sr(sH,2)}, {sr(sLink,2)}
    s_mov_b32 s{sH+2}, L_jobtab-L_pc1
    s_mov_b32 s{sH+3}, {SRD3}
    v_lshrrev_b32 v2, 4, v0
    v_and_b32 v3, 15, v0
    v_lshlrev_b32 v2, 7, v2
    v_lshl_add_u32 v2, v3, 28, v2
    s_lshr_b32 s{t+1}, s2, 3
    s_lshl_b32 s{t+1}, s{t+1}, 11
    buffer_load_dword v4, v2, {sr(sH,4)}, s{t+1} offen
"""
    A(f"""
    s_cmp_ge_u32 s2, 256
    s_cbranch_scc1 L_end
    s_load_dwordx16 s[4:19], s[0:1], 0
    s_load_dwordx8 s[20:27], s[0:1], 64
    s_load_dwordx2 s[28:29], s[0:1], 96
    s_getpc_b64 {sr(sLink,2)}
L_pc1:
    s_and_b32 s{sXq}, s2, 3
    s_lshr_b32 s{sQi}, s2, 6
    s_lshl_b32 s{t}, s{sXq}, 2
    s_add_u32 s{t}, s{t}, s{sQi}            ; jg
    s_lshl_b32 s{t+1}, s{t}, 3
    s_add_u32 s{t+1}, s{t+1}, L_jobtab-L_pc1
    s_load_dwordx2 {sr(sTab,2)}, {sr(sLink,2)}, s{t+1}
    {pref}
    v_lshrrev_b32 v1, 6, v0
    v_and_b32 v{vLane}, 63, v0
    v_readfirstlane_b32 s{sWave}, v1
    v_lshlrev_b32 v{vLane16}, 4, v{vLane}
    s_and_b32 s{t}, s{t}, 7
    s_cmp_eq_u32 s{t}, 7
    s_cselect_b32 s{sSpecial}, 1, 0
    s_and_b32 s{t}, s2, 4
    s_lshl_b32 s{t}, s{t}, 1
    s_bfe_u32 s{t+1}, s2, 0x30003
    s_add_u32 s{sTb}, s{t}, s{t+1}
    s_lshl1_add_u32 s{t}, s{sQi}, s{t+1}
    s_and_b32 s{sRot}, s{t}, 7
    v_lshrrev_b32 v{vR8}, 3, v{vLane}
    v_and_b32 v1, 7, v{vLane}
    s_lshl_b32 s{sM0}, s{sWave}, 12
    s_lshr_b32 s{t+2}, s{sWave}, 1
    s_and_b32 s{t+3}, s{sWave}, 1
    v_and_b32 v2, 2, v{vR8}
    v_xor_b32 v2, v1, v2
    s_lshl_b32 s{t+4}, s{t+3}, 2
    v_xor_b32 v2, s{t+4}, v2
    v_lshlrev_b32 v{vC16}, 4, v2
    v_lshrrev_b32 v2, 1, v{vR8}
    v_xor_b32 v2, v1, v2
    v_lshlrev_b32 v2, 4, v2
    v_mul_u32_u24 v3, 1152, v{vR8}
    v_add_u32 v{vXd}, v2, v3
    v_xor_b32 v2, 64, v{vXd}
    v_add_u32 v{vXd+1}, {8*1152-1024}, v2
    v_add_u32 v{vXd+2}, {2*(8*1152-1024)}, v{vXd}
    v_add_u32 v{vXd+3}, {3*(8*1152-1024)}, v2
    s_lshl_b32 s{t+4}, s{sTb}, 2
    s_add_u32 s{t+4}, s{t+4}, s{sWave}
    s_mul_i32 s{sXb}, s{t+4}, {32*1152}
    s_lshl_b32 s{t+5}, s{sRot}, 7
    s_add_u32 s{sXc}, s{sXb}, s{t+5}
    s_mov_b32 s{sX+2}, {2048*1152}
    s_mov_b32 s{sX+3}, {SRD3}
    s_mov_b32 s{sW+3}, s{sX+3}
    s_mov_b32 s{sW+2}, {WG_SIZE}
    s_movk_i32 s{t+4}, 9216
    v_mad_u32_u24 v{vDma}, v{vR8}, s{t+4}, v{vC16}
    s_mov_b32 s{nD}, {16*9216-1024}
    s_mov_b32 s{sStep}, {64*9216}
    v_add_u32 v{vDma+1}, s{nD}, v{vDma}
    s_mul_i32 s{sRowOff}, s{t+3}, {8*9216}
    v_add_u32 v{vDma+2}, s{nD}, v{vDma+1}
    s_mul_i32 s{nStart}, s{sRot}, s{sStep}
    v_add_u32 v{vDma+3}, s{nD}, v{vDma+2}
    s_add_u32 s{sXend}, s{sXb}, 1024
    s_waitcnt lgkmcnt(0)
    s_mov_b64 {sr(sX,2)}, {sr(S_X,2)}
""")
    vm = Counter(63)
    if common.OPT.get("fine"): stamp(A, 27)
    put_elems(A, vm, range(0, 4))
    A(f"""
    s_cmp_lt_u32 s{sWave}, 2
    s_cselect_b64 {sr(sFb,2)}, {sr(S_WG,2)}, {sr(S_WU,2)}
    s_cselect_b64 {sr(sW,2)}, {sr(S_WG,2)}, {sr(S_WU,2)}
    s_bfe_u32 s{t}, s{sTab}, 0x80008
    s_lshl_b32 s{t+1}, s{t}, 7
    s_add_u32 s{sBase}, s{t+1}, s{sRowOff}
    s_add_u32 s{t+5}, s{sBase}, s{nStart}
    s_lshl3_add_u32 s{sEnd}, s{sStep}, s{sBase}
    v_mov_b32 v{vF}, v{vDma}
    s_cmp_eq_u32 s{sSpecial}, 0
    s_cbranch_scc0 L_sp_first
L_sp_first_ret:
""")
    put_elems(A, vm, range(4, 12))
    if common.OPT.get("fine"): stamp(A, 28)
    A(f"""
    s_mov_b32 s{sOff}, s{t+5}
    s_cmp_eq_u32 s{sSpecial}, 0
    s_cbranch_scc0 L_sp_skip
    s_bfe_u32 s{t}, s{sTab}, 0x80010
    s_lshl_b32 s{t+1}, s{t}, 7
    s_add_u32 s{nOff}, s{t+1}, s{sRowOff}
    s_add_u32 s{nStart}, s{nStart}, s{nOff}
    s_mov_b32 s{nStep}, s{sStep}
    s_mov_b64 {sr(sWn,2)}, {sr(sFb,2)}
    s_mov_b32 s{sWn+2}, s{sW+2}
    v_mov_b32 v{vNext}, v{vF}
L_sp_skip:
""")
    W = sPar
    A(f"""
    s_mov_b64 {sr(sWS,2)}, {sr(S_WS,2)}
    s_mov_b32 s{sWS+2}, {WS_SIZE}
    s_mov_b32 s{sWS+3}, {SRD3}
    s_mov_b64 {sr(sDB,2)}, {sr(S_DBG,2)}
    s_movk_i32 s{sDB+2}, 256
    s_mov_b32 s{sDB+3}, {SRD3}
    s_mov_b32 s{sOUT+2}, {2048*1152}
    s_mov_b32 s{sOUT+3}, {SRD3}
    s_mov_b64 {sr(sH,2)}, {sr(S_WS,2)}
    s_mov_b32 s{sH+2}, {WS_SIZE}
    s_mov_b32 s{sH+3}, {SRD3}
    s_mov_b64 {sr(sPD,2)}, {sr(S_WS,2)}
    s_mov_b32 s{sPD+3}, {SRD3}
    s_mov_b32 s{sP+3}, {SRD3}
    s_mov_b32 s{sC2}, {f2u(GC2):#x}
    v_mov_b32 v{vC1}, {f2u(GC1):#x}
    s_mov_b32 s{sWn+3}, {SRD3}
    s_lshl_b32 s{W}, s2, 2
    s_add_u32 s{W}, s{W}, s{sWave}
    s_lshr_b32 s{t+2}, s{sWave}, 1
    s_and_b32 s{t+3}, s{sWave}, 1
    s_lshl_b32 s{t}, s{sTb}, 1
    s_add_u32 s{t}, s{t}, s{t+2}
    s_mul_i32 s{sHbase}, s{t}, {HO_G}
    s_lshl_b32 s{t}, s{t+3}, 12
    s_add_u32 s{sHbase}, s{sHbase}, s{t}
    v_and_b32 v32, 3, v{vLane}              ; c
    v_lshrrev_b32 v33, 1, v32
    v_and_b32 v32, 1, v32
    v_lshl_add_u32 v32, v32, 1, v33         ; perm(c)
    v_lshlrev_b32 v32, 3, v32
    v_bfe_u32 v33, v{vLane}, 2, 2           ; r4
    v_lshl_add_u32 v32, v33, 7, v32
    v_bfe_u32 v34, v{vLane}, 4, 1
    v_lshrrev_b32 v35, 5, v{vLane}          ; hh
    v_lshl_add_u32 v36, v34, 5, v32
    v_lshl_add_u32 v36, v35, 10, v36
    s_add_u32 s{t}, s{sM0}, {9*16384}
    v_add_u32 v{vPtr}, s{t}, v36
    v_and_b32 v32, 3, v{vLane}
    v_lshlrev_b32 v32, 3, v32
    v_lshl_add_u32 v32, v33, 7, v32         ; r4*128 + c*8
    v_lshrrev_b32 v33, 1, v33
    v_lshl_add_u32 v33, v34, 1, v33
    s_lshl_b32 s{t}, s{t+3}, 1
    v_xor_b32 v33, s{t}, v33
    v_lshl_add_u32 v32, v33, 5, v32
    v_lshl_add_u32 v32, v34, 12, v32
    v_lshl_add_u32 v{vTR}, v35, 10, v32
    v_xor_b32 v{vTR+1}, 32, v{vTR}
    v_add_u32 v{vTR+2}, {12*4096}, v{vTR}
    v_add_u32 v{vTR+3}, {12*4096}, v{vTR+1}
    v_add_u32 v{vTR+4}, {24*4096}, v{vTR}
    v_add_u32 v{vTR+5}, {24*4096}, v{vTR+1}
    v_and_b32 v37, 31, v{vLane}             ; n32
    v_and_b32 v38, 15, v{vLane}             ; n16
    v_bfe_u32 v33, v{vLane}, 1, 3
    v_lshrrev_b32 v39, 4, v{vLane}
    v_xor_b32 v33, v33, v39
    v_lshlrev_b32 v33, 4, v33
    v_lshl_add_u32 v32, v38, 7, v33
    s_lshl_b32 s{t}, s{t+2}, 13
    v_add_u32 v{XR}, s{t}, v32
    v_xor_b32 v{XR+1}, 64, v{XR}
    v_lshlrev_b32 v32, 4, v38
    v_lshl_add_u32 v32, v35, 9, v32
    v_lshl_add_u32 v{vHs}, v34, 11, v32
""")
    for seg in (1, 2):
        for h in range(2): A(f"v_add_u32 v{XR+seg*2+h}, {seg*57344}, v{XR+h}")
    A(f"""
    v_mul_u32_u24 v{vQa}, 1152, v37
    v_lshl_add_u32 v{vQa}, v35, 4, v{vQa}
    v_lshlrev_b32 v{vLane4}, 2, v{vLane}
    v_bfe_u32 v32, v{vLane}, 2, 1
    v_bfe_u32 v33, v{vLane}, 3, 1
    v_lshlrev_b32 v32, 3, v32
    v_lshl_add_u32 v32, v33, 2, v32
    v_and_b32 v33, 0x13, v{vLane}
    v_or_b32 v32, v32, v33
    v_mul_u32_u24 v33, 18, v35
    v_cmp_gt_u32 vcc, 18, v37
    v_add_u32 v32, v32, v33
    v_and_b32 v33, 27, v37
    v_cndmask_b32 v32, 37, v32, vcc
    v_cmp_ne_u32 vcc, 18, v33
    v_mul_u32_u24 v{GX+35}, 12, v37
    s_lshl_b32 s{t+5}, s{sTb}, 2
    s_add_u32 s{t+5}, s{t+5}, s{sXq}
    s_lshl_b32 s{t+5}, s{t+5}, 2
    s_add_u32 s{t+5}, s{t+5}, s{sQi}
    s_lshl_b32 s{t+5}, s{t+5}, 2
    s_add_u32 s{t+5}, s{t+5}, s{sWave}
    s_lshl_b32 s{t+5}, s{t+5}, 1
    v_cndmask_b32 v32, 36, v32, vcc
    v_lshlrev_b32 v{vAV}, 4, v32
    v_add_u32 v5, s{t+5}, v35               ; token
    v_mul_u32_u24 v6, 1152, v5
    v_add_u32 v{GX+36}, v6, v{GX+35}
    v_cmp_eq_u32 vcc, 0, v37
    v_lshlrev_b32 v5, 2, v5
    v_add_u32 v5, {WS_G}, v5
    v_mov_b32 v33, 0x40000000
    v_cndmask_b32 v{GX+26}, v33, v5, vcc
    v_cmp_eq_u32 vcc, 0, v0
    v_mov_b32 v{vOne}, 1
    s_mov_b32 s{sSkip}, 1
    v_cndmask_b32 v{vFlagOff}, v33, 0, vcc
    s_lshl_b32 s{t}, s{sTb}, 2
    s_add_u32 s{t}, s{t}, {F0}
    s_bfe_u32 s{t+1}, s{sTab}, 0x80008
    s_cmp_eq_u32 s{t+1}, 77
    s_cselect_b32 s{sPub}, s{t}, {FOOB}
    ; pack params: ks = W/3, a = W%3
    s_mul_i32 s{t}, s{W}, 21846
    s_lshr_b32 s{t}, s{t}, 16
    s_mul_i32 s{t+1}, s{t}, 3
    s_sub_u32 s{t+1}, s{W}, s{t+1}
    s_mul_i32 s{sPd0}, s{t+1}, {2*WP_T}
    s_mul_i32 s{t+2}, s{t}, 3072
    s_add_u32 s{sPd0}, s{sPd0}, s{t+2}
    s_add_u32 s{sPd0}, s{sPd0}, {WS_WP}
    s_add_u32 s{sPd1}, s{sPd0}, {WP_T}
    s_mov_b32 s{sPD+2}, 0
    s_mul_i32 s{t+1}, s{t+1}, 384
    v_and_b32 v32, 7, v{vLane}
    v_lshlrev_b32 v32, 4, v32
    s_movk_i32 s{t+4}, 1152
    v_mad_u32_u24 v{vPsrc}, v{vR8}, s{t+4}, v32
    s_mov_b64 {sr(sP,2)}, {sr(S_WD,2)}
    s_mov_b32 s{sP+2}, {4608*1152}
    s_mul_i32 s{sPs0}, s{t}, {16*1152}
    s_movk_i32 s{t+3}, {8*1152}
    s_cmp_lt_u32 s{t}, 288
    s_cbranch_scc1 L_pk_done
    s_mov_b64 {sr(sP,2)}, {sr(S_WO,2)}
    s_mov_b32 s{sP+2}, {576*1152}
    s_cmp_lt_u32 s{t}, 324
    s_cselect_b32 s{sP+2}, s{sP+2}, 0
    s_sub_u32 s{t+2}, s{t}, 288
    s_mul_i32 s{t+5}, s{t+2}, 57
    s_lshr_b32 s{t+5}, s{t+5}, 9            ; x = ks'/9
    s_sub_u32 s{t+2}, s{t+2}, s{t+5}        ; 8x + st
    s_mul_i32 s{sPs0}, s{t+2}, {18*1152}
    s_lshr_b32 s{t+2}, s{t+2}, 3
    s_cmp_eq_u32 s{t+2}, s{t+5}
    s_cbranch_scc1 L_pk_done
    s_mul_i32 s{sPs0}, s{t+5}, {144*1152}
    s_add_u32 s{sPs0}, s{sPs0}, {16*1152}
    s_mov_b32 s{t+3}, {72*1152}
    v_lshrrev_b32 v34, 1, v{vR8}
    v_mul_u32_u24 v34, 18, v34
    v_and_b32 v36, 1, v{vR8}
    v_add_u32 v34, v34, v36
    v_mad_u32_u24 v{vPsrc}, v34, s{t+4}, v32
L_pk_done:
    s_add_u32 s{sPs0}, s{sPs0}, s{t+1}
    s_add_u32 s{sPs1}, s{sPs0}, s{t+3}
    s_sub_u32 s{sPs1}, s{sPs1}, 1024
    s_mov_b64 {sr(sLink,2)}, {sr(S_GW,2)}
""")
    g64, head, nt = t, t + 1, t + 2
    D = Asm()
    D(f"""
    s_lshr_b32 s{t+3}, s{sXq}, 1
    s_lshl1_add_u32 s{g64}, s{sTb}, s{t+3}
    s_and_b32 s{t+3}, s{sXq}, 1
    s_lshl2_add_u32 s{nt}, s{t+3}, s{sQi}
    s_lshl2_add_u32 s{head}, s{nt}, s{sWave}
    s_mul_i32 s{t+3}, s{nt}, 3
    s_add_u32 s{t+3}, s{t+3}, s{sWave}
    s_sub_u32 s{t+3}, s{t+3}, 18
    s_mul_i32 s{t+4}, s{sWave}, {KM}
    s_add_u32 s{t+4}, s{t+4}, {KH}
    s_cmp_ge_u32 s{nt}, 6
    s_cselect_b32 s{nt}, s{t+3}, s{nt}
    s_cselect_b32 s{t+4}, 0, s{t+4}
    s_cselect_b32 s{sQi}, 3, 0
    ; W side
    s_mul_i32 s{t+3}, s{nt}, {WP_T}
    s_add_u32 s{t+3}, s{t+3}, {WS_WP}
    s_mul_i32 s{t+5}, s{t+4}, 3072
    s_add_u32 s{t+5}, s{t+5}, s{t+3}
    s_add_u32 s{sWp}, s{S_WS}, s{t+5}
    s_addc_u32 s{sWp+1}, s{S_WS+1}, 0
    s_mul_i32 s{t+5}, s{sWave}, {9*3072}
    s_add_u32 s{t+5}, s{t+5}, s{t+3}
    s_add_u32 s{t+5}, s{t+5}, {288*3072}
    s_add_u32 s{sWo}, s{S_WS}, s{t+5}
    s_addc_u32 s{sWo+1}, s{S_WS+1}, 0
    ; h side
    s_mul_i32 s{t+3}, s{g64}, {HO_G}
    s_lshl_b32 s{t+5}, s{t+4}, 11
    s_add_u32 s{t+5}, s{t+5}, s{t+3}
    s_add_u32 s{sHp}, s{S_WS}, s{t+5}
    s_addc_u32 s{sHp+1}, s{S_WS+1}, 0
    s_mul_i32 s{t+5}, s{sWave}, {9*2048}
    s_add_u32 s{t+5}, s{t+5}, s{t+3}
    s_add_u32 s{t+5}, s{t+5}, {288*2048}
    s_add_u32 s{sHo}, s{S_WS}, s{t+5}
    s_addc_u32 s{sHo+1}, s{S_WS+1}, 0
    s_lshr_b32 s{t+5}, s{head}, 3
    s_mul_i32 s{t+5}, s{t+5}, {9*2048}
    s_add_u32 s{t+3}, s{t+3}, s{t+5}
    s_add_u32 s{t+3}, s{t+3}, {288*2048}
    s_and_b32 s{t+5}, s{head}, 7
    s_lshl_b32 s{sO1}, s{t+5}, 11
    s_add_u32 s{sO1}, s{sO1}, s{t+3}
    s_lshl_b32 s{sO2}, s{t+5}, 8
    s_add_u32 s{sO2}, s{sO2}, s{t+3}
    s_add_u32 s{sO2}, s{sO2}, {8*2048}
    ; q / g offsets
    s_mul_i32 s{sQoff}, s{g64}, {2*36*1024}
    s_mul_i32 s{t+5}, s{head}, 18
    s_lshr_b32 s{t+5}, s{t+5}, 3
    s_lshl_b32 s{t+5}, s{t+5}, 9
    s_add_u32 s{sQoff}, s{sQoff}, s{t+5}
    s_add_u32 s{sQoff}, s{sQoff}, {WS_Q}
    s_lshl_b32 s{sGoff}, s{g64}, 8
    s_add_u32 s{sGoff}, s{sGoff}, {WS_G}
    s_mul_i32 s{sPart}, s{g64}, 6
    s_add_u32 s{sPart}, s{sPart}, s{nt}
    s_mul_i32 s{sPart}, s{sPart}, {PART_T}
    s_add_u32 s{sPart}, s{sPart}, {WS_PART}
    s_mul_i32 s{sOutOff}, s{g64}, {64*1152}
    s_mul_i32 s{t+5}, s{nt}, 192
    s_add_u32 s{sOutOff}, s{sOutOff}, s{t+5}
    s_lshl_b32 s{t+5}, s{sWave}, 5
    s_add_u32 s{sOutOff}, s{sOutOff}, s{t+5}
    s_bfe_u32 s{t}, s2, 0x30003             ; a
    s_and_b32 s{t+1}, s{sWave}, 1
    s_mul_i32 s{t+2}, s{t}, 72
    s_mul_i32 s{t+3}, s{t+1}, 28
    s_add_u32 s{t+2}, s{t+2}, s{t+3}
    s_mul_i32 s{sTch}, s{t+2}, 9216
""")
    deferred = [l.strip() for l in D.lines if not l.strip().startswith(";")]
    if common.OPT.get("nodefer"): A.many(deferred); deferred = []
    A(f"""
    v_mul_u32_u24 v32, 9216, v{vLane}
    v_cmp_gt_u32 vcc, 36, v{vLane}
    s_nop 1
    v_cndmask_b32 v{vTW}, v33, v32, vcc
    v_lshrrev_b32 v32, 4, v0
    v_and_b32 v34, 15, v0
    v_lshlrev_b32 v32, 7, v32
    v_lshl_add_u32 v32, v34, 28, v32
    s_lshr_b32 s{t+1}, s2, 3
    s_lshl_b32 s{t+1}, s{t+1}, 11
    v_add_u32 v{GX+39}, s{t+1}, v32
    s_cmp_eq_u32 s{W}, 775
    s_cbranch_scc1 L_flaginit
L_flaginit_ret:
""")
    if common.OPT.get("fine"): stamp(A, 29)
    body0(A, vm, deferred)
    A(f"""
L_loop:
    s_cmp_eq_u32 s{sSpecial}, 0
    s_cbranch_scc0 L_sp_odd
L_odd:
""")
    body(A, "o")
    A(f"""
    s_cmp_eq_u32 s{sP+2}, 1
    s_cbranch_scc0 L_first_odd
L_last:
""")
    return body(A, "l")

def phase1_tail(A):
    A(f"""
L_first_odd:
    s_cmp_eq_u32 s{sSpecial}, 0
    s_cbranch_scc0 L_sp_even
L_even:
""")
    body(A, "e")
    A(f"""
    s_cmp_eq_u32 s{sSpecial}, 0
    s_cbranch_scc1 L_odd
    s_mov_b32 s{sPar}, 0
    s_call_b64 {sr(sLink,2)}, L_special
    s_branch L_last
L_sp_odd:
    s_mov_b32 s{sPar}, 0
    s_call_b64 {sr(sLink,2)}, L_special
    s_branch L_odd
L_sp_even:
    s_mov_b32 s{sPar}, 1
    s_call_b64 {sr(sLink,2)}, L_special
    s_branch L_even
""")
    A(f"""
L_sp_first:
    s_call_b64 {sr(sLink2,2)}, L_setup
""")
    for g in switch_ops(): A.many(g)
    A(f"""
    s_mov_b32 s{sT+5}, s{nStart}
    s_bfe_u32 s{sT}, s{sTab}, 0x80010
    s_call_b64 {sr(sLink2,2)}, L_setup
    s_add_u32 s{sXend}, s{sXb}, 1024
    s_branch L_sp_first_ret
""")
    setup_sub(A)
    special_sub(A)
    spin(A, f"s{sPollOff}", "kvspin", "L_kvok")
    A(f"""
L_flaginit:
    v_cmp_lt_u32 vcc, 3, v{vLane}
    v_mov_b32 v12, 0
    v_mov_b32 v13, 0
    v_cndmask_b32 v8, 0, 1, vcc
    v_mov_b32 v14, 0
    v_mov_b32 v15, 0
    v_mov_b32 v9, v8
    v_mov_b32 v10, v8
    v_mov_b32 v11, v8
    s_mov_b32 s{sT}, {WS_FL}
    buffer_store_dwordx4 v[8:11], v{vLane16}, {sr(sWS,4)}, s{sT} offen sc1
    buffer_store_dwordx4 v[12:15], v{vLane16}, {sr(sWS,4)}, s{sT} offen offset:1024 sc1
    buffer_store_dwordx4 v[12:15], v{vLane16}, {sr(sWS,4)}, s{sT} offen offset:2048 sc1
    v_mul_u32_u24 v16, {PART_T}, v{vLane}
    s_mov_b32 s{sT}, {WS_PART + 24576}
    buffer_store_dword v12, v16, {sr(sWS,4)}, s{sT} offen sc1
    s_add_u32 s{sT}, s{sT}, {64*PART_T}
    buffer_store_dword v12, v16, {sr(sWS,4)}, s{sT} offen sc1
    s_add_u32 s{sT}, s{sT}, {64*PART_T}
    buffer_store_dword v12, v16, {sr(sWS,4)}, s{sT} offen sc1
    s_waitcnt vmcnt(0)
    buffer_store_dword v{vOne}, off, {sr(sDB,4)}, 0 sc1
    s_branch L_flaginit_ret
L_inispin:
    s_mov_b32 s{sT+5}, 0x40000
L_inispin_l:
    buffer_load_dword v{GX+34}, off, {sr(sDB,4)}, 0 sc1
    s_sub_u32 s{sT+5}, s{sT+5}, 1
    s_cbranch_scc1 L_iniok
    s_waitcnt vmcnt(0)
    v_cmp_eq_u32 vcc, 0, v{GX+34}
    s_cbranch_vccz L_iniok
    s_sleep 8
    s_branch L_inispin_l
""")

def jobtab(A):
    tab, _, _ = job_table()
    A(".p2align 3")
    A(".type L_jobtab,@object")
    A("L_jobtab:")
    for b in tab:
        A(".byte " + ", ".join(str(x) for x in b))
```
